```python
import torch

def _softmax(x, axis=-1):
    return torch.softmax(x, dim=axis)
def _gelu(x):
    return torch.nn.functional.gelu(x, approximate="tanh")
def _silu(x):
    return torch.nn.functional.silu(x)
def _sigmoid(x):
    return torch.sigmoid(x)
def _layernorm(x, axis=-1, eps=1e-5):
    m = x.mean(dim=axis, keepdim=True)
    v = x.var(dim=axis, keepdim=True, unbiased=False)
    return (x - m) / torch.sqrt(v + eps)
def _scatter_add(tgt, idx, src, axis=0):
    return tgt.clone().index_add_(axis, idx, src)
def _segment_sum(src, seg, n):
    out = torch.zeros((n,) + src.shape[1:], dtype=src.dtype)
    return out.index_add_(0, seg, src)
def _pad(x, pw):
    flat = tuple(v for pair in reversed(pw) for v in pair)
    return torch.nn.functional.pad(x, flat)

kernel_name = 'interleave_layers__sliding_block__moe_arch_mod__prompt'

def setup_inputs():

    _w = (lambda a: (lambda t: t.to(torch.bfloat16) if t.is_floating_point() else t)(torch.as_tensor(a)))
    def _A_setup():
        B, S, D = 1, 2048, 1024
        return {
            "x": _w((lambda *s: torch.randn(*s, dtype=torch.bfloat16) * 0.05)(B, S, D)),
            "wqkv": _w((lambda *s: torch.randn(*s, dtype=torch.bfloat16) * 0.05)(D, 3 * D)),
            "wo": _w((lambda *s: torch.randn(*s, dtype=torch.bfloat16) * 0.05)(D, D)),
        }
    _A_in = _A_setup()

    def _B_setup():
        B, S, D, F, C = 1, 2048, 1024, 3584, 1
        return {
            "x": _w((lambda *s: torch.randn(*s, dtype=torch.bfloat16) * 0.05)(B, S, D)),
            "w_r": _w((lambda *s: torch.randn(*s, dtype=torch.bfloat16) * 1.6)(D)),
            "w_gate": _w((lambda *s: torch.randn(*s, dtype=torch.bfloat16) * 0.1)(D, F)),
            "w_up": _w((lambda *s: torch.randn(*s, dtype=torch.bfloat16) * 0.1)(D, F)),
            "w_down": _w((lambda *s: torch.randn(*s, dtype=torch.bfloat16) * 0.1)(F, D)),
        }
    _B_in = _B_setup()

    return {
        "A_x": _A_in["x"],
        "A_wqkv": _A_in["wqkv"],
        "A_wo": _A_in["wo"],
        "B_x": _B_in["x"],
        "B_w_r": _B_in["w_r"],
        "B_w_gate": _B_in["w_gate"],
        "B_w_up": _B_in["w_up"],
        "B_w_down": _B_in["w_down"],
    }

def reference(A_x, A_wqkv, A_wo, B_x, B_w_r, B_w_gate, B_w_up, B_w_down):
    def _A_ref(x, wqkv, wo):
        B, S, D = x.shape
        H = 32; Dh = D // H; W = 256
        qkv = (lambda x, *d: x.permute(*d))((x @ wqkv).reshape(B, S, 3, H, Dh), 2, 0, 3, 1, 4)
        q, k, v = qkv[0], qkv[1], qkv[2]
        scores = torch.einsum("bhqd,bhkd->bhqk", q, k) * (Dh ** -0.5)
        idx = torch.arange(S)
        mask = (idx[:, None] - idx[None, :] >= 0) & (idx[:, None] - idx[None, :] < W)
        scores = torch.where(mask[None, None], scores, -1e9)
        p = _softmax(scores, axis=-1)
        o = torch.einsum("bhqk,bhkd->bhqd", p, v)
        return (lambda x, *d: x.permute(*d))(o, 0, 2, 1, 3).reshape(B, S, D) @ wo

    def _B_ref(x, w_r, w_gate, w_up, w_down):
        B, S, D = x.shape
        C = 1
        r = x @ w_r
        idx = torch.argsort(-r, axis=-1)[:, :C]
        idx_e = (lambda x, n, axis: torch.repeat_interleave(x, n, dim=axis))(idx.reshape(B, C, 1), D, axis=2)
        x_sel = (lambda x, i, axis: torch.take_along_dim(x, i, dim=axis))(x, idx_e, axis=1)
        g = _silu(x_sel @ w_gate)
        u = x_sel @ w_up
        y = (g * u) @ w_down
        r_sel = _sigmoid((lambda x, i, axis: torch.take_along_dim(x, i, dim=axis))(r, idx, axis=1))
        y = y * r_sel.reshape(B, C, 1)
        b_off = (torch.arange(B) * S).reshape(B, 1)
        flat_idx = (idx + b_off).reshape(B * C)
        zero = (x * 0.0).reshape(B * S, D)
        upd = _scatter_add(zero, flat_idx, y.reshape(B * C, D), axis=0)
        return x + upd.reshape(B, S, D)

    x = A_x
    x = x + _A_ref(_layernorm(x, axis=-1), A_wqkv, A_wo)
    x = x + _B_ref(_layernorm(x, axis=-1), B_w_r, B_w_gate, B_w_up, B_w_down)
    x = x + _A_ref(_layernorm(x, axis=-1), A_wqkv, A_wo)
    x = x + _B_ref(_layernorm(x, axis=-1), B_w_r, B_w_gate, B_w_up, B_w_down)
    return x
```

```python
import re

TRANS = ("v_exp_f32", "v_log_f32", "v_rcp_f32", "v_rsq_f32", "v_sqrt_f32", "v_sin_f32", "v_cos_f32",
         "v_rcp_iflag_f32")


def v(i, n=1):
    return f"v{i}" if n == 1 else f"v[{i}:{i+n-1}]"


def s(i, n=1):
    return f"s{i}" if n == 1 else f"s[{i}:{i+n-1}]"


def a(i, n=1):
    return f"a{i}" if n == 1 else f"a[{i}:{i+n-1}]"


_REG = re.compile(r"^-?\|?([vsa])(\d+)\|?$")
_RNG = re.compile(r"^-?\|?([vsa])\[(\d+):(\d+)\]\|?$")


def regs_of(tok):
    tok = tok.strip()
    m = _REG.match(tok)
    if m:
        return {(m.group(1), int(m.group(2)))}
    m = _RNG.match(tok)
    if m:
        return {(m.group(1), i) for i in range(int(m.group(2)), int(m.group(3)) + 1)}
    if tok in ("vcc", "vcc_lo", "vcc_hi"):
        return {("s", "vcc")}
    if tok in ("exec", "exec_lo", "exec_hi"):
        return {("s", "exec")}
    if tok == "m0":
        return {("s", "m0")}
    return set()


class Ins:
    def __init__(self, text):
        self.text = text
        t = text.split(";")[0].strip()
        self.label = t.endswith(":")
        self.dirv = t.startswith(".")
        self.op = ""
        self.w = set()
        self.r = set()
        self.ops = []
        if self.label or self.dirv or not t:
            return
        p = t.split(None, 1)
        self.op = op = p[0]
        rest = p[1] if len(p) > 1 else ""
        toks = [x.strip() for x in rest.split(",")] if rest else []
        mods = ""
        if toks:
            q = toks[-1].split(None, 1)
            toks[-1] = q[0]
            mods = q[1] if len(q) > 1 else ""
        cut = len(toks)
        for i, x in enumerate(toks):
            if "[" in x and "]" not in x and not re.match(r"^-?\|?[vsa]\[", x):
                cut = i + 1
                q = x.split(None, 1)
                toks[i] = q[0]
                break
        toks = [x.split()[0] if x else x for x in toks[:cut]]
        self.ops = toks
        self.mods = rest
        R = [regs_of(x) for x in toks]
        self.mfma = op.startswith("v_mfma")
        self.valu = op.startswith("v_") and not self.mfma
        self.salu = op.startswith("s_")
        self.vmem = op.startswith(("buffer_", "global_"))
        self.ds = op.startswith("ds_")
        self.trans = op.replace("_e32", "").replace("_e64", "") in TRANS
        self.dpp = ("row_" in rest or "quad_perm" in rest or "wave_" in rest) and self.valu
        self.perm = op.startswith("v_permlane")
        self.lds_dma = self.vmem and re.search(r"\blds\b", rest) is not None
        allr = set().union(*R) if R else set()
        if self.mfma:
            self.w = R[0]
            self.A, self.B, self.C = R[1], R[2], R[3]
            self.r = R[1] | R[2] | R[3]
            self.passes = 8 if "32x32" in op else 4
        elif self.valu:
            if self.perm and "swap" in op:
                self.w = R[0] | R[1]
                self.r = R[0] | R[1]
            elif op.startswith("v_cmpx"):
                self.w = {("s", "exec")} | R[0]
                self.r = set().union(*R[1:])
            elif op.startswith(("v_add_co", "v_sub_co", "v_addc_co", "v_subb_co", "v_div_scale")):
                self.w = R[0] | R[1]
                self.r = set().union(*R[2:])
            elif op == "v_nop":
                pass
            else:
                self.w = R[0]
                self.r = set().union(*R[1:]) if len(R) > 1 else set()
                if op.startswith(("v_fmac", "v_mac", "v_dot2c", "v_writelane")) or self.dpp or "sdwa" in op or "dst_sel" in rest:
                    self.r = self.r | R[0]
                if op.startswith("v_cndmask") and len(toks) == 3:
                    self.r = self.r | {("s", "vcc")}
        elif self.vmem:
            if "_load" in op and not self.lds_dma:
                self.w = R[0]
                self.r = set().union(*R[1:])
            elif "atomic" in op and re.search(r"\bsc0\b", rest):
                self.w = R[0]
                self.r = allr
            else:
                self.r = allr
            if self.lds_dma:
                self.r = self.r | {("s", "m0")}
            self.wide = ("store" in op and ("x3" in op or "x4" in op)) or "cmpswap_x2" in op
            self.data = R[0] if op.startswith("buffer_") else (R[1] if len(R) > 1 else set())
        elif self.ds:
            if op.startswith(("ds_read", "ds_bpermute", "ds_permute", "ds_swizzle")) or "_rtn" in op:
                self.w = R[0]
                self.r = set().union(*R[1:]) if len(R) > 1 else set()
            else:
                self.r = allr
        elif self.salu:
            if op.startswith(("s_cmp", "s_cbranch", "s_branch", "s_waitcnt", "s_barrier", "s_nop", "s_endpgm",
                              "s_setprio", "s_sleep", "s_bitcmp", "s_setreg")):
                self.r = allr
            else:
                self.w = R[0] if R else set()
                self.r = set().union(*R[1:]) if len(R) > 1 else set()
                if "saveexec" in op:
                    self.w = self.w | {("s", "exec")}

    def states(self):
        if self.op == "s_nop":
            return int(self.ops[0]) + 1
        return 1


def need(p, c):
    n = 0
    vw = {x for x in p.w if x[0] in "va"}
    sw = {x for x in p.w if x[0] == "s"}
    if p.valu:
        if c.mfma and vw & c.r:
            n = max(n, 2)
        if c.valu:
            if p.trans and not c.trans and vw & c.r:
                n = max(n, 1)
            if (c.dpp or c.perm) and vw & c.r:
                n = max(n, 2)
            if c.op.startswith(("v_readfirstlane", "v_readlane")) and vw & c.r:
                n = max(n, 1)
            if sw & c.r:
                n = max(n, 4 if c.op.startswith(("v_readlane", "v_writelane", "v_div_fmas")) else 2)
            if ("s", "exec") in sw:
                n = max(n, 5 if c.dpp else 4)
            if ("op_sel" in p.mods and not p.op.startswith("v_pk_")) or "dst_sel" in p.mods:
                if vw & (c.r | c.w):
                    n = max(n, 1)
        if c.vmem and sw & c.r:
            n = max(n, 5)
        if c.mfma and ("s", "exec") in sw:
            n = max(n, 4)
    if p.mfma:
        big = p.passes == 8
        if c.mfma:
            if p.w & (c.A | c.B):
                n = max(n, 12 if big else 8)
            if p.w & c.C and not (p.w == c.C and p.passes == c.passes):
                n = max(n, 10 if big else 6)
            if p.w & c.w and not (p.w == c.C):
                n = max(n, 0)
        elif c.valu or c.vmem or c.ds:
            if p.w & (c.r | c.w):
                n = max(n, 12 if big else 8)
            if (c.valu) and p.C & c.w:
                n = max(n, 7 if big else 3)
    if p.vmem and getattr(p, "wide", False):
        if p.data & c.w:
            n = max(n, 2 if c.valu else 1)
    if p.salu and ("s", "m0") in sw and c.vmem and c.lds_dma:
        n = max(n, 1)
    return n


class Asm:
    def __init__(self):
        self.lines = []

    def __call__(self, text):
        for ln in text.split("\n"):
            ln = ln.strip()
            if ln:
                self.lines.append(ln)

    def label(self, name):
        self.lines.append(name + ":")

    def hazard_pass(self, verbose=False):
        ins = [Ins(x) for x in self.lines]
        changed = True
        inserted = 0
        while changed:
            changed = False
            lab = {x.text[:-1]: i for i, x in enumerate(ins) if x.label}
            preds_branch = {}
            for i, x in enumerate(ins):
                if x.op.startswith(("s_cbranch", "s_branch")):
                    preds_branch.setdefault(lab[x.ops[0]], []).append(i)
            for i, c in enumerate(ins):
                if not c.op or c.op == "s_nop":
                    continue
                worst = 0
                stack = [(i - 1, 0)]
                seen = set()
                while stack:
                    j, d = stack.pop()
                    while j >= 0 and d < 13:
                        if (j, d) in seen:
                            break
                        seen.add((j, d))
                        p = ins[j]
                        if p.label:
                            for b in preds_branch.get(j, []):
                                stack.append((b, d))
                            k = j - 1
                            while k >= 0 and not ins[k].op:
                                if ins[k].label:
                                    break
                                k -= 1
                            if k >= 0 and ins[k].op in ("s_branch", "s_endpgm"):
                                break
                            j -= 1
                            continue
                        if not p.op:
                            j -= 1
                            continue
                        n = need(p, c)
                        if n - d > worst:
                            worst = n - d
                            why = p.text
                        d += p.states()
                        j -= 1
                if worst > 0:
                    if verbose:
                        print(f"hazard: +{worst} before '{c.text}' (after '{why}')")
                    k = worst
                    new = []
                    while k > 0:
                        m = min(k, 16)
                        new.append(Ins(f"s_nop {m-1}"))
                        k -= m
                    ins[i:i] = new
                    inserted += 1
                    changed = True
                    break
        self.lines = [x.text for x in ins]
        return inserted

    def text(self):
        out = []
        for ln in self.lines:
            if ln.endswith(":") or ln.startswith("."):
                out.append(ln)
            else:
                out.append("    " + ln)
        return "\n".join(out) + "\n"
```

```python
import sys, os, struct, math
sys.path.insert(0, os.path.join(os.path.dirname(os.path.abspath(__file__)), "tools"))
from asmlib import *

NAME = "interleave_layers__sliding_block__moe_arch_mod__prompt"
MB = 1 << 20
LSTR = 32 * MB
QF, KV, OF, XF = 0, 4 * MB, 12 * MB, 16 * MB
STAT = 20 * MB
YR = STAT + 0x10000
COEF = STAT + 0x40000
MISC = STAT + 0x50000
CSP = 64 * MB
R_Y = 16
EPS = 1e-5
QSCALE = (32 ** -0.5) * math.log2(math.e)


def fl(x):
    return "0x%08x" % struct.unpack("<I", struct.pack("<f", x))[0]


def srd(A, d, ptr, off, nbytes):
    if off:
        A(f"s_add_u32 s{d}, s{ptr}, {hex(off)}")
        A(f"s_addc_u32 s{d+1}, s{ptr+1}, 0")
    else:
        A(f"s_mov_b32 s{d}, s{ptr}")
        A(f"s_mov_b32 s{d+1}, s{ptr+1}")
    A(f"s_mov_b32 s{d+2}, {hex(nbytes)}")
    A(f"s_mov_b32 s{d+3}, 0x20000")


def kbegin(A, name, nwg):
    A(f".globl {name}")
    A(".p2align 8")
    A(f".type {name},@function")
    A.label(name)
    A(f"s_cmp_ge_u32 s2, {nwg}")
    A(f"s_cbranch_scc1 {name}_end")


def kend(A, name):
    A.label(name + "_end")
    A("s_endpgm")


def kdesc(name, vgpr):
    acc = (vgpr + 3) // 4 * 4
    return f""".amdhsa_kernel {name}
  .amdhsa_next_free_vgpr {vgpr}
  .amdhsa_next_free_sgpr 102
  .amdhsa_accum_offset {acc}
  .amdhsa_group_segment_fixed_size 0
  .amdhsa_kernarg_size 88
  .amdhsa_user_sgpr_count 2
  .amdhsa_user_sgpr_kernarg_segment_ptr 1
  .amdhsa_system_sgpr_workgroup_id_x 1
.end_amdhsa_kernel
"""


def MF(d, a_, b_, c=None):
    cc = v(d, 16) if c is None else (c if isinstance(c, str) else v(c, 16))
    return f"v_mfma_f32_32x32x16_bf16 {v(d,16)}, {v(a_,4)}, {v(b_,4)}, {cc}"


def wave_sum(A, r, t):
    for sh in ("quad_perm:[1,0,3,2]", "quad_perm:[2,3,0,1]", "row_half_mirror", "row_mirror"):
        A(f"v_add_f32_dpp v{r}, v{r}, v{r} {sh} row_mask:0xf bank_mask:0xf")
    A(f"v_mov_b32 v{t}, v{r}")
    A(f"v_permlane16_swap_b32 v{r}, v{t}")
    A(f"v_add_f32 v{r}, v{r}, v{t}")
    A(f"v_mov_b32 v{t}, v{r}")
    A(f"v_permlane32_swap_b32 v{r}, v{t}")
    A(f"v_add_f32 v{r}, v{r}, v{t}")


def k_prep(A):
    n = "prep_kernel"
    kbegin(A, n, 256)
    A("s_load_dwordx4 s[4:7], s[0:1], 0")
    A("s_load_dwordx2 s[8:9], s[0:1], 80")
    A("v_lshrrev_b32 v1, 6, v0")
    A("v_and_b32 v2, 63, v0")
    A("v_readfirstlane_b32 s3, v1")
    A("s_waitcnt lgkmcnt(0)")
    srd(A, 12, 4, 0, 4 * MB)
    srd(A, 16, 6, 0, 6 * MB)
    srd(A, 20, 8, 0, 128 * MB)
    A("s_lshl_b32 s24, s2, 3")
    A("s_add_u32 s24, s24, s3")
    A("s_lshl_b32 s25, s24, 11")
    A("v_lshlrev_b32 v3, 4, v2")
    A("buffer_load_dwordx4 v[4:7], v3, s[12:15], s25 offen")
    A("buffer_load_dwordx4 v[8:11], v3, s[12:15], s25 offen offset:1024")
    A("s_mul_i32 s26, s2, 0x5556")
    A("s_lshr_b32 s26, s26, 18")
    A("s_mul_i32 s27, s26, 12")
    A("s_sub_u32 s27, s2, s27")
    A("s_lshl_b32 s28, s26, 6")
    A("s_lshl_b32 s29, s3, 3")
    A("s_add_u32 s28, s28, s29")
    A("s_mul_i32 s28, s28, 6144")
    A("s_lshl_b32 s29, s27, 9")
    A("s_add_u32 s28, s28, s29")
    A("v_lshrrev_b32 v12, 5, v2")
    A("v_mul_u32_u24 v12, 6144, v12")
    A("v_and_b32 v13, 31, v2")
    A("v_lshl_add_u32 v12, v13, 4, v12")
    for i in range(4):
        A(f"buffer_load_dwordx4 {v(16+4*i,4)}, v12, s[16:19], s28 offen")
        A("s_add_u32 s28, s28, 12288")
    A("v_mov_b32 v40, 0")
    A("v_mov_b32 v41, 0")
    A("s_lshr_b32 s30, s2, 7")
    A(f"s_mul_i32 s30, s30, {LSTR}")
    A("s_and_b32 s31, s2, 127")
    A("s_lshl_b32 s31, s31, 10")
    A("s_add_u32 s30, s30, s31")
    A(f"s_add_u32 s30, s30, {hex(STAT)}")
    A("v_lshlrev_b32 v42, 1, v0")
    A("v_and_b32 v42, 0x3fc, v42")
    A("buffer_store_dword v40, v42, s[20:23], s30 offen")
    A("s_waitcnt vmcnt(5)")
    A("v_mov_b32 v32, 0")
    A("v_mov_b32 v33, 0")
    for i in range(8):
        A(f"v_lshlrev_b32 v34, 16, v{4+i}")
        A(f"v_and_b32 v35, 0xffff0000, v{4+i}")
        A("v_add_f32 v32, v32, v34")
        A("v_fmac_f32 v33, v34, v34")
        A("v_add_f32 v32, v32, v35")
        A("v_fmac_f32 v33, v35, v35")
    wave_sum(A, 32, 36)
    wave_sum(A, 33, 36)
    A(f"v_mul_f32 v32, {fl(1/1024)}, v32")
    A(f"v_mul_f32 v33, {fl(1/1024)}, v33")
    A("v_fma_f32 v33, -v32, v32, v33")
    A("v_max_f32 v33, 0, v33")
    A(f"v_add_f32 v33, {fl(EPS)}, v33")
    A("v_rsq_f32 v33, v33")
    A("s_lshl_b32 s24, s24, 2")
    A(f"s_add_u32 s24, s24, {hex(COEF)}")
    A("v_lshlrev_b32 v37, 13, v2")
    A("v_cmp_eq_u32 vcc, 0, v2")
    A("v_cndmask_b32 v33, v32, v33, vcc")
    A("s_mov_b64 exec, 3")
    A("buffer_store_dword v33, v37, s[20:23], s24 offen")
    A("s_mov_b64 exec, -1")
    A("s_waitcnt vmcnt(2)")
    for c in range(4):
        for i in range(4):
            src = 16 + 4 * i + c
            if i == 0:
                A(f"v_lshlrev_b32 v{44+2*c}, 16, v{src}")
                A(f"v_and_b32 v{45+2*c}, 0xffff0000, v{src}")
            else:
                A(f"v_lshlrev_b32 v34, 16, v{src}")
                A(f"v_and_b32 v35, 0xffff0000, v{src}")
                A(f"v_add_f32 v{44+2*c}, v{44+2*c}, v34")
                A(f"v_add_f32 v{45+2*c}, v{45+2*c}, v35")
    A("v_lshlrev_b32 v52, 5, v0")
    A("ds_write_b128 v52, v[44:47]")
    A("ds_write_b128 v52, v[48:51] offset:16")
    A("s_waitcnt lgkmcnt(0)")
    A("s_barrier")
    A("s_cmp_ge_u32 s3, 4")
    A(f"s_cbranch_scc1 {n}_end")
    A("s_cmp_ge_u32 s2, 192")
    A(f"s_cbranch_scc1 {n}_end")
    A("v_lshlrev_b32 v52, 2, v0")
    for i in range(16):
        A(f"ds_read_b32 v{16+i}, v52 offset:{1024*i}")
    A("s_waitcnt lgkmcnt(0)")
    for i in range(1, 16):
        A(f"v_add_f32 v16, v16, v{16+i}")
    A("s_mul_i32 s26, s26, 12288")
    A("s_lshl_b32 s27, s27, 10")
    A("s_add_u32 s26, s26, s27")
    A(f"s_add_u32 s26, s26, {hex(CSP)}")
    A("buffer_store_dword v16, v52, s[20:23], s26 offen")
    kend(A, n)
    return n, 64, 256, 512, 16384


NB = 4
BUF = 40960


def k_qkv(A, L):
    n = f"qkv{L}_kernel"
    kbegin(A, n, 256)
    A("s_load_dwordx4 s[4:7], s[0:1], 0")
    A("s_load_dwordx2 s[8:9], s[0:1], 80")
    A("v_lshrrev_b32 v1, 6, v0")
    A("v_and_b32 v2, 63, v0")
    A("v_readfirstlane_b32 s3, v1")
    A("s_and_b32 s24, s2, 7")
    A("s_lshr_b32 s25, s2, 3")
    A("s_lshr_b32 s26, s24, 2")
    A("s_lshl_b32 s26, s26, 3")
    A("s_and_b32 s27, s25, 7")
    A("s_add_u32 s26, s26, s27")
    A("s_and_b32 s27, s24, 3")
    A("s_lshl_b32 s27, s27, 2")
    A("s_lshr_b32 s25, s25, 3")
    A("s_add_u32 s27, s27, s25")
    A("s_waitcnt lgkmcnt(0)")
    srd(A, 20, 8, 0, 128 * MB)
    TAB = (16 % NB) * BUF
    A("s_cmp_lt_u32 s3, 4")
    A(f"s_cbranch_scc1 {n}_cons")
    if L == 0:
        srd(A, 12, 4, 0, 4 * MB)
    else:
        srd(A, 12, 8, XF, 4 * MB)
    srd(A, 16, 6, 0, 6 * MB)
    A("s_sub_u32 s3, s3, 4")
    if L == 0:
        A("s_and_b32 s28, s3, 1")
        A("s_lshl_b32 s28, s28, 2")
        A("v_lshrrev_b32 v3, 4, v2")
        A("v_add_u32 v3, s28, v3")
        A("v_xor_b32 v3, v3, v2")
        A("v_and_b32 v3, 7, v3")
        A("v_lshlrev_b32 v3, 4, v3")
        A("v_lshrrev_b32 v4, 3, v2")
        A("v_lshl_add_u32 v3, v4, 11, v3")
        A("s_lshl_b32 s28, s3, 14")
        A("v_add_u32 v3, s28, v3")
        A("s_lshl_b32 s30, s26, 18")
        SS, QS = 128, 65536
    else:
        A("s_lshl_b32 s28, s3, 10")
        A("v_lshlrev_b32 v3, 4, v2")
        A("v_add_u32 v3, s28, v3")
        A("s_lshl_b32 s30, s26, 18")
        SS, QS = 16384, 4096
    A("v_lshrrev_b32 v4, 3, v2")
    if L == 0:
        A("s_lshl_b32 s28, s3, 3")
        A("v_add_u32 v4, s28, v4")
    else:
        A("v_and_b32 v5, 3, v4")
        A("v_lshrrev_b32 v6, 5, v2")
        A("v_lshl_add_u32 v4, v6, 3, v5")
        A("s_lshr_b32 s28, s3, 1")
        A("s_lshl_b32 s28, s28, 4")
        A("s_and_b32 s29, s3, 1")
        A("s_lshl_b32 s29, s29, 2")
        A("s_add_u32 s28, s28, s29")
        A("v_add_u32 v4, s28, v4")
    A("v_mul_u32_u24 v4, 6144, v4")
    A("v_lshrrev_b32 v5, 2, v2")
    A("v_and_b32 v5, 4, v5")
    A("v_xor_b32 v5, v5, v2")
    A("v_and_b32 v5, 7, v5")
    A("v_lshl_add_u32 v4, v5, 4, v4")
    A("s_lshl_b32 s31, s27, 7")
    A("s_lshl_b32 s32, s3, 10")
    A("v_subrev_u32 v7, 256, v0")
    A("v_lshrrev_b32 v8, 6, v7")
    A("v_lshlrev_b32 v8, 12, v8")
    A("v_lshl_add_u32 v8, v2, 2, v8")
    A("s_lshl_b32 s33, s27, 8")
    A(f"s_add_u32 s33, s33, {hex(CSP)}")
    for i in range(16):
        A(f"buffer_load_dword v{16+i}, v8, s[20:23], s33 offen")
        A("s_add_u32 s33, s33, 12288")
    A("v_lshrrev_b32 v9, 7, v7")
    A("v_lshlrev_b32 v9, 13, v9")
    A("v_and_b32 v10, 127, v7")
    A("v_lshl_add_u32 v9, v10, 2, v9")
    A("s_lshl_b32 s33, s26, 9")
    A(f"s_add_u32 s33, s33, {hex(L*LSTR + COEF)}")
    A("buffer_load_dword v32, v9, s[20:23], s33 offen")

    def issue():
        A("s_mov_b32 m0, s32")
        A("s_mov_b32 s34, s30")
        for q in range(4):
            A("buffer_load_dwordx4 v3, s[12:15], s34 offen lds")
            A("s_add_u32 m0, m0, 4096")
            if q < 3:
                A(f"s_add_u32 s34, s34, {QS}")
            else:
                A("s_mov_b32 s34, s31")
        for seg in range(3):
            for q in range(2):
                A("buffer_load_dwordx4 v4, s[16:19], s34 offen lds")
                if seg == 2 and q == 1:
                    break
                A("s_add_u32 m0, m0, 4096")
                if q == 0:
                    A(f"s_add_u32 s34, s34, {32*6144}")
                else:
                    A(f"s_sub_u32 s34, s34, {32*6144-2048}")
        A(f"s_add_u32 s30, s30, {SS}")
        A(f"s_add_u32 s31, s31, {64*6144}")
        A(f"s_add_u32 s32, s32, {BUF}")
        A(f"s_cmp_ge_u32 s32, {NB*BUF}")
        A(f"s_cselect_b32 s35, {NB*BUF}, 0")
        A("s_sub_u32 s32, s32, s35")

    A(f"s_mov_b32 s36, {NB}")
    A.label(f"{n}_lpro")
    issue()
    A("s_sub_u32 s36, s36, 1")
    A("s_cmp_lg_u32 s36, 0")
    A(f"s_cbranch_scc1 {n}_lpro")
    A(f"s_waitcnt vmcnt({10*(NB-1)})")
    for i in range(1, 16):
        A(f"v_add_f32 v16, v16, v{16+i}")
    A("s_barrier")
    A(f"s_mov_b32 s36, {16-NB}")
    A.label(f"{n}_lloop")
    A(f"s_waitcnt vmcnt({10*(NB-2)})")
    A("s_barrier")
    issue()
    A("s_sub_u32 s36, s36, 1")
    A("s_cmp_lg_u32 s36, 0")
    A(f"s_cbranch_scc1 {n}_lloop")
    for st in range(16 - NB, 16):
        if st + 1 <= 15:
            A(f"s_waitcnt vmcnt({10*(15-(st+1))})")
        if st == 15:
            A("s_waitcnt lgkmcnt(0)")
        A("s_barrier")
        if st == 16 - NB:
            A("v_lshlrev_b32 v11, 2, v7")
            if TAB:
                A(f"v_add_u32 v11, {TAB}, v11")
            A("ds_write_b32 v11, v32")
            A("ds_write_b32 v11, v16 offset:1024")
    A("s_endpgm")
    A.label(f"{n}_cons")
    ACC = 0
    FR = [96, 116]
    XB, WB, XC, WC = 136, 140, 141, 145
    LN = 212
    A(f"v_mov_b32 v{LN}, v2")
    A("s_and_b32 s28, s3, 1")
    A("s_lshr_b32 s29, s3, 1")
    A("v_and_b32 v3, 31, v2")
    A("v_lshrrev_b32 v4, 5, v2")
    if L == 0:
        A("v_lshrrev_b32 v5, 1, v3")
        A("v_and_b32 v5, 7, v5")
        A("v_xor_b32 v5, v5, v4")
        A("v_lshlrev_b32 v5, 4, v5")
        A("v_lshl_add_u32 v5, v3, 7, v5")
        A("s_lshl_b32 s30, s28, 13")
        A(f"v_add_u32 v{XB}, s30, v5")
        for s_ in range(1, 4):
            A(f"v_xor_b32 v{XB+s_}, {32*s_}, v{XB}")
    else:
        A("s_lshl_b32 s30, s28, 13")
        A("v_lshlrev_b32 v5, 4, v2")
        A(f"v_add_u32 v{XB}, s30, v5")
        for s_ in range(1, 4):
            A(f"v_add_u32 v{XB+s_}, {1024*s_}, v{XB}")
    A("v_bfe_u32 v5, v2, 2, 2")
    A("v_lshl_add_u32 v6, v4, 3, v5")
    A("v_lshlrev_b32 v6, 7, v6")
    A("v_lshrrev_b32 v5, 1, v5")
    A("v_xor_b32 v5, s29, v5")
    A("v_lshl_add_u32 v6, v5, 6, v6")
    A("v_bfe_u32 v5, v2, 4, 1")
    A("v_lshl_add_u32 v6, v5, 5, v6")
    A("v_and_b32 v5, 3, v2")
    A("v_lshl_add_u32 v6, v5, 3, v6")
    A(f"v_add_u32 v{WB}, 16384, v6")
    for i in range(5):
        A(f"v_mov_b32 v{XC+i}, v{XB+i}")
    for i in range(96):
        A(f"v_mov_b32 v{i}, 0")
    A("s_mov_b32 s31, 0")
    A("s_mov_b32 s36, 16")

    def reads(fs, s_):
        f = FR[fs]
        r = [f"ds_read_b128 {v(f,4)}, v{XC+s_}",
             f"ds_read_b128 {v(f+4,4)}, v{XC+s_} offset:4096"]
        for seg in range(3):
            for j in range(2):
                r.append(f"ds_read_b64_tr_b16 {v(f+8+4*seg+2*j,2)}, v{WC} offset:{seg*8192+s_*2048+j*512}")
        return r

    def mfmas(fs):
        f = FR[fs]
        return [MF(0, f + 8, f), MF(16, f + 8, f + 4), MF(32, f + 12, f), MF(48, f + 12, f + 4),
                MF(64, f, f + 16), MF(80, f + 4, f + 16)]

    A("s_barrier")
    for x in reads(0, 0):
        A(x)
    A.label(f"{n}_cloop")
    for ks in range(4):
        fs = ks & 1
        m = mfmas(fs)
        r = reads(fs ^ 1, (ks + 1) & 3)
        r = [r[0], r[2], r[3], r[1], r[4], r[5], r[6], r[7]]
        A("s_waitcnt lgkmcnt(0)")
        A(m[0])
        if ks == 3:
            A("s_barrier")
            A(f"s_add_u32 s31, s31, {BUF}")
            A(f"s_cmp_ge_u32 s31, {NB*BUF}")
            A(f"s_cselect_b32 s31, 0, s31")
            A(f"v_add_u32 v{XC}, s31, v{XB}")
            A(f"v_add_u32 v{WC}, s31, v{WB}")
        A(r[0]); A(r[1]); A(r[2])
        A(m[1])
        A(r[3]); A(r[4]); A(r[5])
        A(m[2])
        A(r[6]); A(r[7])
        A(m[3])
        if ks == 3:
            for s_ in range(1, 4):
                A(f"v_add_u32 v{XC+s_}, s31, v{XB+s_}")
            A("s_sub_u32 s36, s36, 1")
            A("s_cmp_lg_u32 s36, 0")
        A(m[4])
        A(m[5])
    A(f"s_cbranch_scc1 {n}_cloop")
    T0 = 96
    A("s_waitcnt lgkmcnt(0)")
    A(f"v_and_b32 v{T0}, 31, v{LN}")
    A(f"v_lshrrev_b32 v{T0+1}, 5, v{LN}")
    A("s_lshl_b32 s30, s28, 8")
    A(f"s_add_u32 s30, s30, {TAB}")
    A(f"v_lshl_add_u32 v{T0+2}, v{T0}, 2, s30")
    A(f"v_lshl_add_u32 v{T0+3}, v{T0+1}, 4, s30")
    A("s_lshl_b32 s30, s29, 7")
    A(f"s_add_u32 s30, s30, {TAB+1024}")
    A(f"v_lshl_add_u32 v{T0+4}, v{T0+1}, 4, s30")
    A(f"v_lshl_add_u32 v{T0+5}, v{T0}, 2, s30")
    CA = 104
    A(f"ds_read_b32 v{CA}, v{T0+2}")
    A(f"ds_read_b32 v{CA+2}, v{T0+2} offset:128")
    A(f"ds_read_b32 v{CA+4}, v{T0+2} offset:512")
    A(f"ds_read_b32 v{CA+6}, v{T0+2} offset:640")
    A(f"ds_read_b32 v{CA+8}, v{T0+5} offset:512")
    CS = 116
    for seg in range(2):
        for g in range(4):
            A(f"ds_read_b128 {v(CS+16*seg+4*g,4)}, v{T0+4} offset:{seg*256+g*32}")
    RA = 148
    for t in range(2):
        for g in range(4):
            A(f"ds_read_b128 {v(RA+16*t+4*g,4)}, v{T0+3} offset:{t*128+g*32}")
            A(f"ds_read_b128 {v(RA+32+16*t+4*g,4)}, v{T0+3} offset:{512+t*128+g*32}")
    A("s_lshl_b32 s30, s27, 1")
    A("s_add_u32 s30, s30, s29")
    A("s_lshl_b32 s30, s30, 6")
    A("s_lshl_b32 s31, s26, 2")
    A("s_add_u32 s30, s30, s31")
    A("s_lshl_b32 s31, s28, 1")
    A("s_add_u32 s30, s30, s31")
    A("s_lshl_b32 s31, s30, 11")
    A(f"s_add_u32 s31, s31, {hex(L*LSTR+QF)}")
    A("s_lshl_b32 s32, s30, 12")
    A(f"s_add_u32 s32, s32, {hex(L*LSTR+KV)}")
    A("s_add_u32 s33, s32, 4096")
    A(f"v_lshlrev_b32 v{T0}, 4, v{LN}")
    A("s_waitcnt lgkmcnt(15)")
    A(f"v_mul_f32 v{CA+10}, {fl(QSCALE)}, v{CA}")
    A(f"v_mul_f32 v{CA+11-9+0+11}, {fl(QSCALE)}, v{CA+2}") if False else None
    A(f"v_mul_f32 v{T0+6}, {fl(QSCALE)}, v{CA+2}")
    for seg in range(2):
        for t in range(2):
            acc = 32 * seg + 16 * t
            am = CA + 4 + 2 * t
            aa = (CA + 10 if t == 0 else T0 + 6) if seg == 0 else CA + 2 * t
            for p in range(8):
                A(f"v_pk_fma_f32 {v(acc+2*p,2)}, {v(CS+16*seg+2*p,2)}, {v(am,2)}, {v(acc+2*p,2)} op_sel_hi:[1,0,1] neg_lo:[0,1,0] neg_hi:[0,1,0]")
            for p in range(8):
                A(f"v_pk_mul_f32 {v(acc+2*p,2)}, {v(acc+2*p,2)}, {v(aa,2)} op_sel_hi:[1,0]")
            for p in range(8):
                A(f"v_cvt_pk_bf16_f32 v{acc+p}, v{acc+2*p}, v{acc+2*p+1}")
            if seg == 0:
                so, o0 = "s31", t * 2048
            else:
                so, o0 = ("s32" if t == 0 else "s33"), 0
            A(f"buffer_store_dwordx4 {v(acc,4)}, v{T0}, s[20:23], {so} offen offset:{o0}")
            A(f"buffer_store_dwordx4 {v(acc+4,4)}, v{T0}, s[20:23], {so} offen offset:{o0+1024}")
    A("s_waitcnt lgkmcnt(0)")
    for t in range(2):
        acc = 64 + 16 * t
        for p in range(8):
            A(f"v_pk_fma_f32 {v(acc+2*p,2)}, {v(RA+32+16*t+2*p,2)}, {v(CA+8,2)}, {v(acc+2*p,2)} op_sel_hi:[1,0,1] neg_lo:[0,1,0] neg_hi:[0,1,0]")
        for p in range(8):
            A(f"v_pk_mul_f32 {v(acc+2*p,2)}, {v(acc+2*p,2)}, {v(RA+16*t+2*p,2)}")
        for p in range(8):
            A(f"v_cvt_pk_bf16_f32 v{acc+p}, v{acc+2*p}, v{acc+2*p+1}")
        so = "s32" if t == 0 else "s33"
        A(f"buffer_store_dwordx4 {v(acc,4)}, v{T0}, s[20:23], {so} offen offset:2048")
        A(f"buffer_store_dwordx4 {v(acc+4,4)}, v{T0}, s[20:23], {so} offen offset:3072")
    kend(A, n)
    return n, 216, 256, 512, NB * BUF


def k_attn(A, L):
    n = f"attn{L}_kernel"
    kbegin(A, n, 256)
    A("s_load_dwordx2 s[8:9], s[0:1], 80")
    A("v_lshrrev_b32 v1, 6, v0")
    A("v_and_b32 v2, 63, v0")
    A("v_readfirstlane_b32 s3, v1")
    A("s_and_b32 s24, s2, 7")
    A("s_lshr_b32 s25, s2, 3")
    A("s_lshr_b32 s26, s24, 2")
    A("s_lshl_b32 s26, s26, 3")
    A("s_and_b32 s27, s25, 7")
    A("s_add_u32 s26, s26, s27")
    A("s_and_b32 s27, s24, 3")
    A("s_lshl_b32 s27, s27, 2")
    A("s_lshr_b32 s25, s25, 3")
    A("s_add_u32 s27, s27, s25")
    A("s_lshr_b32 s28, s3, 2")
    A("s_and_b32 s29, s3, 3")
    A("s_lshl_b32 s30, s27, 1")
    A("s_add_u32 s30, s30, s28")
    A("s_lshl_b32 s31, s26, 2")
    A("s_add_u32 s37, s31, s29")
    A("v_lshlrev_b32 v3, 4, v2")
    A("s_waitcnt lgkmcnt(0)")
    srd(A, 20, 8, 0, 128 * MB)
    A("s_lshl_b32 s32, s30, 6")
    A("s_add_u32 s33, s32, s37")
    A("s_lshl_b32 s33, s33, 11")
    A(f"s_add_u32 s33, s33, {hex(L*LSTR+QF)}")
    Q = 4
    A(f"buffer_load_dwordx4 {v(Q,4)}, v3, s[20:23], s33 offen")
    A(f"buffer_load_dwordx4 {v(Q+4,4)}, v3, s[20:23], s33 offen offset:1024")
    A("s_mul_i32 s34, s29, 3")
    A("s_mul_i32 s35, s28, 12")
    A("s_add_u32 s35, s35, s34")
    A("s_lshl_b32 s35, s35, 12")
    A("s_add_u32 s34, s34, s31")
    A("s_sub_u32 s34, s34, 8")
    for jj in range(3):
        A("s_max_i32 s36, s34, 0")
        A("s_add_u32 s36, s36, s32")
        A("s_lshl_b32 s36, s36, 12")
        A(f"s_add_u32 s36, s36, {hex(L*LSTR+KV)}")
        A("s_mov_b32 m0, s35")
        A("s_add_u32 s34, s34, 1")
        for p in range(4):
            A(f"buffer_load_dwordx4 v3, s[20:23], s36 offen offset:{p*1024} lds")
        A("s_add_u32 s35, s35, 4096")
    MS = 40
    for reg in range(16):
        g, r = reg >> 2, reg & 3
        A(f"s_mov_b32 s{MS+2*reg}, {hex((0xFFFFFFFF << (8*g+r)) & 0xFFFFFFFF)}")
        A(f"s_mov_b32 s{MS+2*reg+1}, {hex((0xFFFFFFFF << (8*g+4+r)) & 0xFFFFFFFF)}")
    PM = 12
    A("v_mov_b32 v20, 0xffff")
    A("v_mov_b32 v21, 0xffff0000")
    for p in range(8):
        A(f"v_cndmask_b32 v22, 0, v20, {s(MS+4*p,2)}")
        A(f"v_cndmask_b32 v23, 0, v21, {s(MS+4*p+2,2)}")
        A(f"v_or_b32 v{PM+p}, v22, v23")
    CB = 24
    SM = 40
    SA = [56, 72]
    O = 88
    KF = [104, 112]
    VF = [120, 128]
    PP = [136, 144]
    AD = 20
    MX, SU0, SU1, TM = 21, 22, 23, 152
    A("s_mul_i32 s34, s28, 12")
    A("s_add_u32 s34, s34, s29")
    A("s_lshl_b32 s34, s34, 12")
    A(f"v_add_u32 v{AD}, s34, v3")
    for i in range(16):
        A(f"v_mov_b32 v{CB+i}, 0")
    A("s_waitcnt vmcnt(0)")
    A("s_barrier")

    def rdK(buf, d):
        A(f"ds_read_b128 {v(KF[buf],4)}, v{AD} offset:{(8-d)*4096}")
        A(f"ds_read_b128 {v(KF[buf]+4,4)}, v{AD} offset:{(8-d)*4096+1024}")

    def rdV(buf, d):
        A(f"ds_read_b128 {v(VF[buf],4)}, v{AD} offset:{(8-d)*4096+2048}")
        A(f"ds_read_b128 {v(VF[buf]+4,4)}, v{AD} offset:{(8-d)*4096+3072}")

    def neg_switch(d, tag):
        A(f"s_cmp_eq_u32 s37, {d-1}")
        A(f"s_cbranch_scc0 {n}_{tag}{d}")
        for i in range(16):
            A(f"v_mov_b32 v{CB+i}, {fl(-1e30)}")
        A.label(f"{n}_{tag}{d}")

    def smf(dst, buf, c):
        A(MF(dst, KF[buf], Q, c))
        A(MF(dst, KF[buf] + 4, Q + 4))

    def maxes(src, first):
        for p in range(8):
            if first and p == 0:
                A(f"v_max_f32 v{MX}, v{src}, v{src+1}")
            else:
                A(f"v_max3_f32 v{MX}, v{MX}, v{src+2*p}, v{src+2*p+1}")
    rdK(0, 0)
    rdK(1, 1)
    A("s_waitcnt lgkmcnt(2)")
    smf(SM, 0, "0")
    for d in range(1, 9):
        b = d & 1
        if d < 8:
            rdK(b ^ 1, d + 1)
        neg_switch(d, "a")
        A(f"s_waitcnt lgkmcnt({2 if d < 8 else 0})")
        smf(SA[b], b, CB)
        if d >= 2:
            maxes(SA[b ^ 1], d == 2)
    rdK(1, 1)
    rdV(0, 0)
    rdV(1, 8)
    for i in range(16):
        A(f"v_cndmask_b32 v{SM+i}, v{SA[0]+i}, v{SM+i}, {s(MS+2*i,2)}")
    maxes(SM, False)
    A(f"v_mov_b32 v{TM}, v{MX}")
    A(f"v_permlane32_swap_b32 v{MX}, v{TM}")
    A(f"v_max_f32 v{MX}, v{MX}, v{TM}")
    for i in range(16):
        A(f"v_sub_f32 v{CB+i}, 0, v{MX}")
    neg_switch(1, "b")
    A("s_waitcnt lgkmcnt(4)")
    smf(SA[1], 1, CB)
    rdK(0, 2)
    for i in range(16):
        A(f"v_sub_f32 v{SM+i}, v{SM+i}, v{MX}")
    for i in range(16):
        A(f"v_exp_f32 v{SM+i}, v{SM+i}")
    A(f"v_add_f32 v{SU0}, v{SM}, v{SM+1}")
    A(f"v_add_f32 v{SU1}, v{SM+2}, v{SM+3}")
    for i in range(4, 16):
        A(f"v_add_f32 v{SU0+(i&1)}, v{SU0+(i&1)}, v{SM+i}")
    for p in range(8):
        A(f"v_cvt_pk_bf16_f32 v{PP[1]+p}, v{SM+2*p}, v{SM+2*p+1}")
    for p in range(8):
        A(f"v_and_b32 v{PP[0]+p}, v{PP[1]+p}, v{PM+p}")
    for p in range(8):
        A(f"v_xor_b32 v{PP[1]+p}, v{PP[1]+p}, v{PP[0]+p}")
    A("s_waitcnt lgkmcnt(2)")
    A(MF(O, VF[0], PP[0], "0"))
    A(MF(O, VF[0] + 4, PP[0] + 4))
    A(MF(O, VF[1], PP[1]))
    A(MF(O, VF[1] + 4, PP[1] + 4))
    for d in range(1, 8):
        b = d & 1
        rdV(b, d)
        if d < 7:
            neg_switch(d + 1, "b")
            A("s_waitcnt lgkmcnt(2)")
            smf(SA[b ^ 1], b ^ 1, CB)
            if d < 6:
                rdK(b, d + 2)
        src = SA[b]
        for i in range(16):
            A(f"v_exp_f32 v{src+i}, v{src+i}")
        for i in range(16):
            A(f"v_add_f32 v{SU0+(i&1)}, v{SU0+(i&1)}, v{src+i}")
        for p in range(8):
            A(f"v_cvt_pk_bf16_f32 v{PP[b]+p}, v{src+2*p}, v{src+2*p+1}")
        A(f"s_waitcnt lgkmcnt({2 if d < 6 else 0})")
        A(MF(O, VF[b], PP[b]))
        A(MF(O, VF[b] + 4, PP[b] + 4))
    A(f"v_add_f32 v{SU0}, v{SU0}, v{SU1}")
    A(f"v_mov_b32 v{TM}, v{SU0}")
    A(f"v_permlane32_swap_b32 v{SU0}, v{TM}")
    A(f"v_add_f32 v{SU0}, v{SU0}, v{TM}")
    A(f"v_rcp_f32 v{SU0}, v{SU0}")
    A("s_lshl_b32 s33, s37, 16")
    A("s_lshl_b32 s34, s30, 11")
    A("s_add_u32 s33, s33, s34")
    A(f"s_add_u32 s33, s33, {hex(L*LSTR+OF)}")
    for i in range(16):
        A(f"v_mul_f32 v{O+i}, v{O+i}, v{SU0}")
    for p in range(8):
        A(f"v_cvt_pk_bf16_f32 v{O+p}, v{O+2*p}, v{O+2*p+1}")
    A(f"buffer_store_dwordx4 {v(O,4)}, v3, s[20:23], s33 offen")
    A(f"buffer_store_dwordx4 {v(O+4,4)}, v3, s[20:23], s33 offen offset:1024")
    kend(A, n)
    return n, 160, 256, 512, 98304


def k_wo(A, L):
    n = f"wo{L}_kernel"
    kbegin(A, n, 256)
    A("s_load_dwordx2 s[4:5], s[0:1], 0")
    A("s_load_dwordx2 s[6:7], s[0:1], 16")
    A("s_load_dwordx2 s[8:9], s[0:1], 80")
    A("s_load_dwordx2 s[10:11], s[0:1], 32")
    A("v_lshrrev_b32 v1, 6, v0")
    A("v_and_b32 v2, 63, v0")
    A("v_readfirstlane_b32 s3, v1")
    A("s_and_b32 s24, s2, 7")
    A("s_lshr_b32 s25, s2, 3")
    A("s_lshl_b32 s26, s24, 1")
    A("s_and_b32 s27, s25, 1")
    A("s_add_u32 s26, s26, s27")
    A("s_lshr_b32 s27, s25, 1")
    A("s_and_b32 s28, s3, 3")
    A("s_lshr_b32 s29, s3, 2")
    A("v_bfe_u32 v4, v2, 3, 2")
    A("v_lshrrev_b32 v5, 5, v2")
    A("v_lshl_add_u32 v4, v5, 3, v4")
    A("s_lshr_b32 s30, s3, 1")
    A("s_lshl_b32 s30, s30, 4")
    A("s_and_b32 s31, s3, 1")
    A("s_lshl_b32 s31, s31, 2")
    A("s_add_u32 s30, s30, s31")
    A("v_add_u32 v4, s30, v4")
    A("v_lshlrev_b32 v4, 11, v4")
    A("v_lshrrev_b32 v6, 2, v2")
    A("v_and_b32 v6, 4, v6")
    A("v_xor_b32 v6, v6, v2")
    A("v_and_b32 v6, 7, v6")
    A("v_lshl_add_u32 v4, v6, 4, v4")
    A("v_lshlrev_b32 v3, 4, v2")
    A("s_waitcnt lgkmcnt(0)")
    srd(A, 12, 4, 0, 4 * MB)
    srd(A, 16, 6, 0, 2 * MB)
    srd(A, 20, 8, 0, 128 * MB)
    srd(A, 40, 10, 0, 2048)
    A("s_lshl_b32 s30, s27, 7")
    A("s_lshl_b32 s31, s3, 10")
    A("s_mov_b32 m0, s31")
    for q in range(16):
        A("buffer_load_dwordx4 v4, s[16:19], s30 offen lds")
        if q < 15:
            A("s_add_u32 m0, m0, 8192")
            A("s_add_u32 s30, s30, 131072")
    RES, WR, CC = 40, 48, 56
    A("v_and_b32 v7, 31, v2")
    A("s_lshl_b32 s32, s26, 2")
    A("s_add_u32 s32, s32, s28")
    A("s_lshl_b32 s33, s27, 7")
    A("s_lshl_b32 s34, s29, 6")
    A("s_add_u32 s33, s33, s34")
    A("v_lshlrev_b32 v8, 3, v5")
    for g in range(4):
        A(f"buffer_load_dwordx2 {v(WR+2*g,2)}, v8, s[40:43], s33 offen offset:{16*g}")
    A("s_lshl_b32 s35, s26, 4")
    A("s_add_u32 s35, s35, s27")
    A("s_lshl_b32 s35, s35, 14")
    A("s_lshl_b32 s34, s28, 12")
    A("s_add_u32 s35, s35, s34")
    A("s_lshl_b32 s34, s29, 11")
    A("s_add_u32 s35, s35, s34")
    if L == 0:
        A("v_lshl_add_u32 v9, v7, 11, v8")
        A("s_lshl_b32 s34, s32, 16")
        A("s_add_u32 s34, s34, s33")
        for g in range(4):
            A(f"buffer_load_dwordx2 {v(RES+2*g,2)}, v9, s[12:15], s34 offen offset:{16*g}")
        nsm = 8
    else:
        A(f"s_add_u32 s34, s35, {hex(XF)}")
        A(f"buffer_load_dwordx4 {v(RES,4)}, v3, s[20:23], s34 offen")
        A(f"buffer_load_dwordx4 {v(RES+4,4)}, v3, s[20:23], s34 offen offset:1024")
        A("v_lshlrev_b32 v9, 2, v7")
        A("s_lshl_b32 s34, s32, 7")
        A(f"s_add_u32 s34, s34, {hex(L*LSTR+COEF+16384)}")
        A(f"buffer_load_dword v{CC}, v9, s[20:23], s34 offen")
        A(f"s_add_u32 s34, s34, 8192")
        A(f"buffer_load_dword v{CC+1}, v9, s[20:23], s34 offen")
        nsm = 8
    OB = 64
    A("s_lshl_b32 s36, s32, 16")
    A("s_lshl_b32 s34, s29, 15")
    A("s_add_u32 s36, s36, s34")
    A(f"s_add_u32 s36, s36, {hex(L*LSTR+OF)}")
    for i in range(32):
        A(f"buffer_load_dwordx4 {v(OB+4*i,4)}, v3, s[20:23], s36 offen offset:{(i&3)*1024}")
        if i & 3 == 3 and i < 31:
            A("s_add_u32 s36, s36, 4096")
    WA = 58
    A("v_bfe_u32 v10, v2, 2, 2")
    A("v_lshl_add_u32 v11, v5, 3, v10")
    A("v_lshlrev_b32 v11, 7, v11")
    A("v_lshrrev_b32 v10, 1, v10")
    A("v_xor_b32 v10, s29, v10")
    A("v_lshl_add_u32 v11, v10, 6, v11")
    A("v_bfe_u32 v10, v2, 4, 1")
    A("v_lshl_add_u32 v11, v10, 5, v11")
    A("v_and_b32 v10, 3, v2")
    A("v_lshl_add_u32 v11, v10, 3, v11")
    A("s_lshl_b32 s34, s29, 16")
    A(f"v_add_u32 v{WA}, s34, v11")
    A(f"v_xor_b32 v{WA+1}, 64, v{WA}")
    A(f"v_mov_b32 v60, v7")
    A(f"v_mov_b32 v61, v5")
    A(f"v_mov_b32 v62, v3")
    A(f"s_waitcnt vmcnt({32+nsm})")
    A("s_barrier")
    WF = [192, 200, 208]
    AC = [0, 16]

    def rd(i):
        f = WF[i % 3]
        for u in range(2):
            for j in range(2):
                A(f"ds_read_b64_tr_b16 {v(f+4*u+2*j,2)}, v{WA+u} offset:{i*2048+j*512}")
    rd(0)
    rd(1)
    for i in range(32):
        if i + 2 < 32:
            rd(i + 2)
        out = 4 * min(2, 31 - i)
        A(f"s_waitcnt vmcnt({31-i}) lgkmcnt({out})")
        f = WF[i % 3]
        A(MF(AC[0], f, OB + 4 * i, "0" if i == 0 else None))
        A(MF(AC[1], f + 4, OB + 4 * i, "0" if i == 0 else None))
    A("s_lshl_b32 s34, s3, 12")
    A("s_add_u32 s34, s34, 131072")
    A("v_add_u32 v63, s34, v62")
    for g in range(4):
        A(f"ds_write_b128 v63, {v(16+4*g,4)} offset:{1024*g}")
    A("v_xor_b32 v63, 16384, v63")
    RF, WF32 = 64, 80
    for p in range(8):
        A(f"v_lshlrev_b32 v{RF+2*p}, 16, v{RES+p}")
        A(f"v_and_b32 v{RF+2*p+1}, 0xffff0000, v{RES+p}")
        A(f"v_lshlrev_b32 v{WF32+2*p}, 16, v{WR+p}")
        A(f"v_and_b32 v{WF32+2*p+1}, 0xffff0000, v{WR+p}")
    if L == 1:
        for i in range(16):
            A(f"v_fma_f32 v{RF+i}, v{RF+i}, v{CC}, v{CC+1}")
    for i in range(16):
        A(f"v_add_f32 v{i}, v{i}, v{RF+i}")
    A("s_waitcnt lgkmcnt(0)")
    A("s_barrier")
    for g in range(4):
        A(f"ds_read_b128 {v(16+4*g,4)}, v63 offset:{1024*g}")
    A("s_waitcnt lgkmcnt(0)")
    for i in range(16):
        A(f"v_add_f32 v{i}, v{i}, v{16+i}")
    for p in range(8):
        A(f"v_cvt_pk_bf16_f32 v{32+p}, v{2*p}, v{2*p+1}")
    A(f"s_add_u32 s34, s35, {hex(L*LSTR+XF)}")
    A(f"buffer_store_dwordx4 v[32:35], v62, s[20:23], s34 offen")
    A(f"buffer_store_dwordx4 v[36:39], v62, s[20:23], s34 offen offset:1024")
    A("v_add_f32 v40, v0, v1")
    A("v_mul_f32 v41, v0, v0")
    A(f"v_mul_f32 v42, v0, v{WF32}")
    A("v_fmac_f32 v41, v1, v1")
    A(f"v_fmac_f32 v42, v1, v{WF32+1}")
    for i in range(2, 16):
        A(f"v_add_f32 v40, v40, v{i}")
        A(f"v_fmac_f32 v41, v{i}, v{i}")
        A(f"v_fmac_f32 v42, v{i}, v{WF32+i}")
    A("v_mov_b32 v43, v42")
    A("v_permlane32_swap_b32 v40, v41")
    A("v_permlane32_swap_b32 v42, v43")
    A("v_add_f32 v40, v40, v41")
    A("v_add_f32 v42, v42, v43")
    A("v_lshlrev_b32 v44, 2, v60")
    A("v_lshl_add_u32 v45, v61, 13, v44")
    A("s_lshl_b32 s34, s32, 7")
    A(f"s_add_u32 s34, s34, {hex(L*LSTR+STAT)}")
    A("buffer_atomic_add_f32 v40, v45, s[20:23], s34 offen sc1")
    A("s_add_u32 s34, s34, 16384")
    A("s_mov_b64 exec, 0xffffffff")
    A("buffer_atomic_add_f32 v42, v44, s[20:23], s34 offen sc1")
    kend(A, n)
    return n, 216, 256, 512, 163840


def k_ffn(A, L):
    n = f"ffn{L}_kernel"
    kbegin(A, n, 256)
    A("s_load_dwordx4 s[4:7], s[0:1], 32")
    A("s_load_dwordx4 s[8:11], s[0:1], 48")
    A("s_load_dwordx2 s[44:45], s[0:1], 64")
    A("s_load_dwordx2 s[46:47], s[0:1], 80")
    A("v_lshrrev_b32 v1, 6, v0")
    A("v_and_b32 v2, 63, v0")
    A("v_readfirstlane_b32 s3, v1")
    A("s_and_b32 s24, s2, 7")
    A("s_lshr_b32 s25, s2, 3")
    A("s_mul_i32 s26, s24, 28")
    A("s_add_u32 s26, s26, s25")
    A("s_waitcnt lgkmcnt(0)")
    srd(A, 12, 4, 0, 2048)
    srd(A, 20, 46, 0, 128 * MB)
    srd(A, 28, 10, 0, 3584 * 2048)
    A("s_cmp_lt_u32 s3, 4")
    A("s_cselect_b32 s16, s6, s8")
    A("s_cselect_b32 s17, s7, s9")
    A(f"s_mov_b32 s18, {1024*7168}")
    A("s_mov_b32 s19, 0x20000")
    A("v_lshlrev_b32 v3, 4, v0")
    A(f"s_mov_b32 s27, {hex(L*LSTR+STAT)}")
    ST = 8
    for i in range(3):
        A(f"buffer_load_dwordx4 {v(ST+4*i,4)}, v3, s[20:23], s27 offen")
        if i < 2:
            A("s_add_u32 s27, s27, 8192")
    A("v_lshlrev_b32 v4, 5, v2")
    A("buffer_load_dwordx4 v[20:23], v4, s[12:15], 0 offen")
    A("buffer_load_dwordx4 v[24:27], v4, s[12:15], 0 offen offset:16")
    if L == 1:
        srd(A, 48, 44, 0, 4 * MB)
        A("s_lshl_b32 s27, s2, 14")
        A(f"s_add_u32 s27, s27, {hex(L*LSTR+XF)}")
        A("buffer_load_dwordx4 v[100:103], v3, s[20:23], s27 offen")
        A("s_add_u32 s27, s27, 8192")
        A("buffer_load_dwordx4 v[104:107], v3, s[20:23], s27 offen")
        nx = 2
    else:
        nx = 0
    A("s_cmp_lt_u32 s25, 28")
    A("s_cselect_b32 s33, 0, 0x10000000")
    GW = 32
    A("v_lshrrev_b32 v5, 1, v2")
    A("v_mul_u32_u24 v5, 7168, v5")
    A("v_and_b32 v6, 1, v2")
    A("v_lshl_add_u32 v5, v6, 4, v5")
    A("v_add_u32 v5, s33, v5")
    A("s_and_b32 s34, s3, 3")
    A(f"s_mul_i32 s34, s34, {256*7168}")
    A("s_lshl_b32 s35, s26, 5")
    A("s_add_u32 s34, s34, s35")
    for i in range(8):
        A(f"buffer_load_dwordx4 {v(GW+4*i,4)}, v5, s[16:19], s34 offen")
        if i < 7:
            A(f"s_add_u32 s34, s34, {32*7168}")
    DW = 64
    A("v_lshrrev_b32 v6, 4, v2")
    A("v_lshlrev_b32 v6, 11, v6")
    A("v_and_b32 v7, 15, v2")
    A("v_lshl_add_u32 v6, v7, 4, v6")
    A("v_add_u32 v6, s33, v6")
    A("s_lshl_b32 s34, s26, 15")
    A("s_lshl_b32 s35, s3, 8")
    A("s_add_u32 s34, s34, s35")
    for i in range(4):
        A(f"buffer_load_dwordx4 {v(DW+4*i,4)}, v6, s[28:31], s34 offen")
        if i < 3:
            A(f"s_add_u32 s34, s34, 8192")
    A(f"s_waitcnt vmcnt({12+nx})")
    A("v_mov_b32 v28, 0")
    for i in range(8):
        A(f"v_lshlrev_b32 v29, 16, v{20+i}")
        A(f"v_and_b32 v30, 0xffff0000, v{20+i}")
        A("v_add_f32 v28, v28, v29")
        A("v_add_f32 v28, v28, v30")
    wave_sum(A, 28, 29)
    for i in range(4):
        A(f"v_mul_f32 v{ST+i}, {fl(1/1024)}, v{ST+i}")
        A(f"v_mul_f32 v{20+i}, {fl(1/1024)}, v{ST+4+i}")
        A(f"v_fma_f32 v{20+i}, -v{ST+i}, v{ST+i}, v{20+i}")
        A(f"v_max_f32 v{20+i}, 0, v{20+i}")
        A(f"v_add_f32 v{ST+4+i}, {fl(EPS)}, v{20+i}")
        A(f"v_rsq_f32 v{ST+4+i}, v{ST+4+i}")
        A(f"v_fma_f32 v{ST+8+i}, -v{ST+i}, v28, v{ST+8+i}")
        A(f"v_mul_f32 v{ST+8+i}, v{ST+8+i}, v{ST+4+i}")
    A(f"ds_write_b128 v3, {v(ST,4)}")
    A(f"ds_write_b128 v3, {v(ST+4,4)} offset:8192")
    A(f"ds_write_b128 v3, {v(ST+8,4)} offset:16384")
    if L == 0:
        for i in range(4):
            A(f"v_add_f32 v{84+i}, 1.0, v{ST+4+i}")
            A(f"v_mul_f32 v{88+i}, v{ST+i}, v{ST+4+i}")
            A(f"v_sub_f32 v{88+i}, 0, v{88+i}")
            A(f"v_mul_f32 v{80+i}, v{84+i}, v{84+i}")
            A(f"v_mul_f32 v{80+i}, v{80+i}, v{20+i}")
            A(f"v_add_f32 v{80+i}, {fl(EPS)}, v{80+i}")
            A(f"v_rsq_f32 v{80+i}, v{80+i}")
            A(f"v_mul_f32 v{80+i}, v{80+i}, v{84+i}")
        A("v_lshrrev_b32 v29, 1, v0")
        A("v_cmp_eq_u32 vcc, s2, v29")
        A("s_and_saveexec_b64 s[36:37], vcc")
        A(f"s_mov_b32 s27, {hex(LSTR+COEF)}")
        A("buffer_store_dwordx4 v[80:83], v3, s[20:23], s27 offen")
        A("s_add_u32 s27, s27, 8192")
        A(f"buffer_store_dwordx4 {v(ST,4)}, v3, s[20:23], s27 offen")
        A("s_add_u32 s27, s27, 8192")
        A("buffer_store_dwordx4 v[84:87], v3, s[20:23], s27 offen")
        A("s_add_u32 s27, s27, 8192")
        A("buffer_store_dwordx4 v[88:91], v3, s[20:23], s27 offen")
        A("s_mov_b64 exec, s[36:37]")
    A(f"v_max3_f32 v29, v{ST+8}, v{ST+9}, v{ST+10}")
    A(f"v_max_f32 v29, v29, v{ST+11}")
    for sh in ("quad_perm:[1,0,3,2]", "quad_perm:[2,3,0,1]", "row_half_mirror", "row_mirror"):
        A(f"v_max_f32_dpp v29, v29, v29 {sh} row_mask:0xf bank_mask:0xf")
    A("v_mov_b32 v30, v29")
    A("v_permlane16_swap_b32 v29, v30")
    A("v_max_f32 v29, v29, v30")
    A("v_mov_b32 v30, v29")
    A("v_permlane32_swap_b32 v29, v30")
    A("v_max_f32 v29, v29, v30")
    A("v_lshlrev_b32 v30, 2, v1")
    A("ds_write_b32 v30, v29 offset:24576")
    A("v_mov_b32 v31, 0x7fffffff")
    A("v_mov_b32 v30, 0")
    A("ds_write_b32 v30, v31 offset:24640")
    A("s_waitcnt lgkmcnt(0)")
    A("s_barrier")
    A("ds_read_b128 v[92:95], v30 offset:24576")
    A("ds_read_b128 v[96:99], v30 offset:24592")
    A("s_waitcnt lgkmcnt(0)")
    A("v_max3_f32 v29, v92, v93, v94")
    A("v_max3_f32 v29, v29, v95, v96")
    A("v_max3_f32 v29, v29, v97, v98")
    A("v_max_f32 v29, v29, v99")
    A("v_lshlrev_b32 v92, 2, v0")
    for i in range(3, -1, -1):
        A(f"v_cmp_eq_f32 vcc, v29, v{ST+8+i}")
        A(f"v_add_u32 v93, {i}, v92")
        A("v_cndmask_b32 v31, v31, v93, vcc")
    A("v_cmp_gt_u32 vcc, 0x7fffffff, v31")
    A("s_and_saveexec_b64 s[36:37], vcc")
    A("ds_min_u32 v30, v31 offset:24640")
    A("s_mov_b64 exec, s[36:37]")
    A("s_waitcnt lgkmcnt(0)")
    A("s_barrier")
    A("ds_read_b32 v31, v30 offset:24640")
    A("s_waitcnt lgkmcnt(0)")
    A("v_and_b32 v31, 2047, v31")
    A("v_lshlrev_b32 v92, 2, v31")
    A("ds_read_b32 v93, v92")
    A("ds_read_b32 v94, v92 offset:8192")
    A("v_lshrrev_b32 v95, 7, v31")
    A("v_lshlrev_b32 v95, 18, v95")
    A("v_bfe_u32 v96, v31, 5, 2")
    A("v_lshl_add_u32 v95, v96, 12, v95")
    A("v_and_b32 v96, 31, v31")
    A("v_lshl_add_u32 v95, v96, 4, v95")
    A("v_bfe_u32 v96, v0, 3, 4")
    A("v_lshl_add_u32 v95, v96, 14, v95")
    A("v_and_b32 v96, 7, v0")
    A("v_lshl_add_u32 v95, v96, 9, v95")
    A(f"s_mov_b32 s27, {hex(L*LSTR+XF)}")
    A("buffer_load_dwordx4 v[108:111], v95, s[20:23], s27 offen")
    A("s_waitcnt lgkmcnt(0)")
    A("v_mov_b32 v112, v31")
    A("v_mov_b32 v113, v29")
    A("v_mov_b32 v114, v93")
    A("v_mov_b32 v115, v94")
    A("v_or_b32 v96, s2, v0")
    A("v_cmp_eq_u32 vcc, 0, v96")
    A("s_and_saveexec_b64 s[36:37], vcc")
    A(f"s_mov_b32 s27, {hex(L*LSTR+MISC)}")
    A("buffer_store_dwordx4 v[112:115], v30, s[20:23], s27 offen")
    A("s_mov_b64 exec, s[36:37]")
    if L == 1:
        A("s_lshr_b32 s38, s2, 4")
        A("s_and_b32 s39, s2, 15")
        A("s_lshr_b32 s40, s3, 2")
        A("s_lshl_b32 s41, s38, 7")
        A("s_lshl_b32 s42, s40, 5")
        A("s_add_u32 s41, s41, s42")
        A("v_and_b32 v96, 31, v2")
        A("v_add_u32 v96, s41, v96")
        A("v_lshlrev_b32 v97, 2, v96")
        A("ds_read_b32 v116, v97")
        A("ds_read_b32 v117, v97 offset:8192")
        A("ds_read_b32 v118, v97 offset:256")
        A("ds_read_b32 v119, v97 offset:8448")
        A("v_lshlrev_b32 v96, 11, v96")
        A("v_lshrrev_b32 v97, 5, v2")
        A("v_lshl_add_u32 v96, v97, 4, v96")
        A("s_and_b32 s42, s3, 3")
        A("s_lshl_b32 s42, s42, 5")
        A("s_lshl_b32 s39, s39, 7")
        A("s_add_u32 s42, s42, s39")
        A("s_waitcnt lgkmcnt(0)")
        for e in range(2):
            mm, rr, X = 116 + 2 * e, 117 + 2 * e, 100 + 4 * e
            A(f"v_mul_f32 v{mm}, v{mm}, v{rr}")
            A(f"v_add_f32 v{rr}, 1.0, v{rr}")
            for p in range(4):
                A(f"v_lshlrev_b32 v120, 16, v{X+p}")
                A(f"v_and_b32 v121, 0xffff0000, v{X+p}")
                A(f"v_fma_f32 v120, v120, v{rr}, -v{mm}")
                A(f"v_fma_f32 v121, v121, v{rr}, -v{mm}")
                A(f"v_cvt_pk_bf16_f32 v{X+p}, v120, v121")
            A(f"v_permlane32_swap_b32 v{X}, v{X+2}")
            A(f"v_permlane32_swap_b32 v{X+1}, v{X+3}")
            A(f"buffer_store_dwordx4 {v(X,4)}, v96, s[48:51], s42 offen")
            A("s_add_u32 s42, s42, 131072")
        A("s_waitcnt vmcnt(3)")
    else:
        A("s_waitcnt vmcnt(1)")
    for p in range(4):
        A(f"v_lshlrev_b32 v{120+2*p}, 16, v{108+p}")
        A(f"v_and_b32 v{121+2*p}, 0xffff0000, v{108+p}")
    for i in range(8):
        A(f"v_sub_f32 v{120+i}, v{120+i}, v93")
        A(f"v_mul_f32 v{120+i}, v{120+i}, v94")
    A("v_lshrrev_b32 v96, 1, v0")
    A("v_lshlrev_b32 v96, 6, v96")
    A("v_and_b32 v97, 1, v0")
    A("v_lshl_add_u32 v96, v97, 4, v96")
    A("v_cmp_gt_u32 vcc, 128, v0")
    A("s_and_saveexec_b64 s[36:37], vcc")
    A("ds_write_b128 v96, v[120:123] offset:32768")
    A("ds_write_b128 v96, v[124:127] offset:32800")
    A("s_mov_b64 exec, s[36:37]")
    A("s_waitcnt lgkmcnt(0)")
    A("s_barrier")
    A("s_and_b32 s34, s3, 3")
    A("s_lshl_b32 s34, s34, 10")
    A("v_lshrrev_b32 v96, 1, v2")
    A("v_lshl_add_u32 v96, v96, 2, s34")
    for i in range(8):
        A(f"ds_read_b32 v{108+i}, v96 offset:{32768+128*i}")
    A("s_waitcnt lgkmcnt(0)")
    for i in range(8):
        for p in range(4):
            A(f"v_lshlrev_b32 v116, 16, v{GW+4*i+p}")
            A(f"v_and_b32 v117, 0xffff0000, v{GW+4*i+p}")
            if i == 0:
                A(f"v_mul_f32 v{120+2*p}, v116, v{108+i}")
                A(f"v_mul_f32 v{121+2*p}, v117, v{108+i}")
            else:
                A(f"v_fmac_f32 v{120+2*p}, v116, v{108+i}")
                A(f"v_fmac_f32 v{121+2*p}, v117, v{108+i}")
    for p in range(4):
        A(f"v_permlane32_swap_b32 v{120+p}, v{124+p}")
    for p in range(4):
        A(f"v_add_f32 v{120+p}, v{120+p}, v{124+p}")
    for p in range(2):
        A(f"v_permlane16_swap_b32 v{120+p}, v{122+p}")
    for p in range(2):
        A(f"v_add_f32 v{120+p}, v{120+p}, v{122+p}")
    for sh in ("quad_perm:[2,3,0,1]", "row_ror:4", "row_ror:8"):
        for p in range(2):
            A(f"v_add_f32_dpp v{120+p}, v{120+p}, v{120+p} {sh} row_mask:0xf bank_mask:0xf")
    A("v_and_b32 v96, 1, v2")
    A("v_lshrrev_b32 v97, 4, v2")
    A("v_lshlrev_b32 v97, 3, v97")
    A("v_lshl_add_u32 v96, v96, 5, v97")
    A("s_lshl_b32 s34, s3, 6")
    A("v_add_u32 v96, s34, v96")
    A("ds_write_b64 v96, v[120:121] offset:40960")
    A("s_waitcnt lgkmcnt(0)")
    A("s_barrier")
    A("v_and_b32 v96, 15, v2")
    A("v_lshlrev_b32 v96, 2, v96")
    for w in range(8):
        A(f"ds_read_b32 v{108+w}, v96 offset:{40960+64*w}")
    A("s_waitcnt lgkmcnt(0)")
    A("v_add_f32 v108, v108, v109")
    A("v_add_f32 v110, v110, v111")
    A("v_add_f32 v112, v112, v113")
    A("v_add_f32 v114, v114, v115")
    A("v_add_f32 v108, v108, v110")
    A("v_add_f32 v112, v112, v114")
    A(f"v_mul_f32 v109, {fl(-math.log2(math.e))}, v108")
    A("v_exp_f32 v109, v109")
    A("v_add_f32 v109, 1.0, v109")
    A("v_rcp_f32 v109, v109")
    A("v_mul_f32 v108, v108, v109")
    A("v_mul_f32 v108, v108, v112")
    A("v_lshrrev_b32 v96, 4, v2")
    A("v_lshlrev_b32 v96, 2, v96")
    for i in range(4):
        A(f"ds_bpermute_b32 v{112+i}, v96, v108 offset:{16*i}")
    A("s_waitcnt lgkmcnt(0)")
    for i in range(4):
        for p in range(4):
            A(f"v_lshlrev_b32 v116, 16, v{DW+4*i+p}")
            A(f"v_and_b32 v117, 0xffff0000, v{DW+4*i+p}")
            if i == 0:
                A(f"v_mul_f32 v{120+2*p}, v116, v{112+i}")
                A(f"v_mul_f32 v{121+2*p}, v117, v{112+i}")
            else:
                A(f"v_fmac_f32 v{120+2*p}, v116, v{112+i}")
                A(f"v_fmac_f32 v{121+2*p}, v117, v{112+i}")
    for p in range(4):
        A(f"v_permlane32_swap_b32 v{120+p}, v{124+p}")
    for p in range(4):
        A(f"v_add_f32 v{120+p}, v{120+p}, v{124+p}")
    for p in range(2):
        A(f"v_permlane16_swap_b32 v{120+p}, v{122+p}")
    for p in range(2):
        A(f"v_add_f32 v{120+p}, v{120+p}, v{122+p}")
    A("s_cmp_ge_u32 s25, 28")
    A(f"s_cbranch_scc1 {n}_end")
    A("v_and_b32 v96, 15, v2")
    A("v_lshlrev_b32 v96, 5, v96")
    A("v_lshrrev_b32 v97, 4, v2")
    A("v_lshl_add_u32 v96, v97, 3, v96")
    A(f"s_and_b32 s34, s26, {R_Y-1}")
    A("s_lshl_b32 s34, s34, 12")
    A("s_lshl_b32 s35, s3, 9")
    A("s_add_u32 s34, s34, s35")
    A(f"s_add_u32 s34, s34, {hex(L*LSTR+YR)}")
    A("buffer_atomic_add_f32 v120, v96, s[20:23], s34 offen sc1")
    A("buffer_atomic_add_f32 v121, v96, s[20:23], s34 offen offset:4 sc1")
    kend(A, n)
    return n, 128, 256, 512, 49152


def k_fix(A, L):
    n = f"fix{L}_kernel"
    kbegin(A, n, 1)
    A("s_load_dwordx2 s[44:45], s[0:1], 64")
    A("s_load_dwordx2 s[46:47], s[0:1], 80")
    A("s_waitcnt lgkmcnt(0)")
    srd(A, 20, 46, 0, 128 * MB)
    srd(A, 48, 44, 0, 4 * MB)
    A("v_mov_b32 v1, 0")
    A(f"s_mov_b32 s27, {hex(L*LSTR+MISC)}")
    A("buffer_load_dwordx4 v[4:7], v1, s[20:23], s27 offen")
    A("v_lshlrev_b32 v2, 4, v0")
    A(f"s_mov_b32 s27, {hex(L*LSTR+YR)}")
    for i in range(R_Y):
        A(f"buffer_load_dwordx4 {v(16+4*i,4)}, v2, s[20:23], s27 offen")
        A("s_add_u32 s27, s27, 4096")
    A(f"s_waitcnt vmcnt({R_Y})")
    A("v_and_b32 v4, 2047, v4")
    A("v_lshrrev_b32 v8, 7, v4")
    A("v_lshlrev_b32 v8, 18, v8")
    A("v_bfe_u32 v9, v4, 5, 2")
    A("v_lshl_add_u32 v8, v9, 12, v8")
    A("v_and_b32 v9, 31, v4")
    A("v_lshl_add_u32 v8, v9, 4, v8")
    A("v_lshrrev_b32 v9, 4, v0")
    A("v_lshl_add_u32 v8, v9, 14, v8")
    A("v_bfe_u32 v9, v0, 2, 2")
    A("v_lshl_add_u32 v8, v9, 10, v8")
    A("v_and_b32 v9, 1, v0")
    A("v_lshl_add_u32 v8, v9, 9, v8")
    A("v_bfe_u32 v9, v0, 1, 1")
    A("v_lshl_add_u32 v8, v9, 3, v8")
    A(f"s_mov_b32 s28, {hex(L*LSTR+XF)}")
    A("buffer_load_dwordx2 v[10:11], v8, s[20:23], s28 offen")
    A(f"v_mul_f32 v5, {fl(-math.log2(math.e))}, v5")
    A("v_exp_f32 v5, v5")
    A("v_add_f32 v5, 1.0, v5")
    A("v_rcp_f32 v5, v5")
    A("v_mul_f32 v6, v6, v7")
    A("v_add_f32 v7, 1.0, v7")
    A("s_waitcnt vmcnt(0)")
    for i in range(1, R_Y):
        for c in range(4):
            A(f"v_add_f32 v{16+c}, v{16+c}, v{16+4*i+c}")
    A("v_lshlrev_b32 v12, 16, v10")
    A("v_and_b32 v13, 0xffff0000, v10")
    A("v_lshlrev_b32 v14, 16, v11")
    A("v_and_b32 v15, 0xffff0000, v11")
    for c in range(4):
        A(f"v_fma_f32 v{12+c}, v{12+c}, v7, -v6")
        A(f"v_fmac_f32 v{12+c}, v{16+c}, v5")
    A("v_cvt_pk_bf16_f32 v10, v12, v13")
    A("v_cvt_pk_bf16_f32 v11, v14, v15")
    if L == 1:
        A("v_lshlrev_b32 v8, 11, v4")
        A("v_lshl_add_u32 v8, v0, 3, v8")
        A("buffer_store_dwordx2 v[10:11], v8, s[48:51], 0 offen")
    else:
        A("buffer_store_dwordx2 v[10:11], v8, s[20:23], s28 offen")
        A("v_add_f32 v20, v12, v13")
        A("v_add_f32 v20, v20, v14")
        A("v_add_f32 v20, v20, v15")
        A("v_mul_f32 v21, v12, v12")
        for c in range(1, 4):
            A(f"v_fmac_f32 v21, v{12+c}, v{12+c}")
        wave_sum(A, 20, 22)
        wave_sum(A, 21, 22)
        A("v_lshrrev_b32 v22, 6, v0")
        A("v_lshlrev_b32 v22, 3, v22")
        A("ds_write_b64 v22, v[20:21]")
        A("s_waitcnt lgkmcnt(0)")
        A("s_barrier")
        A("ds_read_b128 v[24:27], v1")
        A("ds_read_b128 v[28:31], v1 offset:16")
        A("s_waitcnt lgkmcnt(0)")
        A("v_add_f32 v20, v24, v26")
        A("v_add_f32 v21, v25, v27")
        A("v_add_f32 v20, v20, v28")
        A("v_add_f32 v21, v21, v29")
        A("v_add_f32 v20, v20, v30")
        A("v_add_f32 v21, v21, v31")
        A(f"v_mul_f32 v20, {fl(1/1024)}, v20")
        A(f"v_mul_f32 v21, {fl(1/1024)}, v21")
        A("v_fma_f32 v21, -v20, v20, v21")
        A("v_max_f32 v21, 0, v21")
        A(f"v_add_f32 v21, {fl(EPS)}, v21")
        A("v_rsq_f32 v21, v21")
        A("v_cmp_eq_u32 vcc, 1, v0")
        A("v_cndmask_b32 v21, v21, v20, vcc")
        A("v_cmp_eq_u32 vcc, 2, v0")
        A("v_cndmask_b32 v21, v21, 1.0, vcc")
        A("v_cmp_eq_u32 vcc, 3, v0")
        A("v_cndmask_b32 v21, v21, 0, vcc")
        A("v_lshlrev_b32 v22, 13, v0")
        A("v_lshl_add_u32 v22, v4, 2, v22")
        A("v_cmp_gt_u32 vcc, 4, v0")
        A("s_and_saveexec_b64 s[36:37], vcc")
        A(f"s_mov_b32 s27, {hex(LSTR+COEF)}")
        A("buffer_store_dword v21, v22, s[20:23], s27 offen")
    kend(A, n)
    return n, 96, 1, 256, 1024


def k_empty(A, i):
    n = f"empty{i}_kernel"
    kbegin(A, n, 256)
    kend(A, n)
    return n, 8, 256, 64, 0


def main():
    out = sys.argv[1] if len(sys.argv) > 1 else os.path.join(os.path.dirname(os.path.abspath(__file__)), NAME + ".s")
    nempty = int(sys.argv[2]) if len(sys.argv) > 2 else 0
    ks = []
    body = ""
    gens = [k_prep]
    for L in range(2):
        gens += [lambda A, L=L: k_qkv(A, L), lambda A, L=L: k_attn(A, L), lambda A, L=L: k_wo(A, L),
                 lambda A, L=L: k_ffn(A, L), lambda A, L=L: k_fix(A, L)]
    gens += [lambda A, i=i: k_empty(A, i) for i in range(nempty)]
    for g in gens:
        A = Asm()
        ks.append(g(A))
        A.hazard_pass(verbose="-v" in sys.argv)
        body += A.text()
    hdr = ""
    for (n, vg, nwg, blk, lds) in ks:
        hdr += f"; @launch kernel={n} grid=({nwg},1,1) block=({blk},1,1) lds={lds}\n"
    txt = hdr + '.amdgcn_target "amdgcn-amd-amdhsa--gfx950"\n.text\n' + body + '.section .rodata,"a"\n'
    for (n, vg, nwg, blk, lds) in ks:
        txt += ".p2align 6\n" + kdesc(n, vg)
    open(out, "w").write(txt)


main()
```

```python
import re

TRANS = ("v_exp_f32", "v_log_f32", "v_rcp_f32", "v_rsq_f32", "v_sqrt_f32", "v_sin_f32", "v_cos_f32",
         "v_rcp_iflag_f32")


def v(i, n=1):
    return f"v{i}" if n == 1 else f"v[{i}:{i+n-1}]"


def s(i, n=1):
    return f"s{i}" if n == 1 else f"s[{i}:{i+n-1}]"


def a(i, n=1):
    return f"a{i}" if n == 1 else f"a[{i}:{i+n-1}]"


_REG = re.compile(r"^-?\|?([vsa])(\d+)\|?$")
_RNG = re.compile(r"^-?\|?([vsa])\[(\d+):(\d+)\]\|?$")


def regs_of(tok):
    tok = tok.strip()
    m = _REG.match(tok)
    if m:
        return {(m.group(1), int(m.group(2)))}
    m = _RNG.match(tok)
    if m:
        return {(m.group(1), i) for i in range(int(m.group(2)), int(m.group(3)) + 1)}
    if tok in ("vcc", "vcc_lo", "vcc_hi"):
        return {("s", "vcc")}
    if tok in ("exec", "exec_lo", "exec_hi"):
        return {("s", "exec")}
    if tok == "m0":
        return {("s", "m0")}
    return set()


class Ins:
    def __init__(self, text):
        self.text = text
        t = text.split(";")[0].strip()
        self.label = t.endswith(":")
        self.dirv = t.startswith(".")
        self.op = ""
        self.w = set()
        self.r = set()
        self.ops = []
        if self.label or self.dirv or not t:
            return
        p = t.split(None, 1)
        self.op = op = p[0]
        rest = p[1] if len(p) > 1 else ""
        toks = [x.strip() for x in rest.split(",")] if rest else []
        mods = ""
        if toks:
            q = toks[-1].split(None, 1)
            toks[-1] = q[0]
            mods = q[1] if len(q) > 1 else ""
        cut = len(toks)
        for i, x in enumerate(toks):
            if "[" in x and "]" not in x and not re.match(r"^-?\|?[vsa]\[", x):
                cut = i + 1
                q = x.split(None, 1)
                toks[i] = q[0]
                break
        toks = [x.split()[0] if x else x for x in toks[:cut]]
        self.ops = toks
        self.mods = rest
        R = [regs_of(x) for x in toks]
        self.mfma = op.startswith("v_mfma")
        self.valu = op.startswith("v_") and not self.mfma
        self.salu = op.startswith("s_")
        self.vmem = op.startswith(("buffer_", "global_"))
        self.ds = op.startswith("ds_")
        self.trans = op.replace("_e32", "").replace("_e64", "") in TRANS
        self.dpp = ("row_" in rest or "quad_perm" in rest or "wave_" in rest) and self.valu
        self.perm = op.startswith("v_permlane")
        self.lds_dma = self.vmem and re.search(r"\blds\b", rest) is not None
        allr = set().union(*R) if R else set()
        if self.mfma:
            self.w = R[0]
            self.A, self.B, self.C = R[1], R[2], R[3]
            self.r = R[1] | R[2] | R[3]
            self.passes = 8 if "32x32" in op else 4
        elif self.valu:
            if (self.perm and "swap" in op) or op.startswith("v_swap"):
                self.w = R[0] | R[1]
                self.r = R[0] | R[1]
            elif op.startswith("v_cmpx"):
                self.w = {("s", "exec")} | R[0]
                self.r = set().union(*R[1:])
            elif op.startswith(("v_add_co", "v_sub_co", "v_addc_co", "v_subb_co", "v_div_scale")):
                self.w = R[0] | R[1]
                self.r = set().union(*R[2:])
            elif op == "v_nop":
                pass
            else:
                self.w = R[0]
                self.r = set().union(*R[1:]) if len(R) > 1 else set()
                if op.startswith(("v_fmac", "v_mac", "v_dot2c", "v_writelane")) or self.dpp or "sdwa" in op or "dst_sel" in rest:
                    self.r = self.r | R[0]
                if op.startswith("v_cndmask") and len(toks) == 3:
                    self.r = self.r | {("s", "vcc")}
        elif self.vmem:
            if "_load" in op and not self.lds_dma:
                self.w = R[0]
                self.r = set().union(*R[1:])
            elif "atomic" in op and re.search(r"\bsc0\b", rest):
                self.w = R[0]
                self.r = allr
            else:
                self.r = allr
            if self.lds_dma:
                self.r = self.r | {("s", "m0")}
            self.wide = ("store" in op and ("x3" in op or "x4" in op)) or "cmpswap_x2" in op
            self.data = R[0] if op.startswith("buffer_") else (R[1] if len(R) > 1 else set())
        elif self.ds:
            if op.startswith(("ds_read", "ds_bpermute", "ds_permute", "ds_swizzle")) or "_rtn" in op:
                self.w = R[0]
                self.r = set().union(*R[1:]) if len(R) > 1 else set()
            else:
                self.r = allr
        elif self.salu:
            if op.startswith(("s_cmp", "s_cbranch", "s_branch", "s_waitcnt", "s_barrier", "s_nop", "s_endpgm",
                              "s_setprio", "s_sleep", "s_bitcmp", "s_setreg")):
                self.r = allr
            else:
                self.w = R[0] if R else set()
                self.r = set().union(*R[1:]) if len(R) > 1 else set()
                if "saveexec" in op:
                    self.w = self.w | {("s", "exec")}

    def states(self):
        if self.op == "s_nop":
            return int(self.ops[0]) + 1
        return 1


def need(p, c):
    n = 0
    vw = {x for x in p.w if x[0] in "va"}
    sw = {x for x in p.w if x[0] == "s"}
    if p.valu and p.op.startswith("v_dot"):
        if c.op == p.op:
            ab = set().union(*[regs_of(x) for x in c.ops[1:3]])
            if vw & ab:
                n = max(n, 3)
        elif vw & (c.r | c.w):
            n = max(n, 3)
    if p.valu:
        if c.mfma and vw & c.r:
            n = max(n, 2)
        if c.mfma and p.op.startswith("v_pk_"):
            n = max(n, 1)
        if c.valu:
            if p.trans and not c.trans and vw & c.r:
                n = max(n, 1)
            if (c.dpp or c.perm) and vw & c.r:
                n = max(n, 2)
            if c.op.startswith(("v_readfirstlane", "v_readlane")) and vw & c.r:
                n = max(n, 1)
            if sw & c.r:
                n = max(n, 4 if c.op.startswith(("v_readlane", "v_writelane", "v_div_fmas")) else 2)
            if ("s", "exec") in sw:
                n = max(n, 5 if c.dpp else 4)
            if ("op_sel" in p.mods and not p.op.startswith("v_pk_")) or "dst_sel" in p.mods:
                if vw & (c.r | c.w):
                    n = max(n, 1)
        if c.vmem and sw & c.r:
            n = max(n, 5)
        if c.mfma and ("s", "exec") in sw:
            n = max(n, 4)
    if p.mfma:
        big = p.passes == 8
        if c.mfma:
            if p.w & (c.A | c.B):
                n = max(n, 12 if big else 8)
            if p.w & c.C and not (p.w == c.C and p.passes == c.passes):
                n = max(n, 10 if big else 6)
            if p.w & c.w and not (p.w == c.C):
                n = max(n, 0)
        elif c.valu or c.vmem or c.ds:
            if p.w & (c.r | c.w):
                n = max(n, 12 if big else 8)
            if (c.valu) and p.C & c.w:
                n = max(n, 7 if big else 3)
    if p.vmem and getattr(p, "wide", False):
        if p.data & c.w:
            n = max(n, 2 if c.valu else 1)
    if p.salu and ("s", "m0") in sw and c.vmem and c.lds_dma:
        n = max(n, 1)
    return n


class Asm:
    def __init__(self):
        self.lines = []

    def __call__(self, text):
        for ln in text.split("\n"):
            ln = ln.strip()
            if ln:
                self.lines.append(ln)

    def label(self, name):
        self.lines.append(name + ":")

    def hazard_pass(self, verbose=False):
        ins = [Ins(x) for x in self.lines]
        inserted = 0
        changed = True
        while changed:
            changed = False
            br = {}
            for x in ins:
                if x.op.startswith(("s_cbranch", "s_branch")):
                    br.setdefault(x.ops[0], []).append(x)
            for k, x in enumerate(ins):
                x.idx = k
            pad = {}
            for i, c in enumerate(ins):
                if not c.op or c.op == "s_nop":
                    continue
                worst = 0
                why = None
                stack = [(i - 1, 0)]
                seen = set()
                while stack:
                    j, d = stack.pop()
                    while j >= 0 and d < 13:
                        if (j, d) in seen:
                            break
                        seen.add((j, d))
                        p = ins[j]
                        if p.label:
                            for b in br.get(p.text[:-1], []):
                                stack.append((b.idx, d))
                            k = j - 1
                            while k >= 0 and not ins[k].op:
                                if ins[k].label:
                                    break
                                k -= 1
                            if k >= 0 and ins[k].op in ("s_branch", "s_endpgm"):
                                break
                            j -= 1
                            continue
                        if not p.op:
                            j -= 1
                            continue
                        n = need(p, c)
                        if n - d > worst:
                            worst = n - d
                            why = p.text
                        d += p.states() + pad.get(j, 0)
                        j -= 1
                if worst > 0:
                    if verbose:
                        print(f"hazard: +{worst} before '{c.text}' (after '{why}')")
                    pad[i] = worst
                    inserted += 1
                    changed = True
            if pad:
                new = []
                for i, c in enumerate(ins):
                    if i in pad:
                        new.append(Ins(f"s_nop {pad[i]-1}"))
                    new.append(c)
                ins = new
        self.lines = [x.text for x in ins]
        return inserted

    def text(self):
        out = []
        for ln in self.lines:
            if ln.endswith(":") or ln.startswith("."):
                out.append(ln)
            else:
                out.append("    " + ln)
        return "\n".join(out) + "\n"
```

```python
import sys, os, struct, math, re
sys.path.insert(0, os.path.join(os.path.dirname(os.path.abspath(__file__)), "tools"))
from asmlib import *

NAME = "interleave_layers__sliding_block__moe_arch_mod__prompt"
KB, MB = 1 << 10, 1 << 20
ARGS = sys.argv[1:]


def opt(name, default):
    for x in ARGS:
        if x.startswith(name + "="):
            t = x.split("=", 1)[1]
            return eval(t) if isinstance(default, (list, tuple, dict)) else type(default)(t)
    return default


PROF = "-prof" in ARGS
USELOC = opt("loc", 1)
LSTR = 16 * MB
KVB, OFB, AR = 0, 8 * MB, 12 * MB
STAT, PY, CAND, CUB, SM = AR, AR + 512 * KB, AR + 1408 * KB, AR + 1536 * KB, AR + 1792 * KB
TABLE, KVF, OFL, X2R = SM, SM + 4 * KB, SM + 8 * KB, SM + 16 * KB
XFB = 32 * MB
STAT0, CUB0 = 36 * MB, 37 * MB
PROFOFF = 100 * MB
EPS = 1e-5
QSCALE = (32 ** -0.5) * math.log2(math.e)
ONES = "0x3f803f80"
T_A, T_M, T_CS, T_C, T_D, T_IDX, T_INB = 0, 512, 1024, 2048, 2560, 3072, 3328
L_W, WSL, L_X, XSL = 40960, 24576, 147456, 16384
L_Q, L_KV, KVH = 49152, 65536, 49152
sW, sRB, sHG, sL, sLIM, sW4, sF = 3, 24, 25, 26, 27, 28, 29
MS = 40
sCU, sIDX, sR, sMEAN, sRSTD, sLOC, sCNT, sCI = 72, 73, 74, 75, 76, 77, 78, 79
XS, WOS, TS, WS_, WSP = 4, 8, 12, 16, 20
TS2 = 80
sSX, sSW, sMX, sMW = 84, 85, 86, 87
sKa, sKb, sD0, sD1, sCG, sT, sPATCH, sMO = 94, 95, 96, 97, 98, 99, 100, 101
LN, L16, PRF2, PRF = 252, 253, 254, 255
P, WR, CC, DD, WSUM, EVO = 208, 224, 240, 241, 242, 243
GW, UW, DW, SPARE = 156, 188, 220, 155
CSUM = 2


def fl(x):
    return "0x%08x" % struct.unpack("<I", struct.pack("<f", x))[0]


A = Asm()
_lab = [0]
WSR = f"s[{WSP}:{WSP+3}]"


def newlab(p):
    _lab[0] += 1
    return f"{p}_{_lab[0]}"


def srd_fin(d, nbytes):
    A(f"s_mov_b32 s{d+2}, {hex(nbytes)}")
    A(f"s_mov_b32 s{d+3}, 0x20000")


def srd_load(d, karg, nbytes):
    A(f"s_load_dwordx2 s[{d}:{d+1}], s[0:1], {karg}")
    srd_fin(d, nbytes)
    A("s_waitcnt lgkmcnt(0)")


def cap(fn):
    keep = A.lines
    A.lines = []
    fn()
    out = A.lines
    A.lines = keep
    return out


def tagged(tag, fn):
    for ln in cap(fn):
        if ln.startswith("buffer_") and ";@" not in ln:
            ln += f" ;@{tag}"
        A.lines.append(ln)


def W(tags, lgkm=None):
    A.lines.append(f"@wait {tags} {'' if lgkm is None else lgkm}")


def cond(key, fn):
    A.lines.append(f"@cond {key}")
    fn()
    A.lines.append("@endcond")


def resolve(lines):
    out, issued, stack = [], [], []
    for ln in lines:
        if ln.startswith("@cond"):
            stack.append(ln.split()[1])
        elif ln == "@endcond":
            stack.pop()
        elif ln == "@reset":
            issued = []
        elif ln.startswith("@wait"):
            p = ln.split()
            tags = p[1].split(",")
            idx = [i for i, (t, c) in enumerate(issued) if t in tags]
            assert idx, f"wait for unknown tag {tags}"
            n = sum(1 for (t, c) in issued[idx[-1]+1:] if all(k in stack for k in c))
            out.append(f"s_waitcnt vmcnt({min(n, 63)})" + (f" lgkmcnt({p[2]})" if len(p) > 2 else ""))
        else:
            if ln.startswith("buffer_"):
                issued.append((ln.split(";@")[1] if ";@" in ln else None, tuple(stack)))
                ln = ln.split(";@")[0].strip()
            out.append(ln)
    return out


SCCW = ("s_add_", "s_sub_", "s_cmp", "s_and_", "s_or_", "s_xor_", "s_lshl", "s_lshr", "s_min", "s_max", "s_not", "s_bfe", "s_bitcmp")
SCCR = ("s_cselect", "s_cbranch_scc", "s_addc", "s_subb")


def weave(groups, fn, lead=1):
    body = cap(fn)
    n = len(body)
    safe = [True] * (n + 1)
    pos = {ln[:-1]: i for i, ln in enumerate(body) if ln.endswith(":")}
    ex, depth, lastw = True, 0, -1
    for i, ln in enumerate(body):
        if ln.startswith(("s_cbranch", "s_branch")):
            j = pos[ln.split()[1]]
            for k in range(min(i, j) + 1, max(i, j) + 1):
                safe[k] = False
        if ln.startswith(SCCR):
            for k in range(lastw + 1, i + 1):
                safe[k] = False
        if ln.startswith(SCCW):
            lastw = i
        if re.match(r"s_\w+ exec", ln) or "saveexec" in ln:
            ex = ln == "s_mov_b64 exec, -1"
        if ln.startswith("@cond"):
            depth += 1
        if ln == "@endcond":
            depth -= 1
        if not ex or depth:
            safe[i + 1] = False
    groups = list(groups)
    for g in groups[:lead]:
        A.lines += g
    groups = groups[lead:]
    k = 0
    for i in range(n + 1):
        while k < len(groups) and safe[i] and i >= (k + 1) * n / (len(groups) + 1):
            A.lines += groups[k]
            k += 1
        if i < n:
            A.lines.append(body[i])
    for g in groups[k:]:
        A.lines += g


MARKS = {}


def mark(name):
    if name not in MARKS:
        MARKS[name] = len(MARKS)
    if PROF:
        A("s_memrealtime s[90:91]")
        if "-profq" not in ARGS:
            A("s_memtime s[92:93]")
        A("s_waitcnt lgkmcnt(0)")
        A(f"v_writelane_b32 v{PRF}, s90, {MARKS[name]}")
        if "-profq" not in ARGS:
            A(f"v_writelane_b32 v{PRF}, s92, {MARKS[name]+32}")


def markq(name):
    if "-profq" in ARGS:
        mark(name)


def prof_next():
    if PROF:
        A(f"v_mov_b32 v{PRF2}, v{PRF}")
        A(f"v_mov_b32 v{PRF}, 0")


def MF(d, a_, b_, c=None):
    cc = v(d, 16) if c is None else (c if isinstance(c, str) else v(c, 16))
    return f"v_mfma_f32_32x32x16_bf16 {v(d,16)}, {v(a_,4)}, {v(b_,4)}, {cc}"


def MF16(d, a_, b_):
    return f"v_mfma_f32_16x16x32_bf16 {v(d,4)}, {v(a_,4)}, {v(b_,4)}, {v(d,4)}"


DPPF = "row_mask:0xf bank_mask:0xf"


def wave_red(r, t, op="add", n=64):
    for sh in ("quad_perm:[1,0,3,2]", "quad_perm:[2,3,0,1]", "row_half_mirror", "row_mirror"):
        A(f"v_{op}_f32_dpp v{r}, v{r}, v{r} {sh} {DPPF}")
    A(f"v_mov_b32 v{t}, v{r}")
    A(f"v_permlane16_swap_b32 v{r}, v{t}")
    A(f"v_{op}_f32 v{r}, v{r}, v{t}")
    if n == 64:
        A(f"v_mov_b32 v{t}, v{r}")
        A(f"v_permlane32_swap_b32 v{r}, v{t}")
        A(f"v_{op}_f32 v{r}, v{r}, v{t}")


def tred4(r):
    A(f"v_permlane32_swap_b32 v{r}, v{r+2}")
    A(f"v_permlane32_swap_b32 v{r+1}, v{r+3}")
    A(f"v_add_f32 v{r}, v{r}, v{r+2}")
    A(f"v_add_f32 v{r+1}, v{r+1}, v{r+3}")
    A(f"v_permlane16_swap_b32 v{r}, v{r+1}")
    A(f"v_add_f32 v{r}, v{r}, v{r+1}")


def sent_check(regs, t):
    regs = list(regs)
    if len(regs) == 1:
        A(f"v_cmp_eq_u32 vcc, -1, v{regs[0]}")
        return
    if len(regs) == 2:
        A(f"v_max_u32 v{t}, v{regs[0]}, v{regs[1]}")
        rest = []
    else:
        A(f"v_max3_u32 v{t}, v{regs[0]}, v{regs[1]}, v{regs[2]}")
        rest = regs[3:]
    while rest:
        if len(rest) >= 2:
            A(f"v_max3_u32 v{t}, v{t}, v{rest[0]}, v{rest[1]}")
            rest = rest[2:]
        else:
            A(f"v_max_u32 v{t}, v{t}, v{rest[0]}")
            rest = rest[1:]
    A(f"v_cmp_eq_u32 vcc, -1, v{t}")


def poll(loads, check, issued=None):
    top, chk, done = newlab("pl"), newlab("pc"), newlab("pd")
    A(f"s_mov_b32 s{sCNT}, s{sLIM}")
    if issued is not None:
        W(issued)
        A(f"s_branch {chk}")
    A.label(top)
    cond(top, lambda: A.lines.extend(x.split(";@")[0].strip() for x in cap(loads)))
    A("s_waitcnt vmcnt(0)")
    A.label(chk)
    check()
    A(f"s_cbranch_vccz {done}")
    A(f"s_sub_u32 s{sCNT}, s{sCNT}, 1")
    A(f"s_cmp_lg_u32 s{sCNT}, 0")
    A(f"s_cbranch_scc1 {top}")
    A(f"s_mov_b32 s{sLIM}, 1")
    A.label(done)


def skip_if(cmp, body, key=None):
    l = newlab("sk")
    A(cmp)
    A(f"s_cbranch_scc1 {l}")
    cond(key or l, body)
    A.label(l)


def st_loc(fn):
    if not USELOC:
        fn("sc1")
        return
    a_, b_ = newlab("lc"), newlab("lc")
    A(f"s_cmp_lg_u32 s{sLOC}, 0")
    A(f"s_cbranch_scc1 {a_}")
    cond(a_, lambda: fn("sc1"))
    A(f"s_branch {b_}")
    A.label(a_)
    fn("")
    A.label(b_)


def flag_store(so, loc=False):
    A("v_mov_b32 v154, 0")
    A("s_mov_b64 exec, 1")
    A("s_waitcnt vmcnt(0)")
    f = lambda bits: A(f"buffer_store_dword v154, v154, {WSR}, {so} offen {bits}")
    if loc:
        st_loc(f)
    else:
        f("sc1")
    A("s_mov_b64 exec, -1")


def masks():
    for reg in range(16):
        G, r = reg >> 2, reg & 3
        key = 16 * (G & 1) + 8 * (G >> 1) + r
        A(f"s_mov_b32 s{MS+2*reg}, {hex((0xFFFFFFFF << key) & 0xFFFFFFFF)}")
        A(f"s_mov_b32 s{MS+2*reg+1}, {hex((0xFFFFFFFF << (key+4)) & 0xFFFFFFFF)}")


def prologue():
    A("s_cmp_ge_u32 s2, 256")
    A("s_cbranch_scc1 k_exit")
    A(f"s_load_dwordx4 s[{XS}:{XS+3}], s[0:1], 0")
    A(f"s_load_dwordx2 s[{WOS}:{WOS+1}], s[0:1], 16")
    A(f"s_load_dwordx2 s[{WSP}:{WSP+1}], s[0:1], 80")
    A(f"s_load_dwordx2 s[{TS}:{TS+1}], s[0:1], 72")
    A(f"s_load_dwordx2 s[{TS2}:{TS2+1}], s[0:1], 32")
    A("v_lshrrev_b32 v1, 6, v0")
    A(f"v_and_b32 v{LN}, 63, v0")
    A(f"v_readfirstlane_b32 s{sW}, v1")
    A(f"v_lshlrev_b32 v{L16}, 4, v{LN}")
    A("s_and_b32 s30, s2, 7")
    A("s_lshr_b32 s31, s2, 3")
    A("s_and_b32 s32, s31, 1")
    A(f"s_lshl_b32 s33, s30, 1")
    A(f"s_add_u32 s{sRB}, s33, s32")
    A(f"s_lshr_b32 s{sHG}, s31, 1")
    A(f"s_add_u32 s33, s33, s{sHG}")
    A(f"s_add_u32 s{sKa}, s33, s32")
    A(f"s_sub_u32 s{sKb}, s33, s32")
    A(f"s_add_u32 s{sCG}, s{sKb}, 15")
    A(f"s_and_b32 s{sCG}, s{sCG}, 15")
    A(f"s_mul_i32 s{sF}, s30, 28")
    A(f"s_lshl_b32 s32, s30, 2")
    A(f"s_add_u32 s32, s32, {224-28}")
    A("s_cmp_lt_u32 s31, 28")
    A(f"s_cselect_b32 s{sF}, s{sF}, s32")
    A(f"s_add_u32 s{sF}, s{sF}, s31")
    A(f"s_lshl_b32 s{sCU}, s{sRB}, 4")
    A(f"s_add_u32 s{sCU}, s{sCU}, s{sHG}")
    A(f"s_mov_b32 s{sL}, 0")
    A(f"s_mov_b32 s{sLIM}, 20000")
    A(f"s_and_b32 s{sW4}, s{sW}, 3")
    A(f"s_lshl_b32 s{sT}, s{sRB}, 2")
    A(f"s_add_u32 s{sT}, s{sT}, s{sW4}")
    A(f"s_lshl_b32 s{sMO}, s{sW4}, 10")
    srd_fin(WS_, 6 * MB)
    srd_fin(WOS, 2 * MB)
    srd_fin(WSP, 128 * MB)
    srd_fin(TS, 256)
    srd_fin(TS2, 2048)
    if PROF:
        A(f"v_mov_b32 v{PRF}, 0")
        A(f"v_mov_b32 v{PRF2}, 0")
    mark("start")
    A(f"s_cmp_ge_u32 s{sW}, 4")
    A("s_cbranch_scc1 l_start")


def ptr_fin():
    A("s_waitcnt lgkmcnt(0)")
    A(f"s_mov_b64 s[{WS_}:{WS_+1}], s[{XS+2}:{XS+3}]")
    srd_fin(XS, 4 * MB)


def wo_voff(dst):
    A(f"v_bfe_u32 v20, v{LN}, 3, 2")
    A(f"v_lshrrev_b32 v21, 5, v{LN}")
    A("v_lshl_add_u32 v20, v21, 3, v20")
    A(f"s_lshr_b32 s32, s{sW4}, 1")
    A("s_lshl_b32 s32, s32, 4")
    A(f"s_and_b32 s33, s{sW4}, 1")
    A("s_lshl_b32 s33, s33, 2")
    A("s_add_u32 s32, s32, s33")
    A("v_add_u32 v20, s32, v20")
    A("v_lshlrev_b32 v20, 11, v20")
    A(f"v_lshrrev_b32 v21, 2, v{LN}")
    A("v_and_b32 v21, 4, v21")
    A(f"v_xor_b32 v21, v21, v{LN}")
    A("v_and_b32 v21, 7, v21")
    A("v_lshl_add_u32 v20, v21, 4, v20")
    A(f"s_lshl_b32 s32, s{sCG}, 7")
    A(f"v_add_u32 v{dst}, s32, v20")


ROT = opt("rot", 1)


def wo_groups(slots, vo, tag):
    gs = []
    for j in slots:
        g = []
        if ROT:
            g += [f"s_add_u32 s{sD0}, s{sHG}, {j & 15}", f"s_and_b32 s{sD0}, s{sD0}, 15", f"s_lshl_b32 s{sD0}, s{sD0}, 17"]
            if j >= 16:
                g += [f"s_add_u32 s{sD0}, s{sD0}, 65536"]
        else:
            g += [f"s_mov_b32 s{sD0}, {(2*(j & 15) + (j >> 4))*65536}"]
        g += [f"s_add_u32 m0, s{sMO}, {4096*j}",
              f"buffer_load_dwordx4 v{vo}, s[{WOS}:{WOS+3}], s{sD0} offen lds ;@{tag}"]
        gs.append(g)
    return gs


def emit(groups):
    for g in groups:
        A.lines += g


FR = [96, 136]
XB, WB, XC, WC = 176, 178, 180, 182
KOF, VOF, KLD, VLD, QLD, TA = 244, 245, 246, 247, 248, 184
RA = 192


def e_init():
    ptr_fin()
    A(f"v_lshrrev_b32 v5, 5, v{LN}")
    A("v_lshlrev_b32 v6, 3, v5")
    A(f"s_lshl_b32 s33, s{sCG}, 7")
    for g in range(8):
        A(f"buffer_load_dwordx2 {v(WR+2*g,2)}, v6, s[{TS2}:{TS2+3}], s33 offen offset:{16*g}")
    masks()
    wo_voff(EVO)
    A(f"s_and_b32 s34, s{sW}, 1")
    A(f"s_lshr_b32 s35, s{sW}, 1")
    A(f"v_and_b32 v4, 15, v{LN}")
    A(f"v_lshrrev_b32 v7, 4, v{LN}")
    A("v_lshrrev_b32 v6, 1, v4")
    A("v_xor_b32 v6, v6, v7")
    A("v_lshlrev_b32 v6, 4, v6")
    A("v_lshl_add_u32 v6, v4, 7, v6")
    A("s_lshl_b32 s30, s34, 13")
    A(f"v_add_u32 v{XB}, s30, v6")
    A(f"v_xor_b32 v{XB+1}, 64, v{XB}")
    A("s_lshl_b32 s30, s35, 1")
    wtr_addr(WB, "s30", L_W)
    A(f"v_xor_b32 v{WB+1}, 32, v{WB}")
    A(f"v_and_b32 v8, 31, v{LN}")
    A("v_bfe_u32 v6, v8, 1, 3")
    A("v_xor_b32 v6, v6, v5")
    A("v_lshlrev_b32 v6, 4, v6")
    A("v_lshl_add_u32 v6, v8, 7, v6")
    A(f"s_lshl_b32 s30, s{sW}, 12")
    A(f"s_add_u32 s30, s30, {L_X}")
    A(f"v_add_u32 v{RA}, s30, v6")
    for ks in range(1, 4):
        A(f"v_xor_b32 v{RA+ks}, {32*ks}, v{RA}")
    A("s_lshl_b32 s30, s34, 8")
    A(f"v_lshl_add_u32 v{TA}, v4, 2, s30")
    A(f"v_lshl_add_u32 v{TA+1}, v7, 4, s30")
    A("s_lshl_b32 s30, s35, 7")
    A(f"v_lshl_add_u32 v{TA+2}, v7, 4, s30")
    A(f"s_add_u32 s30, s30, {T_CS+512}")
    A(f"v_lshl_add_u32 v{TA+3}, v4, 2, s30")
    A(f"s_lshl_b32 s30, s{sW}, 7")
    A(f"s_add_u32 s30, s30, {T_C}")
    A(f"v_lshl_add_u32 v{TA+4}, v8, 2, s30")
    A(f"v_mov_b32 v{TA+5}, 0")
    A("v_lshlrev_b32 v6, 9, v7")
    A(f"v_lshl_add_u32 v{VOF}, v4, 4, v6")
    A("v_and_b32 v9, 8, v4")
    A(f"v_lshl_add_u32 v{KOF}, v9, 4, v{VOF}")
    A(f"s_mul_i32 s30, s35, {KVH}")
    A("s_lshl_b32 s31, s34, 13")
    A("s_add_u32 s30, s30, s31")
    A(f"s_add_u32 s30, s30, {L_KV+8*4096}")
    A(f"v_add_u32 v{KLD}, s30, v{KOF}")
    A(f"v_add_u32 v{VLD}, s30, v{VOF}")
    A(f"s_lshl_b32 s30, s{sW}, 12")
    A(f"s_add_u32 s30, s30, {L_Q}")
    A(f"v_add_u32 v{QLD}, s30, v{VOF}")
    A(f"v_mov_b32 v{WSUM}, 0")
    for i in range(96):
        A(f"v_mov_b32 v{i}, 0")
    A("s_waitcnt vmcnt(0)")
    for p in range(16):
        A(f"v_dot2c_f32_bf16 v{WSUM}, {ONES}, v{WR+p}")
    A("s_setprio 1")


def wtr_addr(dst, ct, base):
    A(f"v_lshrrev_b32 v20, 2, v{LN}")
    A("v_bfe_u32 v21, v20, 1, 2")
    if ct is not None:
        A(f"v_xor_b32 v21, {ct}, v21")
    A("v_lshlrev_b32 v20, 7, v20")
    A("v_lshl_add_u32 v20, v21, 5, v20")
    A(f"v_and_b32 v21, 3, v{LN}")
    A("v_lshl_add_u32 v20, v21, 3, v20")
    A(f"v_add_u32 v{dst}, {base}, v20")


def accq(c, t):
    return 64 + (c & 1) * 16 + t * 4 if c >= 4 else (c >> 1) * 32 + t * 8 + (c & 1) * 4


def e_qphase():
    A.label("e_q")
    A.lines.append("@reset")
    A("s_mov_b32 s31, 0")
    A(f"s_mov_b32 s32, {L_X}")
    A("s_mov_b32 s36, 15")
    for i in range(2):
        A(f"v_add_u32 v{XC+i}, s32, v{XB+i}")
        A(f"v_mov_b32 v{WC+i}, v{WB+i}")

    def rd(fs, kk):
        f = FR[fs]
        x = [f"ds_read_b128 {v(f+4*t,4)}, v{XC+kk} offset:{t*2048}" for t in range(4)]
        w = [f"ds_read_b64_tr_b16 {v(f+16+8*seg+4*u+2*j,2)}, v{WC+u} offset:{seg*8192+kk*4096+j*2048}"
             for seg in range(3) for u in range(2) for j in range(2)]
        return [x[0], w[0], w[1], x[1], x[2], x[3]] + w[2:]

    def mf(fs, cs=range(6), snake=True):
        f = FR[fs]
        m = []
        for c in cs:
            for t in range(4):
                if snake and c & 1:
                    t = 3 - t
                a_, b_ = f + 16 + 4 * c, f + 4 * t
                if c >= 4:
                    a_, b_ = b_, a_
                m.append(MF16(accq(c, t), a_, b_))
        return m

    mark("q_wait")
    A("s_barrier")
    mark("q_go")
    for x in rd(0, 0):
        A(x)
    adv = [[f"s_add_u32 s31, s31, {WSL}", f"s_sub_u32 s32, s32, {XSL}"],
           [f"s_cmp_ge_u32 s31, {3*WSL}", "s_cselect_b32 s31, 0, s31", f"s_cselect_b32 s32, {L_X}, s32"],
           [f"v_add_u32 v{WC}, s31, v{WB}", f"v_add_u32 v{XC}, s32, v{XB}"],
           [f"v_add_u32 v{WC+1}, s31, v{WB+1}", f"v_add_u32 v{XC+1}, s32, v{XB+1}"],
           ["s_sub_u32 s36, s36, 1", "s_cmp_eq_u32 s36, 0"]]
    A.label("e_loop")
    for ks in range(2):
        m, r = mf(ks), rd(ks ^ 1, ks ^ 1)
        A("s_waitcnt lgkmcnt(0)")
        A(m[0])
        if ks == 1:
            A("s_barrier")
        for i in range(1, 24):
            if i <= 16:
                A(r[i-1])
            elif ks == 0 and i - 17 < len(adv):
                A.lines += adv[i-17]
            A(m[i])
    A("s_cbranch_scc0 e_loop")
    m, r = mf(0), rd(1, 1)
    A("s_waitcnt lgkmcnt(0)")
    sal = [[f"s_and_b32 s34, s{sW}, 1", f"s_lshr_b32 s35, s{sW}, 1", f"s_lshl_b32 s30, s{sHG}, 1"],
           ["s_add_u32 s30, s30, s35", "s_lshl_b32 s30, s30, 6", f"s_lshl_b32 s31, s{sRB}, 2"],
           ["s_add_u32 s30, s30, s31", "s_lshl_b32 s31, s34, 1", "s_add_u32 s30, s30, s31"],
           ["s_lshl_b32 s32, s30, 12", f"s_add_u32 s32, s32, s{sL}", "s_add_u32 s33, s32, 4096"]]
    for i in range(24):
        if 1 <= i <= 16:
            A(r[i-1])
        if i == 17:
            A(f"s_cmp_lg_u32 s{sL}, 0")
            A("s_cbranch_scc1 e_nores")
            for ks in range(4):
                A(f"ds_read_b128 {v(P+4*ks,4)}, v{RA+ks}")
            A.label("e_nores")
        if 18 <= i < 22:
            A.lines += sal[i-18]
        A(m[i])
    AV, MV, CSK, CSQ, AK, MK, CSV, IDX = 96, 112, 128, 196, 192, 204, 190, 250
    tab = [f"ds_read2_b32 {v(MK,2)}, v{TA} offset0:128 offset1:144",
           f"ds_read_b128 {v(CSK,4)}, v{TA+2} offset:{T_CS+256}",
           f"ds_read_b128 {v(CSK+4,4)}, v{TA+2} offset:{T_CS+256+64}",
           f"ds_read2_b32 {v(AK,2)}, v{TA} offset0:0 offset1:16",
           f"ds_read2_b32 {v(MK+2,2)}, v{TA} offset0:160 offset1:176",
           f"ds_read2_b32 {v(AK+2,2)}, v{TA} offset0:32 offset1:48",
           f"ds_read2_b32 {v(CSV,2)}, v{TA+3} offset0:0 offset1:16"]
    for t in range(4):
        tab += [f"ds_read_b128 {v(MV+4*t,4)}, v{TA+1} offset:{T_M+64*t}", f"ds_read_b128 {v(AV+4*t,4)}, v{TA+1} offset:{T_A+64*t}"]
    tab += [f"ds_read_b128 {v(CSQ,4)}, v{TA+2} offset:{T_CS}", f"ds_read_b128 {v(CSQ+4,4)}, v{TA+2} offset:{T_CS+64}",
            f"ds_read2_b32 {v(CC,2)}, v{TA+4} offset0:0 offset1:128", f"ds_read_b64 {v(IDX,2)}, v{TA+5} offset:{T_IDX}"]
    so = ["s32", "s33"]

    def sel(hi):
        return ("op_sel:[0,1,0] op_sel_hi:[1,1,1]", "op_sel:[0,1] op_sel_hi:[1,1]") if hi else ("op_sel_hi:[1,0,1]", "op_sel_hi:[1,0]")

    def qk(seg, t, pk=True):
        acc, cs = 32 * seg + 8 * t, (CSQ, CSK)[seg]
        s3, s2 = sel(t & 1)
        if not pk:
            return ([f"v_fma_f32 v{acc+p}, v{cs+p}, -v{MK+t}, v{acc+p}" for p in range(8)] +
                    [f"v_mul_f32 v{acc+p}, v{acc+p}, v{AK+t}" for p in range(8)] +
                    [f"v_cvt_pk_bf16_f32 v{acc+p}, v{acc+2*p}, v{acc+2*p+1}" for p in range(4)])
        o = [f"v_pk_fma_f32 {v(acc+2*p,2)}, {v(cs+2*p,2)}, {v(MK+(t&2),2)}, {v(acc+2*p,2)} {s3} neg_lo:[0,1,0] neg_hi:[0,1,0]" for p in range(4)]
        o += [f"v_pk_mul_f32 {v(acc+2*p,2)}, {v(acc+2*p,2)}, {v(AK+(t&2),2)} {s2}" for p in range(4)]
        o += [f"v_cvt_pk_bf16_f32 v{acc+p}, v{acc+2*p}, v{acc+2*p+1}" for p in range(4)]
        return o
    kep = []
    for t in range(4):
        kep += qk(1, t, opt("kpk", 0) or t >= 2) + [f"buffer_store_dwordx4 {v(32+8*t,4)}, v{KOF}, {WSR}, {so[t>>1]} offen offset:{(t&1)*128} sc1"]
    m = mf(1, [2, 3, 4, 5, 0, 1], False)
    A("s_waitcnt lgkmcnt(0)")
    A(m[0])
    A("s_barrier")
    for i in range(1, 24):
        A.lines += tab[2*(i-1):2*i]
        if i == 11:
            A("s_waitcnt lgkmcnt(13)")
        if i >= 11:
            A.lines += kep[3*(i-11):3*(i-10)]
            if opt("kpk", 0) > 1:
                A(f"s_nop {opt('kpk', 0)-2}")
        A(m[i])
    A.lines += kep[39:]
    mark("q_end")
    A("s_waitcnt lgkmcnt(0)")
    for T in range(2):
        for c in range(2):
            acc = 64 + 16 * c + 8 * T
            s3, _ = sel(c)
            for p in range(4):
                A(f"v_pk_fma_f32 {v(acc+2*p,2)}, {v(MV+8*T+2*p,2)}, {v(CSV,2)}, {v(acc+2*p,2)} {s3} neg_lo:[0,1,0] neg_hi:[0,1,0]")
            for p in range(4):
                A(f"v_pk_mul_f32 {v(acc+2*p,2)}, {v(acc+2*p,2)}, {v(AV+8*T+2*p,2)}")
            for p in range(4):
                A(f"v_cvt_pk_bf16_f32 v{acc+p}, v{acc+2*p}, v{acc+2*p+1}")
            A(f"buffer_store_dwordx4 {v(acc,4)}, v{VOF}, {WSR}, {so[T]} offen offset:{2048+c*256} sc1")
    mark("kv_st")
    for t in range(4):
        A(f"ds_write_b128 v{KLD}, {v(32+8*t,4)} offset:{(t>>1)*4096+(t&1)*128}")
        A(f"v_mul_f32 v{AK+t}, {fl(QSCALE)}, v{AK+t}")
    for t in range(4):
        A.lines += qk(0, t)
        A(f"ds_write_b128 v{VLD}, {v(64+16*(t&1)+8*(t>>1),4)} offset:{(t>>1)*4096+2048+(t&1)*256}")
        A(f"ds_write_b128 v{QLD}, {v(8*t,4)} offset:{(t>>1)*2048+(t&1)*256}")
    A(f"s_lshl_b32 s30, s{sHG}, 8")
    A(f"s_lshl_b32 s31, s{sRB}, 4")
    A("s_add_u32 s30, s30, s31")
    A("s_lshl_b32 s31, s34, 3")
    A("s_add_u32 s30, s30, s31")
    A("s_lshl_b32 s31, s35, 2")
    A("s_add_u32 s30, s30, s31")
    A(f"s_add_u32 s30, s30, s{sL}")
    A(f"s_add_u32 s30, s30, {hex(KVF)}")
    flag_store("s30")
    mark("kv_fl")
    A(f"v_readfirstlane_b32 s{sIDX}, v{IDX}")
    A(f"v_readfirstlane_b32 s{sLOC}, v{IDX+1}")
    patch_flag()

    def unswz():
        for ks in range(4):
            A(f"v_permlane32_swap_b32 v{P+4*ks}, v{P+4*ks+2}")
            A(f"v_permlane32_swap_b32 v{P+4*ks+1}, v{P+4*ks+3}")
    skip_if(f"s_cmp_lg_u32 s{sL}, 0", unswz)


def patch_flag():
    A(f"s_lshr_b32 s39, s{sIDX}, 5")
    A(f"s_lshl_b32 s34, s{sRB}, 2")
    A("s_sub_u32 s39, s39, s34")
    A("s_add_u32 s39, s39, 8")
    A("s_cmp_lt_u32 s39, 12")
    A(f"s_cselect_b32 s{sPATCH}, 1, 0")


Q, PM, AD, MX, SU0, SU1, CB, SM_, O, TM = 4, 12, 20, 21, 22, 23, 24, 40, 88, 152
SA, KF, VF, PP = [56, 72], [104, 112], [120, 128], [136, 144]


def att_setup(team):
    A("v_mov_b32 v20, 0xffff")
    A("v_mov_b32 v21, 0xffff0000")
    for p in range(8):
        A(f"v_cndmask_b32 v22, 0, v20, {s(MS+4*p,2)}")
        A(f"v_cndmask_b32 v23, 0, v21, {s(MS+4*p+2,2)}")
        A(f"v_or_b32 v{PM+p}, v22, v23")
    A(f"s_lshl_b32 s34, s{sW4}, 12")
    A(f"s_add_u32 s34, s34, {L_KV+team*KVH}")
    A(f"v_add_u32 v{AD}, s34, v{L16}")
    A(f"s_lshl_b32 s34, s{sW}, 11")
    A(f"s_add_u32 s34, s34, {L_Q}")
    A(f"v_add_u32 v3, s34, v{L16}")
    for i in range(16):
        A(f"v_mov_b32 v{CB+i}, 0")


def att_qread():
    A(f"ds_read_b128 {v(Q,4)}, v3")
    A(f"ds_read_b128 {v(Q+4,4)}, v3 offset:1024")


def attention(team, hook):
    def rdK(buf, d):
        A(f"ds_read_b128 {v(KF[buf],4)}, v{AD} offset:{(8-d)*4096}")
        A(f"ds_read_b128 {v(KF[buf]+4,4)}, v{AD} offset:{(8-d)*4096+1024}")

    def rdV(buf, d):
        A(f"ds_read_b128 {v(VF[buf],4)}, v{AD} offset:{(8-d)*4096+2048}")
        A(f"ds_read_b128 {v(VF[buf]+4,4)}, v{AD} offset:{(8-d)*4096+3072}")

    def neg_switch(d):
        l = newlab("ng")
        A(f"s_cmp_eq_u32 s{sT}, {d-1}")
        A(f"s_cbranch_scc0 {l}")
        for i in range(16):
            A(f"v_mov_b32 v{CB+i}, {fl(-1e30)}")
        A.label(l)

    def smf(dst, buf, c):
        A(MF(dst, KF[buf], Q, c))
        A(MF(dst, KF[buf] + 4, Q + 4))

    def maxes(src, first):
        for p in range(8):
            if first and p == 0:
                A(f"v_max_f32 v{MX}, v{src}, v{src+1}")
            else:
                A(f"v_max3_f32 v{MX}, v{MX}, v{src+2*p}, v{src+2*p+1}")
    rdK(0, 0)
    rdK(1, 1)
    A("s_waitcnt lgkmcnt(2)")
    smf(SM_, 0, "0")
    hook(1, 0)
    for d in range(1, 9):
        b = d & 1
        if d < 8:
            rdK(b ^ 1, d + 1)
        neg_switch(d)
        A(f"s_waitcnt lgkmcnt({2 if d < 8 else 0})")
        smf(SA[b], b, CB)
        if d >= 2:
            maxes(SA[b ^ 1], d == 2)
        hook(1, d)
    rdK(1, 1)
    rdV(0, 0)
    rdV(1, 8)
    for i in range(16):
        A(f"v_cndmask_b32 v{SM_+i}, v{SA[0]+i}, v{SM_+i}, {s(MS+2*i,2)}")
    maxes(SM_, False)
    A(f"v_mov_b32 v{TM}, v{MX}")
    A(f"v_permlane32_swap_b32 v{MX}, v{TM}")
    A(f"v_max_f32 v{MX}, v{MX}, v{TM}")
    for i in range(16):
        A(f"v_sub_f32 v{CB+i}, 0, v{MX}")
    neg_switch(1)
    A("s_waitcnt lgkmcnt(4)")
    smf(SA[1], 1, CB)
    rdK(0, 2)
    for i in range(16):
        A(f"v_sub_f32 v{SM_+i}, v{SM_+i}, v{MX}")
    for i in range(16):
        A(f"v_exp_f32 v{SM_+i}, v{SM_+i}")
    A(f"v_add_f32 v{SU0}, v{SM_}, v{SM_+1}")
    A(f"v_add_f32 v{SU1}, v{SM_+2}, v{SM_+3}")
    for i in range(4, 16):
        A(f"v_add_f32 v{SU0+(i&1)}, v{SU0+(i&1)}, v{SM_+i}")
    for p in range(8):
        A(f"v_cvt_pk_bf16_f32 v{PP[1]+p}, v{SM_+2*p}, v{SM_+2*p+1}")
    for p in range(8):
        A(f"v_and_b32 v{PP[0]+p}, v{PP[1]+p}, v{PM+p}")
    for p in range(8):
        A(f"v_xor_b32 v{PP[1]+p}, v{PP[1]+p}, v{PP[0]+p}")
    A("s_waitcnt lgkmcnt(2)")
    A(MF(O, VF[0], PP[0], "0"))
    A(MF(O, VF[0] + 4, PP[0] + 4))
    A(MF(O, VF[1], PP[1]))
    A(MF(O, VF[1] + 4, PP[1] + 4))
    hook(2, 0)
    for d in range(1, 8):
        b = d & 1
        rdV(b, d)
        if d < 7:
            neg_switch(d + 1)
            A("s_waitcnt lgkmcnt(2)")
            smf(SA[b ^ 1], b ^ 1, CB)
            if d < 6:
                rdK(b, d + 2)
        src = SA[b]
        for i in range(16):
            A(f"v_exp_f32 v{src+i}, v{src+i}")
        for i in range(16):
            A(f"v_add_f32 v{SU0+(i&1)}, v{SU0+(i&1)}, v{src+i}")
        for p in range(8):
            A(f"v_cvt_pk_bf16_f32 v{PP[b]+p}, v{src+2*p}, v{src+2*p+1}")
        A(f"s_waitcnt lgkmcnt({2 if d < 6 else 0})")
        A(MF(O, VF[b], PP[b]))
        A(MF(O, VF[b] + 4, PP[b] + 4))
        hook(2, d)
    A(f"v_add_f32 v{SU0}, v{SU0}, v{SU1}")
    A(f"v_mov_b32 v{TM}, v{SU0}")
    A(f"v_permlane32_swap_b32 v{SU0}, v{TM}")
    A(f"v_add_f32 v{SU0}, v{SU0}, v{TM}")
    A(f"v_rcp_f32 v{SU0}, v{SU0}")
    A(f"s_lshl_b32 s36, s{sT}, 16")
    A(f"s_add_u32 s36, s36, s{sL}")
    A(f"s_add_u32 s36, s36, {hex(OFB + team*32768)}")
    A(f"s_lshl_b32 s33, s{sHG}, 11")
    A("s_add_u32 s33, s33, s36")
    A(f"s_lshl_b32 s30, s{sRB}, 9")
    A(f"s_lshl_b32 s31, s{sW}, 6")
    A("s_add_u32 s30, s30, s31")
    A(f"s_add_u32 s30, s30, s{sL}")
    A(f"s_add_u32 s30, s30, {hex(OFL)}")
    A(f"s_lshl_b32 s31, s{sHG}, 2")
    A("s_add_u32 s31, s31, s30")
    for p in range(8):
        A(f"v_pk_mul_f32 {v(O+2*p,2)}, {v(O+2*p,2)}, {v(SU0,2)} op_sel_hi:[1,0]")
    for p in range(8):
        A(f"v_cvt_pk_bf16_f32 v{O+p}, v{O+2*p}, v{O+2*p+1}")

    def st(bits):
        A(f"buffer_store_dwordx4 {v(O,4)}, v{L16}, {WSR}, s33 offen {bits}")
        A(f"buffer_store_dwordx4 {v(O+4,4)}, v{L16}, {WSR}, s33 offen offset:1024 {bits}")
    st_loc(st)
    mark("att_end")


def e_att():
    att_setup(0)
    A("s_waitcnt lgkmcnt(0)")
    mark("x1_wait")
    A("s_barrier")

    def fix():
        A("s_barrier")
        A(f"s_lshr_b32 s34, s{sIDX}, 5")

        def row():
            A(f"s_and_b32 s32, s{sIDX}, 31")
            A(f"v_and_b32 v0, 31, v{LN}")
            A("v_cmp_eq_u32 vcc, s32, v0")
            A(f"v_lshrrev_b32 v0, 5, v{LN}")
            A("v_lshlrev_b32 v0, 4, v0")
            A(f"s_lshl_b32 s34, s{sCG}, 7")
            A(f"s_add_u32 s34, s34, {hex(X2R)}")
            A("s_mov_b64 exec, vcc")
            for ks in range(4):
                A(f"buffer_load_dwordx4 {v(P+4*ks,4)}, v0, {WSR}, s34 offen offset:{32*ks} sc1")
            A(f"v_mov_b32 v{CC}, 1.0")
            A(f"v_mov_b32 v{DD}, 0")
            A("s_mov_b64 exec, -1")
        skip_if(f"s_cmp_lg_u32 s34, s{sT}", row)
    skip_if(f"s_cmp_eq_u32 s{sPATCH}, 0", fix)
    mark("att_go")
    att_qread()
    XE2 = opt("xe2", 5)
    al = wo_groups([0, 12, 13, 14, 15], EVO, "woa")

    def hook(ps, d):
        k = (ps - 1) * 9 + d
        if k == XE2:
            A("s_barrier")
        if 0 <= k - XE2 < 5:
            A.lines += al[k - XE2]
    attention(0, hook)


def table_loads(T):
    def f():
        A(f"s_add_u32 s32, s{sCI}, {hex(TABLE)}")
        A(f"buffer_load_dwordx4 {v(T,4)}, v{L16}, {WSR}, s32 offen sc1")
    return f


def argmax_lane(T, issued=None):
    poll(table_loads(T), lambda: sent_check(range(T, T + 4), T + 4), issued)
    A(f"v_mov_b32 v{T+4}, v{T}")
    wave_red(T + 4, T + 5, "max")
    A(f"v_cmp_eq_f32 vcc, v{T+4}, v{T}")
    A("s_ff1_i32_b64 s32, vcc")
    A("s_and_b32 s32, s32, 63")


def stat_loads(S, base):
    def f():
        A(f"s_lshl_b32 s30, s{sT}, 13")
        A(f"s_add_u32 s30, s30, {hex(base)}")
        A("s_add_u32 s31, s30, 4096")
        for i in range(8):
            A(f"buffer_load_dwordx4 {v(S+4*i,4)}, v{L16}, {WSR}, s{30+(i>>2)} offen offset:{(i&3)*1024} sc1")
    return f


def stat_core(S, E, t, nc=4):
    for i in range(1, 8):
        for c in range(0, nc, 2):
            A(f"v_pk_add_f32 {v(S+c,2)}, {v(S+c,2)}, {v(S+4*i+c,2)}")
    for i in range(nc):
        A(f"v_mov_b32 v{t+i}, v{S+i}")
    for i in range(nc):
        A(f"v_permlane32_swap_b32 v{S+i}, v{t+i}")
    for i in range(nc):
        A(f"v_add_f32 v{S+i}, v{S+i}, v{t+i}")
    A(f"v_mul_f32 v{E+2}, {fl(1/1024)}, v{S}")
    A(f"v_mul_f32 v{S+1}, {fl(1/1024)}, v{S+1}")
    A(f"v_fma_f32 v{S+1}, -v{E+2}, v{E+2}, v{S+1}")
    A(f"v_max_f32 v{S+1}, 0, v{S+1}")
    A(f"v_add_f32 v{E+3}, {fl(EPS)}, v{S+1}")
    A(f"v_rsq_f32 v{E+3}, v{E+3}")


def cand_publish(S, E, t, PR, lay):
    A(f"v_fma_f32 v{E}, -v{E+2}, v{S+3}, v{S+2}")
    A(f"v_and_b32 v{E+1}, 31, v{LN}")
    A(f"v_mul_f32 v{E}, v{E}, v{E+3}")
    A(f"s_lshl_b32 s32, s{sT}, 5")
    A(f"v_add_u32 v{E+1}, s32, v{E+1}")
    A(f"v_mov_b32 v{t}, v{E}")
    wave_red(t, t + 1, "max", 32)
    A(f"v_cmp_eq_f32 vcc, v{t}, v{E}")
    A(f"v_lshrrev_b32 v{t+2}, 5, v{LN}")
    A(f"v_lshlrev_b32 v{t+2}, 4, v{t+2}")
    A(f"s_lshl_b32 s32, s{sT}, 11")
    A(f"s_lshl_b32 s33, s{sCG}, 7")
    A("s_add_u32 s32, s32, s33")
    A(f"s_add_u32 s32, s32, {hex(CAND + lay)}")
    A(f"s_lshl_b32 s34, s{sT}, 4")
    A(f"s_add_u32 s34, s34, {hex(TABLE + lay)}")
    A("s_ff1_i32_b32 s35, vcc_lo")
    A("s_lshl_b32 s35, 1, s35")
    A(f"s_cmp_eq_u32 s{sHG}, 0")
    A("s_cselect_b32 exec_lo, s35, 0")
    A("s_mov_b32 exec_hi, 0")
    cond(newlab("z"), lambda: A(f"buffer_store_dwordx4 {v(E,4)}, v{t+2}, {WSR}, s34 offen sc1"))
    A("s_mov_b32 exec_lo, s35")
    A("s_mov_b32 exec_hi, s35")
    for ks in range(4):
        A(f"buffer_store_dwordx4 {v(PR+4*ks,4)}, v{t+2}, {WSR}, s32 offen offset:{ks*32} sc1")
    A("s_mov_b64 exec, -1")


def xf_off(dst):
    A(f"v_bfe_u32 v{dst}, v{LN}, 4, 1")
    A(f"v_lshlrev_b32 v{dst}, 11, v{dst}")
    A(f"v_lshrrev_b32 v{dst+1}, 5, v{LN}")
    A(f"v_lshl_add_u32 v{dst}, v{dst+1}, 8, v{dst}")
    A(f"v_and_b32 v{dst+1}, 15, v{LN}")
    A(f"v_lshl_add_u32 v{dst}, v{dst+1}, 4, v{dst}")
    A(f"s_lshl_b32 s34, s{sW4}, 12")
    A(f"s_add_u32 s34, s34, {L_X}")
    A(f"v_add_u32 v{dst+1}, s34, v{dst}")


def e_wo():
    D = opt("wod", 8)
    WA, FA, FL, XO, OB = 56, 60, 61, 100, 104
    WF = [32, 40, 48]
    assert OB + 4 * (D + 1) <= 154
    A(f"v_bfe_u32 v33, v{LN}, 2, 2")
    A(f"v_lshrrev_b32 v32, 5, v{LN}")
    A("v_lshl_add_u32 v34, v32, 3, v33")
    A("v_lshlrev_b32 v34, 7, v34")
    A("v_lshrrev_b32 v33, 1, v33")
    A("v_lshl_add_u32 v34, v33, 6, v34")
    A(f"v_bfe_u32 v33, v{LN}, 4, 1")
    A("v_lshl_add_u32 v34, v33, 5, v34")
    A(f"v_and_b32 v33, 3, v{LN}")
    A(f"v_lshl_add_u32 v{WA}, v33, 3, v34")
    A(f"v_xor_b32 v{WA+1}, 64, v{WA}")
    A(f"v_add_u32 v{WA+2}, 0x10000, v{WA}")
    A(f"v_add_u32 v{WA+3}, 0x10000, v{WA+1}")
    A(f"v_and_b32 v{FA}, 15, v{LN}")
    A(f"v_lshlrev_b32 v{FA}, 2, v{FA}")
    W("woa")
    for p in range(16):
        A(f"v_lshlrev_b32 v{2*p}, 16, v{P+p}")
        A(f"v_and_b32 v{2*p+1}, 0xffff0000, v{P+p}")
    for p in range(16):
        A(f"v_pk_fma_f32 {v(2*p,2)}, {v(2*p,2)}, {v(CC,2)}, {v(CC,2)} op_sel:[0,0,1] op_sel_hi:[1,0,1]")
    flag_store("s31", True)
    mark("o_fl")
    A("s_barrier")
    mark("xa")
    emit(wo_groups(range(16, 28), EVO, "wob"))
    xf_off(XO)
    A(f"s_lshl_b32 s37, s{sHG}, 11" if ROT else "s_mov_b32 s37, 0")

    def rd(i):
        f = WF[i % 3]
        return [f"ds_read_b64_tr_b16 {v(f+4*u+2*j,2)}, v{WA+u+2*(i>>5)} offset:{(i&31)*2048+j*512}" for u in range(2) for j in range(2)]

    def ld(i):
        if i == 32:
            A("s_add_u32 s36, s36, 32768")
        if i & 1 == 0:
            A("s_add_u32 s38, s36, s37")
        else:
            A("s_add_u32 s37, s37, 2048")
            A("s_and_b32 s37, s37, 0x7800")
        A(f"buffer_load_dwordx4 {v(OB+4*(i%(D+1)),4)}, v{L16}, {WSR}, s38 offen offset:{(i&1)*1024} sc1 ;@o{i}")

    def fload(off):
        return lambda: A(f"buffer_load_dword v{FL}, v{FA}, {WSR}, s30 offen offset:{off} sc1")
    A.lines += rd(0) + rd(1)
    poll(fload(0), lambda: sent_check([FL], 62))
    mark("o_ok0")
    for i in range(D):
        ld(i)
    FB = opt("wofb", 4)
    for i in range(64):
        f, ob = WF[i % 3], OB + 4 * (i % (D + 1))
        r = rd(i + 2) if i + 2 < 64 else []
        if i in (30, 54):
            A("s_barrier")
        W(f"o{i}", 4 if i < 63 else 0)
        A(MF(0, f, ob))
        if i + D == 32 - FB:
            tagged("fb", fload(256))
        if i + D == 32:
            poll(fload(256), lambda: sent_check([FL], 62), "fb")
            mark("o_ok1")
        if i + D < 64:
            ld(i + D)
        A.lines += r[:2]
        A(MF(16, f + 4, ob))
        A.lines += r[2:]
    mark("wo_end")
    G = 96
    A(f"s_lshl_b32 s35, s{sRB}, 4")
    A(f"s_add_u32 s35, s35, s{sCG}")
    A("s_lshl_b32 s35, s35, 14")
    A(f"s_lshl_b32 s34, s{sW}, 12")
    A("s_add_u32 s35, s35, s34")
    A(f"s_add_u32 s35, s35, {hex(XFB)}")
    A(f"s_lshl_b32 s30, s{sT}, 13")
    A(f"s_add_u32 s30, s30, s{sL}")
    A(f"s_add_u32 s30, s30, {hex(STAT)}")
    A(f"s_lshl_b32 s31, s{sCG}, 9")
    A("s_add_u32 s31, s31, s30")
    for i in range(3):
        A(f"v_mov_b32 v{G+i}, 0")
    A(f"v_mov_b32 v{G+3}, v{WSUM}")
    for p in range(16):
        A(f"v_cvt_pk_bf16_f32 v{P+p}, v{2*p}, v{2*p+1}")

    def xfst():
        st_loc(lambda bits: [A(f"buffer_store_dwordx4 {v(P+4*ks,4)}, v{XO}, {WSR}, s35 offen offset:{ks*512} {bits}") for ks in range(4)])
        for ks in range(4):
            A(f"ds_write_b128 v{XO+1}, {v(P+4*ks,4)} offset:{ks*512}")
    skip_if(f"s_cmp_lg_u32 s{sL}, 0", xfst)
    for p in range(16):
        A(f"v_dot2c_f32_bf16 v{G}, {ONES}, v{P+p}")
        A(f"v_dot2c_f32_bf16 v{G+1}, v{P+p}, v{P+p}")
        A(f"v_dot2c_f32_bf16 v{G+2}, v{WR+p}, v{P+p}")
    for i in range(4):
        A(f"v_mov_b32 v{48+i}, v{G+i}")
    for i in range(4):
        A(f"v_permlane32_swap_b32 v{G+i}, v{48+i}")
    for i in range(4):
        A(f"v_add_f32 v{G+i}, v{G+i}, v{48+i}")
    A("s_mov_b32 exec_hi, 0")
    A("s_waitcnt vmcnt(0)")
    st_loc(lambda bits: A(f"buffer_store_dwordx4 {v(G,4)}, v{L16}, {WSR}, s31 offen {bits}"))
    A("s_mov_b64 exec, -1")
    mark("st_pub")
    A(f"s_cmp_lg_u32 s{sL}, 0")
    A("s_cbranch_scc1 e_final")
    A(f"s_mov_b32 s{sL}, {LSTR}")
    A(f"s_and_b32 s30, s{sW}, 1")
    A("s_lshl_b32 s30, s30, 13")
    A(f"v_add_u32 v{XB}, s30, v{L16}")
    A(f"v_add_u32 v{XB+1}, 1024, v{XB}")
    for i in range(96):
        A(f"v_mov_b32 v{i}, 0")
    prof_next()
    A("s_waitcnt lgkmcnt(0)")
    A("s_branch e_q")
    A.label("e_final")
    S, E = 64, 52
    A(f"s_load_dwordx2 s[{TS}:{TS+1}], s[0:1], 64")
    srd_fin(TS, 4 * MB)
    poll(stat_loads(S, STAT + LSTR), lambda: sent_check(range(S, S + 32), 48))
    mark("st_ok")
    stat_core(S, E, 48)
    cand_publish(S, E, 48, P, LSTR)
    mark("cand")
    A(f"v_add_f32 v{CC}, 1.0, v{E+3}")
    A(f"v_mul_f32 v{DD}, v{E+2}, v{E+3}")
    A(f"v_sub_f32 v{DD}, 0, v{DD}")
    for p in range(16):
        A(f"v_pk_fma_f32 {v(2*p,2)}, {v(2*p,2)}, {v(CC,2)}, {v(CC,2)} op_sel:[0,0,1] op_sel_hi:[1,0,1]")
    for p in range(16):
        A(f"v_cvt_pk_bf16_f32 v{64+p}, v{2*p}, v{2*p+1}")
    for ks in range(4):
        A(f"v_permlane32_swap_b32 v{64+4*ks}, v{64+4*ks+2}")
        A(f"v_permlane32_swap_b32 v{64+4*ks+1}, v{64+4*ks+3}")
    A(f"v_lshl_add_u32 v50, v{E+1}, 11, v50")
    A(f"s_mov_b32 s{sCI}, s{sL}")

    def arg():
        argmax_lane(0)
        A("s_lshl_b64 exec, 1, s32")
        A(f"ds_write_b128 v{TA+5}, v[0:3] offset:{T_IDX}")
        A("s_mov_b64 exec, -1")
    skip_if(f"s_cmp_lg_u32 s{sW}, 0", arg)
    A("s_waitcnt lgkmcnt(0)")
    A("s_barrier")
    A(f"ds_read_b32 v0, v{TA+5} offset:{T_IDX+4}")
    A("s_waitcnt lgkmcnt(0)")
    A("v_and_b32 v0, 0x7ff, v0")
    A(f"v_cmp_ne_u32 vcc, v0, v{E+1}")
    A("s_mov_b64 exec, vcc")
    for ks in range(4):
        A(f"buffer_store_dwordx4 {v(64+4*ks,4)}, v50, s[{TS}:{TS+3}], s33 offen offset:{ks*32}")
    A("s_mov_b64 exec, -1")
    A("s_branch k_end")


STAG = opt("stag", 1)
FV = [152, 152, 153]


def ffn_addr():
    A(f"v_lshrrev_b32 v20, 2, v{LN}")
    A("v_lshlrev_b32 v20, 2, v20")
    A(f"v_bfe_u32 v21, v{LN}, 1, 1")
    A("v_add_u32 v20, v20, v21")
    A(f"v_mul_u32_u24 v20, {4*7168}, v20")
    A(f"v_and_b32 v21, 1, v{LN}")
    A("v_lshl_add_u32 v20, v21, 4, v20")
    A(f"s_mul_i32 s30, s{sW4}, {256*7168}")
    A(f"s_lshl_b32 s31, s{sF}, 5")
    A("s_add_u32 s30, s30, s31")
    A(f"v_add_u32 v{FV[0]}, s30, v20")
    A("v_lshlrev_b32 v21, 14, v21")
    A(f"v_lshrrev_b32 v20, 1, v{LN}")
    A("v_lshl_add_u32 v20, v20, 4, v21")
    A(f"s_lshl_b32 s30, s{sW4}, 9")
    A(f"s_lshl_b32 s31, s{sF}, 15")
    A("s_add_u32 s30, s30, s31")
    A(f"v_add_u32 v{FV[2]}, s30, v20")


def ffn_groups(which, sd=TS2):
    karg, nb, base = [(40, 1024 * 7168, GW), (48, 1024 * 7168, UW), (56, 3584 * 2048, DW)][which]
    gs = []
    for j in range(8):
        g = []
        if j == 0:
            g += [f"s_load_dwordx2 s[{sd}:{sd+1}], s[0:1], {karg}", f"s_cmp_lt_u32 s{sF}, 224",
                  f"s_cselect_b32 s{sd+2}, {hex(nb)}, 0", f"s_mov_b32 s{sd+3}, 0x20000", "s_waitcnt lgkmcnt(0)"]
        if which == 2:
            g += [f"s_mov_b32 s{sD0}, {j*2048}"]
        elif STAG:
            g += [f"s_xor_b32 s{sD0}, s{sF}, {j >> 1}", f"s_and_b32 s{sD1}, s{sD0}, 2", f"s_and_b32 s{sD0}, s{sD0}, 3",
                  f"s_mul_i32 s{sD1}, s{sD1}, {2*7168}", f"s_mul_i32 s{sD0}, s{sD0}, {2*7168}", f"s_add_u32 s{sD0}, s{sD0}, s{sD1}"]
            if j & 1:
                g += [f"s_add_u32 s{sD0}, s{sD0}, 7168"]
        else:
            g += [f"s_mov_b32 s{sD0}, {((j & 3) + 8*(j >> 2))*7168}"]
        g += [f"buffer_load_dwordx4 {v(base+4*j,4)}, v{FV[which]}, s[{sd}:{sd+3}], s{sD0} offen ;@ffw"]
        gs.append(g)
    return gs


WMAP = {}


def ffn_perm():
    A("s_mov_b32 s30, 0x05040100")
    A("s_mov_b32 s31, 0x07060302")
    free = SPARE
    for m, base in enumerate((GW, UW, DW)):
        for p in range(4):
            for c in range(4):
                a_, b_ = base + 8 * p + c, base + 8 * p + 4 + c
                A(f"v_perm_b32 v{free}, v{b_}, v{a_}, s30")
                A(f"v_perm_b32 v{b_}, v{b_}, v{a_}, s31")
                WMAP[(m, p, 2 * c)] = free
                WMAP[(m, p, 2 * c + 1)] = b_
                free = a_


XG = 24


def ffn_xaddr():
    A(f"s_lshl_b32 s32, s{sW4}, 9")
    A(f"s_sub_u32 s34, s{sF}, 224")
    A("s_lshl_b32 s34, s34, 1")
    A(f"s_add_u32 s89, s34, s{sW4}")
    A(f"s_and_b32 s35, s{sW4}, 1")
    A("s_add_u32 s34, s34, s35")
    A("s_lshl_b32 s34, s34, 5")
    A(f"v_lshrrev_b32 v22, 1, v{LN}")
    A(f"v_and_b32 v23, 1, v{LN}")
    A(f"s_cmp_lt_u32 s{sF}, 224")
    A("s_cselect_b32 s32, s32, s34")
    A("s_cselect_b64 vcc, -1, 0")
    A("v_cndmask_b32 v22, v23, v22, vcc")
    A("v_lshl_add_u32 v22, v22, 4, s32")


def xloads():
    A(f"s_lshr_b32 s33, s{sIDX}, 5")
    A("s_lshl_b32 s33, s33, 11")
    A(f"s_add_u32 s33, s33, s{sCI}")
    A(f"s_add_u32 s33, s33, {hex(CAND)}")
    A(f"buffer_load_dwordx4 {v(XG,4)}, v22, {WSR}, s33 offen sc1")


def ffn_gateup():
    AC = 32
    A(f"v_mov_b32 v28, s{sRSTD}")
    A(f"v_mul_f32 v29, s{sMEAN}, v28")
    for p in range(4):
        A(f"v_lshlrev_b32 v30, 16, v{XG+p}")
        A(f"v_and_b32 v31, 0xffff0000, v{XG+p}")
        A("v_fma_f32 v30, v30, v28, -v29")
        A("v_fma_f32 v31, v31, v28, -v29")
        A(f"v_cvt_pk_bf16_f32 v{XG+p}, v30, v31")
    if STAG:
        for b in range(2):
            skip_if(f"s_bitcmp0_b32 s{sF}, {b}",
                    lambda: [A(f"v_swap_b32 v{XG+p}, v{XG+(p ^ (1 << b))}") for p in range(4) if not p >> b & 1])
    for p in range(4):
        for m in range(2):
            for c in range(8):
                acc = AC + 8 * m + c
                A(f"v_dot2_f32_bf16 v{acc}, v{WMAP[(m,p,c)]}, v{XG+p}, {'0' if p == 0 else 'v%d' % acc}")
    A(f"v_lshrrev_b32 v31, 5, v{LN}")
    A("v_lshlrev_b32 v30, 6, v31")
    for c in range(8):
        A(f"v_permlane32_swap_b32 v{AC+c}, v{AC+8+c}")
    for c in range(8):
        A(f"v_add_f32 v{AC+c}, v{AC+c}, v{AC+8+c}")
    A(f"v_and_b32 v31, 1, v{LN}")
    A("v_lshl_add_u32 v30, v31, 5, v30")
    for c in range(4):
        A(f"v_permlane16_swap_b32 v{AC+c}, v{AC+4+c}")
    for c in range(4):
        A(f"v_add_f32 v{AC+c}, v{AC+c}, v{AC+4+c}")
    A(f"v_and_b32 v31, 16, v{LN}")
    A(f"s_lshl_b32 s32, s{sW4}, 7")
    A("v_add3_u32 v30, v31, v30, s32")
    for sh in ("quad_perm:[2,3,0,1]", "row_ror:4", "row_ror:8"):
        for c in range(4):
            A(f"v_add_f32_dpp v{AC+c}, v{AC+c}, v{AC+c} {sh} {DPPF}")
    A("s_mov_b32 exec_lo, 0x00030003")
    A("s_mov_b32 exec_hi, 0x00030003")
    A(f"ds_write_b128 v30, {v(AC,4)} offset:{T_INB}")
    A("s_mov_b64 exec, -1")


def ffn_down():
    A(f"v_and_b32 v30, 1, v{LN}")
    A(f"v_bfe_u32 v31, v{LN}, 1, 3")
    A("v_lshl_add_u32 v30, v30, 3, v31")
    A("v_lshlrev_b32 v30, 2, v30")
    A(f"v_add_u32 v30, {T_INB}, v30")
    for i in range(4):
        A(f"ds_read2_b32 {v(32+2*i,2)}, v30 offset0:{32*i} offset1:{32*i+16}")
    A(f"v_lshrrev_b32 v30, 2, v{LN}")
    A(f"v_mul_u32_u24 v30, {224*64}, v30")
    A(f"v_and_b32 v31, 3, v{LN}")
    A("v_lshl_add_u32 v30, v31, 4, v30")
    A(f"v_and_b32 v31, 1, v{LN}")
    A("v_cmp_eq_u32 vcc, 1, v31")
    A(f"s_mul_i32 s32, s{sW4}, {16*224*64}")
    A(f"s_lshl_b32 s33, s{sF}, 6")
    A("s_add_u32 s32, s32, s33")
    A(f"s_add_u32 s32, s32, s{sCI}")
    A(f"s_add_u32 s32, s32, {hex(PY)}")
    A("s_waitcnt lgkmcnt(0)")
    A("v_pk_add_f32 v[32:33], v[32:33], v[34:35]")
    A("v_pk_add_f32 v[36:37], v[36:37], v[38:39]")
    A("v_pk_add_f32 v[32:33], v[32:33], v[36:37]")
    A(f"v_mul_f32 v34, {fl(-math.log2(math.e))}, v32")
    A("v_exp_f32 v34, v34")
    A("v_mul_f32 v32, v32, v33")
    A("v_add_f32 v34, 1.0, v34")
    A("v_rcp_f32 v34, v34")
    A("v_mul_f32 v32, v32, v34")
    A(f"v_mov_b32_dpp v33, v32 quad_perm:[2,3,2,3] {DPPF}")
    A("v_cvt_pk_bf16_f32 v32, v32, v33")
    for p in range(4):
        A(f"ds_swizzle_b32 v{36+p}, v32 offset:{hex(1 | (4*p) << 5)}")
    A("s_waitcnt lgkmcnt(0)")
    AC = 40
    for p in range(4):
        for c in range(8):
            A(f"v_dot2_f32_bf16 v{AC+c}, v{WMAP[(2,p,c)]}, v{36+p}, {'0' if p == 0 else 'v%d' % (AC+c)}")
    for c in range(8):
        A(f"v_add_f32_dpp v{AC+c}, v{AC+c}, v{AC+c} quad_perm:[1,0,3,2] {DPPF}")
    for c in range(4):
        A(f"v_cndmask_b32 v{AC+c}, v{AC+c}, v{AC+4+c}, vcc")
    A(f"s_cmp_lt_u32 s{sF}, 224")
    A("s_cselect_b64 exec, -1, 0")
    cond(newlab("z"), lambda: A(f"buffer_store_dwordx4 {v(AC,4)}, v30, {WSR}, s32 offen sc1"))
    A("s_mov_b64 exec, -1")


RP = 32


def red_loads():
    A(f"s_mul_i32 s32, s89, {224*64}")
    A(f"s_add_u32 s32, s32, s{sCI}")
    A(f"s_add_u32 s32, s32, {hex(PY)}")
    for i in range(14):
        A(f"buffer_load_dwordx4 {v(RP+4*i,4)}, v{L16}, {WSR}, s32 offen offset:{(i&3)*1024} sc1")
        if i & 3 == 3:
            A("s_add_u32 s32, s32, 4096")


def red_pre():
    A(f"v_and_b32 v30, 2, v{LN}")
    A("v_cmp_eq_u32 vcc, 2, v30")
    A(f"v_mov_b32 v28, s{sRSTD}")
    A(f"v_mul_f32 v29, s{sMEAN}, v28")
    A("v_add_f32 v28, 1.0, v28")
    A(f"v_cndmask_b32 v30, v{XG}, v{XG+2}, vcc")
    A(f"v_cndmask_b32 v31, v{XG+1}, v{XG+3}, vcc")
    A("v_lshlrev_b32 v92, 16, v30")
    A("v_and_b32 v93, 0xffff0000, v30")
    A("v_lshlrev_b32 v94, 16, v31")
    A("v_and_b32 v95, 0xffff0000, v31")
    for c in range(4):
        A(f"v_fma_f32 v{92+c}, v{92+c}, v28, -v29")
    A(f"v_mov_b32 v96, {fl(-math.log2(math.e))}")
    A(f"v_mul_f32 v96, s{sR}, v96")
    A("v_exp_f32 v96, v96")
    A("v_add_f32 v96, 1.0, v96")
    A("v_rcp_f32 v96, v96")


def red_sum():
    for i in range(1, 14):
        for c in range(0, 4, 2):
            A(f"v_pk_add_f32 {v(RP+c,2)}, {v(RP+c,2)}, {v(RP+4*i+c,2)}")
    for sh in ("row_ror:4", "row_ror:8"):
        for c in range(4):
            A(f"v_add_f32_dpp v{RP+c}, v{RP+c}, v{RP+c} {sh} {DPPF}")
    for sw in ("16", "32"):
        for c in range(4):
            A(f"v_mov_b32 v{RP+4+c}, v{RP+c}")
        for c in range(4):
            A(f"v_permlane{sw}_swap_b32 v{RP+c}, v{RP+4+c}")
        for c in range(4):
            A(f"v_add_f32 v{RP+c}, v{RP+c}, v{RP+4+c}")
    for c in range(4):
        A(f"v_fma_f32 v{RP+c}, v{RP+c}, v96, v{92+c}")
    A(f"v_cvt_pk_bf16_f32 v{RP}, v{RP}, v{RP+1}")
    A(f"v_cvt_pk_bf16_f32 v{RP+1}, v{RP+2}, v{RP+3}")


WCH, XCH, WAC = 100, 132, 140


def wch_reads(st):
    A(f"s_min_u32 s30, s{sW4}, 2")
    A("s_lshl_b32 s30, s30, 13")
    A(f"s_add_u32 s30, s30, {L_W + (st % 3)*WSL}")
    wtr_addr(144, None, "s30")
    for ct in range(1, 4):
        A(f"v_xor_b32 v{144+ct}, {32*ct}, v144")
    for ct in range(4):
        for q in range(4):
            A(f"ds_read_b64_tr_b16 {v(WCH+8*ct+2*q,2)}, v{144+ct} offset:{q*2048}")


def cub_base(base):
    A(f"s_min_u32 s32, s{sW4}, 2")
    A("s_lshl_b32 s32, s32, 12")
    A(f"s_lshl_b32 s33, s{sHG}, 14")
    A("s_add_u32 s32, s32, s33")
    A(f"s_add_u32 s32, s32, {hex(base)}")


def wch_reduce(base, x):
    for ct in range(4):
        A(f"v_mov_b32 v{WAC+ct}, 0")
    for q in range(8):
        for ct in range(4):
            A(f"v_dot2c_f32_bf16 v{WAC+ct}, {ONES if x is None else 'v%d' % (x+q)}, v{WCH+8*ct+q}")
    cub_base(base)
    A(f"s_lshl_b32 s33, s{sRB}, 8")
    A("s_add_u32 s32, s32, s33")
    A(f"v_lshlrev_b32 v20, 2, v{LN}")
    tred4(WAC)
    A(f"buffer_store_dword v{WAC}, v20, {WSR}, s32 offen sc1")


def cub_loads(Z, base):
    cub_base(base)
    for i in range(4):
        A(f"buffer_load_dwordx4 {v(Z+4*i,4)}, v{L16}, {WSR}, s32 offen offset:{i*1024} sc1")


def cub_sum(Z):
    for i in range(1, 4):
        for c in range(0, 4, 2):
            A(f"v_pk_add_f32 {v(Z+c,2)}, {v(Z+c,2)}, {v(Z+4*i+c,2)}")
    tred4(Z)


def tab_write(a_, m_, c_, d_, t):
    A(f"v_cmp_gt_u32 vcc, 32, v{LN}")
    A(f"v_and_b32 v{t}, 31, v{LN}")
    A(f"v_lshrrev_b32 v{t+1}, 5, v{LN}")
    A(f"v_lshlrev_b32 v{t+1}, 9, v{t+1}")
    A(f"v_lshl_add_u32 v{t}, v{t}, 2, v{t+1}")
    A(f"s_lshl_b32 s32, s{sW4}, 7")
    A(f"v_add_u32 v{t}, s32, v{t}")
    A(f"v_cndmask_b32 v{t+1}, {m_}, {a_}, vcc")
    A(f"v_cndmask_b32 v{t+2}, {d_}, {c_}, vcc")
    A(f"ds_write_b32 v{t}, v{t+1} offset:{T_A}")
    A(f"ds_write_b32 v{t}, v{t+2} offset:{T_C}")
    A(f"v_and_b32 v{t}, 15, v{LN}")
    A(f"v_lshrrev_b32 v{t+3}, 4, v{LN}")
    A(f"v_lshl_add_u32 v{t}, v{t}, 2, v{t+3}")
    A(f"s_min_u32 s32, s{sW4}, 2")
    A("s_lshl_b32 s32, s32, 8")
    A(f"v_lshl_add_u32 v{t}, v{t}, 2, s32")
    A(f"ds_write_b32 v{t}, v{CSUM} offset:{T_CS}")


def idx_write():
    A(f"v_mov_b32 v20, s{sIDX}")
    A(f"v_mov_b32 v21, s{sLOC}")
    A("v_mov_b32 v19, 0")
    A(f"ds_write_b64 v19, v[20:21] offset:{T_IDX}")


VX, VW, VO = 4, 8, 14


def l_setup(L):
    A(f"v_lshrrev_b32 v21, 3, v{LN}")
    if L == 0:
        A(f"v_lshrrev_b32 v20, 4, v{LN}")
        A(f"v_xor_b32 v20, v20, v{LN}")
        A("v_and_b32 v20, 7, v20")
        A("v_lshlrev_b32 v20, 4, v20")
        A(f"v_lshl_add_u32 v{VX}, v21, 11, v20")
        A(f"v_xor_b32 v{VX+1}, 64, v{VX}")
        A(f"v_add_u32 v{VX+1}, {16384-1024}, v{VX+1}")
        A(f"v_add_u32 v{VX+2}, {2*(16384-1024)}, v{VX}")
        A(f"v_add_u32 v{VX+3}, {2*(16384-1024)}, v{VX+1}")
        A(f"s_lshl_b32 s{sSX}, s{sT}, 16")
        A(f"s_lshl_b32 s{sSW}, s{sHG}, 7")
        A(f"s_lshl_b32 s{sMX}, s{sW4}, 12")
        A(f"s_mul_i32 s{sMW}, s{sW4}, 6144")
        A("v_and_b32 v20, 4, v21")
        A("v_add_u32 v20, v20, v21")
        A("v_mul_u32_u24 v20, 6144, v20")
    else:
        A(f"s_lshl_b32 s{sSX}, s{sRB}, 18")
        A(f"s_add_u32 s{sSX}, s{sSX}, s{sMX}")
        A(f"s_add_u32 s{sSX}, s{sSX}, {hex(XFB)}")
        A("v_mul_u32_u24 v20, 6144, v21")
    A("v_and_b32 v21, 6, v21")
    A(f"v_xor_b32 v21, v21, v{LN}")
    A("v_and_b32 v21, 7, v21")
    A("v_lshl_add_u32 v20, v21, 4, v20")
    A(f"s_mul_i32 s32, s{sW4}, 3")
    for m in range(3):
        A("s_bfe_u32 s33, s32, 0x10001")
        A(f"s_mul_i32 s33, s33, {32*6144}")
        A("s_and_b32 s34, s32, 1")
        A(f"s_mul_i32 s34, s34, {(4 if L == 0 else 8)*6144}")
        A("s_add_u32 s33, s33, s34")
        A("s_lshr_b32 s34, s32, 2")
        A("s_lshl_b32 s34, s34, 11")
        A("s_add_u32 s33, s33, s34")
        if m == 1:
            A("s_sub_u32 s33, s33, 2048")
        A(f"v_add_u32 v{VW+2*m}, s33, v20")
        A(f"v_add_u32 v{VW+2*m+1}, {16*6144-1024}, v{VW+2*m}")
        if m < 2:
            A("s_add_u32 s32, s32, 1")


def kreg(st):
    return [f"s_add_u32 s{sD0}, s{(sKa, sKb)[st & 1]}, {st}", f"s_and_b32 s{sD0}, s{sD0}, 15"]


def st_x(L, st, tag=None):
    gs = []
    for q in range(4):
        g = []
        if q == 0:
            g += kreg(st) + [f"s_lshl_b32 s{sD1}, s{sD0}, {7 if L == 0 else 14}", f"s_add_u32 s{sD1}, s{sD1}, s{sSX}",
                             f"s_add_u32 m0, s{sMX}, {L_X - XSL*(st % 3)}"]
        if L == 0:
            g += [f"buffer_load_dwordx4 v{VX+q}, s[{XS}:{XS+3}], s{sD1} offen offset:{q*1024} lds ;@{tag or 'st%d' % st}"]
        else:
            g += [f"buffer_load_dwordx4 v{L16}, {WSR}, s{sD1} offen offset:{q*1024} sc1 lds ;@{tag or 'st%d' % st}"]
        gs.append(g)
    return gs


def st_w(st, tag=None):
    gs = []
    for i in range(6):
        g = []
        if i == 0:
            g += kreg(st) + [f"s_mul_i32 s{sD0}, s{sD0}, {64*6144}", f"s_add_u32 s{sD0}, s{sD0}, s{sSW}"]
        if i & 3 == 0:
            g += [f"s_add_u32 m0, s{sMW}, {L_W + WSL*(st % 3) + 1024*i}"]
        g += [f"buffer_load_dwordx4 v{VW+i}, s[{WS_}:{WS_+3}], s{sD0} offen offset:{(i&3)*1024} lds ;@{tag or 'st%d' % st}"]
        gs.append(g)
    return gs


def q_loop(L, jobs, extra, force, lead, pre={}):
    for it in range(16):
        tags = ([f"st{it+1}"] if it < 15 else []) + force.get(it, [])
        if tags:
            W(",".join(tags), 0)
        else:
            A("s_waitcnt lgkmcnt(0)")
        markq(f"w{it}")
        A("s_barrier")
        markq(f"b{it}")
        g = pre.get(it, []) + (st_x(L, it + 3) + st_w(it + 3) if it <= 12 else []) + extra.get(it, [])
        weave(g, lambda: [j() for j in jobs.get(it, [])], lead.get(it, 2))


def isred(body):
    l = newlab("sk")
    A(f"s_cmp_lt_u32 s{sF}, 224")
    A(f"s_cbranch_scc1 {l}")
    A(f"s_cmp_ge_u32 s{sW4}, 2")
    A(f"s_cbranch_scc1 {l}")
    cond("red", body)
    A.label(l)


def l_layer0():
    A.label("l_start")
    A.lines.append("@reset")
    l_setup(0)
    ptr_fin()
    g = st_x(0, 0) + st_w(0) + st_x(0, 1) + st_w(1) + st_x(0, 2) + st_w(2)
    N0, N1 = opt("n0", 8), opt("n1", 17)
    emit(g[:N0])
    masks()
    wo_voff(VO)
    ffn_addr()
    A("s_getreg_b32 s88, hwreg(HW_REG_XCC_ID, 0, 4)")
    A("s_or_b32 s88, s88, 16")
    A(f"s_mov_b32 s{sIDX}, -1")
    A(f"s_mov_b32 s{sPATCH}, 0")
    A(f"v_lshlrev_b32 v15, 2, v{LN}")
    emit(g[N0:N1])
    W("st0")
    A("s_barrier")
    emit(g[N1:])
    S, E, Z = 64, 52, 32

    def clears():
        for i in range(4):
            A(f"v_mov_b32 v{16+i}, -1")
        A(f"s_lshr_b32 s30, s{sW4}, 1")
        A(f"s_mul_i32 s30, s30, {LSTR}")
        A(f"s_and_b32 s31, s{sW4}, 1")
        A("s_lshl_b32 s32, s31, 20")
        A(f"s_lshl_b32 s33, s{sCU}, 10")
        A("s_add_u32 s32, s32, s33")
        A("s_add_u32 s32, s32, s30")
        A(f"s_add_u32 s32, s32, {hex(AR)}")
        for i in range(3):
            A(f"buffer_store_dwordx4 v[16:19], v{L16}, {WSR}, s32 offen sc1 ;@pub")
            A(f"s_add_u32 s32, s32, {256*KB}")
        A(f"s_lshl_b32 s33, s{sCU}, 7")
        A("s_add_u32 s33, s33, s30")
        A(f"s_add_u32 s33, s33, {hex(SM)}")
        A("s_cmp_eq_u32 s31, 0")
        A("s_cselect_b32 s32, s32, s33")
        A("s_cselect_b64 exec, -1, 0xff")
        A(f"buffer_store_dwordx4 v[16:19], v{L16}, {WSR}, s32 offen sc1 ;@pub")
        A("s_mov_b64 exec, -1")

    def part(st):
        A(f"v_and_b32 v28, 31, v{LN}")
        A("v_bfe_u32 v29, v28, 1, 3")
        A(f"v_lshrrev_b32 v30, 5, v{LN}")
        A("v_xor_b32 v29, v29, v30")
        A("v_lshlrev_b32 v29, 4, v29")
        A("v_lshl_add_u32 v28, v28, 7, v29")
        A(f"s_add_u32 s30, s{sMX}, {L_X - XSL*(st % 3)}")
        A("v_add_u32 v28, s30, v28")
        for ks in range(1, 4):
            A(f"v_xor_b32 v{28+ks}, {32*ks}, v28")
        for ks in range(4):
            A(f"ds_read_b128 {v(32+4*ks,4)}, v{28+ks}")
        wch_reads(st)
        for i in range(4):
            A(f"v_mov_b32 v{48+i}, 0")
        A(f"s_lshl_b32 s30, s{sT}, 13")
        A(f"s_lshl_b32 s31, s{sHG}, 9")
        A("s_add_u32 s30, s30, s31")
        A(f"s_add_u32 s30, s30, {hex(STAT0)}")
        A("s_waitcnt lgkmcnt(0)")
        for p in range(16):
            A(f"v_dot2c_f32_bf16 v{48+2*(p&1)}, {ONES}, v{32+p}")
            A(f"v_dot2c_f32_bf16 v{49+2*(p&1)}, v{32+p}, v{32+p}")
        A("v_pk_add_f32 v[48:49], v[48:49], v[50:51]")
        A("v_mov_b32 v50, v48")
        A("v_mov_b32 v51, v49")
        A("v_permlane32_swap_b32 v48, v50")
        A("v_permlane32_swap_b32 v49, v51")
        A("v_pk_add_f32 v[48:49], v[48:49], v[50:51]")
        A("s_mov_b32 exec_hi, 0")
        A(f"buffer_store_dwordx4 v[48:51], v{L16}, {WSR}, s30 offen sc1 ;@pub")
        A("s_mov_b64 exec, -1")
        tagged("pub", lambda: wch_reduce(CUB0, None))

    def arrive():
        A("v_mov_b32 v20, s88")
        A("v_mov_b32 v21, 0")
        A("s_mov_b64 exec, 1")
        A(f"buffer_store_byte v20, v21, s[{TS}:{TS+3}], s{sCU} offen sc1")
        A("s_mov_b64 exec, -1")

    def dbgload():
        A(f"buffer_load_dword v16, v15, s[{TS}:{TS+3}], 0 offen sc1")

    def arrived():
        def chk():
            A("v_and_b32 v17, 0x10101010, v16")
            A("v_cmp_ne_u32 vcc, 0x10101010, v17")
        poll(dbgload, chk, "arr")
        mark("arr")
        tagged("s0", stat_loads(S, STAT0))
        tagged("s0", lambda: cub_loads(Z, CUB0))
        A("s_mul_i32 s30, s88, 0x01010101")
        A("v_cmp_eq_u32 vcc, s30, v16")
        A(f"s_lshl_b32 s31, s{sRB}, 2")
        A("s_lshr_b64 s[30:31], vcc, s31")
        A("s_and_b32 s30, s30, 15")
        A("s_cmp_eq_u32 s30, 15")
        A(f"s_cselect_b32 s{sLOC}, 1, 0")
        idx_write()

    def tables():
        W("s0")
        stat_core(S, E, 48, 2)
        cub_sum(Z)
        A(f"v_mov_b32 v{CSUM}, v{Z}")
        tab_write(f"v{E+3}", f"v{E+2}", "1.0", "0", 48)
    SP, CL, AR_, AP = opt("sp", 2), opt("cl", 0), opt("ar", 4), opt("ap", 7)
    jobs, extra = {}, {}
    for it, j in ((CL, clears), (SP - 1, lambda: part(SP)), (AR_, lambda: skip_if(f"s_cmp_lg_u32 s{sW}, 4", arrive)),
                  (AP, lambda: tagged("arr", dbgload)), (AP + 1, arrived), (AP + 3, tables)):
        jobs.setdefault(it, []).append(j)
    for j, gr in enumerate(wo_groups(range(1, 10), VO, "wo")):
        extra.setdefault(opt("wo0", 2) + j, []).append(gr)
    FFS = opt("ffs", [1, 2, 3, 4, 5, 6, 7, 8, 9, 10, 11, 12, 13, 13, 14, 14] + [13] * 8)
    ff = ffn_groups(0) + ffn_groups(1) + ffn_groups(2, TS)
    assert FFS[16] > AP + 1 and FFS[:16] == sorted(FFS[:16])
    for j in list(range(16, 24)) + list(range(16)):
        extra.setdefault(FFS[j], []).append(ff[j])
    q_loop(0, jobs, extra, {AR_: ["pub"]}, {CL: 10, AR_: 0, AP: 0, AP + 1: 0})


def l_att():
    A.label("l_att")
    A.lines.append("@reset")
    emit(wo_groups([10, 11], VO, "wo"))
    att_setup(1)
    A(f"s_lshr_b32 s33, s{sW4}, 1")
    A(f"s_add_u32 s33, s33, s{sRB}")
    A("s_sub_u32 s33, s33, 2")

    def halo():
        A(f"s_and_b32 s34, s{sW4}, 1")
        A(f"s_lshl_b32 s35, s{sHG}, 7")
        A("s_lshl_b32 s30, s33, 2")
        A("s_add_u32 s35, s35, s30")
        A("s_lshl_b32 s30, s34, 1")
        A("s_add_u32 s35, s35, s30")
        A("s_lshl_b32 s35, s35, 12")
        A(f"s_add_u32 s35, s35, s{sL}")
        A(f"s_lshl_b32 s30, s{sHG}, 8")
        A("s_lshl_b32 s31, s33, 4")
        A("s_add_u32 s30, s30, s31")
        A("s_lshl_b32 s31, s34, 3")
        A("s_add_u32 s30, s30, s31")
        A(f"s_add_u32 s30, s30, s{sL}")
        A(f"s_add_u32 s30, s30, {hex(KVF)}")
        A("v_mov_b32 v40, 0")
        poll(lambda: A(f"buffer_load_dwordx2 v[42:43], v40, {WSR}, s30 offen sc1"), lambda: sent_check([42, 43], 41))
        mark("kv_ok")
        A(f"s_lshl_b32 s30, s{sW4}, 13")
        for hd in range(2):
            for kv in range(2):
                for tt in range(2):
                    A(f"s_add_u32 m0, s30, {L_KV + hd*KVH + tt*4096}")
                    A(f"s_add_u32 s31, s35, {hd*262144 + tt*4096}")
                    for p in range(2):
                        A(f"buffer_load_dwordx4 v{L16}, {WSR}, s31 offen offset:{(2*kv+p)*1024} sc1 lds ;@h{hd}{kv}")
        W("h00")
    skip_if("s_cmp_lt_i32 s33, 0", halo)
    skip_if(f"s_cmp_eq_u32 s{sPATCH}, 0", lambda: A("s_waitcnt vmcnt(0)"))
    mark("x1_wait")
    A("s_barrier")

    def fix():
        A("s_cmp_lg_u32 s38, 0")
        A("s_cselect_b64 exec, -1, 0")
        A("ds_write_b16 v0, v1")
        A("s_mov_b64 exec, -1")
        A("s_waitcnt lgkmcnt(0)")
        A("s_barrier")
    skip_if(f"s_cmp_eq_u32 s{sPATCH}, 0", fix)
    att_qread()
    A("s_waitcnt vmcnt(0) lgkmcnt(0)")
    A("s_barrier")
    mark("att_go")
    XLA = opt("xla", 13)

    def hook(ps, d):
        if (ps - 1) * 9 + d == XLA:
            A("s_barrier")
    attention(1, hook)
    flag_store("s31", True)
    mark("o_fl")
    wo_voff(VO)
    ffn_xaddr()
    A(f"s_mov_b32 s{sCI}, s{sL}")

    def nxt():
        ffn_perm()
        l_setup(1)
        A(f"s_sub_u32 s30, s{sKb}, 1")
        A(f"s_sub_u32 s{sKb}, s{sKa}, 3")
        A(f"s_mov_b32 s{sKa}, s30")
        xf_off(116)
        A(f"v_and_b32 v16, 15, v{LN}")
        A("v_lshlrev_b32 v16, 9, v16")
        srd_load(TS, 64, 4 * MB)
    skip_if(f"s_cmp_lg_u32 s{sL}, 0", nxt)
    A("s_barrier")
    emit(wo_groups(range(28, 32), VO, "wo"))
    A("s_waitcnt vmcnt(0)")
    A("s_barrier")
    A(f"s_cmp_lg_u32 s{sL}, 0")
    A("s_cbranch_scc1 l_tail")


def readsel(T, lane):
    for r_, i in ((sR, 0), (sIDX, 1), (sMEAN, 2), (sRSTD, 3)):
        A(f"v_readlane_b32 s{r_}, v{T+i}, {lane}")
    A(f"s_and_b32 s{sIDX}, s{sIDX}, 2047")


def l_layer1():
    S, E, TB, PR = 64, 52, 16, 100
    A(f"s_mov_b32 s{sL}, {LSTR}")
    emit(st_w(0) + st_w(1))
    A(f"s_lshl_b32 s30, s{sT}, 13")
    A(f"s_add_u32 s30, s30, {hex(STAT)}")
    prof_next()
    W("st0")
    A("s_barrier")
    emit(st_w(2))
    for ks in range(4):
        A(f"ds_read_b128 {v(PR+4*ks,4)}, v117 offset:{ks*512}")
    poll(lambda: A(f"buffer_load_dword v17, v16, {WSR}, s30 offen sc1"), lambda: sent_check([17], 18))
    mark("x_ok")
    emit(st_x(1, 1))
    tagged("stat", stat_loads(S, STAT))

    def stats():
        poll(stat_loads(S, STAT), lambda: sent_check(range(S, S + 32), 48), "stat")
        stat_core(S, E, 48)
        cand_publish(S, E, 48, PR, 0)
        mark("cand")
        A(f"v_add_f32 v56, 1.0, v{E+3}")
        A(f"v_mul_f32 v57, v{E+2}, v{E+3}")
        A("v_mul_f32 v58, v56, v56")
        A("v_sub_f32 v57, 0, v57")
        A(f"v_mul_f32 v58, v58, v{S+1}")
        A(f"v_add_f32 v58, {fl(EPS)}, v58")
        A("v_rsq_f32 v58, v58")
        A("v_mul_f32 v58, v58, v56")
        tab_write("v58", f"v{E+2}", "v56", "v57", 48)

    def arg():
        argmax_lane(TB, "tab")
        readsel(TB, "s32")
        tagged("x", xloads)
        mark("f_arg")
        idx_write()
        patch_flag()

    def gateup():
        poll(xloads, lambda: sent_check(range(XG, XG + 4), 30), "x")
        red_pre()
        ffn_gateup()

    def down():
        ffn_down()
        mark("f_down")

    def red():
        poll(red_loads, lambda: sent_check(range(RP, RP + 56), 30), "red")
        red_sum()
        A("s_lshl_b32 s32, s89, 5")
        A(f"s_add_u32 s32, s32, {hex(X2R)}")
        A(f"v_and_b32 v30, 1, v{LN}")
        A(f"v_bfe_u32 v31, v{LN}, 1, 1")
        A("v_lshlrev_b32 v30, 4, v30")
        A("v_lshl_add_u32 v30, v31, 3, v30")
        A("s_mov_b64 exec, 15")
        A(f"buffer_store_dwordx2 {v(RP,2)}, v30, {WSR}, s32 offen sc1")
        A("s_mov_b64 exec, -1")
        mark("f_red")
    T_, RL, XL, PL = opt("tb", 3), opt("rl", 8), opt("xl", 11), opt("pl", 14)
    SZ = XL + 1

    def x2loads():
        for kk in range(2):
            A(f"buffer_load_dwordx4 {v(XCH+4*kk,4)}, v19, {WSR}, s35 offen offset:{64*kk} sc1")

    def x2():
        A(f"s_add_u32 s35, s{(sKa, sKb)[SZ & 1]}, {SZ}")
        A("s_and_b32 s35, s35, 15")
        A("s_lshl_b32 s35, s35, 7")
        A(f"s_add_u32 s35, s35, {hex(X2R)}")
        A(f"v_and_b32 v19, 48, v{LN}")
        tagged("x2", x2loads)
        wch_reads(SZ)

    def z():
        poll(x2loads, lambda: sent_check(range(XCH, XCH + 8), 30), "x2")
        wch_reduce(CUB + LSTR, XCH)
        mark("f_z")
    Z, XR = 32, 48

    def zloads():
        cub_loads(Z, CUB + LSTR)
        A(f"s_mov_b32 s32, {hex(X2R)}")
        for i in range(2):
            A(f"buffer_load_dwordx4 {v(XR+4*i,4)}, v{L16}, {WSR}, s32 offen offset:{1024*i} sc1")

    def paddr():
        tagged("z", zloads)
        A(f"v_and_b32 v20, 7, v{LN}")
        A(f"v_lshrrev_b32 v21, 4, v{LN}")
        A("v_lshl_add_u32 v21, v20, 2, v21")
        A(f"s_and_b32 s34, s{sIDX}, 31")
        A("s_and_b32 s32, s34, 7")
        A("s_and_b32 s33, s34, 8")
        A("s_lshl_b32 s33, s33, 1")
        A("s_add_u32 s32, s32, s33")
        A("s_lshr_b32 s33, s34, 4")
        A("s_lshl_b32 s33, s33, 3")
        A("s_add_u32 s32, s32, s33")
        A(f"s_cmp_eq_u32 s{sW4}, 1")
        A("s_cselect_b32 s34, s32, s34")
        A("v_mov_b32 v20, s34")
        A(f"s_cmp_ge_u32 s{sW4}, 2")
        A("s_cselect_b64 vcc, -1, 0")
        A("s_cselect_b32 s32, 2048, 0")
        A("v_cndmask_b32 v30, v20, v21, vcc")
        A("v_cndmask_b32 v31, v21, v20, vcc")
        A("v_lshlrev_b32 v0, 4, v30")
        A("v_bfe_u32 v20, v31, 2, 2")
        A("v_lshl_add_u32 v0, v20, 9, v0")
        A("v_lshrrev_b32 v20, 4, v31")
        A("v_lshl_add_u32 v0, v20, 3, v0")
        A("v_and_b32 v20, 3, v31")
        A("v_lshl_add_u32 v0, v20, 1, v0")
        A("s_lshl_b32 s33, s39, 12")
        A("s_add_u32 s33, s33, s32")
        A(f"s_add_u32 s33, s33, {L_KV}")
        A("s_lshl_b32 s34, s39, 11")
        A(f"s_add_u32 s34, s34, {L_Q - 8*2048}")
        A("s_cmp_ge_u32 s39, 8")
        A("s_cselect_b32 s38, 1, 0")
        A("s_movk_i32 s32, 8192")
        A(f"s_cmp_eq_u32 s{sW4}, 0")
        A("s_cselect_b32 s33, s34, s33")
        A(f"s_cselect_b32 s32, s32, {KVH}")
        A("s_cselect_b32 s38, s38, 1")
        A(f"s_cselect_b32 s37, {fl(QSCALE)}, 1.0")
        A(f"v_bfe_u32 v20, v{LN}, 3, 1")
        A("v_mul_u32_u24 v20, s32, v20")
        A("v_add3_u32 v0, v0, v20, s33")

    def pval():
        poll(zloads, lambda: sent_check(range(Z, Z + 24), 30), "z")
        A("v_mov_b32 v28, 0")
        A("v_mov_b32 v29, 0")
        for p in range(8):
            A(f"v_dot2c_f32_bf16 v28, {ONES}, v{XR+p}")
            A(f"v_dot2c_f32_bf16 v29, v{XR+p}, v{XR+p}")
        cub_sum(Z)
        wave_red(28, 30)
        wave_red(29, 30)
        A(f"v_mul_f32 v28, {fl(1/1024)}, v28")
        A(f"v_mul_f32 v29, {fl(1/1024)}, v29")
        A("v_fma_f32 v29, -v28, v28, v29")
        A("v_max_f32 v29, 0, v29")
        A(f"v_add_f32 v29, {fl(EPS)}, v29")
        A("v_rsq_f32 v29, v29")
        A(f"v_fma_f32 v{Z}, -v28, v{CSUM}, v{Z}")
        A("v_mul_f32 v29, s37, v29")
        A(f"v_mul_f32 v{Z}, v{Z}, v29")
        A(f"v_cvt_pk_bf16_f32 v1, v{Z}, v{Z}")
        mark("f_patch")
    pat = lambda f: (lambda: skip_if(f"s_cmp_eq_u32 s{sPATCH}, 0", f, "pat"))
    jobs = {}
    for it, j in ((0, stats), (T_, lambda: tagged("tab", table_loads(TB))), (T_ + 1, arg), (T_ + 2, gateup), (T_ + 3, down),
                  (RL, lambda: isred(lambda: tagged("red", red_loads))), (RL + 1, lambda: isred(red)),
                  (XL, x2), (XL + 1, z), (PL, pat(paddr)), (min(PL + 1, 15), pat(pval))):
        jobs.setdefault(it, []).append(j)
    q_loop(1, jobs, {}, {}, opt("lead", {0: 4, T_: 0, T_ + 1: 0, RL: 0, RL + 1: 10, XL: 0}), {0: st_x(1, 2)})
    A("s_branch l_att")
    A.label("l_tail")
    A.lines.append("@reset")
    A("v_mov_b32 v20, 0")
    A("s_barrier")
    A(f"ds_read_b128 {v(TB,4)}, v20 offset:{T_IDX}")
    A("s_waitcnt lgkmcnt(0)")
    readsel(TB, "0")
    mark("t_arg")
    poll(xloads, lambda: sent_check(range(XG, XG + 4), 30))
    mark("t_x")
    A(f"s_cmp_ge_u32 s{sF}, 224")
    A("s_cbranch_scc1 l_tred")
    ffn_gateup()
    A("s_waitcnt lgkmcnt(0)")
    A("s_barrier")
    ffn_down()
    mark("f_down")
    A("s_branch k_end")
    A.label("l_tred")
    A(f"s_cmp_ge_u32 s{sW4}, 2")
    A("s_cbranch_scc1 k_end")
    red_pre()
    poll(red_loads, lambda: sent_check(range(RP, RP + 56), 30))
    mark("t_py")
    red_sum()
    A(f"s_lshl_b32 s32, s{sIDX}, 11")
    A("s_lshl_b32 s33, s89, 5")
    A("s_add_u32 s32, s32, s33")
    A(f"v_lshlrev_b32 v30, 3, v{LN}")
    A("s_mov_b64 exec, 15")
    A(f"buffer_store_dwordx2 {v(RP,2)}, v30, s[{TS}:{TS+3}], s32 offen sc1")
    A("s_mov_b64 exec, -1")


def main():
    out = [x for x in ARGS if x.endswith(".s")]
    out = out[0] if out else os.path.join(os.path.dirname(os.path.abspath(__file__)), NAME + ".s")
    K = NAME + "_kernel"
    A(f".globl {K}")
    A(".p2align 8")
    A(f".type {K},@function")
    A.label(K)
    cap(ffn_perm)
    prologue()
    e_init()
    e_qphase()
    e_att()
    e_wo()
    l_layer0()
    l_att()
    l_layer1()
    A.label("k_end")
    if PROF:
        A("s_waitcnt vmcnt(0)")
        mark("end")
        A(f"s_lshl_b32 s30, s{sCU}, 3")
        A(f"s_add_u32 s30, s30, s{sW}")
        A("s_lshl_b32 s30, s30, 9")
        A(f"s_add_u32 s30, s30, {hex(PROFOFF)}")
        A(f"v_lshlrev_b32 v0, 2, v{LN}")
        A(f"buffer_store_dword v{PRF2}, v0, {WSR}, s30 offen")
        A(f"buffer_store_dword v{PRF}, v0, {WSR}, s30 offen offset:256")
    A.label("k_exit")
    A("s_endpgm")
    assert len(MARKS) <= (64 if "-profq" in ARGS else 32), len(MARKS)
    A.lines = resolve(A.lines)
    A.hazard_pass(verbose="-v" in ARGS)
    txt = "; @launch grid=(256,1,1) block=(512,1,1) lds=163840\n"
    txt += "; marks: " + " ".join(MARKS) + "\n" if PROF else ""
    txt += '.amdgcn_target "amdgcn-amd-amdhsa--gfx950"\n.text\n' + A.text() + '.section .rodata,"a"\n.p2align 6\n'
    txt += f""".amdhsa_kernel {K}
  .amdhsa_next_free_vgpr 256
  .amdhsa_next_free_sgpr 102
  .amdhsa_accum_offset 256
  .amdhsa_group_segment_fixed_size 0
  .amdhsa_kernarg_size 88
  .amdhsa_user_sgpr_count 2
  .amdhsa_user_sgpr_kernarg_segment_ptr 1
  .amdhsa_system_sgpr_workgroup_id_x 1
.end_amdhsa_kernel
"""
    open(out, "w").write(txt)


main()
```

```python
import sys, os, struct, math, re
sys.path.insert(0, os.path.join(os.path.dirname(os.path.abspath(__file__)), "tools"))
from asmlib import *

NAME = "interleave_layers__sliding_block__moe_arch_mod__prompt"
KB, MB = 1 << 10, 1 << 20
ARGS = sys.argv[1:]


def opt(name, default):
    for x in ARGS:
        if x.startswith(name + "="):
            t = x.split("=", 1)[1]
            return eval(t) if isinstance(default, (list, tuple, dict)) else type(default)(t)
    return default


PROF = "-prof" in ARGS
USELOC = opt("loc", 1)
LSTR = 16 * MB
KVB, OFB, AR = 0, 8 * MB, 12 * MB
STAT, PY, CAND, CUB, SM = AR, AR + 512 * KB, AR + 1408 * KB, AR + 1536 * KB, AR + 1792 * KB
TABLE, KVF, OFL, X2R = SM, SM + 4 * KB, SM + 8 * KB, SM + 16 * KB
XFB = 32 * MB
STAT0, CUB0 = 36 * MB, 37 * MB
PROFOFF = 100 * MB
EPS = 1e-5
QSCALE = (32 ** -0.5) * math.log2(math.e)
ONES = "0x3f803f80"
T_A, T_M, T_CS, T_C, T_D, T_IDX, T_INB = 0, 512, 1024, 2048, 2560, 3072, 3328
L_W, WSL, L_X, XSL = 40960, 24576, 147456, 16384
L_Q, L_KV, KVH = 49152, 65536, 49152
sW, sRB, sHG, sL, sLIM, sW4, sF = 3, 24, 25, 26, 27, 28, 29
MS = 40
sCU, sIDX, sR, sMEAN, sRSTD, sLOC, sCNT, sCI = 72, 73, 74, 75, 76, 77, 78, 79
XS, WOS, TS, WS_, WSP = 4, 8, 12, 16, 20
TS2 = 80
sSX, sSW, sMX, sMW = 84, 85, 86, 87
sKa, sKb, sD0, sD1, sCG, sT, sPATCH, sMO = 94, 95, 96, 97, 98, 99, 100, 101
LN, L16, PRF2, PRF = 252, 253, 254, 255
P, WR, CC, DD, WSUM, EVO = 208, 224, 240, 241, 242, 243
GW, UW, DW, SPARE = 156, 188, 220, 155
CSUM = 2


def fl(x):
    return "0x%08x" % struct.unpack("<I", struct.pack("<f", x))[0]


A = Asm()
_lab = [0]
WSR = f"s[{WSP}:{WSP+3}]"


def newlab(p):
    _lab[0] += 1
    return f"{p}_{_lab[0]}"


def srd_fin(d, nbytes):
    A(f"s_mov_b32 s{d+2}, {hex(nbytes)}")
    A(f"s_mov_b32 s{d+3}, 0x20000")


def srd_load(d, karg, nbytes):
    A(f"s_load_dwordx2 s[{d}:{d+1}], s[0:1], {karg}")
    srd_fin(d, nbytes)
    A("s_waitcnt lgkmcnt(0)")


def cap(fn):
    keep = A.lines
    A.lines = []
    fn()
    out = A.lines
    A.lines = keep
    return out


def tagged(tag, fn):
    for ln in cap(fn):
        if ln.startswith("buffer_") and ";@" not in ln:
            ln += f" ;@{tag}"
        A.lines.append(ln)


def W(tags, lgkm=None):
    A.lines.append(f"@wait {tags} {'' if lgkm is None else lgkm}")


def cond(key, fn):
    A.lines.append(f"@cond {key}")
    fn()
    A.lines.append("@endcond")


def resolve(lines):
    out, issued, stack = [], [], []
    for ln in lines:
        if ln.startswith("@cond"):
            stack.append(ln.split()[1])
        elif ln == "@endcond":
            stack.pop()
        elif ln == "@reset":
            issued = []
        elif ln.startswith("@wait"):
            p = ln.split()
            tags = p[1].split(",")
            idx = [i for i, (t, c) in enumerate(issued) if t in tags]
            assert idx, f"wait for unknown tag {tags}"
            n = sum(1 for (t, c) in issued[idx[-1]+1:] if all(k in stack for k in c))
            out.append(f"s_waitcnt vmcnt({min(n, 63)})" + (f" lgkmcnt({p[2]})" if len(p) > 2 else ""))
        else:
            if ln.startswith("buffer_"):
                issued.append((ln.split(";@")[1] if ";@" in ln else None, tuple(stack)))
                ln = ln.split(";@")[0].strip()
            out.append(ln)
    return out


SCCW = ("s_add_", "s_sub_", "s_cmp", "s_and_", "s_or_", "s_xor_", "s_lshl", "s_lshr", "s_min", "s_max", "s_not", "s_bfe", "s_bitcmp")
SCCR = ("s_cselect", "s_cbranch_scc", "s_addc", "s_subb")


def safe_points(body):
    n = len(body)
    safe = [True] * (n + 1)
    pos = {ln[:-1]: i for i, ln in enumerate(body) if ln.endswith(":")}
    ex, depth, lastw = True, 0, -1
    for i, ln in enumerate(body):
        if ln.startswith(("s_cbranch", "s_branch")):
            j = pos[ln.split()[1]]
            for k in range(min(i, j) + 1, max(i, j) + 1):
                safe[k] = False
        if ln.startswith(SCCR):
            for k in range(lastw + 1, i + 1):
                safe[k] = False
        if ln.startswith(SCCW):
            lastw = i
        if re.match(r"s_\w+ exec", ln) or "saveexec" in ln:
            ex = ln == "s_mov_b64 exec, -1"
        if ln.startswith("@cond"):
            depth += 1
        if ln == "@endcond":
            depth -= 1
        if not ex or depth:
            safe[i + 1] = False
    return safe


def pieces(fn, k):
    body = cap(fn)
    safe = safe_points(body)
    fr = [(i + 1) / k for i in range(k - 1)] if isinstance(k, int) else k
    cuts = [0]
    for f in fr:
        c = max(int(f * len(body)), cuts[-1])
        while not safe[c]:
            c += 1
        cuts.append(c)
    cuts.append(len(body))
    return [(lambda a=a, b=b: A.lines.extend(body[a:b])) for a, b in zip(cuts, cuts[1:])]


def weave(groups, fn, lead=1):
    body = cap(fn)
    n = len(body)
    safe = safe_points(body)
    groups = list(groups)
    for g in groups[:lead]:
        A.lines += g
    groups = groups[lead:]
    k = 0
    for i in range(n + 1):
        while k < len(groups) and safe[i] and i >= (k + 1) * n / (len(groups) + 1):
            A.lines += groups[k]
            k += 1
        if i < n:
            A.lines.append(body[i])
    for g in groups[k:]:
        A.lines += g


MARKS = {}


def mark(name):
    if name not in MARKS:
        MARKS[name] = len(MARKS)
    if PROF:
        A("s_memrealtime s[90:91]")
        if "-profq" not in ARGS:
            A("s_memtime s[92:93]")
        A("s_waitcnt lgkmcnt(0)")
        A(f"v_writelane_b32 v{PRF}, s90, {MARKS[name]}")
        if "-profq" not in ARGS:
            A(f"v_writelane_b32 v{PRF}, s92, {MARKS[name]+32}")


def markq(name):
    if "-profq" in ARGS:
        mark(name)


def prof_next():
    if PROF:
        A(f"v_mov_b32 v{PRF2}, v{PRF}")
        A(f"v_mov_b32 v{PRF}, 0")


def MF(d, a_, b_, c=None):
    cc = v(d, 16) if c is None else (c if isinstance(c, str) else v(c, 16))
    return f"v_mfma_f32_32x32x16_bf16 {v(d,16)}, {v(a_,4)}, {v(b_,4)}, {cc}"


def MF16(d, a_, b_):
    return f"v_mfma_f32_16x16x32_bf16 {v(d,4)}, {v(a_,4)}, {v(b_,4)}, {v(d,4)}"


DPPF = "row_mask:0xf bank_mask:0xf"


def wave_red(r, t, op="add", n=64):
    for sh in ("quad_perm:[1,0,3,2]", "quad_perm:[2,3,0,1]", "row_half_mirror", "row_mirror"):
        A(f"v_{op}_f32_dpp v{r}, v{r}, v{r} {sh} {DPPF}")
    A(f"v_mov_b32 v{t}, v{r}")
    A(f"v_permlane16_swap_b32 v{r}, v{t}")
    A(f"v_{op}_f32 v{r}, v{r}, v{t}")
    if n == 64:
        A(f"v_mov_b32 v{t}, v{r}")
        A(f"v_permlane32_swap_b32 v{r}, v{t}")
        A(f"v_{op}_f32 v{r}, v{r}, v{t}")


def tred4(r):
    A(f"v_permlane32_swap_b32 v{r}, v{r+2}")
    A(f"v_permlane32_swap_b32 v{r+1}, v{r+3}")
    A(f"v_add_f32 v{r}, v{r}, v{r+2}")
    A(f"v_add_f32 v{r+1}, v{r+1}, v{r+3}")
    A(f"v_permlane16_swap_b32 v{r}, v{r+1}")
    A(f"v_add_f32 v{r}, v{r}, v{r+1}")


def sent_check(regs, t):
    regs = list(regs)
    if len(regs) == 1:
        A(f"v_cmp_eq_u32 vcc, -1, v{regs[0]}")
        return
    if len(regs) == 2:
        A(f"v_max_u32 v{t}, v{regs[0]}, v{regs[1]}")
        rest = []
    else:
        A(f"v_max3_u32 v{t}, v{regs[0]}, v{regs[1]}, v{regs[2]}")
        rest = regs[3:]
    while rest:
        if len(rest) >= 2:
            A(f"v_max3_u32 v{t}, v{t}, v{rest[0]}, v{rest[1]}")
            rest = rest[2:]
        else:
            A(f"v_max_u32 v{t}, v{t}, v{rest[0]}")
            rest = rest[1:]
    A(f"v_cmp_eq_u32 vcc, -1, v{t}")


def poll(loads, check, issued=None):
    top, chk, done = newlab("pl"), newlab("pc"), newlab("pd")
    A(f"s_mov_b32 s{sCNT}, s{sLIM}")
    if issued is not None:
        W(issued)
        A(f"s_branch {chk}")
    A.label(top)
    cond(top, lambda: A.lines.extend(x.split(";@")[0].strip() for x in cap(loads)))
    A("s_waitcnt vmcnt(0)")
    A.label(chk)
    check()
    A(f"s_cbranch_vccz {done}")
    A(f"s_sub_u32 s{sCNT}, s{sCNT}, 1")
    A(f"s_cmp_lg_u32 s{sCNT}, 0")
    A(f"s_cbranch_scc1 {top}")
    A(f"s_mov_b32 s{sLIM}, 1")
    A.label(done)


def skip_if(cmp, body, key=None):
    l = newlab("sk")
    A(cmp)
    A(f"s_cbranch_scc1 {l}")
    cond(key or l, body)
    A.label(l)


def st_loc(fn):
    if not USELOC:
        fn("sc1")
        return
    a_, b_ = newlab("lc"), newlab("lc")
    A(f"s_cmp_lg_u32 s{sLOC}, 0")
    A(f"s_cbranch_scc1 {a_}")
    cond(a_, lambda: fn("sc1"))
    A(f"s_branch {b_}")
    A.label(a_)
    fn("")
    A.label(b_)


def flag_store(so, loc=False):
    A("v_mov_b32 v154, 0")
    A("s_mov_b64 exec, 1")
    A("s_waitcnt vmcnt(0)")
    f = lambda bits: A(f"buffer_store_dword v154, v154, {WSR}, {so} offen {bits}")
    if loc:
        st_loc(f)
    else:
        f("sc1")
    A("s_mov_b64 exec, -1")


def masks():
    for reg in range(16):
        G, r = reg >> 2, reg & 3
        key = 16 * (G & 1) + 8 * (G >> 1) + r
        A(f"s_mov_b32 s{MS+2*reg}, {hex((0xFFFFFFFF << key) & 0xFFFFFFFF)}")
        A(f"s_mov_b32 s{MS+2*reg+1}, {hex((0xFFFFFFFF << (key+4)) & 0xFFFFFFFF)}")


def prologue():
    A("s_cmp_ge_u32 s2, 256")
    A("s_cbranch_scc1 k_exit")
    A(f"s_load_dwordx4 s[{XS}:{XS+3}], s[0:1], 0")
    A(f"s_load_dwordx2 s[{WOS}:{WOS+1}], s[0:1], 16")
    A(f"s_load_dwordx2 s[{WSP}:{WSP+1}], s[0:1], 80")
    A(f"s_load_dwordx2 s[{TS}:{TS+1}], s[0:1], 72")
    A(f"s_load_dwordx2 s[{TS2}:{TS2+1}], s[0:1], 32")
    A("v_lshrrev_b32 v1, 6, v0")
    A(f"v_and_b32 v{LN}, 63, v0")
    A(f"v_readfirstlane_b32 s{sW}, v1")
    A(f"v_lshlrev_b32 v{L16}, 4, v{LN}")
    A("s_and_b32 s30, s2, 7")
    A("s_lshr_b32 s31, s2, 3")
    A("s_and_b32 s32, s31, 1")
    A(f"s_lshl_b32 s33, s30, 1")
    A(f"s_add_u32 s{sRB}, s33, s32")
    A(f"s_lshr_b32 s{sHG}, s31, 1")
    A(f"s_add_u32 s33, s33, s{sHG}")
    A(f"s_add_u32 s{sKa}, s33, s32")
    A(f"s_sub_u32 s{sKb}, s33, s32")
    A(f"s_add_u32 s{sCG}, s{sKb}, 15")
    A(f"s_and_b32 s{sCG}, s{sCG}, 15")
    A(f"s_mul_i32 s{sF}, s30, 28")
    A(f"s_lshl_b32 s32, s30, 2")
    A(f"s_add_u32 s32, s32, {224-28}")
    A("s_cmp_lt_u32 s31, 28")
    A(f"s_cselect_b32 s{sF}, s{sF}, s32")
    A(f"s_add_u32 s{sF}, s{sF}, s31")
    A(f"s_lshl_b32 s{sCU}, s{sRB}, 4")
    A(f"s_add_u32 s{sCU}, s{sCU}, s{sHG}")
    A(f"s_mov_b32 s{sL}, 0")
    A(f"s_mov_b32 s{sLIM}, 20000")
    A(f"s_and_b32 s{sW4}, s{sW}, 3")
    A(f"s_lshl_b32 s{sT}, s{sRB}, 2")
    A(f"s_add_u32 s{sT}, s{sT}, s{sW4}")
    A(f"s_lshl_b32 s{sMO}, s{sW4}, 10")
    srd_fin(WS_, 6 * MB)
    srd_fin(WOS, 2 * MB)
    srd_fin(WSP, 128 * MB)
    srd_fin(TS, 256)
    srd_fin(TS2, 2048)
    if PROF:
        A(f"v_mov_b32 v{PRF}, 0")
        A(f"v_mov_b32 v{PRF2}, 0")
    mark("start")
    A(f"s_cmp_ge_u32 s{sW}, 4")
    A("s_cbranch_scc1 l_start")


def ptr_fin():
    A("s_waitcnt lgkmcnt(0)")
    A(f"s_mov_b64 s[{WS_}:{WS_+1}], s[{XS+2}:{XS+3}]")
    srd_fin(XS, 4 * MB)


def wo_voff(dst):
    A(f"v_bfe_u32 v20, v{LN}, 3, 2")
    A(f"v_lshrrev_b32 v21, 5, v{LN}")
    A("v_lshl_add_u32 v20, v21, 3, v20")
    A(f"s_lshr_b32 s32, s{sW4}, 1")
    A("s_lshl_b32 s32, s32, 4")
    A(f"s_and_b32 s33, s{sW4}, 1")
    A("s_lshl_b32 s33, s33, 2")
    A("s_add_u32 s32, s32, s33")
    A("v_add_u32 v20, s32, v20")
    A("v_lshlrev_b32 v20, 11, v20")
    A(f"v_lshrrev_b32 v21, 2, v{LN}")
    A("v_and_b32 v21, 4, v21")
    A(f"v_xor_b32 v21, v21, v{LN}")
    A("v_and_b32 v21, 7, v21")
    A("v_lshl_add_u32 v20, v21, 4, v20")
    A(f"s_lshl_b32 s32, s{sCG}, 7")
    A(f"v_add_u32 v{dst}, s32, v20")


ROT = opt("rot", 1)


def wo_groups(slots, vo, tag):
    gs = []
    for j in slots:
        g = []
        if ROT:
            g += [f"s_add_u32 s{sD0}, s{sHG}, {j & 15}", f"s_and_b32 s{sD0}, s{sD0}, 15", f"s_lshl_b32 s{sD0}, s{sD0}, 17"]
            if j >= 16:
                g += [f"s_add_u32 s{sD0}, s{sD0}, 65536"]
        else:
            g += [f"s_mov_b32 s{sD0}, {(2*(j & 15) + (j >> 4))*65536}"]
        g += [f"s_add_u32 m0, s{sMO}, {4096*j}",
              f"buffer_load_dwordx4 v{vo}, s[{WOS}:{WOS+3}], s{sD0} offen lds ;@{tag}"]
        gs.append(g)
    return gs


def emit(groups):
    for g in groups:
        A.lines += g


FR = [96, 136]
XB, WB, XC, WC = 176, 178, 180, 182
KOF, VOF, KLD, VLD, QLD, TA = 244, 245, 246, 247, 248, 184
RA = 192
AR_IT = opt("ar", 4)


def e_init():
    ptr_fin()
    A(f"v_lshrrev_b32 v5, 5, v{LN}")
    A("v_lshlrev_b32 v6, 3, v5")
    A(f"s_lshl_b32 s33, s{sCG}, 7")
    for g in range(8):
        A(f"buffer_load_dwordx2 {v(WR+2*g,2)}, v6, s[{TS2}:{TS2+3}], s33 offen offset:{16*g}")
    masks()
    wo_voff(EVO)
    A(f"s_and_b32 s34, s{sW}, 1")
    A(f"s_lshr_b32 s35, s{sW}, 1")
    A(f"v_and_b32 v4, 15, v{LN}")
    A(f"v_lshrrev_b32 v7, 4, v{LN}")
    A("v_lshrrev_b32 v6, 1, v4")
    A("v_xor_b32 v6, v6, v7")
    A("v_lshlrev_b32 v6, 4, v6")
    A("v_lshl_add_u32 v6, v4, 7, v6")
    A("s_lshl_b32 s30, s34, 13")
    A(f"v_add_u32 v{XB}, s30, v6")
    A(f"v_xor_b32 v{XB+1}, 64, v{XB}")
    A("s_lshl_b32 s30, s35, 1")
    wtr_addr(WB, "s30", L_W)
    A(f"v_xor_b32 v{WB+1}, 32, v{WB}")
    A(f"v_and_b32 v8, 31, v{LN}")
    A("v_bfe_u32 v6, v8, 1, 3")
    A("v_xor_b32 v6, v6, v5")
    A("v_lshlrev_b32 v6, 4, v6")
    A("v_lshl_add_u32 v6, v8, 7, v6")
    A(f"s_lshl_b32 s30, s{sW}, 12")
    A(f"s_add_u32 s30, s30, {L_X}")
    A(f"v_add_u32 v{RA}, s30, v6")
    for ks in range(1, 4):
        A(f"v_xor_b32 v{RA+ks}, {32*ks}, v{RA}")
    A("s_lshl_b32 s30, s34, 8")
    A(f"v_lshl_add_u32 v{TA}, v4, 2, s30")
    A(f"v_lshl_add_u32 v{TA+1}, v7, 4, s30")
    A("s_lshl_b32 s30, s35, 7")
    A(f"v_lshl_add_u32 v{TA+2}, v7, 4, s30")
    A(f"s_add_u32 s30, s30, {T_CS+512}")
    A(f"v_lshl_add_u32 v{TA+3}, v4, 2, s30")
    A(f"s_lshl_b32 s30, s{sW}, 7")
    A(f"s_add_u32 s30, s30, {T_C}")
    A(f"v_lshl_add_u32 v{TA+4}, v8, 2, s30")
    A(f"v_mov_b32 v{TA+5}, 0")
    A("v_lshlrev_b32 v6, 9, v7")
    A(f"v_lshl_add_u32 v{VOF}, v4, 4, v6")
    A("v_and_b32 v9, 8, v4")
    A(f"v_lshl_add_u32 v{KOF}, v9, 4, v{VOF}")
    A(f"s_mul_i32 s30, s35, {KVH}")
    A("s_lshl_b32 s31, s34, 13")
    A("s_add_u32 s30, s30, s31")
    A(f"s_add_u32 s30, s30, {L_KV+8*4096}")
    A(f"v_add_u32 v{KLD}, s30, v{KOF}")
    A(f"v_add_u32 v{VLD}, s30, v{VOF}")
    A(f"s_lshl_b32 s30, s{sW}, 12")
    A(f"s_add_u32 s30, s30, {L_Q}")
    A(f"v_add_u32 v{QLD}, s30, v{VOF}")
    A("s_getreg_b32 s88, hwreg(HW_REG_XCC_ID, 0, 4)")
    A("s_or_b32 s88, s88, 16")
    A("v_mov_b32 v249, s88")
    A(f"s_cmp_eq_u32 s{sW}, 0")
    A(f"s_cselect_b32 s88, {14 - AR_IT}, -1")
    A(f"v_mov_b32 v{WSUM}, 0")
    for i in range(96):
        A(f"v_mov_b32 v{i}, 0")
    A("s_waitcnt vmcnt(0)")
    for p in range(16):
        A(f"v_dot2c_f32_bf16 v{WSUM}, {ONES}, v{WR+p}")
    A("s_setprio 1")


def wtr_addr(dst, ct, base):
    A(f"v_lshrrev_b32 v20, 2, v{LN}")
    A("v_bfe_u32 v21, v20, 1, 2")
    if ct is not None:
        A(f"v_xor_b32 v21, {ct}, v21")
    A("v_lshlrev_b32 v20, 7, v20")
    A("v_lshl_add_u32 v20, v21, 5, v20")
    A(f"v_and_b32 v21, 3, v{LN}")
    A("v_lshl_add_u32 v20, v21, 3, v20")
    A(f"v_add_u32 v{dst}, {base}, v20")


def accq(c, t):
    return 64 + (c & 1) * 16 + t * 4 if c >= 4 else (c >> 1) * 32 + t * 8 + (c & 1) * 4


def e_qphase():
    A.label("e_q")
    A.lines.append("@reset")
    A("s_mov_b32 s31, 0")
    A(f"s_mov_b32 s32, {L_X}")
    A("s_mov_b32 s36, 15")
    for i in range(2):
        A(f"v_add_u32 v{XC+i}, s32, v{XB+i}")
        A(f"v_mov_b32 v{WC+i}, v{WB+i}")

    def rd(fs, kk):
        f = FR[fs]
        x = [f"ds_read_b128 {v(f+4*t,4)}, v{XC+kk} offset:{t*2048}" for t in range(4)]
        w = [f"ds_read_b64_tr_b16 {v(f+16+8*seg+4*u+2*j,2)}, v{WC+u} offset:{seg*8192+kk*4096+j*2048}"
             for seg in range(3) for u in range(2) for j in range(2)]
        return [x[0], w[0], w[1], x[1], x[2], x[3]] + w[2:]

    def mf(fs, cs=range(6), snake=True):
        f = FR[fs]
        m = []
        for c in cs:
            for t in range(4):
                if snake and c & 1:
                    t = 3 - t
                a_, b_ = f + 16 + 4 * c, f + 4 * t
                if c >= 4:
                    a_, b_ = b_, a_
                m.append(MF16(accq(c, t), a_, b_))
        return m

    mark("q_wait")
    A("s_barrier")
    mark("q_go")
    for x in rd(0, 0):
        A(x)
    adv = [["s_cmp_eq_u32 s36, s88", "s_cbranch_scc1 e_arr", "e_arr_ret:"],
           [f"s_add_u32 s31, s31, {WSL}", f"s_sub_u32 s32, s32, {XSL}"],
           [f"s_cmp_ge_u32 s31, {3*WSL}", "s_cselect_b32 s31, 0, s31", f"s_cselect_b32 s32, {L_X}, s32"],
           [f"v_add_u32 v{WC}, s31, v{WB}", f"v_add_u32 v{XC}, s32, v{XB}"],
           [f"v_add_u32 v{WC+1}, s31, v{WB+1}", f"v_add_u32 v{XC+1}, s32, v{XB+1}"],
           ["s_sub_u32 s36, s36, 1", "s_cmp_eq_u32 s36, 0"]]
    A.label("e_loop")
    for ks in range(2):
        m, r = mf(ks), rd(ks ^ 1, ks ^ 1)
        A("s_waitcnt lgkmcnt(0)")
        A(m[0])
        if ks == 1:
            A("s_barrier")
        for i in range(1, 24):
            if i <= 16:
                A(r[i-1])
            elif ks == 0 and i - 17 < len(adv):
                A.lines += adv[i-17]
            A(m[i])
    A("s_cbranch_scc0 e_loop")
    m, r = mf(0), rd(1, 1)
    A("s_waitcnt lgkmcnt(0)")
    sal = [[f"s_and_b32 s34, s{sW}, 1", f"s_lshr_b32 s35, s{sW}, 1", f"s_lshl_b32 s30, s{sHG}, 1"],
           ["s_add_u32 s30, s30, s35", "s_lshl_b32 s30, s30, 6", f"s_lshl_b32 s31, s{sRB}, 2"],
           ["s_add_u32 s30, s30, s31", "s_lshl_b32 s31, s34, 1", "s_add_u32 s30, s30, s31"],
           ["s_lshl_b32 s32, s30, 12", f"s_add_u32 s32, s32, s{sL}", "s_add_u32 s33, s32, 4096"]]
    for i in range(24):
        if 1 <= i <= 16:
            A(r[i-1])
        if i == 17:
            A(f"s_cmp_lg_u32 s{sL}, 0")
            A("s_cbranch_scc1 e_nores")
            for ks in range(4):
                A(f"ds_read_b128 {v(P+4*ks,4)}, v{RA+ks}")
            A.label("e_nores")
        if 18 <= i < 22:
            A.lines += sal[i-18]
        A(m[i])
    AV, MV, CSK, CSQ, AK, MK, CSV, IDX = 96, 112, 128, 196, 192, 204, 190, 250
    tab = [f"ds_read2_b32 {v(MK,2)}, v{TA} offset0:128 offset1:144",
           f"ds_read_b128 {v(CSK,4)}, v{TA+2} offset:{T_CS+256}",
           f"ds_read_b128 {v(CSK+4,4)}, v{TA+2} offset:{T_CS+256+64}",
           f"ds_read2_b32 {v(AK,2)}, v{TA} offset0:0 offset1:16",
           f"ds_read2_b32 {v(MK+2,2)}, v{TA} offset0:160 offset1:176",
           f"ds_read2_b32 {v(AK+2,2)}, v{TA} offset0:32 offset1:48",
           f"ds_read2_b32 {v(CSV,2)}, v{TA+3} offset0:0 offset1:16"]
    for t in range(4):
        tab += [f"ds_read_b128 {v(MV+4*t,4)}, v{TA+1} offset:{T_M+64*t}", f"ds_read_b128 {v(AV+4*t,4)}, v{TA+1} offset:{T_A+64*t}"]
    tab += [f"ds_read_b128 {v(CSQ,4)}, v{TA+2} offset:{T_CS}", f"ds_read_b128 {v(CSQ+4,4)}, v{TA+2} offset:{T_CS+64}",
            f"ds_read2_b32 {v(CC,2)}, v{TA+4} offset0:0 offset1:128", f"ds_read_b64 {v(IDX,2)}, v{TA+5} offset:{T_IDX}"]
    so = ["s32", "s33"]

    def sel(hi):
        return ("op_sel:[0,1,0] op_sel_hi:[1,1,1]", "op_sel:[0,1] op_sel_hi:[1,1]") if hi else ("op_sel_hi:[1,0,1]", "op_sel_hi:[1,0]")

    def qk(seg, t, pk=True):
        acc, cs = 32 * seg + 8 * t, (CSQ, CSK)[seg]
        s3, s2 = sel(t & 1)
        if not pk:
            return ([f"v_fma_f32 v{acc+p}, v{cs+p}, -v{MK+t}, v{acc+p}" for p in range(8)] +
                    [f"v_mul_f32 v{acc+p}, v{acc+p}, v{AK+t}" for p in range(8)] +
                    [f"v_cvt_pk_bf16_f32 v{acc+p}, v{acc+2*p}, v{acc+2*p+1}" for p in range(4)])
        o = [f"v_pk_fma_f32 {v(acc+2*p,2)}, {v(cs+2*p,2)}, {v(MK+(t&2),2)}, {v(acc+2*p,2)} {s3} neg_lo:[0,1,0] neg_hi:[0,1,0]" for p in range(4)]
        o += [f"v_pk_mul_f32 {v(acc+2*p,2)}, {v(acc+2*p,2)}, {v(AK+(t&2),2)} {s2}" for p in range(4)]
        o += [f"v_cvt_pk_bf16_f32 v{acc+p}, v{acc+2*p}, v{acc+2*p+1}" for p in range(4)]
        return o
    kep = []
    for t in range(4):
        kep += qk(1, t, opt("kpk", 0) or t >= 2) + [f"buffer_store_dwordx4 {v(32+8*t,4)}, v{KOF}, {WSR}, {so[t>>1]} offen offset:{(t&1)*128} sc1"]
    m = mf(1, [2, 3, 4, 5, 0, 1], False)
    A("s_waitcnt lgkmcnt(0)")
    A(m[0])
    A("s_barrier")
    for i in range(1, 24):
        A.lines += tab[2*(i-1):2*i]
        if i == 11:
            A("s_waitcnt lgkmcnt(13)")
        if i >= 11:
            A.lines += kep[3*(i-11):3*(i-10)]
            if opt("kpk", 0) > 1:
                A(f"s_nop {opt('kpk', 0)-2}")
        A(m[i])
    A.lines += kep[39:]
    mark("q_end")
    A("s_waitcnt lgkmcnt(0)")
    for T in range(2):
        for c in range(2):
            acc = 64 + 16 * c + 8 * T
            s3, _ = sel(c)
            for p in range(4):
                A(f"v_pk_fma_f32 {v(acc+2*p,2)}, {v(MV+8*T+2*p,2)}, {v(CSV,2)}, {v(acc+2*p,2)} {s3} neg_lo:[0,1,0] neg_hi:[0,1,0]")
            for p in range(4):
                A(f"v_pk_mul_f32 {v(acc+2*p,2)}, {v(acc+2*p,2)}, {v(AV+8*T+2*p,2)}")
            for p in range(4):
                A(f"v_cvt_pk_bf16_f32 v{acc+p}, v{acc+2*p}, v{acc+2*p+1}")
            A(f"buffer_store_dwordx4 {v(acc,4)}, v{VOF}, {WSR}, {so[T]} offen offset:{2048+c*256} sc1")
    mark("kv_st")
    for t in range(4):
        A(f"ds_write_b128 v{KLD}, {v(32+8*t,4)} offset:{(t>>1)*4096+(t&1)*128}")
        A(f"v_mul_f32 v{AK+t}, {fl(QSCALE)}, v{AK+t}")
    for t in range(4):
        A.lines += qk(0, t)
        A(f"ds_write_b128 v{VLD}, {v(64+16*(t&1)+8*(t>>1),4)} offset:{(t>>1)*4096+2048+(t&1)*256}")
        A(f"ds_write_b128 v{QLD}, {v(8*t,4)} offset:{(t>>1)*2048+(t&1)*256}")
    A(f"s_lshl_b32 s30, s{sHG}, 8")
    A(f"s_lshl_b32 s31, s{sRB}, 4")
    A("s_add_u32 s30, s30, s31")
    A("s_lshl_b32 s31, s34, 3")
    A("s_add_u32 s30, s30, s31")
    A("s_lshl_b32 s31, s35, 2")
    A("s_add_u32 s30, s30, s31")
    A(f"s_add_u32 s30, s30, s{sL}")
    A(f"s_add_u32 s30, s30, {hex(KVF)}")
    flag_store("s30")
    mark("kv_fl")
    A(f"v_readfirstlane_b32 s{sIDX}, v{IDX}")
    A(f"v_readfirstlane_b32 s{sLOC}, v{IDX+1}")
    patch_flag()

    def unswz():
        for ks in range(4):
            A(f"v_permlane32_swap_b32 v{P+4*ks}, v{P+4*ks+2}")
            A(f"v_permlane32_swap_b32 v{P+4*ks+1}, v{P+4*ks+3}")
    skip_if(f"s_cmp_lg_u32 s{sL}, 0", unswz)


def patch_flag():
    A(f"s_lshr_b32 s39, s{sIDX}, 5")
    A(f"s_lshl_b32 s34, s{sRB}, 2")
    A("s_sub_u32 s39, s39, s34")
    A("s_add_u32 s39, s39, 8")
    A("s_cmp_lt_u32 s39, 12")
    A(f"s_cselect_b32 s{sPATCH}, 1, 0")


Q, PM, AD, MX, SU0, SU1, CB, SM_, O, TM = 4, 12, 20, 21, 22, 23, 24, 40, 88, 152
SA, KF, VF, PP = [56, 72], [104, 112], [120, 128], [136, 144]


def att_setup(team):
    A("v_mov_b32 v20, 0xffff")
    A("v_mov_b32 v21, 0xffff0000")
    for p in range(8):
        A(f"v_cndmask_b32 v22, 0, v20, {s(MS+4*p,2)}")
        A(f"v_cndmask_b32 v23, 0, v21, {s(MS+4*p+2,2)}")
        A(f"v_or_b32 v{PM+p}, v22, v23")
    A(f"s_lshl_b32 s34, s{sW4}, 12")
    A(f"s_add_u32 s34, s34, {L_KV+team*KVH}")
    A(f"v_add_u32 v{AD}, s34, v{L16}")
    A(f"s_lshl_b32 s34, s{sW}, 11")
    A(f"s_add_u32 s34, s34, {L_Q}")
    A(f"v_add_u32 v3, s34, v{L16}")
    for i in range(16):
        A(f"v_mov_b32 v{CB+i}, 0")


def att_qread():
    A(f"ds_read_b128 {v(Q,4)}, v3")
    A(f"ds_read_b128 {v(Q+4,4)}, v3 offset:1024")


def attention(team, hook):
    def rdK(buf, d):
        A(f"ds_read_b128 {v(KF[buf],4)}, v{AD} offset:{(8-d)*4096}")
        A(f"ds_read_b128 {v(KF[buf]+4,4)}, v{AD} offset:{(8-d)*4096+1024}")

    def rdV(buf, d):
        A(f"ds_read_b128 {v(VF[buf],4)}, v{AD} offset:{(8-d)*4096+2048}")
        A(f"ds_read_b128 {v(VF[buf]+4,4)}, v{AD} offset:{(8-d)*4096+3072}")

    def neg_switch(d):
        l = newlab("ng")
        A(f"s_cmp_eq_u32 s{sT}, {d-1}")
        A(f"s_cbranch_scc0 {l}")
        for i in range(16):
            A(f"v_mov_b32 v{CB+i}, {fl(-1e30)}")
        A.label(l)

    def smf(dst, buf, c):
        A(MF(dst, KF[buf], Q, c))
        A(MF(dst, KF[buf] + 4, Q + 4))

    def maxes(src, first):
        for p in range(8):
            if first and p == 0:
                A(f"v_max_f32 v{MX}, v{src}, v{src+1}")
            else:
                A(f"v_max3_f32 v{MX}, v{MX}, v{src+2*p}, v{src+2*p+1}")
    rdK(0, 0)
    rdK(1, 1)
    A("s_waitcnt lgkmcnt(2)")
    smf(SM_, 0, "0")
    hook(1, 0)
    for d in range(1, 9):
        b = d & 1
        if d < 8:
            rdK(b ^ 1, d + 1)
        neg_switch(d)
        A(f"s_waitcnt lgkmcnt({2 if d < 8 else 0})")
        smf(SA[b], b, CB)
        if d >= 2:
            maxes(SA[b ^ 1], d == 2)
        hook(1, d)
    rdK(1, 1)
    rdV(0, 0)
    rdV(1, 8)
    for i in range(16):
        A(f"v_cndmask_b32 v{SM_+i}, v{SA[0]+i}, v{SM_+i}, {s(MS+2*i,2)}")
    maxes(SM_, False)
    A(f"v_mov_b32 v{TM}, v{MX}")
    A(f"v_permlane32_swap_b32 v{MX}, v{TM}")
    A(f"v_max_f32 v{MX}, v{MX}, v{TM}")
    for i in range(16):
        A(f"v_sub_f32 v{CB+i}, 0, v{MX}")
    neg_switch(1)
    A("s_waitcnt lgkmcnt(4)")
    smf(SA[1], 1, CB)
    rdK(0, 2)
    for i in range(16):
        A(f"v_sub_f32 v{SM_+i}, v{SM_+i}, v{MX}")
    for i in range(16):
        A(f"v_exp_f32 v{SM_+i}, v{SM_+i}")
    A(f"v_add_f32 v{SU0}, v{SM_}, v{SM_+1}")
    A(f"v_add_f32 v{SU1}, v{SM_+2}, v{SM_+3}")
    for i in range(4, 16):
        A(f"v_add_f32 v{SU0+(i&1)}, v{SU0+(i&1)}, v{SM_+i}")
    for p in range(8):
        A(f"v_cvt_pk_bf16_f32 v{PP[1]+p}, v{SM_+2*p}, v{SM_+2*p+1}")
    for p in range(8):
        A(f"v_and_b32 v{PP[0]+p}, v{PP[1]+p}, v{PM+p}")
    for p in range(8):
        A(f"v_xor_b32 v{PP[1]+p}, v{PP[1]+p}, v{PP[0]+p}")
    A("s_waitcnt lgkmcnt(2)")
    A(MF(O, VF[0], PP[0], "0"))
    A(MF(O, VF[0] + 4, PP[0] + 4))
    A(MF(O, VF[1], PP[1]))
    A(MF(O, VF[1] + 4, PP[1] + 4))
    hook(2, 0)
    for d in range(1, 8):
        b = d & 1
        rdV(b, d)
        if d < 7:
            neg_switch(d + 1)
            A("s_waitcnt lgkmcnt(2)")
            smf(SA[b ^ 1], b ^ 1, CB)
            if d < 6:
                rdK(b, d + 2)
        src = SA[b]
        for i in range(16):
            A(f"v_exp_f32 v{src+i}, v{src+i}")
        for i in range(16):
            A(f"v_add_f32 v{SU0+(i&1)}, v{SU0+(i&1)}, v{src+i}")
        for p in range(8):
            A(f"v_cvt_pk_bf16_f32 v{PP[b]+p}, v{src+2*p}, v{src+2*p+1}")
        A(f"s_waitcnt lgkmcnt({2 if d < 6 else 0})")
        A(MF(O, VF[b], PP[b]))
        A(MF(O, VF[b] + 4, PP[b] + 4))
        hook(2, d)
    A(f"v_add_f32 v{SU0}, v{SU0}, v{SU1}")
    A(f"v_mov_b32 v{TM}, v{SU0}")
    A(f"v_permlane32_swap_b32 v{SU0}, v{TM}")
    A(f"v_add_f32 v{SU0}, v{SU0}, v{TM}")
    A(f"v_rcp_f32 v{SU0}, v{SU0}")
    A(f"s_lshl_b32 s36, s{sT}, 16")
    A(f"s_add_u32 s36, s36, s{sL}")
    A(f"s_add_u32 s36, s36, {hex(OFB + team*32768)}")
    A(f"s_lshl_b32 s33, s{sHG}, 11")
    A("s_add_u32 s33, s33, s36")
    A(f"s_lshl_b32 s30, s{sRB}, 9")
    A(f"s_lshl_b32 s31, s{sW}, 6")
    A("s_add_u32 s30, s30, s31")
    A(f"s_add_u32 s30, s30, s{sL}")
    A(f"s_add_u32 s30, s30, {hex(OFL)}")
    A(f"s_lshl_b32 s31, s{sHG}, 2")
    A("s_add_u32 s31, s31, s30")
    for p in range(8):
        A(f"v_pk_mul_f32 {v(O+2*p,2)}, {v(O+2*p,2)}, {v(SU0,2)} op_sel_hi:[1,0]")
    for p in range(8):
        A(f"v_cvt_pk_bf16_f32 v{O+p}, v{O+2*p}, v{O+2*p+1}")

    def st(bits):
        A(f"buffer_store_dwordx4 {v(O,4)}, v{L16}, {WSR}, s33 offen {bits}")
        A(f"buffer_store_dwordx4 {v(O+4,4)}, v{L16}, {WSR}, s33 offen offset:1024 {bits}")
    st_loc(st)
    mark("att_end")


def e_att():
    att_setup(0)
    A("s_waitcnt lgkmcnt(0)")
    mark("x1_wait")
    A("s_barrier")

    def fix():
        A("s_barrier")
        A(f"s_lshr_b32 s34, s{sIDX}, 5")

        def row():
            A(f"s_and_b32 s32, s{sIDX}, 31")
            A(f"v_and_b32 v0, 31, v{LN}")
            A("v_cmp_eq_u32 vcc, s32, v0")
            A(f"v_lshrrev_b32 v0, 5, v{LN}")
            A("v_lshlrev_b32 v0, 4, v0")
            A(f"s_lshl_b32 s34, s{sCG}, 7")
            A(f"s_add_u32 s34, s34, {hex(X2R)}")
            A("s_mov_b64 exec, vcc")
            for ks in range(4):
                A(f"buffer_load_dwordx4 {v(P+4*ks,4)}, v0, {WSR}, s34 offen offset:{32*ks} sc1")
            A(f"v_mov_b32 v{CC}, 1.0")
            A(f"v_mov_b32 v{DD}, 0")
            A("s_mov_b64 exec, -1")
        skip_if(f"s_cmp_lg_u32 s34, s{sT}", row)
    skip_if(f"s_cmp_eq_u32 s{sPATCH}, 0", fix)
    mark("att_go")
    att_qread()
    XE2 = opt("xe2", 5)
    al = wo_groups([0, 12, 13, 14, 15], EVO, "woa")

    def hook(ps, d):
        k = (ps - 1) * 9 + d
        if k == XE2:
            A("s_barrier")
        if 0 <= k - XE2 < 5:
            A.lines += al[k - XE2]
    attention(0, hook)


def table_loads(T):
    def f():
        A(f"s_add_u32 s32, s{sCI}, {hex(TABLE)}")
        A(f"buffer_load_dwordx4 {v(T,4)}, v{L16}, {WSR}, s32 offen sc1")
    return f


def argmax_lane(T, issued=None):
    poll(table_loads(T), lambda: sent_check(range(T, T + 4), T + 4), issued)
    A(f"v_mov_b32 v{T+4}, v{T}")
    wave_red(T + 4, T + 5, "max")
    A(f"v_cmp_eq_f32 vcc, v{T+4}, v{T}")
    A("s_ff1_i32_b64 s32, vcc")
    A("s_and_b32 s32, s32, 63")


def stat_loads(S, base):
    def f():
        A(f"s_lshl_b32 s30, s{sT}, 13")
        A(f"s_add_u32 s30, s30, {hex(base)}")
        A("s_add_u32 s31, s30, 4096")
        for i in range(8):
            A(f"buffer_load_dwordx4 {v(S+4*i,4)}, v{L16}, {WSR}, s{30+(i>>2)} offen offset:{(i&3)*1024} sc1")
    return f


def stat_core(S, E, t, nc=4):
    for i in range(1, 8):
        for c in range(0, nc, 2):
            A(f"v_pk_add_f32 {v(S+c,2)}, {v(S+c,2)}, {v(S+4*i+c,2)}")
    for i in range(nc):
        A(f"v_mov_b32 v{t+i}, v{S+i}")
    for i in range(nc):
        A(f"v_permlane32_swap_b32 v{S+i}, v{t+i}")
    for i in range(nc):
        A(f"v_add_f32 v{S+i}, v{S+i}, v{t+i}")
    A(f"v_mul_f32 v{E+2}, {fl(1/1024)}, v{S}")
    A(f"v_mul_f32 v{S+1}, {fl(1/1024)}, v{S+1}")
    A(f"v_fma_f32 v{S+1}, -v{E+2}, v{E+2}, v{S+1}")
    A(f"v_max_f32 v{S+1}, 0, v{S+1}")
    A(f"v_add_f32 v{E+3}, {fl(EPS)}, v{S+1}")
    A(f"v_rsq_f32 v{E+3}, v{E+3}")


def cand_publish(S, E, t, PR, lay):
    A(f"v_fma_f32 v{E}, -v{E+2}, v{S+3}, v{S+2}")
    A(f"v_and_b32 v{E+1}, 31, v{LN}")
    A(f"v_mul_f32 v{E}, v{E}, v{E+3}")
    A(f"s_lshl_b32 s32, s{sT}, 5")
    A(f"v_add_u32 v{E+1}, s32, v{E+1}")
    A(f"v_mov_b32 v{t}, v{E}")
    wave_red(t, t + 1, "max", 32)
    A(f"v_cmp_eq_f32 vcc, v{t}, v{E}")
    A(f"v_lshrrev_b32 v{t+2}, 5, v{LN}")
    A(f"v_lshlrev_b32 v{t+2}, 4, v{t+2}")
    A(f"s_lshl_b32 s32, s{sT}, 11")
    A(f"s_lshl_b32 s33, s{sCG}, 7")
    A("s_add_u32 s32, s32, s33")
    A(f"s_add_u32 s32, s32, {hex(CAND + lay)}")
    A(f"s_lshl_b32 s34, s{sT}, 4")
    A(f"s_add_u32 s34, s34, {hex(TABLE + lay)}")
    A("s_ff1_i32_b32 s35, vcc_lo")
    A("s_lshl_b32 s35, 1, s35")
    A(f"s_cmp_eq_u32 s{sHG}, 0")
    A("s_cselect_b32 exec_lo, s35, 0")
    A("s_mov_b32 exec_hi, 0")
    cond(newlab("z"), lambda: A(f"buffer_store_dwordx4 {v(E,4)}, v{t+2}, {WSR}, s34 offen sc1"))
    A("s_mov_b32 exec_lo, s35")
    A("s_mov_b32 exec_hi, s35")
    for ks in range(4):
        A(f"buffer_store_dwordx4 {v(PR+4*ks,4)}, v{t+2}, {WSR}, s32 offen offset:{ks*32} sc1")
    A("s_mov_b64 exec, -1")


def xf_off(dst):
    A(f"v_bfe_u32 v{dst}, v{LN}, 4, 1")
    A(f"v_lshlrev_b32 v{dst}, 11, v{dst}")
    A(f"v_lshrrev_b32 v{dst+1}, 5, v{LN}")
    A(f"v_lshl_add_u32 v{dst}, v{dst+1}, 8, v{dst}")
    A(f"v_and_b32 v{dst+1}, 15, v{LN}")
    A(f"v_lshl_add_u32 v{dst}, v{dst+1}, 4, v{dst}")
    A(f"s_lshl_b32 s34, s{sW4}, 12")
    A(f"s_add_u32 s34, s34, {L_X}")
    A(f"v_add_u32 v{dst+1}, s34, v{dst}")


def e_wo():
    D = opt("wod", 8)
    WA, FA, FL, XO, OB = 56, 60, 61, 100, 104
    WF = [32, 40, 48]
    assert OB + 4 * (D + 1) <= 154
    A(f"v_bfe_u32 v33, v{LN}, 2, 2")
    A(f"v_lshrrev_b32 v32, 5, v{LN}")
    A("v_lshl_add_u32 v34, v32, 3, v33")
    A("v_lshlrev_b32 v34, 7, v34")
    A("v_lshrrev_b32 v33, 1, v33")
    A("v_lshl_add_u32 v34, v33, 6, v34")
    A(f"v_bfe_u32 v33, v{LN}, 4, 1")
    A("v_lshl_add_u32 v34, v33, 5, v34")
    A(f"v_and_b32 v33, 3, v{LN}")
    A(f"v_lshl_add_u32 v{WA}, v33, 3, v34")
    A(f"v_xor_b32 v{WA+1}, 64, v{WA}")
    A(f"v_add_u32 v{WA+2}, 0x10000, v{WA}")
    A(f"v_add_u32 v{WA+3}, 0x10000, v{WA+1}")
    A(f"v_and_b32 v{FA}, 15, v{LN}")
    A(f"v_lshlrev_b32 v{FA}, 2, v{FA}")
    W("woa")
    for p in range(16):
        A(f"v_lshlrev_b32 v{2*p}, 16, v{P+p}")
        A(f"v_and_b32 v{2*p+1}, 0xffff0000, v{P+p}")
    for p in range(16):
        A(f"v_pk_fma_f32 {v(2*p,2)}, {v(2*p,2)}, {v(CC,2)}, {v(CC,2)} op_sel:[0,0,1] op_sel_hi:[1,0,1]")
    flag_store("s31", True)
    mark("o_fl")
    A("s_barrier")
    mark("xa")
    emit(wo_groups(range(16, 28), EVO, "wob"))
    xf_off(XO)
    A(f"s_lshl_b32 s37, s{sHG}, 11" if ROT else "s_mov_b32 s37, 0")

    def rd(i):
        f = WF[i % 3]
        return [f"ds_read_b64_tr_b16 {v(f+4*u+2*j,2)}, v{WA+u+2*(i>>5)} offset:{(i&31)*2048+j*512}" for u in range(2) for j in range(2)]

    def ld(i):
        if i == 32:
            A("s_add_u32 s36, s36, 32768")
        if i & 1 == 0:
            A("s_add_u32 s38, s36, s37")
        else:
            A("s_add_u32 s37, s37, 2048")
            A("s_and_b32 s37, s37, 0x7800")
        A(f"buffer_load_dwordx4 {v(OB+4*(i%(D+1)),4)}, v{L16}, {WSR}, s38 offen offset:{(i&1)*1024} sc1 ;@o{i}")

    def fload(off):
        return lambda: A(f"buffer_load_dword v{FL}, v{FA}, {WSR}, s30 offen offset:{off} sc1")
    A.lines += rd(0) + rd(1)
    poll(fload(0), lambda: sent_check([FL], 62))
    mark("o_ok0")
    for i in range(D):
        ld(i)
    FB = opt("wofb", 4)
    for i in range(64):
        f, ob = WF[i % 3], OB + 4 * (i % (D + 1))
        r = rd(i + 2) if i + 2 < 64 else []
        if i in (30, 54):
            A("s_barrier")
        W(f"o{i}", 4 if i < 63 else 0)
        A(MF(0, f, ob))
        if i + D == 32 - FB:
            tagged("fb", fload(256))
        if i + D == 32:
            poll(fload(256), lambda: sent_check([FL], 62), "fb")
            mark("o_ok1")
        if i + D < 64:
            ld(i + D)
        A.lines += r[:2]
        A(MF(16, f + 4, ob))
        A.lines += r[2:]
    mark("wo_end")
    G = 96
    A(f"s_lshl_b32 s35, s{sRB}, 4")
    A(f"s_add_u32 s35, s35, s{sCG}")
    A("s_lshl_b32 s35, s35, 14")
    A(f"s_lshl_b32 s34, s{sW}, 12")
    A("s_add_u32 s35, s35, s34")
    A(f"s_add_u32 s35, s35, {hex(XFB)}")
    A(f"s_lshl_b32 s30, s{sT}, 13")
    A(f"s_add_u32 s30, s30, s{sL}")
    A(f"s_add_u32 s30, s30, {hex(STAT)}")
    A(f"s_lshl_b32 s31, s{sCG}, 9")
    A("s_add_u32 s31, s31, s30")
    for i in range(3):
        A(f"v_mov_b32 v{G+i}, 0")
    A(f"v_mov_b32 v{G+3}, v{WSUM}")
    for p in range(16):
        A(f"v_cvt_pk_bf16_f32 v{P+p}, v{2*p}, v{2*p+1}")

    def xfst():
        st_loc(lambda bits: [A(f"buffer_store_dwordx4 {v(P+4*ks,4)}, v{XO}, {WSR}, s35 offen offset:{ks*512} {bits}") for ks in range(4)])
        for ks in range(4):
            A(f"ds_write_b128 v{XO+1}, {v(P+4*ks,4)} offset:{ks*512}")
    skip_if(f"s_cmp_lg_u32 s{sL}, 0", xfst)
    for p in range(16):
        A(f"v_dot2c_f32_bf16 v{G}, {ONES}, v{P+p}")
        A(f"v_dot2c_f32_bf16 v{G+1}, v{P+p}, v{P+p}")
        A(f"v_dot2c_f32_bf16 v{G+2}, v{WR+p}, v{P+p}")
    for i in range(4):
        A(f"v_mov_b32 v{48+i}, v{G+i}")
    for i in range(4):
        A(f"v_permlane32_swap_b32 v{G+i}, v{48+i}")
    for i in range(4):
        A(f"v_add_f32 v{G+i}, v{G+i}, v{48+i}")
    A("s_mov_b32 exec_hi, 0")
    A("s_waitcnt vmcnt(0)")
    st_loc(lambda bits: A(f"buffer_store_dwordx4 {v(G,4)}, v{L16}, {WSR}, s31 offen {bits}"))
    A("s_mov_b64 exec, -1")
    mark("st_pub")
    A(f"s_cmp_lg_u32 s{sL}, 0")
    A("s_cbranch_scc1 e_final")
    A(f"s_mov_b32 s{sL}, {LSTR}")
    A(f"s_and_b32 s30, s{sW}, 1")
    A("s_lshl_b32 s30, s30, 13")
    A(f"v_add_u32 v{XB}, s30, v{L16}")
    A(f"v_add_u32 v{XB+1}, 1024, v{XB}")
    for i in range(96):
        A(f"v_mov_b32 v{i}, 0")
    prof_next()
    A("s_waitcnt lgkmcnt(0)")
    A("s_branch e_q")
    A.label("e_arr")
    A("s_mov_b64 exec, 1")
    A(f"buffer_store_byte v249, v{TA+5}, s[{TS}:{TS+3}], s{sCU} offen sc1")
    A("s_mov_b64 exec, -1")
    A("s_mov_b32 s88, -1")
    A("s_branch e_arr_ret")
    A.label("e_final")
    S, E = 64, 52
    A(f"s_load_dwordx2 s[{TS}:{TS+1}], s[0:1], 64")
    srd_fin(TS, 4 * MB)
    poll(stat_loads(S, STAT + LSTR), lambda: sent_check(range(S, S + 32), 48))
    mark("st_ok")
    stat_core(S, E, 48)
    cand_publish(S, E, 48, P, LSTR)
    mark("cand")
    A(f"v_add_f32 v{CC}, 1.0, v{E+3}")
    A(f"v_mul_f32 v{DD}, v{E+2}, v{E+3}")
    A(f"v_sub_f32 v{DD}, 0, v{DD}")
    for p in range(16):
        A(f"v_pk_fma_f32 {v(2*p,2)}, {v(2*p,2)}, {v(CC,2)}, {v(CC,2)} op_sel:[0,0,1] op_sel_hi:[1,0,1]")
    for p in range(16):
        A(f"v_cvt_pk_bf16_f32 v{64+p}, v{2*p}, v{2*p+1}")
    for ks in range(4):
        A(f"v_permlane32_swap_b32 v{64+4*ks}, v{64+4*ks+2}")
        A(f"v_permlane32_swap_b32 v{64+4*ks+1}, v{64+4*ks+3}")
    A(f"v_lshl_add_u32 v50, v{E+1}, 11, v50")
    A(f"s_mov_b32 s{sCI}, s{sL}")

    def arg():
        argmax_lane(0)
        A("s_lshl_b64 exec, 1, s32")
        A(f"ds_write_b128 v{TA+5}, v[0:3] offset:{T_IDX}")
        A("s_mov_b64 exec, -1")
    skip_if(f"s_cmp_lg_u32 s{sW}, 0", arg)
    A("s_waitcnt lgkmcnt(0)")
    A("s_barrier")
    A(f"ds_read_b32 v0, v{TA+5} offset:{T_IDX+4}")
    A("s_waitcnt lgkmcnt(0)")
    A("v_and_b32 v0, 0x7ff, v0")
    A(f"v_cmp_ne_u32 vcc, v0, v{E+1}")
    A("s_mov_b64 exec, vcc")
    for ks in range(4):
        A(f"buffer_store_dwordx4 {v(64+4*ks,4)}, v50, s[{TS}:{TS+3}], s33 offen offset:{ks*32}")
    A("s_mov_b64 exec, -1")
    A("s_branch k_end")


STAG = opt("stag", 1)
FV = [152, 152, 153]


def ffn_addr():
    A(f"v_lshrrev_b32 v20, 2, v{LN}")
    A("v_lshlrev_b32 v20, 2, v20")
    A(f"v_bfe_u32 v21, v{LN}, 1, 1")
    A("v_add_u32 v20, v20, v21")
    A(f"v_mul_u32_u24 v20, {4*7168}, v20")
    A(f"v_and_b32 v21, 1, v{LN}")
    A("v_lshl_add_u32 v20, v21, 4, v20")
    A(f"s_mul_i32 s30, s{sW4}, {256*7168}")
    A(f"s_lshl_b32 s31, s{sF}, 5")
    A("s_add_u32 s30, s30, s31")
    A(f"v_add_u32 v{FV[0]}, s30, v20")
    A("v_lshlrev_b32 v21, 14, v21")
    A(f"v_lshrrev_b32 v20, 1, v{LN}")
    A("v_lshl_add_u32 v20, v20, 4, v21")
    A(f"s_lshl_b32 s30, s{sW4}, 9")
    A(f"s_lshl_b32 s31, s{sF}, 15")
    A("s_add_u32 s30, s30, s31")
    A(f"v_add_u32 v{FV[2]}, s30, v20")


def ffn_groups(which, sd=TS2):
    karg, nb, base = [(40, 1024 * 7168, GW), (48, 1024 * 7168, UW), (56, 3584 * 2048, DW)][which]
    gs = []
    if opt("noffn", 0) >> which & 1:
        nb = 0
    for j in range(8):
        g = []
        if j == 0:
            g += [f"s_load_dwordx2 s[{sd}:{sd+1}], s[0:1], {karg}", f"s_cmp_lt_u32 s{sF}, 224",
                  f"s_cselect_b32 s{sd+2}, {hex(nb)}, 0", f"s_mov_b32 s{sd+3}, 0x20000", "s_waitcnt lgkmcnt(0)"]
        if which == 2:
            g += [f"s_mov_b32 s{sD0}, {j*2048}"]
        elif STAG:
            g += [f"s_xor_b32 s{sD0}, s{sF}, {j >> 1}", f"s_and_b32 s{sD1}, s{sD0}, 2", f"s_and_b32 s{sD0}, s{sD0}, 3",
                  f"s_mul_i32 s{sD1}, s{sD1}, {2*7168}", f"s_mul_i32 s{sD0}, s{sD0}, {2*7168}", f"s_add_u32 s{sD0}, s{sD0}, s{sD1}"]
            if j & 1:
                g += [f"s_add_u32 s{sD0}, s{sD0}, 7168"]
        else:
            g += [f"s_mov_b32 s{sD0}, {((j & 3) + 8*(j >> 2))*7168}"]
        g += [f"buffer_load_dwordx4 {v(base+4*j,4)}, v{FV[which]}, s[{sd}:{sd+3}], s{sD0} offen ;@ffw"]
        gs.append(g)
    return gs


WMAP = {}


def ffn_perm():
    A("s_mov_b32 s30, 0x05040100")
    A("s_mov_b32 s31, 0x07060302")
    free = SPARE
    for m, base in enumerate((GW, UW, DW)):
        for p in range(4):
            for c in range(4):
                a_, b_ = base + 8 * p + c, base + 8 * p + 4 + c
                A(f"v_perm_b32 v{free}, v{b_}, v{a_}, s30")
                A(f"v_perm_b32 v{b_}, v{b_}, v{a_}, s31")
                WMAP[(m, p, 2 * c)] = free
                WMAP[(m, p, 2 * c + 1)] = b_
                free = a_


XG = 24


def ffn_xaddr():
    A(f"s_lshl_b32 s32, s{sW4}, 9")
    A(f"s_sub_u32 s34, s{sF}, 224")
    A("s_lshl_b32 s34, s34, 1")
    A(f"s_add_u32 s89, s34, s{sW4}")
    A(f"s_and_b32 s35, s{sW4}, 1")
    A("s_add_u32 s34, s34, s35")
    A("s_lshl_b32 s34, s34, 5")
    A(f"v_lshrrev_b32 v22, 1, v{LN}")
    A(f"v_and_b32 v23, 1, v{LN}")
    A(f"s_cmp_lt_u32 s{sF}, 224")
    A("s_cselect_b32 s32, s32, s34")
    A("s_cselect_b64 vcc, -1, 0")
    A("v_cndmask_b32 v22, v23, v22, vcc")
    A("v_lshl_add_u32 v22, v22, 4, s32")


def xloads():
    A(f"s_lshr_b32 s33, s{sIDX}, 5")
    A("s_lshl_b32 s33, s33, 11")
    A(f"s_add_u32 s33, s33, s{sCI}")
    A(f"s_add_u32 s33, s33, {hex(CAND)}")
    A(f"buffer_load_dwordx4 {v(XG,4)}, v22, {WSR}, s33 offen sc1")


def ffn_gateup():
    AC = 32
    A(f"v_mov_b32 v28, s{sRSTD}")
    A(f"v_mul_f32 v29, s{sMEAN}, v28")
    for p in range(4):
        A(f"v_lshlrev_b32 v30, 16, v{XG+p}")
        A(f"v_and_b32 v31, 0xffff0000, v{XG+p}")
        A("v_fma_f32 v30, v30, v28, -v29")
        A("v_fma_f32 v31, v31, v28, -v29")
        A(f"v_cvt_pk_bf16_f32 v{XG+p}, v30, v31")
    if STAG:
        for b in range(2):
            skip_if(f"s_bitcmp0_b32 s{sF}, {b}",
                    lambda: [A(f"v_swap_b32 v{XG+p}, v{XG+(p ^ (1 << b))}") for p in range(4) if not p >> b & 1])
    for p in range(4):
        for m in range(2):
            for c in range(8):
                acc = AC + 8 * m + c
                A(f"v_dot2_f32_bf16 v{acc}, v{WMAP[(m,p,c)]}, v{XG+p}, {'0' if p == 0 else 'v%d' % acc}")
    A(f"v_lshrrev_b32 v31, 5, v{LN}")
    A("v_lshlrev_b32 v30, 6, v31")
    for c in range(8):
        A(f"v_permlane32_swap_b32 v{AC+c}, v{AC+8+c}")
    for c in range(8):
        A(f"v_add_f32 v{AC+c}, v{AC+c}, v{AC+8+c}")
    A(f"v_and_b32 v31, 1, v{LN}")
    A("v_lshl_add_u32 v30, v31, 5, v30")
    for c in range(4):
        A(f"v_permlane16_swap_b32 v{AC+c}, v{AC+4+c}")
    for c in range(4):
        A(f"v_add_f32 v{AC+c}, v{AC+c}, v{AC+4+c}")
    A(f"v_and_b32 v31, 16, v{LN}")
    A(f"s_lshl_b32 s32, s{sW4}, 7")
    A("v_add3_u32 v30, v31, v30, s32")
    for sh in ("quad_perm:[2,3,0,1]", "row_ror:4", "row_ror:8"):
        for c in range(4):
            A(f"v_add_f32_dpp v{AC+c}, v{AC+c}, v{AC+c} {sh} {DPPF}")
    A("s_mov_b32 exec_lo, 0x00030003")
    A("s_mov_b32 exec_hi, 0x00030003")
    A(f"ds_write_b128 v30, {v(AC,4)} offset:{T_INB}")
    A("s_mov_b64 exec, -1")


def ffn_down():
    A(f"v_and_b32 v30, 1, v{LN}")
    A(f"v_bfe_u32 v31, v{LN}, 1, 3")
    A("v_lshl_add_u32 v30, v30, 3, v31")
    A("v_lshlrev_b32 v30, 2, v30")
    A(f"v_add_u32 v30, {T_INB}, v30")
    for i in range(4):
        A(f"ds_read2_b32 {v(32+2*i,2)}, v30 offset0:{32*i} offset1:{32*i+16}")
    A(f"v_lshrrev_b32 v30, 2, v{LN}")
    A(f"v_mul_u32_u24 v30, {224*64}, v30")
    A(f"v_and_b32 v31, 3, v{LN}")
    A("v_lshl_add_u32 v30, v31, 4, v30")
    A(f"v_and_b32 v31, 1, v{LN}")
    A("v_cmp_eq_u32 vcc, 1, v31")
    A(f"s_mul_i32 s32, s{sW4}, {16*224*64}")
    A(f"s_lshl_b32 s33, s{sF}, 6")
    A("s_add_u32 s32, s32, s33")
    A(f"s_add_u32 s32, s32, s{sCI}")
    A(f"s_add_u32 s32, s32, {hex(PY)}")
    A("s_waitcnt lgkmcnt(0)")
    A("v_pk_add_f32 v[32:33], v[32:33], v[34:35]")
    A("v_pk_add_f32 v[36:37], v[36:37], v[38:39]")
    A("v_pk_add_f32 v[32:33], v[32:33], v[36:37]")
    A(f"v_mul_f32 v34, {fl(-math.log2(math.e))}, v32")
    A("v_exp_f32 v34, v34")
    A("v_mul_f32 v32, v32, v33")
    A("v_add_f32 v34, 1.0, v34")
    A("v_rcp_f32 v34, v34")
    A("v_mul_f32 v32, v32, v34")
    A(f"v_mov_b32_dpp v33, v32 quad_perm:[2,3,2,3] {DPPF}")
    A("v_cvt_pk_bf16_f32 v32, v32, v33")
    for p in range(4):
        A(f"ds_swizzle_b32 v{36+p}, v32 offset:{hex(1 | (4*p) << 5)}")
    A("s_waitcnt lgkmcnt(0)")
    AC = 40
    for p in range(4):
        for c in range(8):
            A(f"v_dot2_f32_bf16 v{AC+c}, v{WMAP[(2,p,c)]}, v{36+p}, {'0' if p == 0 else 'v%d' % (AC+c)}")
    for c in range(8):
        A(f"v_add_f32_dpp v{AC+c}, v{AC+c}, v{AC+c} quad_perm:[1,0,3,2] {DPPF}")
    for c in range(4):
        A(f"v_cndmask_b32 v{AC+c}, v{AC+c}, v{AC+4+c}, vcc")
    A(f"s_cmp_lt_u32 s{sF}, 224")
    A("s_cselect_b64 exec, -1, 0")
    cond(newlab("z"), lambda: A(f"buffer_store_dwordx4 {v(AC,4)}, v30, {WSR}, s32 offen sc1"))
    A("s_mov_b64 exec, -1")


RP = 32


def red_loads():
    A(f"s_mul_i32 s32, s89, {224*64}")
    A(f"s_add_u32 s32, s32, s{sCI}")
    A(f"s_add_u32 s32, s32, {hex(PY)}")
    for i in range(14):
        A(f"buffer_load_dwordx4 {v(RP+4*i,4)}, v{L16}, {WSR}, s32 offen offset:{(i&3)*1024} sc1")
        if i & 3 == 3:
            A("s_add_u32 s32, s32, 4096")


def red_pre():
    A(f"v_and_b32 v30, 2, v{LN}")
    A("v_cmp_eq_u32 vcc, 2, v30")
    A(f"v_mov_b32 v28, s{sRSTD}")
    A(f"v_mul_f32 v29, s{sMEAN}, v28")
    A("v_add_f32 v28, 1.0, v28")
    A(f"v_cndmask_b32 v30, v{XG}, v{XG+2}, vcc")
    A(f"v_cndmask_b32 v31, v{XG+1}, v{XG+3}, vcc")
    A("v_lshlrev_b32 v92, 16, v30")
    A("v_and_b32 v93, 0xffff0000, v30")
    A("v_lshlrev_b32 v94, 16, v31")
    A("v_and_b32 v95, 0xffff0000, v31")
    for c in range(4):
        A(f"v_fma_f32 v{92+c}, v{92+c}, v28, -v29")
    A(f"v_mov_b32 v96, {fl(-math.log2(math.e))}")
    A(f"v_mul_f32 v96, s{sR}, v96")
    A("v_exp_f32 v96, v96")
    A("v_add_f32 v96, 1.0, v96")
    A("v_rcp_f32 v96, v96")


def red_sum():
    for i in range(1, 14):
        for c in range(0, 4, 2):
            A(f"v_pk_add_f32 {v(RP+c,2)}, {v(RP+c,2)}, {v(RP+4*i+c,2)}")
    for sh in ("row_ror:4", "row_ror:8"):
        for c in range(4):
            A(f"v_add_f32_dpp v{RP+c}, v{RP+c}, v{RP+c} {sh} {DPPF}")
    for sw in ("16", "32"):
        for c in range(4):
            A(f"v_mov_b32 v{RP+4+c}, v{RP+c}")
        for c in range(4):
            A(f"v_permlane{sw}_swap_b32 v{RP+c}, v{RP+4+c}")
        for c in range(4):
            A(f"v_add_f32 v{RP+c}, v{RP+c}, v{RP+4+c}")
    for c in range(4):
        A(f"v_fma_f32 v{RP+c}, v{RP+c}, v96, v{92+c}")
    A(f"v_cvt_pk_bf16_f32 v{RP}, v{RP}, v{RP+1}")
    A(f"v_cvt_pk_bf16_f32 v{RP+1}, v{RP+2}, v{RP+3}")


WCH, XCH, WAC = 100, 132, 140


def wch_reads(st):
    A(f"s_min_u32 s30, s{sW4}, 2")
    A("s_lshl_b32 s30, s30, 13")
    A(f"s_add_u32 s30, s30, {L_W + (st % 3)*WSL}")
    wtr_addr(144, None, "s30")
    for ct in range(1, 4):
        A(f"v_xor_b32 v{144+ct}, {32*ct}, v144")
    for ct in range(4):
        for q in range(4):
            A(f"ds_read_b64_tr_b16 {v(WCH+8*ct+2*q,2)}, v{144+ct} offset:{q*2048}")


def cub_base(base):
    A(f"s_min_u32 s32, s{sW4}, 2")
    A("s_lshl_b32 s32, s32, 12")
    A(f"s_lshl_b32 s33, s{sHG}, 14")
    A("s_add_u32 s32, s32, s33")
    A(f"s_add_u32 s32, s32, {hex(base)}")


def wch_reduce(base, x):
    for ct in range(4):
        A(f"v_mov_b32 v{WAC+ct}, 0")
    for q in range(8):
        for ct in range(4):
            A(f"v_dot2c_f32_bf16 v{WAC+ct}, {ONES if x is None else 'v%d' % (x+q)}, v{WCH+8*ct+q}")
    cub_base(base)
    A(f"s_lshl_b32 s33, s{sRB}, 8")
    A("s_add_u32 s32, s32, s33")
    A(f"v_lshlrev_b32 v20, 2, v{LN}")
    tred4(WAC)
    A(f"buffer_store_dword v{WAC}, v20, {WSR}, s32 offen sc1")


def cub_loads(Z, base):
    cub_base(base)
    for i in range(4):
        A(f"buffer_load_dwordx4 {v(Z+4*i,4)}, v{L16}, {WSR}, s32 offen offset:{i*1024} sc1")


def cub_sum(Z):
    for i in range(1, 4):
        for c in range(0, 4, 2):
            A(f"v_pk_add_f32 {v(Z+c,2)}, {v(Z+c,2)}, {v(Z+4*i+c,2)}")
    tred4(Z)


def tab_write(a_, m_, c_, d_, t):
    A(f"v_cmp_gt_u32 vcc, 32, v{LN}")
    A(f"v_and_b32 v{t}, 31, v{LN}")
    A(f"v_lshrrev_b32 v{t+1}, 5, v{LN}")
    A(f"v_lshlrev_b32 v{t+1}, 9, v{t+1}")
    A(f"v_lshl_add_u32 v{t}, v{t}, 2, v{t+1}")
    A(f"s_lshl_b32 s32, s{sW4}, 7")
    A(f"v_add_u32 v{t}, s32, v{t}")
    A(f"v_cndmask_b32 v{t+1}, {m_}, {a_}, vcc")
    A(f"v_cndmask_b32 v{t+2}, {d_}, {c_}, vcc")
    A(f"ds_write_b32 v{t}, v{t+1} offset:{T_A}")
    A(f"ds_write_b32 v{t}, v{t+2} offset:{T_C}")
    A(f"v_and_b32 v{t}, 15, v{LN}")
    A(f"v_lshrrev_b32 v{t+3}, 4, v{LN}")
    A(f"v_lshl_add_u32 v{t}, v{t}, 2, v{t+3}")
    A(f"s_min_u32 s32, s{sW4}, 2")
    A("s_lshl_b32 s32, s32, 8")
    A(f"v_lshl_add_u32 v{t}, v{t}, 2, s32")
    A(f"ds_write_b32 v{t}, v{CSUM} offset:{T_CS}")


def idx_write():
    A(f"v_mov_b32 v20, s{sIDX}")
    A(f"v_mov_b32 v21, s{sLOC}")
    A("v_mov_b32 v19, 0")
    A(f"ds_write_b64 v19, v[20:21] offset:{T_IDX}")


VX, VW, VO = 4, 8, 14


def l_setup(L):
    A(f"v_lshrrev_b32 v21, 3, v{LN}")
    if L == 0:
        A(f"v_lshrrev_b32 v20, 4, v{LN}")
        A(f"v_xor_b32 v20, v20, v{LN}")
        A("v_and_b32 v20, 7, v20")
        A("v_lshlrev_b32 v20, 4, v20")
        A(f"v_lshl_add_u32 v{VX}, v21, 11, v20")
        A(f"v_xor_b32 v{VX+1}, 64, v{VX}")
        A(f"v_add_u32 v{VX+1}, {16384-1024}, v{VX+1}")
        A(f"v_add_u32 v{VX+2}, {2*(16384-1024)}, v{VX}")
        A(f"v_add_u32 v{VX+3}, {2*(16384-1024)}, v{VX+1}")
        A(f"s_lshl_b32 s{sSX}, s{sT}, 16")
        A(f"s_lshl_b32 s{sSW}, s{sHG}, 7")
        A(f"s_lshl_b32 s{sMX}, s{sW4}, 12")
        A(f"s_mul_i32 s{sMW}, s{sW4}, 6144")
        A("v_and_b32 v20, 4, v21")
        A("v_add_u32 v20, v20, v21")
        A("v_mul_u32_u24 v20, 6144, v20")
    else:
        A(f"s_lshl_b32 s{sSX}, s{sRB}, 18")
        A(f"s_add_u32 s{sSX}, s{sSX}, s{sMX}")
        A(f"s_add_u32 s{sSX}, s{sSX}, {hex(XFB)}")
        A("v_mul_u32_u24 v20, 6144, v21")
    A("v_and_b32 v21, 6, v21")
    A(f"v_xor_b32 v21, v21, v{LN}")
    A("v_and_b32 v21, 7, v21")
    A("v_lshl_add_u32 v20, v21, 4, v20")
    A(f"s_mul_i32 s32, s{sW4}, 3")
    for m in range(3):
        A("s_bfe_u32 s33, s32, 0x10001")
        A(f"s_mul_i32 s33, s33, {32*6144}")
        A("s_and_b32 s34, s32, 1")
        A(f"s_mul_i32 s34, s34, {(4 if L == 0 else 8)*6144}")
        A("s_add_u32 s33, s33, s34")
        A("s_lshr_b32 s34, s32, 2")
        A("s_lshl_b32 s34, s34, 11")
        A("s_add_u32 s33, s33, s34")
        if m == 1:
            A("s_sub_u32 s33, s33, 2048")
        A(f"v_add_u32 v{VW+2*m}, s33, v20")
        A(f"v_add_u32 v{VW+2*m+1}, {16*6144-1024}, v{VW+2*m}")
        if m < 2:
            A("s_add_u32 s32, s32, 1")


def kreg(st):
    return [f"s_add_u32 s{sD0}, s{(sKa, sKb)[st & 1]}, {st}", f"s_and_b32 s{sD0}, s{sD0}, 15"]


def st_x(L, st, tag=None):
    gs = []
    for q in range(4):
        g = []
        if q == 0:
            g += kreg(st) + [f"s_lshl_b32 s{sD1}, s{sD0}, {7 if L == 0 else 14}", f"s_add_u32 s{sD1}, s{sD1}, s{sSX}",
                             f"s_add_u32 m0, s{sMX}, {L_X - XSL*(st % 3)}"]
        if L == 0:
            g += [f"buffer_load_dwordx4 v{VX+q}, s[{XS}:{XS+3}], s{sD1} offen offset:{q*1024} lds ;@{tag or 'st%d' % st}"]
        else:
            g += [f"buffer_load_dwordx4 v{L16}, {WSR}, s{sD1} offen offset:{q*1024} sc1 lds ;@{tag or 'st%d' % st}"]
        gs.append(g)
    return gs


def st_w(st, tag=None):
    gs = []
    for i in range(6):
        g = []
        if i == 0:
            g += kreg(st) + [f"s_mul_i32 s{sD0}, s{sD0}, {64*6144}", f"s_add_u32 s{sD0}, s{sD0}, s{sSW}"]
        if i & 3 == 0:
            g += [f"s_add_u32 m0, s{sMW}, {L_W + WSL*(st % 3) + 1024*i}"]
        g += [f"buffer_load_dwordx4 v{VW+i}, s[{WS_}:{WS_+3}], s{sD0} offen offset:{(i&3)*1024} lds ;@{tag or 'st%d' % st}"]
        gs.append(g)
    return gs


def q_loop(L, jobs, extra, force, lead, pre={}):
    for it in range(16):
        tags = ([f"st{it+1}"] if it < 15 else []) + force.get(it, [])
        if tags:
            W(",".join(tags), 0)
        else:
            A("s_waitcnt lgkmcnt(0)")
        markq(f"w{it}")
        A("s_barrier")
        markq(f"b{it}")
        g = pre.get(it, []) + (st_x(L, it + 3) + st_w(it + 3) if it <= 12 else []) + extra.get(it, [])
        weave(g, lambda: [j() for j in jobs.get(it, [])], lead.get(it, 2))


def isred(body):
    l = newlab("sk")
    A(f"s_cmp_lt_u32 s{sF}, 224")
    A(f"s_cbranch_scc1 {l}")
    A(f"s_cmp_ge_u32 s{sW4}, 2")
    A(f"s_cbranch_scc1 {l}")
    cond("red", body)
    A.label(l)


def l_layer0():
    A.label("l_start")
    A.lines.append("@reset")
    l_setup(0)
    ptr_fin()
    g = st_x(0, 0) + st_w(0) + st_x(0, 1) + st_w(1) + st_x(0, 2) + st_w(2)
    N0, N1 = opt("n0", 8), opt("n1", 17)
    emit(g[:N0])
    masks()
    wo_voff(VO)
    ffn_addr()
    A("s_getreg_b32 s88, hwreg(HW_REG_XCC_ID, 0, 4)")
    A("s_or_b32 s88, s88, 16")
    A(f"s_mov_b32 s{sIDX}, -1")
    A(f"s_mov_b32 s{sPATCH}, 0")
    A(f"v_lshlrev_b32 v15, 2, v{LN}")
    emit(g[N0:N1])
    W("st0")
    A("s_barrier")
    emit(g[N1:])
    S, E, Z = 64, 52, 32

    def clears():
        for i in range(4):
            A(f"v_mov_b32 v{16+i}, -1")
        A(f"s_lshr_b32 s30, s{sW4}, 1")
        A(f"s_mul_i32 s30, s30, {LSTR}")
        A(f"s_and_b32 s31, s{sW4}, 1")
        A("s_lshl_b32 s32, s31, 20")
        A(f"s_lshl_b32 s33, s{sCU}, 10")
        A("s_add_u32 s32, s32, s33")
        A("s_add_u32 s32, s32, s30")
        A(f"s_add_u32 s32, s32, {hex(AR)}")
        for i in range(3):
            A(f"buffer_store_dwordx4 v[16:19], v{L16}, {WSR}, s32 offen sc1 ;@pub")
            A(f"s_add_u32 s32, s32, {256*KB}")
        A(f"s_lshl_b32 s33, s{sCU}, 7")
        A("s_add_u32 s33, s33, s30")
        A(f"s_add_u32 s33, s33, {hex(SM)}")
        A("s_cmp_eq_u32 s31, 0")
        A("s_cselect_b32 s32, s32, s33")
        A("s_cselect_b64 exec, -1, 0xff")
        A(f"buffer_store_dwordx4 v[16:19], v{L16}, {WSR}, s32 offen sc1 ;@pub")
        A("s_mov_b64 exec, -1")

    def part(st):
        A(f"v_and_b32 v28, 31, v{LN}")
        A("v_bfe_u32 v29, v28, 1, 3")
        A(f"v_lshrrev_b32 v30, 5, v{LN}")
        A("v_xor_b32 v29, v29, v30")
        A("v_lshlrev_b32 v29, 4, v29")
        A("v_lshl_add_u32 v28, v28, 7, v29")
        A(f"s_add_u32 s30, s{sMX}, {L_X - XSL*(st % 3)}")
        A("v_add_u32 v28, s30, v28")
        for ks in range(1, 4):
            A(f"v_xor_b32 v{28+ks}, {32*ks}, v28")
        for ks in range(4):
            A(f"ds_read_b128 {v(32+4*ks,4)}, v{28+ks}")
        wch_reads(st)

    def part2():
        for i in range(4):
            A(f"v_mov_b32 v{48+i}, 0")
        A(f"s_lshl_b32 s30, s{sT}, 13")
        A(f"s_lshl_b32 s31, s{sHG}, 9")
        A("s_add_u32 s30, s30, s31")
        A(f"s_add_u32 s30, s30, {hex(STAT0)}")
        for p in range(16):
            A(f"v_dot2c_f32_bf16 v{48+2*(p&1)}, {ONES}, v{32+p}")
            A(f"v_dot2c_f32_bf16 v{49+2*(p&1)}, v{32+p}, v{32+p}")
        A("v_pk_add_f32 v[48:49], v[48:49], v[50:51]")
        A("v_mov_b32 v50, v48")
        A("v_mov_b32 v51, v49")
        A("v_permlane32_swap_b32 v48, v50")
        A("v_permlane32_swap_b32 v49, v51")
        A("v_pk_add_f32 v[48:49], v[48:49], v[50:51]")
        A("s_mov_b32 exec_hi, 0")
        A(f"buffer_store_dwordx4 v[48:51], v{L16}, {WSR}, s30 offen sc1 ;@pub")
        A("s_mov_b64 exec, -1")
        tagged("pub", lambda: wch_reduce(CUB0, None))

    def dbgload():
        A(f"buffer_load_dword v16, v15, s[{TS}:{TS+3}], 0 offen sc1")

    def arrived():
        def chk():
            A("v_and_b32 v17, 0x10101010, v16")
            A("v_cmp_ne_u32 vcc, 0x10101010, v17")
        poll(dbgload, chk, "arr")
        mark("arr")
        tagged("s0", stat_loads(S, STAT0))
        tagged("s0", lambda: cub_loads(Z, CUB0))
        A("s_mul_i32 s30, s88, 0x01010101")
        A("v_cmp_eq_u32 vcc, s30, v16")
        A(f"s_lshl_b32 s31, s{sRB}, 2")
        A("s_lshr_b64 s[30:31], vcc, s31")
        A("s_and_b32 s30, s30, 15")
        A("s_cmp_eq_u32 s30, 15")
        A(f"s_cselect_b32 s{sLOC}, 1, 0")
        idx_write()

    def tables():
        W("s0")
        stat_core(S, E, 48, 2)
        cub_sum(Z)
        A(f"v_mov_b32 v{CSUM}, v{Z}")
        tab_write(f"v{E+3}", f"v{E+2}", "1.0", "0", 48)
    SP, CL, AR_, AP = opt("sp", 1), opt("cl", 0), AR_IT, opt("ap", 11)
    jobs, extra = {}, {}
    tb = pieces(tables, 2)
    for it, j in ((SP - 1, lambda: part(SP)), (CL, clears), (SP, part2),
                  (AP, lambda: tagged("arr", dbgload)), (AP + 1, arrived), (AP + 2, tb[0]), (AP + 3, tb[1])):
        jobs.setdefault(it, []).append(j)
    for j, gr in enumerate(wo_groups(range(1, 10), VO, "wo")):
        extra.setdefault(opt("wo0", 2) + j, []).append(gr)
    FFS = opt("ffs", [1, 2, 3, 4, 5, 6, 7, 8, 9, 10, 11, 12, 13, 13, 14, 14] + [13] * 8)
    ff = ffn_groups(0) + ffn_groups(1) + ffn_groups(2, TS)
    assert FFS[16] > AP + 1 and FFS[:16] == sorted(FFS[:16])
    for j in list(range(16, 24)) + list(range(16)):
        extra.setdefault(FFS[j], []).append(ff[j])
    q_loop(0, jobs, extra, {AR_: ["pub"]}, opt("lead0", {CL: 6, AP: 0, AP + 1: 10}))


def l_att():
    A.label("l_att")
    A.lines.append("@reset")
    emit(wo_groups([10, 11], VO, "wo"))
    att_setup(1)
    A(f"s_lshr_b32 s33, s{sW4}, 1")
    A(f"s_add_u32 s33, s33, s{sRB}")
    A("s_sub_u32 s33, s33, 2")

    def halo():
        A(f"s_and_b32 s34, s{sW4}, 1")
        A(f"s_lshl_b32 s35, s{sHG}, 7")
        A("s_lshl_b32 s30, s33, 2")
        A("s_add_u32 s35, s35, s30")
        A("s_lshl_b32 s30, s34, 1")
        A("s_add_u32 s35, s35, s30")
        A("s_lshl_b32 s35, s35, 12")
        A(f"s_add_u32 s35, s35, s{sL}")
        A(f"s_lshl_b32 s30, s{sHG}, 8")
        A("s_lshl_b32 s31, s33, 4")
        A("s_add_u32 s30, s30, s31")
        A("s_lshl_b32 s31, s34, 3")
        A("s_add_u32 s30, s30, s31")
        A(f"s_add_u32 s30, s30, s{sL}")
        A(f"s_add_u32 s30, s30, {hex(KVF)}")
        A("v_mov_b32 v40, 0")
        poll(lambda: A(f"buffer_load_dwordx2 v[42:43], v40, {WSR}, s30 offen sc1"), lambda: sent_check([42, 43], 41))
        mark("kv_ok")
        A(f"s_lshl_b32 s30, s{sW4}, 13")
        for hd in range(2):
            for kv in range(2):
                for tt in range(2):
                    A(f"s_add_u32 m0, s30, {L_KV + hd*KVH + tt*4096}")
                    A(f"s_add_u32 s31, s35, {hd*262144 + tt*4096}")
                    for p in range(2):
                        A(f"buffer_load_dwordx4 v{L16}, {WSR}, s31 offen offset:{(2*kv+p)*1024} sc1 lds ;@h{hd}{kv}")
        W("h00")
    skip_if("s_cmp_lt_i32 s33, 0", halo)
    skip_if(f"s_cmp_eq_u32 s{sPATCH}, 0", lambda: A("s_waitcnt vmcnt(0)"))
    mark("x1_wait")
    A("s_barrier")

    def fix():
        A("s_cmp_lg_u32 s38, 0")
        A("s_cselect_b64 exec, -1, 0")
        A("ds_write_b16 v0, v1")
        A("s_mov_b64 exec, -1")
        A("s_waitcnt lgkmcnt(0)")
        A("s_barrier")
    skip_if(f"s_cmp_eq_u32 s{sPATCH}, 0", fix)
    att_qread()
    A("s_waitcnt vmcnt(0) lgkmcnt(0)")
    A("s_barrier")
    mark("att_go")
    XLA = opt("xla", 13)

    def hook(ps, d):
        if (ps - 1) * 9 + d == XLA:
            A("s_barrier")
    attention(1, hook)
    flag_store("s31", True)
    mark("o_fl")
    wo_voff(VO)
    ffn_xaddr()
    A(f"s_mov_b32 s{sCI}, s{sL}")

    def nxt():
        ffn_perm()
        l_setup(1)
        A(f"s_sub_u32 s30, s{sKb}, 1")
        A(f"s_sub_u32 s{sKb}, s{sKa}, 3")
        A(f"s_mov_b32 s{sKa}, s30")
        xf_off(116)
        A(f"v_and_b32 v16, 15, v{LN}")
        A("v_lshlrev_b32 v16, 9, v16")
        srd_load(TS, 64, 4 * MB)
    skip_if(f"s_cmp_lg_u32 s{sL}, 0", nxt)
    A("s_barrier")
    emit(wo_groups(range(28, 32), VO, "wo"))
    A("s_waitcnt vmcnt(0)")
    A("s_barrier")
    A(f"s_cmp_lg_u32 s{sL}, 0")
    A("s_cbranch_scc1 l_tail")


def readsel(T, lane):
    for r_, i in ((sR, 0), (sIDX, 1), (sMEAN, 2), (sRSTD, 3)):
        A(f"v_readlane_b32 s{r_}, v{T+i}, {lane}")
    A(f"s_and_b32 s{sIDX}, s{sIDX}, 2047")


def l_layer1():
    S, E, TB, PR = 64, 52, 16, 100
    A(f"s_mov_b32 s{sL}, {LSTR}")
    emit(st_w(0) + st_w(1))
    A(f"s_lshl_b32 s30, s{sT}, 13")
    A(f"s_add_u32 s30, s30, {hex(STAT)}")
    prof_next()
    W("st0")
    A("s_barrier")
    emit(st_w(2))
    for ks in range(4):
        A(f"ds_read_b128 {v(PR+4*ks,4)}, v117 offset:{ks*512}")
    poll(lambda: A(f"buffer_load_dword v17, v16, {WSR}, s30 offen sc1"), lambda: sent_check([17], 18))
    mark("x_ok")
    emit(st_x(1, 1))
    tagged("stat", stat_loads(S, STAT))

    def stats():
        poll(stat_loads(S, STAT), lambda: sent_check(range(S, S + 32), 48), "stat")
        stat_core(S, E, 48)
        cand_publish(S, E, 48, PR, 0)
        mark("cand")
        A(f"v_add_f32 v56, 1.0, v{E+3}")
        A(f"v_mul_f32 v57, v{E+2}, v{E+3}")
        A("v_mul_f32 v58, v56, v56")
        A("v_sub_f32 v57, 0, v57")
        A(f"v_mul_f32 v58, v58, v{S+1}")
        A(f"v_add_f32 v58, {fl(EPS)}, v58")
        A("v_rsq_f32 v58, v58")
        A("v_mul_f32 v58, v58, v56")
        tab_write("v58", f"v{E+2}", "v56", "v57", 48)

    def arg():
        argmax_lane(TB, "tab")
        readsel(TB, "s32")
        tagged("x", xloads)
        mark("f_arg")
        idx_write()
        patch_flag()

    def gateup():
        poll(xloads, lambda: sent_check(range(XG, XG + 4), 30), "x")
        red_pre()
        ffn_gateup()

    def down():
        ffn_down()
        mark("f_down")

    def red():
        poll(red_loads, lambda: sent_check(range(RP, RP + 56), 30), "red")
        red_sum()
        A("s_lshl_b32 s32, s89, 5")
        A(f"s_add_u32 s32, s32, {hex(X2R)}")
        A(f"v_and_b32 v30, 1, v{LN}")
        A(f"v_bfe_u32 v31, v{LN}, 1, 1")
        A("v_lshlrev_b32 v30, 4, v30")
        A("v_lshl_add_u32 v30, v31, 3, v30")
        A("s_mov_b64 exec, 15")
        A(f"buffer_store_dwordx2 {v(RP,2)}, v30, {WSR}, s32 offen sc1")
        A("s_mov_b64 exec, -1")
        mark("f_red")
    T_, RL, XL, PL = opt("tb", 3), opt("rl", 8), opt("xl", 11), opt("pl", 14)
    SZ = XL + 1

    def x2loads():
        for kk in range(2):
            A(f"buffer_load_dwordx4 {v(XCH+4*kk,4)}, v19, {WSR}, s35 offen offset:{64*kk} sc1")

    def x2():
        A(f"s_add_u32 s35, s{(sKa, sKb)[SZ & 1]}, {SZ}")
        A("s_and_b32 s35, s35, 15")
        A("s_lshl_b32 s35, s35, 7")
        A(f"s_add_u32 s35, s35, {hex(X2R)}")
        A(f"v_and_b32 v19, 48, v{LN}")
        tagged("x2", x2loads)
        wch_reads(SZ)

    def z():
        poll(x2loads, lambda: sent_check(range(XCH, XCH + 8), 30), "x2")
        wch_reduce(CUB + LSTR, XCH)
        mark("f_z")
    Z, XR = 32, 48

    def zloads():
        cub_loads(Z, CUB + LSTR)
        A(f"s_mov_b32 s32, {hex(X2R)}")
        for i in range(2):
            A(f"buffer_load_dwordx4 {v(XR+4*i,4)}, v{L16}, {WSR}, s32 offen offset:{1024*i} sc1")

    def paddr():
        tagged("z", zloads)
        A(f"v_and_b32 v20, 7, v{LN}")
        A(f"v_lshrrev_b32 v21, 4, v{LN}")
        A("v_lshl_add_u32 v21, v20, 2, v21")
        A(f"s_and_b32 s34, s{sIDX}, 31")
        A("s_and_b32 s32, s34, 7")
        A("s_and_b32 s33, s34, 8")
        A("s_lshl_b32 s33, s33, 1")
        A("s_add_u32 s32, s32, s33")
        A("s_lshr_b32 s33, s34, 4")
        A("s_lshl_b32 s33, s33, 3")
        A("s_add_u32 s32, s32, s33")
        A(f"s_cmp_eq_u32 s{sW4}, 1")
        A("s_cselect_b32 s34, s32, s34")
        A("v_mov_b32 v20, s34")
        A(f"s_cmp_ge_u32 s{sW4}, 2")
        A("s_cselect_b64 vcc, -1, 0")
        A("s_cselect_b32 s32, 2048, 0")
        A("v_cndmask_b32 v30, v20, v21, vcc")
        A("v_cndmask_b32 v31, v21, v20, vcc")
        A("v_lshlrev_b32 v0, 4, v30")
        A("v_bfe_u32 v20, v31, 2, 2")
        A("v_lshl_add_u32 v0, v20, 9, v0")
        A("v_lshrrev_b32 v20, 4, v31")
        A("v_lshl_add_u32 v0, v20, 3, v0")
        A("v_and_b32 v20, 3, v31")
        A("v_lshl_add_u32 v0, v20, 1, v0")
        A("s_lshl_b32 s33, s39, 12")
        A("s_add_u32 s33, s33, s32")
        A(f"s_add_u32 s33, s33, {L_KV}")
        A("s_lshl_b32 s34, s39, 11")
        A(f"s_add_u32 s34, s34, {L_Q - 8*2048}")
        A("s_cmp_ge_u32 s39, 8")
        A("s_cselect_b32 s38, 1, 0")
        A("s_movk_i32 s32, 8192")
        A(f"s_cmp_eq_u32 s{sW4}, 0")
        A("s_cselect_b32 s33, s34, s33")
        A(f"s_cselect_b32 s32, s32, {KVH}")
        A("s_cselect_b32 s38, s38, 1")
        A(f"s_cselect_b32 s37, {fl(QSCALE)}, 1.0")
        A(f"v_bfe_u32 v20, v{LN}, 3, 1")
        A("v_mul_u32_u24 v20, s32, v20")
        A("v_add3_u32 v0, v0, v20, s33")

    def pval():
        poll(zloads, lambda: sent_check(range(Z, Z + 24), 30), "z")
        A("v_mov_b32 v28, 0")
        A("v_mov_b32 v29, 0")
        for p in range(8):
            A(f"v_dot2c_f32_bf16 v28, {ONES}, v{XR+p}")
            A(f"v_dot2c_f32_bf16 v29, v{XR+p}, v{XR+p}")
        cub_sum(Z)
        wave_red(28, 30)
        wave_red(29, 30)
        A(f"v_mul_f32 v28, {fl(1/1024)}, v28")
        A(f"v_mul_f32 v29, {fl(1/1024)}, v29")
        A("v_fma_f32 v29, -v28, v28, v29")
        A("v_max_f32 v29, 0, v29")
        A(f"v_add_f32 v29, {fl(EPS)}, v29")
        A("v_rsq_f32 v29, v29")
        A(f"v_fma_f32 v{Z}, -v28, v{CSUM}, v{Z}")
        A("v_mul_f32 v29, s37, v29")
        A(f"v_mul_f32 v{Z}, v{Z}, v29")
        A(f"v_cvt_pk_bf16_f32 v1, v{Z}, v{Z}")
        mark("f_patch")
    pat = lambda f: (lambda: skip_if(f"s_cmp_eq_u32 s{sPATCH}, 0", f, "pat"))
    jobs = {}
    for it, j in ((0, stats), (T_, lambda: tagged("tab", table_loads(TB))), (T_ + 1, arg), (T_ + 2, gateup), (T_ + 3, down),
                  (RL, lambda: isred(lambda: tagged("red", red_loads))), (RL + 1, lambda: isred(red)),
                  (XL, x2), (XL + 1, z), (PL, pat(paddr)), (min(PL + 1, 15), pat(pval))):
        jobs.setdefault(it, []).append(j)
    q_loop(1, jobs, {}, {}, opt("lead", {0: 4, T_: 0, T_ + 1: 0, RL: 0, RL + 1: 10, XL: 0}), {0: st_x(1, 2)})
    A("s_branch l_att")
    A.label("l_tail")
    A.lines.append("@reset")
    A("v_mov_b32 v20, 0")
    A("s_barrier")
    A(f"ds_read_b128 {v(TB,4)}, v20 offset:{T_IDX}")
    A("s_waitcnt lgkmcnt(0)")
    readsel(TB, "0")
    mark("t_arg")
    poll(xloads, lambda: sent_check(range(XG, XG + 4), 30))
    mark("t_x")
    A(f"s_cmp_ge_u32 s{sF}, 224")
    A("s_cbranch_scc1 l_tred")
    ffn_gateup()
    A("s_waitcnt lgkmcnt(0)")
    A("s_barrier")
    ffn_down()
    mark("f_down")
    A("s_branch k_end")
    A.label("l_tred")
    A(f"s_cmp_ge_u32 s{sW4}, 2")
    A("s_cbranch_scc1 k_end")
    red_pre()
    poll(red_loads, lambda: sent_check(range(RP, RP + 56), 30))
    mark("t_py")
    red_sum()
    A(f"s_lshl_b32 s32, s{sIDX}, 11")
    A("s_lshl_b32 s33, s89, 5")
    A("s_add_u32 s32, s32, s33")
    A(f"v_lshlrev_b32 v30, 3, v{LN}")
    A("s_mov_b64 exec, 15")
    A(f"buffer_store_dwordx2 {v(RP,2)}, v30, s[{TS}:{TS+3}], s32 offen sc1")
    A("s_mov_b64 exec, -1")


def main():
    out = [x for x in ARGS if x.endswith(".s")]
    out = out[0] if out else os.path.join(os.path.dirname(os.path.abspath(__file__)), NAME + ".s")
    K = NAME + "_kernel"
    A(f".globl {K}")
    A(".p2align 8")
    A(f".type {K},@function")
    A.label(K)
    cap(ffn_perm)
    prologue()
    e_init()
    e_qphase()
    e_att()
    e_wo()
    l_layer0()
    l_att()
    l_layer1()
    A.label("k_end")
    if PROF:
        A("s_waitcnt vmcnt(0)")
        mark("end")
        A(f"s_lshl_b32 s30, s{sCU}, 3")
        A(f"s_add_u32 s30, s30, s{sW}")
        A("s_lshl_b32 s30, s30, 9")
        A(f"s_add_u32 s30, s30, {hex(PROFOFF)}")
        A(f"v_lshlrev_b32 v0, 2, v{LN}")
        A(f"buffer_store_dword v{PRF2}, v0, {WSR}, s30 offen")
        A(f"buffer_store_dword v{PRF}, v0, {WSR}, s30 offen offset:256")
    A.label("k_exit")
    A("s_endpgm")
    assert len(MARKS) <= (64 if "-profq" in ARGS else 32), len(MARKS)
    A.lines = resolve(A.lines)
    A.hazard_pass(verbose="-v" in ARGS)
    txt = "; @launch grid=(256,1,1) block=(512,1,1) lds=163840\n"
    txt += "; marks: " + " ".join(MARKS) + "\n" if PROF else ""
    txt += '.amdgcn_target "amdgcn-amd-amdhsa--gfx950"\n.text\n' + A.text() + '.section .rodata,"a"\n.p2align 6\n'
    txt += f""".amdhsa_kernel {K}
  .amdhsa_next_free_vgpr 256
  .amdhsa_next_free_sgpr 102
  .amdhsa_accum_offset 256
  .amdhsa_group_segment_fixed_size 0
  .amdhsa_kernarg_size 88
  .amdhsa_user_sgpr_count 2
  .amdhsa_user_sgpr_kernarg_segment_ptr 1
  .amdhsa_system_sgpr_workgroup_id_x 1
.end_amdhsa_kernel
"""
    open(out, "w").write(txt)


main()
```

```python
import sys, os, struct, math, re
sys.path.insert(0, os.path.join(os.path.dirname(os.path.abspath(__file__)), "tools"))
from asmlib import *

NAME = "interleave_layers__sliding_block__moe_arch_mod__prompt"
KB, MB = 1 << 10, 1 << 20
ARGS = sys.argv[1:]


def opt(name, default):
    for x in ARGS:
        if x.startswith(name + "="):
            t = x.split("=", 1)[1]
            return eval(t) if isinstance(default, (list, tuple, dict)) else type(default)(t)
    return default


PROF = "-prof" in ARGS
USELOC = opt("loc", 1)
LSTR = 16 * MB
KVB, OFB, AR = 0, 8 * MB, 12 * MB
STAT, PY, CAND, CUB, SM = AR, AR + 512 * KB, AR + 1408 * KB, AR + 1536 * KB, AR + 1792 * KB
TABLE, X2R, KVF, OFL = SM, SM + 16 * KB, SM + 64 * KB, SM + 72 * KB
EPOCH, ROWF, COLF = SM + 96 * KB, SM + 100 * KB, SM + 104 * KB
EPINC = 0x9E3779B9
XFB = 32 * MB
STAT0, CUB0 = 36 * MB, 37 * MB
PROFOFF = 100 * MB
EPS = 1e-5
QSCALE = (32 ** -0.5) * math.log2(math.e)
ONES = "0x3f803f80"
T_A, T_M, T_CS, T_C, T_D, T_IDX, T_INB = 0, 512, 1024, 2048, 2560, 3072, 3328
L_W, WSL, L_X, XSL = 40960, 24576, 147456, 16384
L_Q, L_KV, KVH = 49152, 65536, 49152
sW, sRB, sHG, sL, sLIM, sW4, sF = 3, 24, 25, 26, 27, 28, 29
MS = 40
sCU, sIDX, sR, sMEAN, sRSTD, sLOC, sCNT, sCI = 72, 73, 74, 75, 76, 77, 78, 79
XS, WOS, TS, WS_, WSP = 4, 8, 12, 16, 20
TS2 = 80
sSX, sSW, sMX, sMW, sNON, sAC = 84, 85, 86, 87, 88, 89
sKa, sKb, sD0, sD1, sCG, sT, sPATCH, sMO = 94, 95, 96, 97, 98, 99, 100, 101
LN, L16, PRF2, PRF = 252, 253, 254, 255
P, WR, CC, DD, WSUM, EVO = 208, 224, 240, 241, 242, 243
GW, UW, DW, SPARE = 156, 188, 220, 155
CSUM = 2


def fl(x):
    return "0x%08x" % struct.unpack("<I", struct.pack("<f", x))[0]


A = Asm()
_lab = [0]
WSR = f"s[{WSP}:{WSP+3}]"


def newlab(p):
    _lab[0] += 1
    return f"{p}_{_lab[0]}"


def srd_fin(d, nbytes):
    A(f"s_mov_b32 s{d+2}, {hex(nbytes)}")
    A(f"s_mov_b32 s{d+3}, 0x20000")


def srd_load(d, karg, nbytes):
    A(f"s_load_dwordx2 s[{d}:{d+1}], s[0:1], {karg}")
    srd_fin(d, nbytes)
    A("s_waitcnt lgkmcnt(0)")


def cap(fn):
    keep = A.lines
    A.lines = []
    fn()
    out = A.lines
    A.lines = keep
    return out


def tagged(tag, fn):
    for ln in cap(fn):
        if ln.startswith("buffer_") and ";@" not in ln:
            ln += f" ;@{tag}"
        A.lines.append(ln)


def W(tags, lgkm=None):
    A.lines.append(f"@wait {tags} {'' if lgkm is None else lgkm}")


def cond(key, fn):
    A.lines.append(f"@cond {key}")
    fn()
    A.lines.append("@endcond")


def resolve(lines):
    out, issued, stack = [], [], []
    for ln in lines:
        if ln.startswith("@cond"):
            stack.append(ln.split()[1])
        elif ln == "@endcond":
            stack.pop()
        elif ln == "@reset":
            issued = []
        elif ln.startswith("@wait"):
            p = ln.split()
            tags = p[1].split(",")
            idx = [i for i, (t, c) in enumerate(issued) if t in tags]
            assert idx, f"wait for unknown tag {tags}"
            n = sum(1 for (t, c) in issued[idx[-1]+1:] if all(k in stack for k in c))
            out.append(f"s_waitcnt vmcnt({min(n, 63)})" + (f" lgkmcnt({p[2]})" if len(p) > 2 else ""))
        else:
            if ln.startswith("buffer_"):
                issued.append((ln.split(";@")[1] if ";@" in ln else None, tuple(stack)))
                ln = ln.split(";@")[0].strip()
            out.append(ln)
    return out


SCCW = ("s_add_", "s_sub_", "s_cmp", "s_and_", "s_or_", "s_xor_", "s_lshl", "s_lshr", "s_min", "s_max", "s_not", "s_bfe", "s_bitcmp")
SCCR = ("s_cselect", "s_cbranch_scc", "s_addc", "s_subb")


def safe_points(body):
    n = len(body)
    safe = [True] * (n + 1)
    pos = {ln[:-1]: i for i, ln in enumerate(body) if ln.endswith(":")}
    ex, depth, lastw = True, 0, -1
    for i, ln in enumerate(body):
        if ln.startswith(("s_cbranch", "s_branch")):
            j = pos[ln.split()[1]]
            for k in range(min(i, j) + 1, max(i, j) + 1):
                safe[k] = False
        if ln.startswith(SCCR):
            for k in range(lastw + 1, i + 1):
                safe[k] = False
        if ln.startswith(SCCW):
            lastw = i
        if re.match(r"s_\w+ exec", ln) or "saveexec" in ln:
            ex = ln == "s_mov_b64 exec, -1"
        if ln.startswith("@cond"):
            depth += 1
        if ln == "@endcond":
            depth -= 1
        if not ex or depth:
            safe[i + 1] = False
    return safe


def pieces(fn, k):
    body = cap(fn)
    safe = safe_points(body)
    fr = [(i + 1) / k for i in range(k - 1)] if isinstance(k, int) else k
    cuts = [0]
    for f in fr:
        c = max(int(f * len(body)), cuts[-1])
        while not safe[c]:
            c += 1
        cuts.append(c)
    cuts.append(len(body))
    return [(lambda a=a, b=b: A.lines.extend(body[a:b])) for a, b in zip(cuts, cuts[1:])]


def weave(groups, fn, lead=1, post=False):
    body = cap(fn)
    n = len(body)
    safe = safe_points(body)
    groups = list(groups)
    for g in groups[:lead]:
        A.lines += g
    groups = groups[lead:]
    k = 0
    for i in range(n + 1):
        while k < len(groups) and not post and safe[i] and i >= (k + 1) * n / (len(groups) + 1):
            A.lines += groups[k]
            k += 1
        if i < n:
            A.lines.append(body[i])
    for g in groups[k:]:
        A.lines += g


MARKS = {}


def mark(name):
    if name not in MARKS:
        MARKS[name] = len(MARKS)
    if PROF:
        A("s_memrealtime s[90:91]")
        if "-profq" not in ARGS:
            A("s_memtime s[92:93]")
        A("s_waitcnt lgkmcnt(0)")
        A(f"v_writelane_b32 v{PRF}, s90, {MARKS[name]}")
        if "-profq" not in ARGS:
            A(f"v_writelane_b32 v{PRF}, s92, {MARKS[name]+32}")


def markq(name):
    if "-profq" in ARGS:
        mark(name)


def prof_next():
    if PROF:
        A(f"v_mov_b32 v{PRF2}, v{PRF}")
        A(f"v_mov_b32 v{PRF}, 0")


def MF(d, a_, b_, c=None):
    cc = v(d, 16) if c is None else (c if isinstance(c, str) else v(c, 16))
    return f"v_mfma_f32_32x32x16_bf16 {v(d,16)}, {v(a_,4)}, {v(b_,4)}, {cc}"


def MF16(d, a_, b_):
    return f"v_mfma_f32_16x16x32_bf16 {v(d,4)}, {v(a_,4)}, {v(b_,4)}, {v(d,4)}"


DPPF = "row_mask:0xf bank_mask:0xf"


def wave_red(r, t, op="add", n=64):
    for sh in ("quad_perm:[1,0,3,2]", "quad_perm:[2,3,0,1]", "row_half_mirror", "row_mirror"):
        A(f"v_{op}_f32_dpp v{r}, v{r}, v{r} {sh} {DPPF}")
    A(f"v_mov_b32 v{t}, v{r}")
    A(f"v_permlane16_swap_b32 v{r}, v{t}")
    A(f"v_{op}_f32 v{r}, v{r}, v{t}")
    if n == 64:
        A(f"v_mov_b32 v{t}, v{r}")
        A(f"v_permlane32_swap_b32 v{r}, v{t}")
        A(f"v_{op}_f32 v{r}, v{r}, v{t}")


def tred4(r):
    A(f"v_permlane32_swap_b32 v{r}, v{r+2}")
    A(f"v_permlane32_swap_b32 v{r+1}, v{r+3}")
    A(f"v_add_f32 v{r}, v{r}, v{r+2}")
    A(f"v_add_f32 v{r+1}, v{r+1}, v{r+3}")
    A(f"v_permlane16_swap_b32 v{r}, v{r+1}")
    A(f"v_add_f32 v{r}, v{r}, v{r+1}")


def sent_check(regs, t):
    regs = list(regs)
    if len(regs) == 1:
        A(f"v_cmp_eq_u32 vcc, -1, v{regs[0]}")
        return
    if len(regs) == 2:
        A(f"v_max_u32 v{t}, v{regs[0]}, v{regs[1]}")
        rest = []
    else:
        A(f"v_max3_u32 v{t}, v{regs[0]}, v{regs[1]}, v{regs[2]}")
        rest = regs[3:]
    while rest:
        if len(rest) >= 2:
            A(f"v_max3_u32 v{t}, v{t}, v{rest[0]}, v{rest[1]}")
            rest = rest[2:]
        else:
            A(f"v_max_u32 v{t}, v{t}, v{rest[0]}")
            rest = rest[1:]
    A(f"v_cmp_eq_u32 vcc, -1, v{t}")


def poll(loads, check, issued=None):
    top, chk, done = newlab("pl"), newlab("pc"), newlab("pd")
    A(f"s_mov_b32 s{sCNT}, s{sLIM}")
    if issued is not None:
        W(issued)
        A(f"s_branch {chk}")
    A.label(top)
    cond(top, lambda: A.lines.extend(x.split(";@")[0].strip() for x in cap(loads)))
    A("s_waitcnt vmcnt(0)")
    A.label(chk)
    check()
    A(f"s_cbranch_vccz {done}")
    A(f"s_sub_u32 s{sCNT}, s{sCNT}, 1")
    A(f"s_cmp_lg_u32 s{sCNT}, 0")
    A(f"s_cbranch_scc1 {top}")
    A(f"s_mov_b32 s{sLIM}, 1")
    A.label(done)


def skip_if(cmp, body, key=None):
    l = newlab("sk")
    A(cmp)
    A(f"s_cbranch_scc1 {l}")
    cond(key or l, body)
    A.label(l)


def st_loc(fn):
    if not USELOC:
        fn("sc1")
        return
    a_, b_ = newlab("lc"), newlab("lc")
    A(f"s_cmp_lg_u32 s{sLOC}, 0")
    A(f"s_cbranch_scc1 {a_}")
    cond(a_, lambda: fn("sc1"))
    A(f"s_branch {b_}")
    A.label(a_)
    fn("")
    A.label(b_)


def flag_store(so, loc=False):
    A(f"v_mov_b32 v154, s{sNON}")
    A("s_mov_b64 exec, 1")
    A("s_waitcnt vmcnt(0)")
    f = lambda bits: A(f"buffer_store_dword v154, v{L16}, {WSR}, {so} offen {bits}")
    if loc:
        st_loc(f)
    else:
        f("sc1")
    A("s_mov_b64 exec, -1")


def masks():
    for reg in range(16):
        G, r = reg >> 2, reg & 3
        key = 16 * (G & 1) + 8 * (G >> 1) + r
        A(f"s_mov_b32 s{MS+2*reg}, {hex((0xFFFFFFFF << key) & 0xFFFFFFFF)}")
        A(f"s_mov_b32 s{MS+2*reg+1}, {hex((0xFFFFFFFF << (key+4)) & 0xFFFFFFFF)}")


def prologue():
    A("s_cmp_ge_u32 s2, 256")
    A("s_cbranch_scc1 k_exit")
    A(f"s_load_dwordx4 s[{XS}:{XS+3}], s[0:1], 0")
    A(f"s_load_dwordx2 s[{WOS}:{WOS+1}], s[0:1], 16")
    A(f"s_load_dwordx2 s[{WSP}:{WSP+1}], s[0:1], 80")
    A(f"s_load_dwordx2 s[{TS2}:{TS2+1}], s[0:1], 32")
    A("v_lshrrev_b32 v1, 6, v0")
    A(f"v_and_b32 v{LN}, 63, v0")
    A(f"v_readfirstlane_b32 s{sW}, v1")
    A(f"v_lshlrev_b32 v{L16}, 4, v{LN}")
    A("s_and_b32 s30, s2, 7")
    A("s_lshr_b32 s31, s2, 3")
    A("s_and_b32 s32, s31, 1")
    A(f"s_lshl_b32 s33, s30, 1")
    A(f"s_add_u32 s{sRB}, s33, s32")
    A(f"s_lshr_b32 s{sHG}, s31, 1")
    A(f"s_add_u32 s33, s33, s{sHG}")
    A(f"s_add_u32 s{sKa}, s33, s32")
    A(f"s_sub_u32 s{sKb}, s33, s32")
    A(f"s_add_u32 s{sCG}, s{sKb}, 15")
    A(f"s_and_b32 s{sCG}, s{sCG}, 15")
    A(f"s_mul_i32 s{sF}, s30, 28")
    A(f"s_lshl_b32 s32, s30, 2")
    A(f"s_add_u32 s32, s32, {224-28}")
    A("s_cmp_lt_u32 s31, 28")
    A(f"s_cselect_b32 s{sF}, s{sF}, s32")
    A(f"s_add_u32 s{sF}, s{sF}, s31")
    A(f"s_lshl_b32 s{sCU}, s{sRB}, 4")
    A(f"s_add_u32 s{sCU}, s{sCU}, s{sHG}")
    A(f"s_mov_b32 s{sL}, 0")
    A(f"s_mov_b32 s{sLIM}, 20000")
    A(f"s_and_b32 s{sW4}, s{sW}, 3")
    A(f"s_lshl_b32 s{sT}, s{sRB}, 2")
    A(f"s_add_u32 s{sT}, s{sT}, s{sW4}")
    A(f"s_lshl_b32 s{sMO}, s{sW4}, 10")
    srd_fin(WS_, 6 * MB)
    srd_fin(WOS, 2 * MB)
    srd_fin(WSP, 128 * MB)
    srd_fin(TS2, 2048)
    if PROF:
        A(f"v_mov_b32 v{PRF}, 0")
        A(f"v_mov_b32 v{PRF2}, 0")
    mark("start")
    A(f"s_cmp_ge_u32 s{sW}, 4")
    A("s_cbranch_scc1 l_start")


def ptr_fin():
    A("s_waitcnt lgkmcnt(0)")
    A(f"s_mov_b32 s{sNON}, {hex(EPOCH)}")
    A(f"s_load_dword s{sNON}, s[{WSP}:{WSP+1}], s{sNON}")
    A(f"s_mov_b64 s[{WS_}:{WS_+1}], s[{XS+2}:{XS+3}]")
    srd_fin(XS, 4 * MB)


def wo_voff(dst):
    A(f"v_bfe_u32 v20, v{LN}, 3, 2")
    A(f"v_lshrrev_b32 v21, 5, v{LN}")
    A("v_lshl_add_u32 v20, v21, 3, v20")
    A(f"s_lshr_b32 s32, s{sW4}, 1")
    A("s_lshl_b32 s32, s32, 4")
    A(f"s_and_b32 s33, s{sW4}, 1")
    A("s_lshl_b32 s33, s33, 2")
    A("s_add_u32 s32, s32, s33")
    A("v_add_u32 v20, s32, v20")
    A("v_lshlrev_b32 v20, 11, v20")
    A(f"v_lshrrev_b32 v21, 2, v{LN}")
    A("v_and_b32 v21, 4, v21")
    A(f"v_xor_b32 v21, v21, v{LN}")
    A("v_and_b32 v21, 7, v21")
    A("v_lshl_add_u32 v20, v21, 4, v20")
    A(f"s_lshl_b32 s32, s{sCG}, 7")
    A(f"v_add_u32 v{dst}, s32, v20")


ROT = opt("rot", 1)


def wo_groups(slots, vo, tag):
    gs = []
    for j in slots:
        g = []
        if ROT:
            g += [f"s_add_u32 s{sD0}, s{sHG}, {j & 15}", f"s_and_b32 s{sD0}, s{sD0}, 15", f"s_lshl_b32 s{sD0}, s{sD0}, 17"]
            if j >= 16:
                g += [f"s_add_u32 s{sD0}, s{sD0}, 65536"]
        else:
            g += [f"s_mov_b32 s{sD0}, {(2*(j & 15) + (j >> 4))*65536}"]
        g += [f"s_add_u32 m0, s{sMO}, {4096*j}",
              f"buffer_load_dwordx4 v{vo}, s[{WOS}:{WOS+3}], s{sD0} offen lds ;@{tag}"]
        gs.append(g)
    return gs


def emit(groups):
    for g in groups:
        A.lines += g


FR = [96, 136]
XB, WB, XC, WC = 176, 178, 180, 182
KOF, VOF, KLD, VLD, QLD, TA = 244, 245, 246, 247, 248, 184
RA = 192
AR_IT = opt("ar", 4)


PF, PFD = opt("pf", 1), opt("pfd", 6)
PFA, PFT, sPB, sPK = 190, 191, 84, 85


def pf_setup(va, sPB=sPB):
    A(f"s_lshr_b32 s30, s{WS_}, 7")
    A("s_sub_u32 s30, 3, s30")
    A("s_and_b32 s30, s30, 7")
    A(f"s_and_b32 s31, s{sRB}, 1")
    A("s_lshl_b32 s31, s31, 3")
    A("s_add_u32 s30, s30, s31")
    A(f"s_and_b32 s31, s{sRB}, 14")
    A(f"s_add_u32 s{sPB}, s31, s30")
    A(f"s_lshl_b32 s31, s{sHG}, 2")
    A(f"s_add_u32 s31, s31, s{sW4}")
    A("s_mul_i32 s31, s31, 6144")
    A("s_lshl_b32 s30, s30, 7")
    A("s_add_u32 s30, s30, s31")
    A(f"v_min_u32 v{va}, 2, v{LN}")
    A(f"v_lshl_add_u32 v{va}, v{va}, 11, s30")


def pf_load(va, vt, k, sPB=sPB):
    return [f"s_add_u32 s30, s{sPB}, {k & 15}", "s_and_b32 s30, s30, 15", f"s_mul_i32 s30, s30, {64*6144}",
            f"buffer_load_dword v{vt}, v{va}, s[{WS_}:{WS_+3}], s30 offen"]


def e_init():
    ptr_fin()
    if PF:
        pf_setup(PFA)
        for k in opt("pf0", [0, 1]):
            A.lines += pf_load(PFA, PFT, k)
    A(f"v_lshrrev_b32 v5, 5, v{LN}")
    A("v_lshlrev_b32 v6, 3, v5")
    A(f"s_lshl_b32 s33, s{sCG}, 7")
    for g in range(8):
        A(f"buffer_load_dwordx2 {v(WR+2*g,2)}, v6, s[{TS2}:{TS2+3}], s33 offen offset:{16*g}")
    masks()
    wo_voff(EVO)
    A(f"s_and_b32 s34, s{sW}, 1")
    A(f"s_lshr_b32 s35, s{sW}, 1")
    A(f"v_and_b32 v4, 15, v{LN}")
    A(f"v_lshrrev_b32 v7, 4, v{LN}")
    A("v_lshrrev_b32 v6, 1, v4")
    A("v_xor_b32 v6, v6, v7")
    A("v_lshlrev_b32 v6, 4, v6")
    A("v_lshl_add_u32 v6, v4, 7, v6")
    A("s_lshl_b32 s30, s34, 13")
    A(f"v_add_u32 v{XB}, s30, v6")
    A(f"v_xor_b32 v{XB+1}, 64, v{XB}")
    A("s_lshl_b32 s30, s35, 1")
    wtr_addr(WB, "s30", L_W)
    A(f"v_xor_b32 v{WB+1}, 32, v{WB}")
    A(f"v_and_b32 v8, 31, v{LN}")
    A("v_bfe_u32 v6, v8, 1, 3")
    A("v_xor_b32 v6, v6, v5")
    A("v_lshlrev_b32 v6, 4, v6")
    A("v_lshl_add_u32 v6, v8, 7, v6")
    A(f"s_lshl_b32 s30, s{sW}, 12")
    A(f"s_add_u32 s30, s30, {L_X}")
    A(f"v_add_u32 v{RA}, s30, v6")
    for ks in range(1, 4):
        A(f"v_xor_b32 v{RA+ks}, {32*ks}, v{RA}")
    A("s_lshl_b32 s30, s34, 8")
    A(f"v_lshl_add_u32 v{TA}, v4, 2, s30")
    A(f"v_lshl_add_u32 v{TA+1}, v7, 4, s30")
    A("s_lshl_b32 s30, s35, 7")
    A(f"v_lshl_add_u32 v{TA+2}, v7, 4, s30")
    A(f"s_add_u32 s30, s30, {T_CS+512}")
    A(f"v_lshl_add_u32 v{TA+3}, v4, 2, s30")
    A(f"s_lshl_b32 s30, s{sW}, 7")
    A(f"s_add_u32 s30, s30, {T_C}")
    A(f"v_lshl_add_u32 v{TA+4}, v8, 2, s30")
    A(f"v_mov_b32 v{TA+5}, 0")
    A("v_lshlrev_b32 v6, 9, v7")
    A(f"v_lshl_add_u32 v{VOF}, v4, 4, v6")
    A("v_and_b32 v9, 8, v4")
    A(f"v_lshl_add_u32 v{KOF}, v9, 4, v{VOF}")
    A(f"s_mul_i32 s30, s35, {KVH}")
    A("s_lshl_b32 s31, s34, 13")
    A("s_add_u32 s30, s30, s31")
    A(f"s_add_u32 s30, s30, {L_KV+8*4096}")
    A(f"v_add_u32 v{KLD}, s30, v{KOF}")
    A(f"v_add_u32 v{VLD}, s30, v{VOF}")
    A(f"s_lshl_b32 s30, s{sW}, 12")
    A(f"s_add_u32 s30, s30, {L_Q}")
    A(f"v_add_u32 v{QLD}, s30, v{VOF}")
    A("s_getreg_b32 s30, hwreg(HW_REG_XCC_ID, 0, 4)")
    A("v_mov_b32 v251, s30")
    A(f"s_lshl_b32 s30, s{sHG}, 4")
    A(f"s_add_u32 s30, s30, s{sRB}")
    A(f"s_sub_u32 s30, s30, s{sCU}")
    A(f"s_add_u32 s30, s30, {(COLF - ROWF) // 8}")
    A(f"v_mul_u32_u24 v249, s30, v{LN}")
    A(f"v_add_u32 v249, s{sCU}, v249")
    A("v_lshlrev_b32 v249, 3, v249")
    A(f"s_cmp_eq_u32 s{sW}, 0")
    A(f"s_cselect_b32 s{sAC}, {14 - AR_IT}, -1")
    A(f"v_mov_b32 v{WSUM}, 0")
    for i in range(96):
        A(f"v_mov_b32 v{i}, 0")
    A("s_waitcnt vmcnt(0) lgkmcnt(0)")
    A(f"s_add_u32 s{sNON}, s{sNON}, {hex(EPINC)}")
    A(f"v_mov_b32 v250, s{sNON}")
    for p in range(16):
        A(f"v_dot2c_f32_bf16 v{WSUM}, {ONES}, v{WR+p}")
    if PF:
        for k in opt("pf1", [2, 3, 4, 5]):
            A.lines += pf_load(PFA, PFT, k)
    A("s_setprio 1")


def wtr_addr(dst, ct, base):
    A(f"v_lshrrev_b32 v20, 2, v{LN}")
    A("v_bfe_u32 v21, v20, 1, 2")
    if ct is not None:
        A(f"v_xor_b32 v21, {ct}, v21")
    A("v_lshlrev_b32 v20, 7, v20")
    A("v_lshl_add_u32 v20, v21, 5, v20")
    A(f"v_and_b32 v21, 3, v{LN}")
    A("v_lshl_add_u32 v20, v21, 3, v20")
    A(f"v_add_u32 v{dst}, {base}, v20")


def accq(c, t):
    return 64 + (c & 1) * 16 + t * 4 if c >= 4 else (c >> 1) * 32 + t * 8 + (c & 1) * 4


def e_qphase():
    A.label("e_q")
    A.lines.append("@reset")
    A("s_mov_b32 s31, 0")
    A(f"s_mov_b32 s32, {L_X}")
    A("s_mov_b32 s36, 15")
    for i in range(2):
        A(f"v_add_u32 v{XC+i}, s32, v{XB+i}")
        A(f"v_mov_b32 v{WC+i}, v{WB+i}")

    def rd(fs, kk):
        f = FR[fs]
        x = [f"ds_read_b128 {v(f+4*t,4)}, v{XC+kk} offset:{t*2048}" for t in range(4)]
        w = [f"ds_read_b64_tr_b16 {v(f+16+8*seg+4*u+2*j,2)}, v{WC+u} offset:{seg*8192+kk*4096+j*2048}"
             for seg in range(3) for u in range(2) for j in range(2)]
        return [x[0], w[0], w[1], x[1], x[2], x[3]] + w[2:]

    def mf(fs, cs=range(6), snake=True):
        f = FR[fs]
        m = []
        for c in cs:
            for t in range(4):
                if snake and c & 1:
                    t = 3 - t
                a_, b_ = f + 16 + 4 * c, f + 4 * t
                if c >= 4:
                    a_, b_ = b_, a_
                m.append(MF16(accq(c, t), a_, b_))
        return m

    mark("q_wait")
    A("s_barrier")
    mark("q_go")
    for x in rd(0, 0):
        A(x)
    adv = [[f"s_cmp_eq_u32 s36, s{sAC}", "s_cbranch_scc1 e_arr", "e_arr_ret:"],
           [f"s_add_u32 s31, s31, {WSL}", f"s_sub_u32 s32, s32, {XSL}"],
           [f"s_cmp_ge_u32 s31, {3*WSL}", "s_cselect_b32 s31, 0, s31", f"s_cselect_b32 s32, {L_X}, s32"],
           [f"v_add_u32 v{WC}, s31, v{WB}", f"v_add_u32 v{XC}, s32, v{XB}"],
           [f"v_add_u32 v{WC+1}, s31, v{WB+1}", f"v_add_u32 v{XC+1}, s32, v{XB+1}"],
           ["s_sub_u32 s36, s36, 1", "s_cmp_eq_u32 s36, 0"]]
    if PF:
        A(f"s_add_u32 s{sPK}, s{sPB}, {PFD - 1}")
        adv[5:5] = [[f"s_add_u32 s{sPK}, s{sPK}, 1", f"s_and_b32 s30, s{sPK}, 15"],
                    [f"s_mul_i32 s30, s30, {64*6144}", f"s_cmp_ge_u32 s36, {PFD}"],
                    ["s_cselect_b64 exec, 7, 0", f"buffer_load_dword v{PFT}, v{PFA}, s[{WS_}:{WS_+3}], s30 offen", "s_mov_b64 exec, -1"]]
    A.label("e_loop")
    for ks in range(2):
        m, r = mf(ks), rd(ks ^ 1, ks ^ 1)
        A("s_waitcnt lgkmcnt(0)")
        A(m[0])
        if ks == 1:
            A("s_barrier")
        for i in range(1, 24):
            if i <= 16:
                A(r[i-1])
            elif 7 * ks + i - 17 < len(adv):
                A.lines += adv[7*ks+i-17]
            A(m[i])
    A("s_cbranch_scc0 e_loop")
    m, r = mf(0), rd(1, 1)
    A("s_waitcnt lgkmcnt(0)")
    sal = [[f"s_and_b32 s34, s{sW}, 1", f"s_lshr_b32 s35, s{sW}, 1", f"s_lshl_b32 s30, s{sHG}, 1"],
           ["s_add_u32 s30, s30, s35", "s_lshl_b32 s30, s30, 6", f"s_lshl_b32 s31, s{sRB}, 2"],
           ["s_add_u32 s30, s30, s31", "s_lshl_b32 s31, s34, 1", "s_add_u32 s30, s30, s31"],
           ["s_lshl_b32 s32, s30, 12", f"s_add_u32 s32, s32, s{sL}", "s_add_u32 s33, s32, 4096"]]
    for i in range(24):
        if 1 <= i <= 16:
            A(r[i-1])
        if i == 17:
            A(f"s_cmp_lg_u32 s{sL}, 0")
            A("s_cbranch_scc1 e_nores")
            for ks in range(4):
                A(f"ds_read_b128 {v(P+4*ks,4)}, v{RA+ks}")
            A.label("e_nores")
        if 18 <= i < 22:
            A.lines += sal[i-18]
        A(m[i])
    AV, MV, CSK, CSQ, AK, MK, CSV, IDX = 96, 112, 128, 196, 192, 204, 190, 250
    tab = [f"ds_read2_b32 {v(MK,2)}, v{TA} offset0:128 offset1:144",
           f"ds_read_b128 {v(CSK,4)}, v{TA+2} offset:{T_CS+256}",
           f"ds_read_b128 {v(CSK+4,4)}, v{TA+2} offset:{T_CS+256+64}",
           f"ds_read2_b32 {v(AK,2)}, v{TA} offset0:0 offset1:16",
           f"ds_read2_b32 {v(MK+2,2)}, v{TA} offset0:160 offset1:176",
           f"ds_read2_b32 {v(AK+2,2)}, v{TA} offset0:32 offset1:48",
           f"ds_read2_b32 {v(CSV,2)}, v{TA+3} offset0:0 offset1:16"]
    for t in range(4):
        tab += [f"ds_read_b128 {v(MV+4*t,4)}, v{TA+1} offset:{T_M+64*t}", f"ds_read_b128 {v(AV+4*t,4)}, v{TA+1} offset:{T_A+64*t}"]
    tab += [f"ds_read_b128 {v(CSQ,4)}, v{TA+2} offset:{T_CS}", f"ds_read_b128 {v(CSQ+4,4)}, v{TA+2} offset:{T_CS+64}",
            f"ds_read2_b32 {v(CC,2)}, v{TA+4} offset0:0 offset1:128", f"ds_read_b64 {v(IDX,2)}, v{TA+5} offset:{T_IDX}"]
    so = ["s32", "s33"]

    def sel(hi):
        return ("op_sel:[0,1,0] op_sel_hi:[1,1,1]", "op_sel:[0,1] op_sel_hi:[1,1]") if hi else ("op_sel_hi:[1,0,1]", "op_sel_hi:[1,0]")

    def qk(seg, t, pk=True):
        acc, cs = 32 * seg + 8 * t, (CSQ, CSK)[seg]
        s3, s2 = sel(t & 1)
        if not pk:
            return ([f"v_fma_f32 v{acc+p}, v{cs+p}, -v{MK+t}, v{acc+p}" for p in range(8)] +
                    [f"v_mul_f32 v{acc+p}, v{acc+p}, v{AK+t}" for p in range(8)] +
                    [f"v_cvt_pk_bf16_f32 v{acc+p}, v{acc+2*p}, v{acc+2*p+1}" for p in range(4)])
        o = [f"v_pk_fma_f32 {v(acc+2*p,2)}, {v(cs+2*p,2)}, {v(MK+(t&2),2)}, {v(acc+2*p,2)} {s3} neg_lo:[0,1,0] neg_hi:[0,1,0]" for p in range(4)]
        o += [f"v_pk_mul_f32 {v(acc+2*p,2)}, {v(acc+2*p,2)}, {v(AK+(t&2),2)} {s2}" for p in range(4)]
        o += [f"v_cvt_pk_bf16_f32 v{acc+p}, v{acc+2*p}, v{acc+2*p+1}" for p in range(4)]
        return o
    kep = []
    for t in range(4):
        kep += qk(1, t, opt("kpk", 0) or t >= 2) + [f"buffer_store_dwordx4 {v(32+8*t,4)}, v{KOF}, {WSR}, {so[t>>1]} offen offset:{(t&1)*128} sc1"]
    m = mf(1, [2, 3, 4, 5, 0, 1], False)
    A("s_waitcnt vmcnt(0) lgkmcnt(0)")
    A(m[0])
    A("s_barrier")
    for i in range(1, 24):
        A.lines += tab[2*(i-1):2*i]
        if i == 11:
            A("s_waitcnt lgkmcnt(13)")
        if i >= 11:
            A.lines += kep[3*(i-11):3*(i-10)]
            if opt("kpk", 0) > 1:
                A(f"s_nop {opt('kpk', 0)-2}")
        A(m[i])
    A.lines += kep[39:]
    mark("q_end")
    A("s_waitcnt lgkmcnt(0)")
    for T in range(2):
        for c in range(2):
            acc = 64 + 16 * c + 8 * T
            s3, _ = sel(c)
            for p in range(4):
                A(f"v_pk_fma_f32 {v(acc+2*p,2)}, {v(MV+8*T+2*p,2)}, {v(CSV,2)}, {v(acc+2*p,2)} {s3} neg_lo:[0,1,0] neg_hi:[0,1,0]")
            for p in range(4):
                A(f"v_pk_mul_f32 {v(acc+2*p,2)}, {v(acc+2*p,2)}, {v(AV+8*T+2*p,2)}")
            for p in range(4):
                A(f"v_cvt_pk_bf16_f32 v{acc+p}, v{acc+2*p}, v{acc+2*p+1}")
            A(f"buffer_store_dwordx4 {v(acc,4)}, v{VOF}, {WSR}, {so[T]} offen offset:{2048+c*256} sc1")
    mark("kv_st")
    for t in range(4):
        A(f"ds_write_b128 v{KLD}, {v(32+8*t,4)} offset:{(t>>1)*4096+(t&1)*128}")
        A(f"v_mul_f32 v{AK+t}, {fl(QSCALE)}, v{AK+t}")
    for t in range(4):
        A.lines += qk(0, t)
        A(f"ds_write_b128 v{VLD}, {v(64+16*(t&1)+8*(t>>1),4)} offset:{(t>>1)*4096+2048+(t&1)*256}")
        A(f"ds_write_b128 v{QLD}, {v(8*t,4)} offset:{(t>>1)*2048+(t&1)*256}")
    A(f"s_lshl_b32 s30, s{sHG}, 8")
    A(f"s_lshl_b32 s31, s{sRB}, 4")
    A("s_add_u32 s30, s30, s31")
    A("s_lshl_b32 s31, s34, 3")
    A("s_add_u32 s30, s30, s31")
    A("s_lshl_b32 s31, s35, 2")
    A("s_add_u32 s30, s30, s31")
    A(f"s_add_u32 s30, s30, s{sL}")
    A(f"s_add_u32 s30, s30, {hex(KVF)}")
    flag_store("s30")
    mark("kv_fl")
    A(f"v_readfirstlane_b32 s{sIDX}, v{IDX}")
    A(f"v_readfirstlane_b32 s{sLOC}, v{IDX+1}")
    patch_flag()

    def unswz():
        for ks in range(4):
            A(f"v_permlane32_swap_b32 v{P+4*ks}, v{P+4*ks+2}")
            A(f"v_permlane32_swap_b32 v{P+4*ks+1}, v{P+4*ks+3}")
    skip_if(f"s_cmp_lg_u32 s{sL}, 0", unswz)


def patch_flag():
    A(f"s_lshr_b32 s39, s{sIDX}, 5")
    A(f"s_lshl_b32 s34, s{sRB}, 2")
    A("s_sub_u32 s39, s39, s34")
    A("s_add_u32 s39, s39, 8")
    A("s_cmp_lt_u32 s39, 12")
    A(f"s_cselect_b32 s{sPATCH}, 1, 0")


Q, PM, AD, MX, SU0, SU1, CB, SM_, O, TM = 4, 12, 20, 21, 22, 23, 24, 40, 88, 152
SA, KF, VF, PP = [56, 72], [104, 112], [120, 128], [136, 144]


def att_setup(team):
    A("v_mov_b32 v20, 0xffff")
    A("v_mov_b32 v21, 0xffff0000")
    for p in range(8):
        A(f"v_cndmask_b32 v22, 0, v20, {s(MS+4*p,2)}")
        A(f"v_cndmask_b32 v23, 0, v21, {s(MS+4*p+2,2)}")
        A(f"v_or_b32 v{PM+p}, v22, v23")
    A(f"s_lshl_b32 s34, s{sW4}, 12")
    A(f"s_add_u32 s34, s34, {L_KV+team*KVH}")
    A(f"v_add_u32 v{AD}, s34, v{L16}")
    A(f"s_lshl_b32 s34, s{sW}, 11")
    A(f"s_add_u32 s34, s34, {L_Q}")
    A(f"v_add_u32 v3, s34, v{L16}")
    for i in range(16):
        A(f"v_mov_b32 v{CB+i}, 0")


def att_qread():
    A(f"ds_read_b128 {v(Q,4)}, v3")
    A(f"ds_read_b128 {v(Q+4,4)}, v3 offset:1024")


def attention(team, hook):
    def rdK(buf, d):
        A(f"ds_read_b128 {v(KF[buf],4)}, v{AD} offset:{(8-d)*4096}")
        A(f"ds_read_b128 {v(KF[buf]+4,4)}, v{AD} offset:{(8-d)*4096+1024}")

    def rdV(buf, d):
        A(f"ds_read_b128 {v(VF[buf],4)}, v{AD} offset:{(8-d)*4096+2048}")
        A(f"ds_read_b128 {v(VF[buf]+4,4)}, v{AD} offset:{(8-d)*4096+3072}")

    def neg_switch(d):
        l = newlab("ng")
        A(f"s_cmp_eq_u32 s{sT}, {d-1}")
        A(f"s_cbranch_scc0 {l}")
        for i in range(16):
            A(f"v_mov_b32 v{CB+i}, {fl(-1e30)}")
        A.label(l)

    def smf(dst, buf, c):
        A(MF(dst, KF[buf], Q, c))
        A(MF(dst, KF[buf] + 4, Q + 4))

    def maxes(src, first):
        for p in range(8):
            if first and p == 0:
                A(f"v_max_f32 v{MX}, v{src}, v{src+1}")
            else:
                A(f"v_max3_f32 v{MX}, v{MX}, v{src+2*p}, v{src+2*p+1}")
    rdK(0, 0)
    rdK(1, 1)
    A("s_waitcnt lgkmcnt(2)")
    smf(SM_, 0, "0")
    hook(1, 0)
    for d in range(1, 9):
        b = d & 1
        if d < 8:
            rdK(b ^ 1, d + 1)
        neg_switch(d)
        A(f"s_waitcnt lgkmcnt({2 if d < 8 else 0})")
        smf(SA[b], b, CB)
        if d >= 2:
            maxes(SA[b ^ 1], d == 2)
        hook(1, d)
    rdK(1, 1)
    rdV(0, 0)
    rdV(1, 8)
    for i in range(16):
        A(f"v_cndmask_b32 v{SM_+i}, v{SA[0]+i}, v{SM_+i}, {s(MS+2*i,2)}")
    maxes(SM_, False)
    A(f"v_mov_b32 v{TM}, v{MX}")
    A(f"v_permlane32_swap_b32 v{MX}, v{TM}")
    A(f"v_max_f32 v{MX}, v{MX}, v{TM}")
    for i in range(16):
        A(f"v_sub_f32 v{CB+i}, 0, v{MX}")
    neg_switch(1)
    A("s_waitcnt lgkmcnt(4)")
    smf(SA[1], 1, CB)
    rdK(0, 2)
    for i in range(16):
        A(f"v_sub_f32 v{SM_+i}, v{SM_+i}, v{MX}")
    for i in range(16):
        A(f"v_exp_f32 v{SM_+i}, v{SM_+i}")
    A(f"v_add_f32 v{SU0}, v{SM_}, v{SM_+1}")
    A(f"v_add_f32 v{SU1}, v{SM_+2}, v{SM_+3}")
    for i in range(4, 16):
        A(f"v_add_f32 v{SU0+(i&1)}, v{SU0+(i&1)}, v{SM_+i}")
    for p in range(8):
        A(f"v_cvt_pk_bf16_f32 v{PP[1]+p}, v{SM_+2*p}, v{SM_+2*p+1}")
    for p in range(8):
        A(f"v_and_b32 v{PP[0]+p}, v{PP[1]+p}, v{PM+p}")
    for p in range(8):
        A(f"v_xor_b32 v{PP[1]+p}, v{PP[1]+p}, v{PP[0]+p}")
    A("s_waitcnt lgkmcnt(2)")
    A(MF(O, VF[0], PP[0], "0"))
    A(MF(O, VF[0] + 4, PP[0] + 4))
    A(MF(O, VF[1], PP[1]))
    A(MF(O, VF[1] + 4, PP[1] + 4))
    hook(2, 0)
    for d in range(1, 8):
        b = d & 1
        rdV(b, d)
        if d < 7:
            neg_switch(d + 1)
            A("s_waitcnt lgkmcnt(2)")
            smf(SA[b ^ 1], b ^ 1, CB)
            if d < 6:
                rdK(b, d + 2)
        src = SA[b]
        for i in range(16):
            A(f"v_exp_f32 v{src+i}, v{src+i}")
        for i in range(16):
            A(f"v_add_f32 v{SU0+(i&1)}, v{SU0+(i&1)}, v{src+i}")
        for p in range(8):
            A(f"v_cvt_pk_bf16_f32 v{PP[b]+p}, v{src+2*p}, v{src+2*p+1}")
        A(f"s_waitcnt lgkmcnt({2 if d < 6 else 0})")
        A(MF(O, VF[b], PP[b]))
        A(MF(O, VF[b] + 4, PP[b] + 4))
        hook(2, d)
    A(f"v_add_f32 v{SU0}, v{SU0}, v{SU1}")
    A(f"v_mov_b32 v{TM}, v{SU0}")
    A(f"v_permlane32_swap_b32 v{SU0}, v{TM}")
    A(f"v_add_f32 v{SU0}, v{SU0}, v{TM}")
    A(f"v_rcp_f32 v{SU0}, v{SU0}")
    A(f"s_lshl_b32 s36, s{sT}, 16")
    A(f"s_add_u32 s36, s36, s{sL}")
    A(f"s_add_u32 s36, s36, {hex(OFB + team*32768)}")
    A(f"s_lshl_b32 s33, s{sHG}, 11")
    A("s_add_u32 s33, s33, s36")
    A(f"s_lshl_b32 s30, s{sRB}, 9")
    A(f"s_lshl_b32 s31, s{sW}, 6")
    A("s_add_u32 s30, s30, s31")
    A(f"s_add_u32 s30, s30, s{sL}")
    A(f"s_add_u32 s30, s30, {hex(OFL)}")
    A(f"s_lshl_b32 s31, s{sHG}, 2")
    A("s_add_u32 s31, s31, s30")
    for p in range(8):
        A(f"v_pk_mul_f32 {v(O+2*p,2)}, {v(O+2*p,2)}, {v(SU0,2)} op_sel_hi:[1,0]")
    for p in range(8):
        A(f"v_cvt_pk_bf16_f32 v{O+p}, v{O+2*p}, v{O+2*p+1}")

    def st(bits):
        A(f"buffer_store_dwordx4 {v(O,4)}, v{L16}, {WSR}, s33 offen {bits}")
        A(f"buffer_store_dwordx4 {v(O+4,4)}, v{L16}, {WSR}, s33 offen offset:1024 {bits}")
    st_loc(st)
    mark("att_end")


def e_att():
    att_setup(0)
    A("s_waitcnt lgkmcnt(0)")
    mark("x1_wait")
    A("s_barrier")

    def fix():
        A("s_barrier")
        A(f"s_lshr_b32 s34, s{sIDX}, 5")

        def row():
            A(f"s_and_b32 s32, s{sIDX}, 31")
            A(f"v_and_b32 v0, 31, v{LN}")
            A("v_cmp_eq_u32 vcc, s32, v0")
            A(f"v_lshrrev_b32 v0, 5, v{LN}")
            A("v_lshlrev_b32 v0, 4, v0")
            A(f"s_lshl_b32 s34, s{sCG}, 7")
            A(f"s_add_u32 s34, s34, {hex(X2R)}")
            A("s_mov_b64 exec, vcc")
            for ks in range(4):
                A(f"buffer_load_dwordx4 {v(P+4*ks,4)}, v0, {WSR}, s34 offen offset:{32*ks} sc1")
            A(f"v_mov_b32 v{CC}, 1.0")
            A(f"v_mov_b32 v{DD}, 0")
            A("s_mov_b64 exec, -1")
        skip_if(f"s_cmp_lg_u32 s34, s{sT}", row)
    skip_if(f"s_cmp_eq_u32 s{sPATCH}, 0", fix)
    mark("att_go")
    att_qread()
    XE2 = opt("xe2", 5)
    al = wo_groups([0, 12, 13, 14, 15], EVO, "woa")

    def hook(ps, d):
        k = (ps - 1) * 9 + d
        if k == XE2:
            A("s_barrier")
        if 0 <= k - XE2 < 5:
            A.lines += al[k - XE2]
    attention(0, hook)


def table_loads(T):
    def f():
        A(f"s_add_u32 s32, s{sCI}, {hex(TABLE)}")
        A(f"buffer_load_dwordx4 {v(T,4)}, v{L16}, {WSR}, s32 offen sc1")
    return f


def argmax_lane(T, issued=None):
    poll(table_loads(T), lambda: sent_check(range(T, T + 4), T + 4), issued)
    A(f"v_mov_b32 v{T+4}, v{T}")
    wave_red(T + 4, T + 5, "max")
    A(f"v_cmp_eq_f32 vcc, v{T+4}, v{T}")
    A("s_ff1_i32_b64 s32, vcc")
    A("s_and_b32 s32, s32, 63")


def stat_loads(S, base):
    def f():
        A(f"s_lshl_b32 s30, s{sT}, 13")
        A(f"s_add_u32 s30, s30, {hex(base)}")
        A("s_add_u32 s31, s30, 4096")
        for i in range(8):
            A(f"buffer_load_dwordx4 {v(S+4*i,4)}, v{L16}, {WSR}, s{30+(i>>2)} offen offset:{(i&3)*1024} sc1")
    return f


def stat_core(S, E, t, nc=4, n=8, sw=32):
    for i in range(1, n):
        for c in range(0, nc, 2):
            A(f"v_pk_add_f32 {v(S+c,2)}, {v(S+c,2)}, {v(S+4*i+c,2)}")
    for i in range(nc):
        A(f"v_mov_b32 v{t+i}, v{S+i}")
    for i in range(nc):
        A(f"v_permlane{sw}_swap_b32 v{S+i}, v{t+i}")
    for i in range(nc):
        A(f"v_add_f32 v{S+i}, v{S+i}, v{t+i}")
    A(f"v_mul_f32 v{E+2}, {fl(1/1024)}, v{S}")
    A(f"v_mul_f32 v{S+1}, {fl(1/1024)}, v{S+1}")
    A(f"v_fma_f32 v{S+1}, -v{E+2}, v{E+2}, v{S+1}")
    A(f"v_max_f32 v{S+1}, 0, v{S+1}")
    A(f"v_add_f32 v{E+3}, {fl(EPS)}, v{S+1}")
    A(f"v_rsq_f32 v{E+3}, v{E+3}")


def cand_publish(S, E, t, PR, lay):
    A(f"v_fma_f32 v{E}, -v{E+2}, v{S+3}, v{S+2}")
    A(f"v_and_b32 v{E+1}, 31, v{LN}")
    A(f"v_mul_f32 v{E}, v{E}, v{E+3}")
    A(f"s_lshl_b32 s32, s{sT}, 5")
    A(f"v_add_u32 v{E+1}, s32, v{E+1}")
    A(f"v_mov_b32 v{t}, v{E}")
    wave_red(t, t + 1, "max", 32)
    A(f"v_cmp_eq_f32 vcc, v{t}, v{E}")
    A(f"v_lshrrev_b32 v{t+2}, 5, v{LN}")
    A(f"v_lshlrev_b32 v{t+2}, 4, v{t+2}")
    A(f"s_lshl_b32 s32, s{sT}, 11")
    A(f"s_lshl_b32 s33, s{sCG}, 7")
    A("s_add_u32 s32, s32, s33")
    A(f"s_add_u32 s32, s32, {hex(CAND + lay)}")
    A(f"s_lshl_b32 s34, s{sT}, 4")
    A(f"s_add_u32 s34, s34, {hex(TABLE + lay)}")
    A("s_ff1_i32_b32 s35, vcc_lo")
    A("s_lshl_b32 s35, 1, s35")
    A(f"s_cmp_eq_u32 s{sHG}, 0")
    A("s_cselect_b32 exec_lo, s35, 0")
    A("s_mov_b32 exec_hi, 0")
    cond(newlab("z"), lambda: A(f"buffer_store_dwordx4 {v(E,4)}, v{t+2}, {WSR}, s34 offen sc1"))
    A("s_mov_b32 exec_lo, s35")
    A("s_mov_b32 exec_hi, s35")
    for ks in range(4):
        A(f"buffer_store_dwordx4 {v(PR+4*ks,4)}, v{t+2}, {WSR}, s32 offen offset:{ks*32} sc1")
    A("s_mov_b64 exec, -1")


def xf_off(dst):
    A(f"v_bfe_u32 v{dst}, v{LN}, 4, 1")
    A(f"v_lshlrev_b32 v{dst}, 11, v{dst}")
    A(f"v_lshrrev_b32 v{dst+1}, 5, v{LN}")
    A(f"v_lshl_add_u32 v{dst}, v{dst+1}, 8, v{dst}")
    A(f"v_and_b32 v{dst+1}, 15, v{LN}")
    A(f"v_lshl_add_u32 v{dst}, v{dst+1}, 4, v{dst}")
    A(f"s_lshl_b32 s34, s{sW4}, 12")
    A(f"s_add_u32 s34, s34, {L_X}")
    A(f"v_add_u32 v{dst+1}, s34, v{dst}")


def e_wo():
    D = opt("wod", 8)
    WA, FA, FL, XO, OB = 56, 60, 61, 100, 104
    WF = [32, 40, 48]
    assert OB + 4 * (D + 1) <= 154
    A(f"v_bfe_u32 v33, v{LN}, 2, 2")
    A(f"v_lshrrev_b32 v32, 5, v{LN}")
    A("v_lshl_add_u32 v34, v32, 3, v33")
    A("v_lshlrev_b32 v34, 7, v34")
    A("v_lshrrev_b32 v33, 1, v33")
    A("v_lshl_add_u32 v34, v33, 6, v34")
    A(f"v_bfe_u32 v33, v{LN}, 4, 1")
    A("v_lshl_add_u32 v34, v33, 5, v34")
    A(f"v_and_b32 v33, 3, v{LN}")
    A(f"v_lshl_add_u32 v{WA}, v33, 3, v34")
    A(f"v_xor_b32 v{WA+1}, 64, v{WA}")
    A(f"v_add_u32 v{WA+2}, 0x10000, v{WA}")
    A(f"v_add_u32 v{WA+3}, 0x10000, v{WA+1}")
    A(f"v_and_b32 v{FA}, 15, v{LN}")
    A(f"v_lshlrev_b32 v{FA}, 2, v{FA}")
    W("woa")
    for p in range(16):
        A(f"v_lshlrev_b32 v{2*p}, 16, v{P+p}")
        A(f"v_and_b32 v{2*p+1}, 0xffff0000, v{P+p}")
    for p in range(16):
        A(f"v_pk_fma_f32 {v(2*p,2)}, {v(2*p,2)}, {v(CC,2)}, {v(CC,2)} op_sel:[0,0,1] op_sel_hi:[1,0,1]")
    flag_store("s31", True)
    mark("o_fl")
    A("s_barrier")
    mark("xa")
    emit(wo_groups(range(16, 28), EVO, "wob"))
    xf_off(XO)
    A(f"s_lshl_b32 s37, s{sHG}, 11" if ROT else "s_mov_b32 s37, 0")

    def rd(i):
        f = WF[i % 3]
        return [f"ds_read_b64_tr_b16 {v(f+4*u+2*j,2)}, v{WA+u+2*(i>>5)} offset:{(i&31)*2048+j*512}" for u in range(2) for j in range(2)]

    def ld(i):
        if i == 32:
            A("s_add_u32 s36, s36, 32768")
        if i & 1 == 0:
            A("s_add_u32 s38, s36, s37")
        else:
            A("s_add_u32 s37, s37, 2048")
            A("s_and_b32 s37, s37, 0x7800")
        A(f"buffer_load_dwordx4 {v(OB+4*(i%(D+1)),4)}, v{L16}, {WSR}, s38 offen offset:{(i&1)*1024} sc1 ;@o{i}")

    def fload(off):
        return lambda: A(f"buffer_load_dword v{FL}, v{FA}, {WSR}, s30 offen offset:{off} sc1")
    A.lines += rd(0) + rd(1)
    poll(fload(0), lambda: A(f"v_cmp_ne_u32 vcc, s{sNON}, v{FL}"))
    mark("o_ok0")
    for i in range(D):
        ld(i)
    FB = opt("wofb", 4)
    for i in range(64):
        f, ob = WF[i % 3], OB + 4 * (i % (D + 1))
        r = rd(i + 2) if i + 2 < 64 else []
        if i in (30, 54):
            A("s_barrier")
        W(f"o{i}", 4 if i < 63 else 0)
        A(MF(0, f, ob))
        if i + D == 32 - FB:
            tagged("fb", fload(256))
        if i + D == 32:
            poll(fload(256), lambda: A(f"v_cmp_ne_u32 vcc, s{sNON}, v{FL}"), "fb")
            mark("o_ok1")
        if i + D < 64:
            ld(i + D)
        A.lines += r[:2]
        A(MF(16, f + 4, ob))
        A.lines += r[2:]
    mark("wo_end")
    G = 96
    A(f"s_lshl_b32 s35, s{sRB}, 4")
    A(f"s_add_u32 s35, s35, s{sCG}")
    A("s_lshl_b32 s35, s35, 14")
    A(f"s_lshl_b32 s34, s{sW}, 12")
    A("s_add_u32 s35, s35, s34")
    A(f"s_add_u32 s35, s35, {hex(XFB)}")
    A(f"s_lshl_b32 s30, s{sT}, 13")
    A(f"s_add_u32 s30, s30, s{sL}")
    A(f"s_add_u32 s30, s30, {hex(STAT)}")
    A(f"s_lshl_b32 s31, s{sCG}, 9")
    A("s_add_u32 s31, s31, s30")
    for i in range(3):
        A(f"v_mov_b32 v{G+i}, 0")
    A(f"v_mov_b32 v{G+3}, v{WSUM}")
    for p in range(16):
        A(f"v_cvt_pk_bf16_f32 v{P+p}, v{2*p}, v{2*p+1}")

    def xfst():
        st_loc(lambda bits: [A(f"buffer_store_dwordx4 {v(P+4*ks,4)}, v{XO}, {WSR}, s35 offen offset:{ks*512} {bits}") for ks in range(4)])
        for ks in range(4):
            A(f"ds_write_b128 v{XO+1}, {v(P+4*ks,4)} offset:{ks*512}")
    skip_if(f"s_cmp_lg_u32 s{sL}, 0", xfst)
    for p in range(16):
        A(f"v_dot2c_f32_bf16 v{G}, {ONES}, v{P+p}")
        A(f"v_dot2c_f32_bf16 v{G+1}, v{P+p}, v{P+p}")
        A(f"v_dot2c_f32_bf16 v{G+2}, v{WR+p}, v{P+p}")
    for i in range(4):
        A(f"v_mov_b32 v{48+i}, v{G+i}")
    for i in range(4):
        A(f"v_permlane32_swap_b32 v{G+i}, v{48+i}")
    for i in range(4):
        A(f"v_add_f32 v{G+i}, v{G+i}, v{48+i}")
    A("s_mov_b32 exec_hi, 0")
    A("s_waitcnt vmcnt(0)")
    st_loc(lambda bits: A(f"buffer_store_dwordx4 {v(G,4)}, v{L16}, {WSR}, s31 offen {bits}"))
    A("s_mov_b64 exec, -1")
    mark("st_pub")
    A(f"s_cmp_lg_u32 s{sL}, 0")
    A("s_cbranch_scc1 e_final")
    A(f"s_mov_b32 s{sL}, {LSTR}")
    A(f"s_and_b32 s30, s{sW}, 1")
    A("s_lshl_b32 s30, s30, 13")
    A(f"v_add_u32 v{XB}, s30, v{L16}")
    A(f"v_add_u32 v{XB+1}, 1024, v{XB}")
    if PF:
        pf_setup(PFA)
        A(f"s_add_u32 s{sPB}, s{sPB}, 14")
    for i in range(96):
        A(f"v_mov_b32 v{i}, 0")
    prof_next()
    A("s_waitcnt lgkmcnt(0)")
    A("s_branch e_q")
    A.label("e_arr")
    A("s_mov_b64 exec, 3")
    A(f"s_mov_b32 s{sAC}, {hex(ROWF)}")
    A(f"buffer_store_dwordx2 v[250:251], v249, {WSR}, s{sAC} offen sc1")
    A("s_mov_b64 exec, -1")
    A("s_branch e_arr_ret")
    A.label("e_final")
    S, E = 64, 52
    A(f"s_load_dwordx2 s[{TS}:{TS+1}], s[0:1], 64")
    srd_fin(TS, 4 * MB)
    poll(stat_loads(S, STAT + LSTR), lambda: sent_check(range(S, S + 32), 48))
    mark("st_ok")
    stat_core(S, E, 48)
    cand_publish(S, E, 48, P, LSTR)
    mark("cand")
    A(f"v_add_f32 v{CC}, 1.0, v{E+3}")
    A(f"v_mul_f32 v{DD}, v{E+2}, v{E+3}")
    A(f"v_sub_f32 v{DD}, 0, v{DD}")
    for p in range(16):
        A(f"v_pk_fma_f32 {v(2*p,2)}, {v(2*p,2)}, {v(CC,2)}, {v(CC,2)} op_sel:[0,0,1] op_sel_hi:[1,0,1]")
    for p in range(16):
        A(f"v_cvt_pk_bf16_f32 v{64+p}, v{2*p}, v{2*p+1}")
    for ks in range(4):
        A(f"v_permlane32_swap_b32 v{64+4*ks}, v{64+4*ks+2}")
        A(f"v_permlane32_swap_b32 v{64+4*ks+1}, v{64+4*ks+3}")
    A(f"v_lshl_add_u32 v50, v{E+1}, 11, v50")
    A(f"s_mov_b32 s{sCI}, s{sL}")

    def arg():
        argmax_lane(0)
        A("s_lshl_b64 exec, 1, s32")
        A(f"ds_write_b128 v{TA+5}, v[0:3] offset:{T_IDX}")
        A("s_mov_b64 exec, -1")
    skip_if(f"s_cmp_lg_u32 s{sW}, 0", arg)
    A("s_waitcnt lgkmcnt(0)")
    A("s_barrier")
    A(f"ds_read_b32 v0, v{TA+5} offset:{T_IDX+4}")
    A("s_waitcnt lgkmcnt(0)")
    A("v_and_b32 v0, 0x7ff, v0")
    A(f"v_cmp_ne_u32 vcc, v0, v{E+1}")
    A("s_mov_b64 exec, vcc")
    for ks in range(4):
        A(f"buffer_store_dwordx4 {v(64+4*ks,4)}, v50, s[{TS}:{TS+3}], s33 offen offset:{ks*32}")
    A("s_mov_b64 exec, -1")
    A("s_branch k_end")


STAG = opt("stag", 1)
FV = [155, 155, 153]


def ffn_addr():
    A(f"v_lshrrev_b32 v20, 2, v{LN}")
    A("v_lshlrev_b32 v20, 2, v20")
    A(f"v_bfe_u32 v21, v{LN}, 1, 1")
    A("v_add_u32 v20, v20, v21")
    A(f"v_mul_u32_u24 v20, {4*7168}, v20")
    A(f"v_and_b32 v21, 1, v{LN}")
    A("v_lshl_add_u32 v20, v21, 4, v20")
    A(f"s_mul_i32 s30, s{sW4}, {256*7168}")
    A(f"s_lshl_b32 s31, s{sF}, 5")
    A("s_add_u32 s30, s30, s31")
    A(f"v_add_u32 v{FV[0]}, s30, v20")
    A("v_lshlrev_b32 v21, 14, v21")
    A(f"v_lshrrev_b32 v20, 1, v{LN}")
    A("v_lshl_add_u32 v20, v20, 4, v21")
    A(f"s_lshl_b32 s30, s{sW4}, 9")
    A(f"s_lshl_b32 s31, s{sF}, 15")
    A("s_add_u32 s30, s30, s31")
    A(f"v_add_u32 v{FV[2]}, s30, v20")


def ffn_srd(which, sd):
    karg, nb = [(40, 1024 * 7168), (48, 1024 * 7168), (56, 3584 * 2048)][which]
    if opt("noffn", 0) >> which & 1:
        nb = 0
    return [f"s_load_dwordx2 s[{sd}:{sd+1}], s[0:1], {karg}", f"s_cmp_lt_u32 s{sF}, 224",
            f"s_cselect_b32 s{sd+2}, {hex(nb)}, 0", f"s_mov_b32 s{sd+3}, 0x20000"]


def ffn_groups(which, sd):
    base = [GW, UW, DW][which]
    gs = []
    for j in range(8):
        g = []
        if which == 2:
            g += [f"s_mov_b32 s{sD0}, {j*2048}"]
        elif STAG:
            g += [f"s_xor_b32 s{sD0}, s{sF}, {j >> 1}", f"s_and_b32 s{sD1}, s{sD0}, 2", f"s_and_b32 s{sD0}, s{sD0}, 3",
                  f"s_mul_i32 s{sD1}, s{sD1}, {2*7168}", f"s_mul_i32 s{sD0}, s{sD0}, {2*7168}", f"s_add_u32 s{sD0}, s{sD0}, s{sD1}"]
            if j & 1:
                g += [f"s_add_u32 s{sD0}, s{sD0}, 7168"]
        else:
            g += [f"s_mov_b32 s{sD0}, {((j & 3) + 8*(j >> 2))*7168}"]
        g += [f"buffer_load_dwordx4 {v(base+4*j,4)}, v{FV[which]}, s[{sd}:{sd+3}], s{sD0} offen {opt('fbits', '')} ;@ffw"]
        gs.append(g)
    return gs


FFS = opt("ffs", [14, 14, 17, 18, 19, 20, 21, 22, 15, 15, 23, 24, 25, 26, 27, 28] + [16] * 8)
LATE = {}


def late(k):
    if k in LATE:
        skip_if(f"s_cmp_lg_u32 s{sL}, 0", lambda: emit(LATE[k]))


WMAP = {}


def ffn_perm():
    A("s_mov_b32 s30, 0x05040100")
    A("s_mov_b32 s31, 0x07060302")
    free = SPARE
    for m, base in enumerate((GW, UW, DW)):
        for p in range(4):
            for c in range(4):
                a_, b_ = base + 8 * p + c, base + 8 * p + 4 + c
                A(f"v_perm_b32 v{free}, v{b_}, v{a_}, s30")
                A(f"v_perm_b32 v{b_}, v{b_}, v{a_}, s31")
                WMAP[(m, p, 2 * c)] = free
                WMAP[(m, p, 2 * c + 1)] = b_
                free = a_


XG = 24


def ffn_xaddr():
    A(f"s_lshl_b32 s32, s{sW4}, 9")
    A(f"s_sub_u32 s34, s{sF}, 224")
    A("s_lshl_b32 s34, s34, 1")
    A(f"s_add_u32 s89, s34, s{sW4}")
    A(f"s_and_b32 s35, s{sW4}, 1")
    A("s_add_u32 s34, s34, s35")
    A("s_lshl_b32 s34, s34, 5")
    A(f"v_lshrrev_b32 v22, 1, v{LN}")
    A(f"v_and_b32 v23, 1, v{LN}")
    A(f"s_cmp_lt_u32 s{sF}, 224")
    A("s_cselect_b32 s32, s32, s34")
    A("s_cselect_b64 vcc, -1, 0")
    A("v_cndmask_b32 v22, v23, v22, vcc")
    A("v_lshl_add_u32 v22, v22, 4, s32")


def xloads():
    A(f"s_lshr_b32 s33, s{sIDX}, 5")
    A("s_lshl_b32 s33, s33, 11")
    A(f"s_add_u32 s33, s33, s{sCI}")
    A(f"s_add_u32 s33, s33, {hex(CAND)}")
    A(f"buffer_load_dwordx4 {v(XG,4)}, v22, {WSR}, s33 offen sc1")


def ffn_gateup():
    AC = 32
    A(f"v_mov_b32 v28, s{sRSTD}")
    A(f"v_mul_f32 v29, s{sMEAN}, v28")
    for p in range(4):
        A(f"v_lshlrev_b32 v30, 16, v{XG+p}")
        A(f"v_and_b32 v31, 0xffff0000, v{XG+p}")
        A("v_fma_f32 v30, v30, v28, -v29")
        A("v_fma_f32 v31, v31, v28, -v29")
        A(f"v_cvt_pk_bf16_f32 v{XG+p}, v30, v31")
    if STAG:
        for b in range(2):
            skip_if(f"s_bitcmp0_b32 s{sF}, {b}",
                    lambda: [A(f"v_swap_b32 v{XG+p}, v{XG+(p ^ (1 << b))}") for p in range(4) if not p >> b & 1])
    for p in range(4):
        for m in range(2):
            for c in range(8):
                acc = AC + 8 * m + c
                A(f"v_dot2_f32_bf16 v{acc}, v{WMAP[(m,p,c)]}, v{XG+p}, {'0' if p == 0 else 'v%d' % acc}")
    A(f"v_lshrrev_b32 v31, 5, v{LN}")
    A("v_lshlrev_b32 v30, 6, v31")
    for c in range(8):
        A(f"v_permlane32_swap_b32 v{AC+c}, v{AC+8+c}")
    for c in range(8):
        A(f"v_add_f32 v{AC+c}, v{AC+c}, v{AC+8+c}")
    A(f"v_and_b32 v31, 1, v{LN}")
    A("v_lshl_add_u32 v30, v31, 5, v30")
    for c in range(4):
        A(f"v_permlane16_swap_b32 v{AC+c}, v{AC+4+c}")
    for c in range(4):
        A(f"v_add_f32 v{AC+c}, v{AC+c}, v{AC+4+c}")
    A(f"v_and_b32 v31, 16, v{LN}")
    A(f"s_lshl_b32 s32, s{sW4}, 7")
    A("v_add3_u32 v30, v31, v30, s32")
    for sh in ("quad_perm:[2,3,0,1]", "row_ror:4", "row_ror:8"):
        for c in range(4):
            A(f"v_add_f32_dpp v{AC+c}, v{AC+c}, v{AC+c} {sh} {DPPF}")
    A("s_mov_b32 exec_lo, 0x00030003")
    A("s_mov_b32 exec_hi, 0x00030003")
    A(f"ds_write_b128 v30, {v(AC,4)} offset:{T_INB}")
    A("s_mov_b64 exec, -1")


def ffn_down():
    A(f"v_and_b32 v30, 1, v{LN}")
    A(f"v_bfe_u32 v31, v{LN}, 1, 3")
    A("v_lshl_add_u32 v30, v30, 3, v31")
    A("v_lshlrev_b32 v30, 2, v30")
    A(f"v_add_u32 v30, {T_INB}, v30")
    for i in range(4):
        A(f"ds_read2_b32 {v(32+2*i,2)}, v30 offset0:{32*i} offset1:{32*i+16}")
    A(f"v_lshrrev_b32 v30, 2, v{LN}")
    A(f"v_mul_u32_u24 v30, {224*64}, v30")
    A(f"v_and_b32 v31, 3, v{LN}")
    A("v_lshl_add_u32 v30, v31, 4, v30")
    A(f"v_and_b32 v31, 1, v{LN}")
    A("v_cmp_eq_u32 vcc, 1, v31")
    A(f"s_mul_i32 s32, s{sW4}, {16*224*64}")
    A(f"s_lshl_b32 s33, s{sF}, 6")
    A("s_add_u32 s32, s32, s33")
    A(f"s_add_u32 s32, s32, s{sCI}")
    A(f"s_add_u32 s32, s32, {hex(PY)}")
    A("s_waitcnt lgkmcnt(0)")
    A("v_pk_add_f32 v[32:33], v[32:33], v[34:35]")
    A("v_pk_add_f32 v[36:37], v[36:37], v[38:39]")
    A("v_pk_add_f32 v[32:33], v[32:33], v[36:37]")
    A(f"v_mul_f32 v34, {fl(-math.log2(math.e))}, v32")
    A("v_exp_f32 v34, v34")
    A("v_mul_f32 v32, v32, v33")
    A("v_add_f32 v34, 1.0, v34")
    A("v_rcp_f32 v34, v34")
    A("v_mul_f32 v32, v32, v34")
    A(f"v_mov_b32_dpp v33, v32 quad_perm:[2,3,2,3] {DPPF}")
    A("v_cvt_pk_bf16_f32 v32, v32, v33")
    for p in range(4):
        A(f"ds_swizzle_b32 v{36+p}, v32 offset:{hex(1 | (4*p) << 5)}")
    A("s_waitcnt lgkmcnt(0)")
    AC = 40
    for p in range(4):
        for c in range(8):
            A(f"v_dot2_f32_bf16 v{AC+c}, v{WMAP[(2,p,c)]}, v{36+p}, {'0' if p == 0 else 'v%d' % (AC+c)}")
    for c in range(8):
        A(f"v_add_f32_dpp v{AC+c}, v{AC+c}, v{AC+c} quad_perm:[1,0,3,2] {DPPF}")
    for c in range(4):
        A(f"v_cndmask_b32 v{AC+c}, v{AC+c}, v{AC+4+c}, vcc")
    A(f"s_cmp_lt_u32 s{sF}, 224")
    A("s_cselect_b64 exec, -1, 0")
    cond(newlab("z"), lambda: A(f"buffer_store_dwordx4 {v(AC,4)}, v30, {WSR}, s32 offen sc1"))
    A("s_mov_b64 exec, -1")


RP = 32


def red_loads():
    A(f"s_mul_i32 s32, s89, {224*64}")
    A(f"s_add_u32 s32, s32, s{sCI}")
    A(f"s_add_u32 s32, s32, {hex(PY)}")
    for i in range(14):
        A(f"buffer_load_dwordx4 {v(RP+4*i,4)}, v{L16}, {WSR}, s32 offen offset:{(i&3)*1024} sc1")
        if i & 3 == 3:
            A("s_add_u32 s32, s32, 4096")


def red_pre():
    A(f"v_and_b32 v30, 2, v{LN}")
    A("v_cmp_eq_u32 vcc, 2, v30")
    A(f"v_mov_b32 v28, s{sRSTD}")
    A(f"v_mul_f32 v29, s{sMEAN}, v28")
    A("v_add_f32 v28, 1.0, v28")
    A(f"v_cndmask_b32 v30, v{XG}, v{XG+2}, vcc")
    A(f"v_cndmask_b32 v31, v{XG+1}, v{XG+3}, vcc")
    A("v_lshlrev_b32 v92, 16, v30")
    A("v_and_b32 v93, 0xffff0000, v30")
    A("v_lshlrev_b32 v94, 16, v31")
    A("v_and_b32 v95, 0xffff0000, v31")
    for c in range(4):
        A(f"v_fma_f32 v{92+c}, v{92+c}, v28, -v29")
    A(f"v_mov_b32 v96, {fl(-math.log2(math.e))}")
    A(f"v_mul_f32 v96, s{sR}, v96")
    A("v_exp_f32 v96, v96")
    A("v_add_f32 v96, 1.0, v96")
    A("v_rcp_f32 v96, v96")


def red_sum():
    for i in range(1, 14):
        for c in range(0, 4, 2):
            A(f"v_pk_add_f32 {v(RP+c,2)}, {v(RP+c,2)}, {v(RP+4*i+c,2)}")
    for sh in ("row_ror:4", "row_ror:8"):
        for c in range(4):
            A(f"v_add_f32_dpp v{RP+c}, v{RP+c}, v{RP+c} {sh} {DPPF}")
    for sw in ("16", "32"):
        for c in range(4):
            A(f"v_mov_b32 v{RP+4+c}, v{RP+c}")
        for c in range(4):
            A(f"v_permlane{sw}_swap_b32 v{RP+c}, v{RP+4+c}")
        for c in range(4):
            A(f"v_add_f32 v{RP+c}, v{RP+c}, v{RP+4+c}")
    for c in range(4):
        A(f"v_fma_f32 v{RP+c}, v{RP+c}, v96, v{92+c}")
    A(f"v_cvt_pk_bf16_f32 v{RP}, v{RP}, v{RP+1}")
    A(f"v_cvt_pk_bf16_f32 v{RP+1}, v{RP+2}, v{RP+3}")


WCH, XCH, WAC = 100, 132, 140


def wch_reads(st):
    A(f"s_min_u32 s30, s{sW4}, 2")
    A("s_lshl_b32 s30, s30, 13")
    A(f"s_add_u32 s30, s30, {L_W + (st % 3)*WSL}")
    wtr_addr(144, None, "s30")
    for ct in range(1, 4):
        A(f"v_xor_b32 v{144+ct}, {32*ct}, v144")
    for ct in range(4):
        for q in range(4):
            A(f"ds_read_b64_tr_b16 {v(WCH+8*ct+2*q,2)}, v{144+ct} offset:{q*2048}")


def cub_base(base):
    A(f"s_min_u32 s32, s{sW4}, 2")
    A("s_lshl_b32 s32, s32, 12")
    A(f"s_lshl_b32 s33, s{sHG}, 14")
    A("s_add_u32 s32, s32, s33")
    A(f"s_add_u32 s32, s32, {hex(base)}")


def wch_reduce(base, x):
    for ct in range(4):
        A(f"v_mov_b32 v{WAC+ct}, 0")
    for q in range(8):
        for ct in range(4):
            A(f"v_dot2c_f32_bf16 v{WAC+ct}, {ONES if x is None else 'v%d' % (x+q)}, v{WCH+8*ct+q}")
    cub_base(base)
    A(f"s_lshl_b32 s33, s{sRB}, 8")
    A("s_add_u32 s32, s32, s33")
    A(f"v_lshlrev_b32 v20, 2, v{LN}")
    tred4(WAC)
    A(f"buffer_store_dword v{WAC}, v20, {WSR}, s32 offen sc1")


def cub_loads(Z, base):
    cub_base(base)
    for i in range(4):
        A(f"buffer_load_dwordx4 {v(Z+4*i,4)}, v{L16}, {WSR}, s32 offen offset:{i*1024} sc1")


def cub_sum(Z):
    for i in range(1, 4):
        for c in range(0, 4, 2):
            A(f"v_pk_add_f32 {v(Z+c,2)}, {v(Z+c,2)}, {v(Z+4*i+c,2)}")
    tred4(Z)


def tab_write(a_, m_, c_, d_, t, alt=False):
    if alt:
        A(f"v_and_b32 v{t}, 15, v{LN}")
        A(f"v_lshrrev_b32 v{t+1}, 5, v{LN}")
        A(f"v_lshl_add_u32 v{t}, v{t}, 1, v{t+1}")
        A(f"v_bfe_u32 v{t+1}, v{LN}, 4, 1")
    else:
        A(f"v_and_b32 v{t}, 31, v{LN}")
        A(f"v_lshrrev_b32 v{t+1}, 5, v{LN}")
    A(f"v_cmp_eq_u32 vcc, 0, v{t+1}")
    A(f"v_lshlrev_b32 v{t+1}, 9, v{t+1}")
    A(f"v_lshl_add_u32 v{t}, v{t}, 2, v{t+1}")
    A(f"s_lshl_b32 s32, s{sW4}, 7")
    A(f"v_add_u32 v{t}, s32, v{t}")
    A(f"v_cndmask_b32 v{t+1}, {m_}, {a_}, vcc")
    A(f"v_cndmask_b32 v{t+2}, {d_}, {c_}, vcc")
    A(f"ds_write_b32 v{t}, v{t+1} offset:{T_A}")
    A(f"ds_write_b32 v{t}, v{t+2} offset:{T_C}")
    A(f"v_and_b32 v{t}, 15, v{LN}")
    A(f"v_lshrrev_b32 v{t+3}, 4, v{LN}")
    A(f"v_lshl_add_u32 v{t}, v{t}, 2, v{t+3}")
    A(f"s_min_u32 s32, s{sW4}, 2")
    A("s_lshl_b32 s32, s32, 8")
    A(f"v_lshl_add_u32 v{t}, v{t}, 2, s32")
    A(f"ds_write_b32 v{t}, v{CSUM} offset:{T_CS}")


def idx_write():
    A(f"v_mov_b32 v20, s{sIDX}")
    A(f"v_mov_b32 v21, s{sLOC}")
    A("v_mov_b32 v19, 0")
    A(f"ds_write_b64 v19, v[20:21] offset:{T_IDX}")


VX, VW, VO = 4, 8, 14


def l_setup(L):
    A(f"v_lshrrev_b32 v21, 3, v{LN}")
    if L == 0:
        A(f"v_lshrrev_b32 v20, 4, v{LN}")
        A(f"v_xor_b32 v20, v20, v{LN}")
        A("v_and_b32 v20, 7, v20")
        A("v_lshlrev_b32 v20, 4, v20")
        A(f"v_lshl_add_u32 v{VX}, v21, 11, v20")
        A(f"v_xor_b32 v{VX+1}, 64, v{VX}")
        A(f"v_add_u32 v{VX+1}, {16384-1024}, v{VX+1}")
        A(f"v_add_u32 v{VX+2}, {2*(16384-1024)}, v{VX}")
        A(f"v_add_u32 v{VX+3}, {2*(16384-1024)}, v{VX+1}")
        A(f"s_lshl_b32 s{sSX}, s{sT}, 16")
        A(f"s_lshl_b32 s{sSW}, s{sHG}, 7")
        A(f"s_lshl_b32 s{sMX}, s{sW4}, 12")
        A(f"s_mul_i32 s{sMW}, s{sW4}, 6144")
        A("v_and_b32 v20, 4, v21")
        A("v_add_u32 v20, v20, v21")
        A("v_mul_u32_u24 v20, 6144, v20")
    else:
        A(f"s_lshl_b32 s{sSX}, s{sRB}, 18")
        A(f"s_add_u32 s{sSX}, s{sSX}, s{sMX}")
        A(f"s_add_u32 s{sSX}, s{sSX}, {hex(XFB)}")
        A("v_mul_u32_u24 v20, 6144, v21")
    A("v_and_b32 v21, 6, v21")
    A(f"v_xor_b32 v21, v21, v{LN}")
    A("v_and_b32 v21, 7, v21")
    A("v_lshl_add_u32 v20, v21, 4, v20")
    A(f"s_mul_i32 s32, s{sW4}, 3")
    for m in range(3):
        A("s_bfe_u32 s33, s32, 0x10001")
        A(f"s_mul_i32 s33, s33, {32*6144}")
        A("s_and_b32 s34, s32, 1")
        A(f"s_mul_i32 s34, s34, {(4 if L == 0 else 8)*6144}")
        A("s_add_u32 s33, s33, s34")
        A("s_lshr_b32 s34, s32, 2")
        A("s_lshl_b32 s34, s34, 11")
        A("s_add_u32 s33, s33, s34")
        if m == 1:
            A("s_sub_u32 s33, s33, 2048")
        A(f"v_add_u32 v{VW+2*m}, s33, v20")
        A(f"v_add_u32 v{VW+2*m+1}, {16*6144-1024}, v{VW+2*m}")
        if m < 2:
            A("s_add_u32 s32, s32, 1")


def kreg(st):
    return [f"s_add_u32 s{sD0}, s{(sKa, sKb)[st & 1]}, {st}", f"s_and_b32 s{sD0}, s{sD0}, 15"]


def st_x(L, st, tag=None):
    gs = []
    for q in range(4):
        g = []
        if q == 0:
            g += kreg(st) + [f"s_lshl_b32 s{sD1}, s{sD0}, {7 if L == 0 else 14}", f"s_add_u32 s{sD1}, s{sD1}, s{sSX}",
                             f"s_add_u32 m0, s{sMX}, {L_X - XSL*(st % 3)}"]
        if L == 0:
            g += [f"buffer_load_dwordx4 v{VX+q}, s[{XS}:{XS+3}], s{sD1} offen offset:{q*1024} lds ;@{tag or 'st%d' % st}"]
        else:
            g += [f"buffer_load_dwordx4 v{L16}, {WSR}, s{sD1} offen offset:{q*1024} sc1 lds ;@{tag or 'st%d' % st}"]
        gs.append(g)
    return gs


def st_w(st, tag=None):
    gs = []
    for i in range(6):
        g = []
        if i == 0:
            g += kreg(st) + [f"s_mul_i32 s{sD0}, s{sD0}, {64*6144}", f"s_add_u32 s{sD0}, s{sD0}, s{sSW}"]
        if i & 3 == 0:
            g += [f"s_add_u32 m0, s{sMW}, {L_W + WSL*(st % 3) + 1024*i}"]
        g += [f"buffer_load_dwordx4 v{VW+i}, s[{WS_}:{WS_+3}], s{sD0} offen offset:{(i&3)*1024} lds ;@{tag or 'st%d' % st}"]
        gs.append(g)
    return gs


def q_loop(L, jobs, extra, force, lead, pre={}, post=[]):
    for it in range(16):
        tags = ([f"st{it+1}"] if it < 15 else []) + force.get(it, [])
        if tags:
            W(",".join(tags), 0)
        else:
            A("s_waitcnt lgkmcnt(0)")
        markq(f"w{it}")
        A("s_barrier")
        markq(f"b{it}")
        g = pre.get(it, []) + (st_x(L, it + 3) + st_w(it + 3) if it <= 12 else []) + extra.get(it, [])
        weave(g, lambda: [j() for j in jobs.get(it, [])], lead.get(it, 2), it in post)


def isred(body):
    l = newlab("sk")
    A(f"s_cmp_lt_u32 s{sF}, 224")
    A(f"s_cbranch_scc1 {l}")
    A(f"s_cmp_ge_u32 s{sW4}, 2")
    A(f"s_cbranch_scc1 {l}")
    cond("red", body)
    A.label(l)


def l_layer0():
    A.label("l_start")
    A.lines.append("@reset")
    l_setup(0)
    ptr_fin()
    g = st_x(0, 0) + st_w(0) + st_x(0, 1) + st_w(1) + st_x(0, 2) + st_w(2)
    N0, N1 = opt("n0", 8), opt("n1", 17)
    emit(g[:N0])
    masks()
    wo_voff(VO)
    ffn_addr()
    A.lines += ffn_srd(0, TS2) + ffn_srd(2, TS)
    A(f"s_mov_b32 s{sIDX}, -1")
    A(f"s_mov_b32 s{sPATCH}, 0")
    A(f"s_sub_u32 s30, s{sHG}, s{sRB}")
    A(f"s_add_u32 s30, s30, {(COLF - ROWF) // 128 - 1}")
    A(f"v_and_b32 v15, 16, v{LN}")
    A("v_mul_u32_u24 v15, s30, v15")
    A(f"v_and_b32 v20, 31, v{LN}")
    A("v_add_lshl_u32 v15, v15, v20, 3")
    A(f"s_lshl_b32 s30, s{sRB}, 7")
    A(f"s_add_u32 s30, s30, {hex(ROWF)}")
    A("v_add_u32 v15, s30, v15")
    emit(g[N0:N1])
    W("st0", 0)
    A(f"s_add_u32 s{sNON}, s{sNON}, {hex(EPINC)}")
    A("s_barrier")
    emit(g[N1:])
    S, E, Z = 64, 52, 32

    def clears():
        for i in range(4):
            A(f"v_mov_b32 v{16+i}, -1")
        A(f"s_lshr_b32 s30, s{sW4}, 1")
        A(f"s_mul_i32 s30, s30, {LSTR}")
        A(f"s_and_b32 s31, s{sW4}, 1")
        A("s_lshl_b32 s32, s31, 20")
        A(f"s_lshl_b32 s33, s{sCU}, 10")
        A("s_add_u32 s32, s32, s33")
        A("s_add_u32 s32, s32, s30")
        A(f"s_add_u32 s32, s32, {hex(AR)}")
        for i in range(3):
            A(f"buffer_store_dwordx4 v[16:19], v{L16}, {WSR}, s32 offen sc1 ;@pub")
            A(f"s_add_u32 s32, s32, {256*KB}")
        A(f"s_lshl_b32 s33, s{sCU}, 7")
        A("s_add_u32 s33, s33, s30")
        A(f"s_add_u32 s33, s33, {hex(SM)}")
        A("s_cmp_eq_u32 s31, 0")
        A("s_cselect_b32 s32, s32, s33")
        A("s_cselect_b64 exec, -1, 0xff")
        A(f"buffer_store_dwordx4 v[16:19], v{L16}, {WSR}, s32 offen sc1 ;@pub")
        A("s_mov_b64 exec, -1")

    def part(st):
        A(f"v_and_b32 v28, 31, v{LN}")
        A("v_bfe_u32 v29, v28, 1, 3")
        A(f"v_lshrrev_b32 v30, 5, v{LN}")
        A("v_xor_b32 v29, v29, v30")
        A("v_lshlrev_b32 v29, 4, v29")
        A("v_lshl_add_u32 v28, v28, 7, v29")
        A(f"s_add_u32 s30, s{sMX}, {L_X - XSL*(st % 3)}")
        A("v_add_u32 v28, s30, v28")
        for ks in range(1, 4):
            A(f"v_xor_b32 v{28+ks}, {32*ks}, v28")
        for ks in range(4):
            A(f"ds_read_b128 {v(32+4*ks,4)}, v{28+ks}")
        wch_reads(st)

    def part2():
        for i in range(4):
            A(f"v_mov_b32 v{48+i}, 0")
        A(f"s_lshl_b32 s30, s{sT}, 12")
        A(f"s_lshl_b32 s31, s{sHG}, 8")
        A("s_add_u32 s30, s30, s31")
        A(f"s_add_u32 s30, s30, {hex(STAT0)}")
        A(f"v_lshlrev_b32 v28, 3, v{LN}")
        for p in range(16):
            A(f"v_dot2c_f32_bf16 v{48+2*(p&1)}, {ONES}, v{32+p}")
            A(f"v_dot2c_f32_bf16 v{49+2*(p&1)}, v{32+p}, v{32+p}")
        A("v_pk_add_f32 v[48:49], v[48:49], v[50:51]")
        A("v_mov_b32 v50, v48")
        A("v_mov_b32 v51, v49")
        A("v_permlane32_swap_b32 v48, v50")
        A("v_permlane32_swap_b32 v49, v51")
        A("v_pk_add_f32 v[48:49], v[48:49], v[50:51]")
        A("s_mov_b32 exec_hi, 0")
        A(f"buffer_store_dwordx2 v[48:49], v28, {WSR}, s30 offen sc1 ;@pub")
        A("s_mov_b64 exec, -1")
        tagged("pub", lambda: wch_reduce(CUB0, None))

    def dbgload():
        A(f"buffer_load_dwordx2 v[16:17], v15, {WSR}, 0 offen sc1")

    def arrived():
        poll(dbgload, lambda: A(f"v_cmp_ne_u32 vcc, s{sNON}, v16"), "arr")
        mark("arr")
        A("s_getreg_b32 s30, hwreg(HW_REG_XCC_ID, 0, 4)")
        A("v_cmp_ne_u32 vcc, s30, v17")
        A("s_and_b32 s30, vcc_lo, 0xffff")
        A(f"s_cselect_b32 s{sLOC}, 0, 1")
        idx_write()

    def s0loads():
        A(f"s_lshl_b32 s30, s{sT}, 12")
        A(f"s_add_u32 s30, s30, {hex(STAT0)}")
        for i in range(4):
            A(f"buffer_load_dwordx4 {v(S+4*i,4)}, v{L16}, {WSR}, s30 offen offset:{i*1024} sc1 ;@s0")
        tagged("s0", lambda: cub_loads(Z, CUB0))

    def tables():
        W("s0")
        for i in range(1, 4):
            for c in range(0, 4, 2):
                A(f"v_pk_add_f32 {v(S+c,2)}, {v(S+c,2)}, {v(S+4*i+c,2)}")
        A(f"v_permlane32_swap_b32 v{S}, v{S+2}")
        A(f"v_permlane32_swap_b32 v{S+1}, v{S+3}")
        A(f"v_pk_add_f32 {v(S,2)}, {v(S,2)}, {v(S+2,2)}")
        stat_core(S, E, 48, 2, 1, 16)
        cub_sum(Z)
        A(f"v_mov_b32 v{CSUM}, v{Z}")
        tab_write(f"v{E+3}", f"v{E+2}", "1.0", "0", 48, True)
    SP, CL, AR_, AP = opt("sp", 1), opt("cl", 0), AR_IT, opt("ap", 10)
    jobs, extra = {}, {}
    S0, TB0 = opt("s0", 13), opt("tb0", 14)
    for it, j in ((SP - 1, lambda: part(SP)), (CL, clears), (SP, part2),
                  (AP, lambda: tagged("arr", dbgload)), (AP + 1, arrived), (S0, s0loads), (TB0, tables)):
        jobs.setdefault(it, []).append(j)
    WO0 = opt("wo0", [13] * 3 + [16] * 6)
    ff = ffn_groups(0, TS2) + ffn_groups(1, XS) + ffn_groups(2, TS)
    assert min(FFS[8:16]) >= 14 and max(WO0) <= 16
    extra[13] = [ffn_srd(1, XS)]
    for k, gr in [(FFS[j], ff[j]) for j in list(range(16, 24)) + list(range(16))] + list(zip(WO0, wo_groups(range(1, 10), VO, "wo"))):
        (extra if k < 16 else LATE).setdefault(k, []).append(gr)
    q_loop(0, jobs, extra, {AR_: ["pub"]}, opt("lead0", {CL: 6, AP: 0, AP + 1: 10, S0: 1 if S0 == 13 else 10, TB0: 0}), post=opt("post0", [S0, TB0]))


def l_att():
    A.label("l_att")
    A.lines.append("@reset")
    emit(wo_groups([10, 11], VO, "wo"))
    late(16)
    att_setup(1)
    A(f"s_lshr_b32 s33, s{sW4}, 1")
    A(f"s_add_u32 s33, s33, s{sRB}")
    A("s_sub_u32 s33, s33, 2")

    def halo():
        A(f"s_and_b32 s34, s{sW4}, 1")
        A(f"s_lshl_b32 s35, s{sHG}, 7")
        A("s_lshl_b32 s30, s33, 2")
        A("s_add_u32 s35, s35, s30")
        A("s_lshl_b32 s30, s34, 1")
        A("s_add_u32 s35, s35, s30")
        A("s_lshl_b32 s35, s35, 12")
        A(f"s_add_u32 s35, s35, s{sL}")
        A(f"s_lshl_b32 s30, s{sHG}, 8")
        A("s_lshl_b32 s31, s33, 4")
        A("s_add_u32 s30, s30, s31")
        A("s_lshl_b32 s31, s34, 3")
        A("s_add_u32 s30, s30, s31")
        A(f"s_add_u32 s30, s30, s{sL}")
        A(f"s_add_u32 s30, s30, {hex(KVF)}")
        A(f"v_and_b32 v40, 4, v{LN}")
        poll(lambda: A(f"buffer_load_dword v42, v40, {WSR}, s30 offen sc1"), lambda: A(f"v_cmp_ne_u32 vcc, s{sNON}, v42"))
        mark("kv_ok")
        A(f"s_lshl_b32 s30, s{sW4}, 13")
        for hd in range(2):
            for kv in range(2):
                for tt in range(2):
                    A(f"s_add_u32 m0, s30, {L_KV + hd*KVH + tt*4096}")
                    A(f"s_add_u32 s31, s35, {hd*262144 + tt*4096}")
                    for p in range(2):
                        A(f"buffer_load_dwordx4 v{L16}, {WSR}, s31 offen offset:{(2*kv+p)*1024} sc1 lds ;@h{hd}{kv}")
        W("h00")
    skip_if("s_cmp_lt_i32 s33, 0", halo)
    skip_if(f"s_cmp_eq_u32 s{sPATCH}, 0", lambda: A("s_waitcnt vmcnt(0)"))
    mark("x1_wait")
    A("s_barrier")

    def fix():
        A("s_cmp_lg_u32 s38, 0")
        A("s_cselect_b64 exec, -1, 0")
        A("ds_write_b16 v0, v1")
        A("s_mov_b64 exec, -1")
        A("s_waitcnt lgkmcnt(0)")
        A("s_barrier")
    skip_if(f"s_cmp_eq_u32 s{sPATCH}, 0", fix)
    att_qread()
    A("s_waitcnt vmcnt(0) lgkmcnt(0)")
    A("s_barrier")
    mark("att_go")
    XLA = opt("xla", 13)

    def hook(ps, d):
        if (ps - 1) * 9 + d == XLA:
            A("s_barrier")
        late(17 + (ps - 1) * 9 + d)
    attention(1, hook)
    flag_store("s31", True)
    mark("o_fl")
    late(40)
    wo_voff(VO)
    ffn_xaddr()
    A(f"s_mov_b32 s{sCI}, s{sL}")

    def nxt():
        if 40 in LATE:
            A("s_waitcnt vmcnt(0)")
        if PF:
            pf_setup(18, 35)
            for k in range(PFD):
                A.lines += pf_load(18, 19, k - 2, 35)
        ffn_perm()
        l_setup(1)
        A(f"s_sub_u32 s30, s{sKb}, 1")
        A(f"s_sub_u32 s{sKb}, s{sKa}, 3")
        A(f"s_mov_b32 s{sKa}, s30")
        xf_off(116)
        A(f"v_and_b32 v16, 15, v{LN}")
        A("v_lshlrev_b32 v16, 9, v16")
        srd_load(TS, 64, 4 * MB)
    skip_if(f"s_cmp_lg_u32 s{sL}, 0", nxt)
    A("s_barrier")
    emit(wo_groups(range(28, 32), VO, "wo"))
    A("s_waitcnt vmcnt(0)")
    A("s_barrier")
    A(f"s_cmp_lg_u32 s{sL}, 0")
    A("s_cbranch_scc1 l_tail")


def readsel(T, lane):
    for r_, i in ((sR, 0), (sIDX, 1), (sMEAN, 2), (sRSTD, 3)):
        A(f"v_readlane_b32 s{r_}, v{T+i}, {lane}")
    A(f"s_and_b32 s{sIDX}, s{sIDX}, 2047")


def l_layer1():
    S, E, TB, PR = 64, 52, 16, 100
    A(f"s_mov_b32 s{sL}, {LSTR}")
    emit(st_w(0) + st_w(1))
    A(f"s_lshl_b32 s30, s{sT}, 13")
    A(f"s_add_u32 s30, s30, {hex(STAT)}")
    prof_next()
    W("st0")
    A("s_barrier")
    emit(st_w(2))
    for ks in range(4):
        A(f"ds_read_b128 {v(PR+4*ks,4)}, v117 offset:{ks*512}")
    poll(lambda: A(f"buffer_load_dword v17, v16, {WSR}, s30 offen sc1"), lambda: sent_check([17], 18))
    mark("x_ok")
    emit(st_x(1, 1))
    tagged("stat", stat_loads(S, STAT))

    def stats():
        poll(stat_loads(S, STAT), lambda: sent_check(range(S, S + 32), 48), "stat")
        stat_core(S, E, 48)
        cand_publish(S, E, 48, PR, 0)
        mark("cand")
        A(f"v_add_f32 v56, 1.0, v{E+3}")
        A(f"v_mul_f32 v57, v{E+2}, v{E+3}")
        A("v_mul_f32 v58, v56, v56")
        A("v_sub_f32 v57, 0, v57")
        A(f"v_mul_f32 v58, v58, v{S+1}")
        A(f"v_add_f32 v58, {fl(EPS)}, v58")
        A("v_rsq_f32 v58, v58")
        A("v_mul_f32 v58, v58, v56")
        tab_write("v58", f"v{E+2}", "v56", "v57", 48)

    def arg():
        argmax_lane(TB, "tab")
        readsel(TB, "s32")
        tagged("x", xloads)
        mark("f_arg")
        idx_write()
        patch_flag()

    def gateup():
        poll(xloads, lambda: sent_check(range(XG, XG + 4), 30), "x")
        red_pre()
        ffn_gateup()

    def down():
        ffn_down()
        mark("f_down")

    def red():
        poll(red_loads, lambda: sent_check(range(RP, RP + 56), 30), "red")
        red_sum()
        A("s_lshl_b32 s32, s89, 5")
        A(f"s_add_u32 s32, s32, {hex(X2R)}")
        A(f"v_and_b32 v30, 1, v{LN}")
        A(f"v_bfe_u32 v31, v{LN}, 1, 1")
        A("v_lshlrev_b32 v30, 4, v30")
        A("v_lshl_add_u32 v30, v31, 3, v30")
        A("s_mov_b64 exec, 15")
        A(f"buffer_store_dwordx2 {v(RP,2)}, v30, {WSR}, s32 offen sc1")
        A("s_mov_b64 exec, -1")
        mark("f_red")
    T_, RL, XL, PL = opt("tb", 3), opt("rl", 8), opt("xl", 11), opt("pl", 14)
    SZ = XL + 1

    def x2loads():
        for kk in range(2):
            A(f"buffer_load_dwordx4 {v(XCH+4*kk,4)}, v19, {WSR}, s35 offen offset:{64*kk} sc1")

    def x2():
        A(f"s_add_u32 s35, s{(sKa, sKb)[SZ & 1]}, {SZ}")
        A("s_and_b32 s35, s35, 15")
        A("s_lshl_b32 s35, s35, 7")
        A(f"s_add_u32 s35, s35, {hex(X2R)}")
        A(f"v_and_b32 v19, 48, v{LN}")
        tagged("x2", x2loads)
        wch_reads(SZ)

    def z():
        poll(x2loads, lambda: sent_check(range(XCH, XCH + 8), 30), "x2")
        wch_reduce(CUB + LSTR, XCH)
        mark("f_z")
    Z, XR = 32, 48

    def zloads():
        cub_loads(Z, CUB + LSTR)
        A(f"s_mov_b32 s32, {hex(X2R)}")
        for i in range(2):
            A(f"buffer_load_dwordx4 {v(XR+4*i,4)}, v{L16}, {WSR}, s32 offen offset:{1024*i} sc1")

    def paddr():
        tagged("z", zloads)
        A(f"v_and_b32 v20, 7, v{LN}")
        A(f"v_lshrrev_b32 v21, 4, v{LN}")
        A("v_lshl_add_u32 v21, v20, 2, v21")
        A(f"s_and_b32 s34, s{sIDX}, 31")
        A("s_and_b32 s32, s34, 7")
        A("s_and_b32 s33, s34, 8")
        A("s_lshl_b32 s33, s33, 1")
        A("s_add_u32 s32, s32, s33")
        A("s_lshr_b32 s33, s34, 4")
        A("s_lshl_b32 s33, s33, 3")
        A("s_add_u32 s32, s32, s33")
        A(f"s_cmp_eq_u32 s{sW4}, 1")
        A("s_cselect_b32 s34, s32, s34")
        A("v_mov_b32 v20, s34")
        A(f"s_cmp_ge_u32 s{sW4}, 2")
        A("s_cselect_b64 vcc, -1, 0")
        A("s_cselect_b32 s32, 2048, 0")
        A("v_cndmask_b32 v30, v20, v21, vcc")
        A("v_cndmask_b32 v31, v21, v20, vcc")
        A("v_lshlrev_b32 v0, 4, v30")
        A("v_bfe_u32 v20, v31, 2, 2")
        A("v_lshl_add_u32 v0, v20, 9, v0")
        A("v_lshrrev_b32 v20, 4, v31")
        A("v_lshl_add_u32 v0, v20, 3, v0")
        A("v_and_b32 v20, 3, v31")
        A("v_lshl_add_u32 v0, v20, 1, v0")
        A("s_lshl_b32 s33, s39, 12")
        A("s_add_u32 s33, s33, s32")
        A(f"s_add_u32 s33, s33, {L_KV}")
        A("s_lshl_b32 s34, s39, 11")
        A(f"s_add_u32 s34, s34, {L_Q - 8*2048}")
        A("s_cmp_ge_u32 s39, 8")
        A("s_cselect_b32 s38, 1, 0")
        A("s_movk_i32 s32, 8192")
        A(f"s_cmp_eq_u32 s{sW4}, 0")
        A("s_cselect_b32 s33, s34, s33")
        A(f"s_cselect_b32 s32, s32, {KVH}")
        A("s_cselect_b32 s38, s38, 1")
        A(f"s_cselect_b32 s37, {fl(QSCALE)}, 1.0")
        A(f"v_bfe_u32 v20, v{LN}, 3, 1")
        A("v_mul_u32_u24 v20, s32, v20")
        A("v_add3_u32 v0, v0, v20, s33")

    def pval():
        poll(zloads, lambda: sent_check(range(Z, Z + 24), 30), "z")
        A("v_mov_b32 v28, 0")
        A("v_mov_b32 v29, 0")
        for p in range(8):
            A(f"v_dot2c_f32_bf16 v28, {ONES}, v{XR+p}")
            A(f"v_dot2c_f32_bf16 v29, v{XR+p}, v{XR+p}")
        cub_sum(Z)
        wave_red(28, 30)
        wave_red(29, 30)
        A(f"v_mul_f32 v28, {fl(1/1024)}, v28")
        A(f"v_mul_f32 v29, {fl(1/1024)}, v29")
        A("v_fma_f32 v29, -v28, v28, v29")
        A("v_max_f32 v29, 0, v29")
        A(f"v_add_f32 v29, {fl(EPS)}, v29")
        A("v_rsq_f32 v29, v29")
        A(f"v_fma_f32 v{Z}, -v28, v{CSUM}, v{Z}")
        A("v_mul_f32 v29, s37, v29")
        A(f"v_mul_f32 v{Z}, v{Z}, v29")
        A(f"v_cvt_pk_bf16_f32 v1, v{Z}, v{Z}")
        mark("f_patch")
    pat = lambda f: (lambda: skip_if(f"s_cmp_eq_u32 s{sPATCH}, 0", f, "pat"))
    jobs = {}
    for it, j in ((0, stats), (T_, lambda: tagged("tab", table_loads(TB))), (T_ + 1, arg), (T_ + 2, gateup), (T_ + 3, down),
                  (RL, lambda: isred(lambda: tagged("red", red_loads))), (RL + 1, lambda: isred(red)),
                  (XL, x2), (XL + 1, z), (PL, pat(paddr)), (min(PL + 1, 15), pat(pval))):
        jobs.setdefault(it, []).append(j)
    q_loop(1, jobs, {}, {}, opt("lead", {0: 4, T_: 0, T_ + 1: 0, RL: 0, RL + 1: 10, XL: 0}), {0: st_x(1, 2)})
    A("s_branch l_att")
    A.label("l_tail")
    A.lines.append("@reset")
    A("v_mov_b32 v20, 0")

    def epoch():
        A(f"s_mov_b32 s34, {hex(EPOCH)}")
        flag_store("s34")
    A(f"s_or_b32 s34, s{sCU}, s{sW4}")
    skip_if("s_cmp_lg_u32 s34, 0", epoch)
    A("s_barrier")
    A(f"ds_read_b128 {v(TB,4)}, v20 offset:{T_IDX}")
    A("s_waitcnt lgkmcnt(0)")
    readsel(TB, "0")
    mark("t_arg")
    poll(xloads, lambda: sent_check(range(XG, XG + 4), 30))
    mark("t_x")
    A(f"s_cmp_ge_u32 s{sF}, 224")
    A("s_cbranch_scc1 l_tred")
    ffn_gateup()
    A("s_waitcnt lgkmcnt(0)")
    A("s_barrier")
    ffn_down()
    mark("f_down")
    A("s_branch k_end")
    A.label("l_tred")
    A(f"s_cmp_ge_u32 s{sW4}, 2")
    A("s_cbranch_scc1 k_end")
    red_pre()
    poll(red_loads, lambda: sent_check(range(RP, RP + 56), 30))
    mark("t_py")
    red_sum()
    A(f"s_lshl_b32 s32, s{sIDX}, 11")
    A("s_lshl_b32 s33, s89, 5")
    A("s_add_u32 s32, s32, s33")
    A(f"v_lshlrev_b32 v30, 3, v{LN}")
    A("s_mov_b64 exec, 15")
    A(f"buffer_store_dwordx2 {v(RP,2)}, v30, s[{TS}:{TS+3}], s32 offen sc1")
    A("s_mov_b64 exec, -1")


def main():
    out = [x for x in ARGS if x.endswith(".s")]
    out = out[0] if out else os.path.join(os.path.dirname(os.path.abspath(__file__)), NAME + ".s")
    K = NAME + "_kernel"
    A(f".globl {K}")
    A(".p2align 8")
    A(f".type {K},@function")
    A.label(K)
    cap(ffn_perm)
    prologue()
    e_init()
    e_qphase()
    e_att()
    e_wo()
    l_layer0()
    l_att()
    l_layer1()
    A.label("k_end")
    if PROF:
        A("s_waitcnt vmcnt(0)")
        mark("end")
        A(f"s_lshl_b32 s30, s{sCU}, 3")
        A(f"s_add_u32 s30, s30, s{sW}")
        A("s_lshl_b32 s30, s30, 9")
        A(f"s_add_u32 s30, s30, {hex(PROFOFF)}")
        A(f"v_lshlrev_b32 v0, 2, v{LN}")
        A(f"buffer_store_dword v{PRF2}, v0, {WSR}, s30 offen")
        A(f"buffer_store_dword v{PRF}, v0, {WSR}, s30 offen offset:256")
    A.label("k_exit")
    A("s_endpgm")
    assert len(MARKS) <= (64 if "-profq" in ARGS else 32), len(MARKS)
    A.lines = resolve(A.lines)
    A.hazard_pass(verbose="-v" in ARGS)
    txt = "; @launch grid=(256,1,1) block=(512,1,1) lds=163840\n"
    txt += "; marks: " + " ".join(MARKS) + "\n" if PROF else ""
    txt += '.amdgcn_target "amdgcn-amd-amdhsa--gfx950"\n.text\n' + A.text() + '.section .rodata,"a"\n.p2align 6\n'
    txt += f""".amdhsa_kernel {K}
  .amdhsa_next_free_vgpr 256
  .amdhsa_next_free_sgpr 102
  .amdhsa_accum_offset 256
  .amdhsa_group_segment_fixed_size 0
  .amdhsa_kernarg_size 88
  .amdhsa_user_sgpr_count 2
  .amdhsa_user_sgpr_kernarg_segment_ptr 1
  .amdhsa_system_sgpr_workgroup_id_x 1
.end_amdhsa_kernel
"""
    open(out, "w").write(txt)


main()
```

```python
import sys, os, struct, math, re
sys.path.insert(0, os.path.join(os.path.dirname(os.path.abspath(__file__)), "tools"))
from asmlib import *

NAME = "interleave_layers__sliding_block__moe_arch_mod__prompt"
KB, MB = 1 << 10, 1 << 20
ARGS = sys.argv[1:]


def opt(name, default):
    for x in ARGS:
        if x.startswith(name + "="):
            t = x.split("=", 1)[1]
            return eval(t) if isinstance(default, (list, tuple, dict)) else type(default)(t)
    return default


PROF = "-prof" in ARGS
USELOC = opt("loc", 1)
OSH, XFO = opt("osh", 1), opt("xfo", 0)
LSTR = 16 * MB
KVB, OFB, AR = 0, 8 * MB, 12 * MB
STAT, PY, CAND, CUB, SM = AR, AR + 512 * KB, AR + 1408 * KB, AR + 1536 * KB, AR + 1792 * KB
TABLE, X2R, KVF, OFL = SM, SM + 16 * KB, SM + 64 * KB, SM + 72 * KB
EPOCH, ROWF, COLF = SM + 96 * KB, SM + 100 * KB, SM + 104 * KB
EPINC = 0x9E3779B9
XFB = 32 * MB
STAT0, CUB0 = 36 * MB, 37 * MB
PROFOFF = 100 * MB
EPS = 1e-5
QSCALE = (32 ** -0.5) * math.log2(math.e)
ONES = "0x3f803f80"
T_A, T_M, T_CS, T_C, T_D, T_IDX, T_INB = 0, 512, 1024, 2048, 2560, 3072, 3328
L_W, WSL, L_X, XSL = 40960, 24576, 147456, 16384
L_Q, L_KV, KVH = 49152, 65536, 49152
sW, sRB, sHG, sL, sLIM, sW4, sF = 3, 24, 25, 26, 27, 28, 29
MS = 40
sCU, sIDX, sR, sMEAN, sRSTD, sLOC, sCNT, sCI = 72, 73, 74, 75, 76, 77, 78, 79
XS, WOS, TS, WS_, WSP = 4, 8, 12, 16, 20
TS2 = 80
sSX, sSW, sMX, sMW, sNON, sAC = 84, 85, 86, 87, 88, 89
sKa, sKb, sD0, sD1, sCG, sT, sPATCH, sMO = 94, 95, 96, 97, 98, 99, 100, 101
LN, L16, PRF2, PRF = 252, 253, 254, 255
P, WR, CC, DD, WSUM, EVO = 208, 224, 240, 241, 242, 243
GW, UW, DW, SPARE = 156, 188, 220, 155
CSUM = 2


def fl(x):
    return "0x%08x" % struct.unpack("<I", struct.pack("<f", x))[0]


A = Asm()
_lab = [0]
WSR = f"s[{WSP}:{WSP+3}]"
XFR = f"s[{TS}:{TS+3}]" if XFO else WSR


def newlab(p):
    _lab[0] += 1
    return f"{p}_{_lab[0]}"


def srd_fin(d, nbytes):
    A(f"s_mov_b32 s{d+2}, {hex(nbytes)}")
    A(f"s_mov_b32 s{d+3}, 0x20000")


def srd_load(d, karg, nbytes):
    A(f"s_load_dwordx2 s[{d}:{d+1}], s[0:1], {karg}")
    srd_fin(d, nbytes)
    A("s_waitcnt lgkmcnt(0)")


def cap(fn):
    keep = A.lines
    A.lines = []
    fn()
    out = A.lines
    A.lines = keep
    return out


def tagged(tag, fn):
    for ln in cap(fn):
        if ln.startswith("buffer_") and ";@" not in ln:
            ln += f" ;@{tag}"
        A.lines.append(ln)


def W(tags, lgkm=None):
    A.lines.append(f"@wait {tags} {'' if lgkm is None else lgkm}")


def cond(key, fn):
    A.lines.append(f"@cond {key}")
    fn()
    A.lines.append("@endcond")


def resolve(lines):
    out, issued, stack = [], [], []
    for ln in lines:
        if ln.startswith("@cond"):
            stack.append(ln.split()[1])
        elif ln == "@endcond":
            stack.pop()
        elif ln == "@reset":
            issued = []
        elif ln.startswith("@wait"):
            p = ln.split()
            tags = p[1].split(",")
            idx = [i for i, (t, c) in enumerate(issued) if t in tags]
            assert idx, f"wait for unknown tag {tags}"
            n = sum(1 for (t, c) in issued[idx[-1]+1:] if all(k in stack for k in c))
            out.append(f"s_waitcnt vmcnt({min(n, 63)})" + (f" lgkmcnt({p[2]})" if len(p) > 2 else ""))
        else:
            if ln.startswith("buffer_"):
                issued.append((ln.split(";@")[1] if ";@" in ln else None, tuple(stack)))
                ln = ln.split(";@")[0].strip()
            out.append(ln)
    return out


SCCW = ("s_add_", "s_sub_", "s_cmp", "s_and_", "s_or_", "s_xor_", "s_lshl", "s_lshr", "s_min", "s_max", "s_not", "s_bfe", "s_bitcmp")
SCCR = ("s_cselect", "s_cbranch_scc", "s_addc", "s_subb")


def safe_points(body):
    n = len(body)
    safe = [True] * (n + 1)
    pos = {ln[:-1]: i for i, ln in enumerate(body) if ln.endswith(":")}
    ex, depth, lastw = True, 0, -1
    for i, ln in enumerate(body):
        if ln.startswith(("s_cbranch", "s_branch")):
            j = pos[ln.split()[1]]
            for k in range(min(i, j) + 1, max(i, j) + 1):
                safe[k] = False
        if ln.startswith(SCCR):
            for k in range(lastw + 1, i + 1):
                safe[k] = False
        if ln.startswith(SCCW):
            lastw = i
        if re.match(r"s_\w+ exec", ln) or "saveexec" in ln:
            ex = ln == "s_mov_b64 exec, -1"
        if ln.startswith("@cond"):
            depth += 1
        if ln == "@endcond":
            depth -= 1
        if not ex or depth:
            safe[i + 1] = False
    return safe


def pieces(fn, k):
    body = cap(fn)
    safe = safe_points(body)
    fr = [(i + 1) / k for i in range(k - 1)] if isinstance(k, int) else k
    cuts = [0]
    for f in fr:
        c = max(int(f * len(body)), cuts[-1])
        while not safe[c]:
            c += 1
        cuts.append(c)
    cuts.append(len(body))
    return [(lambda a=a, b=b: A.lines.extend(body[a:b])) for a, b in zip(cuts, cuts[1:])]


def weave(groups, fn, lead=1, post=False):
    body = cap(fn)
    n = len(body)
    safe = safe_points(body)
    groups = list(groups)
    for g in groups[:lead]:
        A.lines += g
    groups = groups[lead:]
    k = 0
    for i in range(n + 1):
        while k < len(groups) and not post and safe[i] and i >= (k + 1) * n / (len(groups) + 1):
            A.lines += groups[k]
            k += 1
        if i < n:
            A.lines.append(body[i])
    for g in groups[k:]:
        A.lines += g


MARKS = {}


def mark(name):
    if name not in MARKS:
        MARKS[name] = len(MARKS)
    if PROF:
        A("s_memrealtime s[90:91]")
        if "-profq" not in ARGS:
            A("s_memtime s[92:93]")
        A("s_waitcnt lgkmcnt(0)")
        A(f"v_writelane_b32 v{PRF}, s90, {MARKS[name]}")
        if "-profq" not in ARGS:
            A(f"v_writelane_b32 v{PRF}, s92, {MARKS[name]+32}")


PAD = opt("pad", {})


def padat(name, L=None):
    if name not in PAD:
        return
    l, e = newlab("pad"), newlab("pad")
    if L is not None:
        A(f"s_cmp_lg_u32 s{sL}, {L*LSTR}")
        A(f"s_cbranch_scc1 {e}")
    A.label(l)
    A("s_memrealtime s[92:93]")
    A("s_waitcnt lgkmcnt(0)")
    A("s_sub_u32 s92, s92, s90")
    A(f"s_cmp_lt_u32 s92, {PAD[name]}")
    A(f"s_cbranch_scc1 {l}")
    A.label(e)


def markq(name):
    if "-profq" in ARGS:
        mark(name)


def prof_next():
    if PROF:
        A(f"v_mov_b32 v{PRF2}, v{PRF}")
        A(f"v_mov_b32 v{PRF}, 0")


def MF(d, a_, b_, c=None):
    cc = v(d, 16) if c is None else (c if isinstance(c, str) else v(c, 16))
    return f"v_mfma_f32_32x32x16_bf16 {v(d,16)}, {v(a_,4)}, {v(b_,4)}, {cc}"


def MF16(d, a_, b_):
    return f"v_mfma_f32_16x16x32_bf16 {v(d,4)}, {v(a_,4)}, {v(b_,4)}, {v(d,4)}"


DPPF = "row_mask:0xf bank_mask:0xf"


def wave_red(r, t, op="add", n=64):
    for sh in ("quad_perm:[1,0,3,2]", "quad_perm:[2,3,0,1]", "row_half_mirror", "row_mirror"):
        A(f"v_{op}_f32_dpp v{r}, v{r}, v{r} {sh} {DPPF}")
    A(f"v_mov_b32 v{t}, v{r}")
    A(f"v_permlane16_swap_b32 v{r}, v{t}")
    A(f"v_{op}_f32 v{r}, v{r}, v{t}")
    if n == 64:
        A(f"v_mov_b32 v{t}, v{r}")
        A(f"v_permlane32_swap_b32 v{r}, v{t}")
        A(f"v_{op}_f32 v{r}, v{r}, v{t}")


def tred4(r):
    A(f"v_permlane32_swap_b32 v{r}, v{r+2}")
    A(f"v_permlane32_swap_b32 v{r+1}, v{r+3}")
    A(f"v_add_f32 v{r}, v{r}, v{r+2}")
    A(f"v_add_f32 v{r+1}, v{r+1}, v{r+3}")
    A(f"v_permlane16_swap_b32 v{r}, v{r+1}")
    A(f"v_add_f32 v{r}, v{r}, v{r+1}")


def sent_check(regs, t):
    regs = list(regs)
    if len(regs) == 1:
        A(f"v_cmp_eq_u32 vcc, -1, v{regs[0]}")
        return
    if len(regs) == 2:
        A(f"v_max_u32 v{t}, v{regs[0]}, v{regs[1]}")
        rest = []
    else:
        A(f"v_max3_u32 v{t}, v{regs[0]}, v{regs[1]}, v{regs[2]}")
        rest = regs[3:]
    while rest:
        if len(rest) >= 2:
            A(f"v_max3_u32 v{t}, v{t}, v{rest[0]}, v{rest[1]}")
            rest = rest[2:]
        else:
            A(f"v_max_u32 v{t}, v{t}, v{rest[0]}")
            rest = rest[1:]
    A(f"v_cmp_eq_u32 vcc, -1, v{t}")


def poll(loads, check, issued=None):
    top, chk, done = newlab("pl"), newlab("pc"), newlab("pd")
    A(f"s_mov_b32 s{sCNT}, s{sLIM}")
    if issued is not None:
        W(issued)
        A(f"s_branch {chk}")
    A.label(top)
    cond(top, lambda: A.lines.extend(x.split(";@")[0].strip() for x in cap(loads)))
    A("s_waitcnt vmcnt(0)")
    A.label(chk)
    check()
    A(f"s_cbranch_vccz {done}")
    A(f"s_sub_u32 s{sCNT}, s{sCNT}, 1")
    A(f"s_cmp_lg_u32 s{sCNT}, 0")
    A(f"s_cbranch_scc1 {top}")
    A(f"s_mov_b32 s{sLIM}, 1")
    A.label(done)


def skip_if(cmp, body, key=None):
    l = newlab("sk")
    A(cmp)
    A(f"s_cbranch_scc1 {l}")
    cond(key or l, body)
    A.label(l)


def st_loc(fn):
    if not USELOC:
        fn("sc1")
        return
    a_, b_ = newlab("lc"), newlab("lc")
    A(f"s_cmp_lg_u32 s{sLOC}, 0")
    A(f"s_cbranch_scc1 {a_}")
    cond(a_, lambda: fn("sc1"))
    A(f"s_branch {b_}")
    A.label(a_)
    fn("")
    A.label(b_)


def flag_store(so, loc=False):
    A(f"v_mov_b32 v154, s{sNON}")
    A("s_mov_b64 exec, 1")
    A("s_waitcnt vmcnt(0)")
    f = lambda bits: A(f"buffer_store_dword v154, v{L16}, {WSR}, {so} offen {bits}")
    if loc:
        st_loc(f)
    else:
        f("sc1")
    A("s_mov_b64 exec, -1")


def masks():
    for reg in range(16):
        G, r = reg >> 2, reg & 3
        key = 16 * (G & 1) + 8 * (G >> 1) + r
        A(f"s_mov_b32 s{MS+2*reg}, {hex((0xFFFFFFFF << key) & 0xFFFFFFFF)}")
        A(f"s_mov_b32 s{MS+2*reg+1}, {hex((0xFFFFFFFF << (key+4)) & 0xFFFFFFFF)}")


def prologue():
    A("s_cmp_ge_u32 s2, 256")
    A("s_cbranch_scc1 k_exit")
    A(f"s_load_dwordx4 s[{XS}:{XS+3}], s[0:1], 0")
    A(f"s_load_dwordx2 s[{WOS}:{WOS+1}], s[0:1], 16")
    A(f"s_load_dwordx2 s[{WSP}:{WSP+1}], s[0:1], 80")
    A(f"s_load_dwordx2 s[{TS2}:{TS2+1}], s[0:1], 32")
    A("v_lshrrev_b32 v1, 6, v0")
    A(f"v_and_b32 v{LN}, 63, v0")
    A(f"v_readfirstlane_b32 s{sW}, v1")
    A(f"v_lshlrev_b32 v{L16}, 4, v{LN}")
    A("s_and_b32 s30, s2, 7")
    A("s_lshr_b32 s31, s2, 3")
    A("s_and_b32 s32, s31, 1")
    A(f"s_lshl_b32 s33, s30, 1")
    A(f"s_add_u32 s{sRB}, s33, s32")
    A(f"s_lshr_b32 s{sHG}, s31, 1")
    A(f"s_add_u32 s33, s33, s{sHG}")
    A(f"s_add_u32 s{sKa}, s33, s32")
    A(f"s_sub_u32 s{sKb}, s33, s32")
    A(f"s_add_u32 s{sCG}, s{sKb}, 15")
    A(f"s_and_b32 s{sCG}, s{sCG}, 15")
    A(f"s_mul_i32 s{sF}, s30, 28")
    A(f"s_lshl_b32 s32, s30, 2")
    A(f"s_add_u32 s32, s32, {224-28}")
    A("s_cmp_lt_u32 s31, 28")
    A(f"s_cselect_b32 s{sF}, s{sF}, s32")
    A(f"s_add_u32 s{sF}, s{sF}, s31")
    A(f"s_lshl_b32 s{sCU}, s{sRB}, 4")
    A(f"s_add_u32 s{sCU}, s{sCU}, s{sHG}")
    A(f"s_mov_b32 s{sL}, 0")
    A(f"s_mov_b32 s{sLIM}, 20000")
    A(f"s_and_b32 s{sW4}, s{sW}, 3")
    A(f"s_lshl_b32 s{sT}, s{sRB}, 2")
    A(f"s_add_u32 s{sT}, s{sT}, s{sW4}")
    A(f"s_lshl_b32 s{sMO}, s{sW4}, 10")
    srd_fin(WS_, 6 * MB)
    srd_fin(WOS, 2 * MB)
    srd_fin(WSP, 128 * MB)
    srd_fin(TS2, 2048)
    if PROF:
        A(f"v_mov_b32 v{PRF}, 0")
        A(f"v_mov_b32 v{PRF2}, 0")
    mark("start")
    if PAD:
        A("s_memrealtime s[90:91]")
    A(f"s_cmp_ge_u32 s{sW}, 4")
    A("s_cbranch_scc1 l_start")


def ptr_fin():
    A("s_waitcnt lgkmcnt(0)")
    A(f"s_mov_b32 s{sNON}, {hex(EPOCH)}")
    A(f"s_load_dword s{sNON}, s[{WSP}:{WSP+1}], s{sNON}")
    A(f"s_mov_b64 s[{WS_}:{WS_+1}], s[{XS+2}:{XS+3}]")
    srd_fin(XS, 4 * MB)


def wo_voff(dst):
    A(f"v_bfe_u32 v20, v{LN}, 3, 2")
    A(f"v_lshrrev_b32 v21, 5, v{LN}")
    A("v_lshl_add_u32 v20, v21, 3, v20")
    A(f"s_lshr_b32 s32, s{sW4}, 1")
    A("s_lshl_b32 s32, s32, 4")
    A(f"s_and_b32 s33, s{sW4}, 1")
    A("s_lshl_b32 s33, s33, 2")
    A("s_add_u32 s32, s32, s33")
    A("v_add_u32 v20, s32, v20")
    A("v_lshlrev_b32 v20, 11, v20")
    A(f"v_lshrrev_b32 v21, 2, v{LN}")
    A("v_and_b32 v21, 4, v21")
    A(f"v_xor_b32 v21, v21, v{LN}")
    A("v_and_b32 v21, 7, v21")
    A("v_lshl_add_u32 v20, v21, 4, v20")
    A(f"s_lshl_b32 s32, s{sCG}, 7")
    A(f"v_add_u32 v{dst}, s32, v20")


ROT = opt("rot", 1)


def wo_groups(slots, vo, tag):
    gs = []
    for j in slots:
        g = []
        if ROT:
            g += [f"s_add_u32 s{sD0}, s{sHG}, {j & 15}", f"s_and_b32 s{sD0}, s{sD0}, 15", f"s_lshl_b32 s{sD0}, s{sD0}, 17"]
            if j >= 16:
                g += [f"s_add_u32 s{sD0}, s{sD0}, 65536"]
        else:
            g += [f"s_mov_b32 s{sD0}, {(2*(j & 15) + (j >> 4))*65536}"]
        g += [f"s_add_u32 m0, s{sMO}, {4096*j}",
              f"buffer_load_dwordx4 v{vo}, s[{WOS}:{WOS+3}], s{sD0} offen lds ;@{tag}"]
        gs.append(g)
    return gs


def emit(groups):
    for g in groups:
        A.lines += g


FR = [96, 136]
XB, WB, XC, WC = 176, 178, 180, 182
KOF, VOF, KLD, VLD, QLD, TA = 244, 245, 246, 247, 248, 184
RA = 192
AR_IT = opt("ar", 4)


PF, PFD = opt("pf", 1), opt("pfd", 6)
PFA, PFT, sPB, sPK = 190, 191, 84, 85


def pf_setup(va, sPB=sPB):
    A(f"s_lshr_b32 s30, s{WS_}, 7")
    A("s_sub_u32 s30, 3, s30")
    A("s_and_b32 s30, s30, 7")
    A(f"s_and_b32 s31, s{sRB}, 1")
    A("s_lshl_b32 s31, s31, 3")
    A("s_add_u32 s30, s30, s31")
    A(f"s_and_b32 s31, s{sRB}, 14")
    A(f"s_add_u32 s{sPB}, s31, s30")
    A(f"s_lshl_b32 s31, s{sHG}, 2")
    A(f"s_add_u32 s31, s31, s{sW4}")
    A("s_mul_i32 s31, s31, 6144")
    A("s_lshl_b32 s30, s30, 7")
    A("s_add_u32 s30, s30, s31")
    A(f"v_min_u32 v{va}, 2, v{LN}")
    A(f"v_lshl_add_u32 v{va}, v{va}, 11, s30")


def pf_load(va, vt, k, sPB=sPB):
    return [f"s_add_u32 s30, s{sPB}, {k & 15}", "s_and_b32 s30, s30, 15", f"s_mul_i32 s30, s30, {64*6144}",
            f"buffer_load_dword v{vt}, v{va}, s[{WS_}:{WS_+3}], s30 offen"]


def e_init():
    ptr_fin()
    A(f"s_load_dwordx2 s[{TS}:{TS+1}], s[0:1], 64")
    srd_fin(TS, 4 * MB)
    if PF:
        pf_setup(PFA)
        for k in opt("pf0", [0, 1]):
            A.lines += pf_load(PFA, PFT, k)
    A(f"v_lshrrev_b32 v5, 5, v{LN}")
    A("v_lshlrev_b32 v6, 3, v5")
    A(f"s_lshl_b32 s33, s{sCG}, 7")
    for g in range(8):
        A(f"buffer_load_dwordx2 {v(WR+2*g,2)}, v6, s[{TS2}:{TS2+3}], s33 offen offset:{16*g}")
    masks()
    wo_voff(EVO)
    A(f"s_and_b32 s34, s{sW}, 1")
    A(f"s_lshr_b32 s35, s{sW}, 1")
    A(f"v_and_b32 v4, 15, v{LN}")
    A(f"v_lshrrev_b32 v7, 4, v{LN}")
    A("v_lshrrev_b32 v6, 1, v4")
    A("v_xor_b32 v6, v6, v7")
    A("v_lshlrev_b32 v6, 4, v6")
    A("v_lshl_add_u32 v6, v4, 7, v6")
    A("s_lshl_b32 s30, s34, 13")
    A(f"v_add_u32 v{XB}, s30, v6")
    A(f"v_xor_b32 v{XB+1}, 64, v{XB}")
    A("s_lshl_b32 s30, s35, 1")
    wtr_addr(WB, "s30", L_W)
    A(f"v_xor_b32 v{WB+1}, 32, v{WB}")
    A(f"v_and_b32 v8, 31, v{LN}")
    A("v_bfe_u32 v6, v8, 1, 3")
    A("v_xor_b32 v6, v6, v5")
    A("v_lshlrev_b32 v6, 4, v6")
    A("v_lshl_add_u32 v6, v8, 7, v6")
    A(f"s_lshl_b32 s30, s{sW}, 12")
    A(f"s_add_u32 s30, s30, {L_X}")
    A(f"v_add_u32 v{RA}, s30, v6")
    for ks in range(1, 4):
        A(f"v_xor_b32 v{RA+ks}, {32*ks}, v{RA}")
    A("s_lshl_b32 s30, s34, 8")
    A(f"v_lshl_add_u32 v{TA}, v4, 2, s30")
    A(f"v_lshl_add_u32 v{TA+1}, v7, 4, s30")
    A("s_lshl_b32 s30, s35, 7")
    A(f"v_lshl_add_u32 v{TA+2}, v7, 4, s30")
    A(f"s_add_u32 s30, s30, {T_CS+512}")
    A(f"v_lshl_add_u32 v{TA+3}, v4, 2, s30")
    A(f"s_lshl_b32 s30, s{sW}, 7")
    A(f"s_add_u32 s30, s30, {T_C}")
    A(f"v_lshl_add_u32 v{TA+4}, v8, 2, s30")
    A(f"v_mov_b32 v{TA+5}, 0")
    A("v_lshlrev_b32 v6, 9, v7")
    A(f"v_lshl_add_u32 v{VOF}, v4, 4, v6")
    A("v_and_b32 v9, 8, v4")
    A(f"v_lshl_add_u32 v{KOF}, v9, 4, v{VOF}")
    A(f"s_mul_i32 s30, s35, {KVH}")
    A("s_lshl_b32 s31, s34, 13")
    A("s_add_u32 s30, s30, s31")
    A(f"s_add_u32 s30, s30, {L_KV+8*4096}")
    A(f"v_add_u32 v{KLD}, s30, v{KOF}")
    A(f"v_add_u32 v{VLD}, s30, v{VOF}")
    A(f"s_lshl_b32 s30, s{sW}, 12")
    A(f"s_add_u32 s30, s30, {L_Q}")
    A(f"v_add_u32 v{QLD}, s30, v{VOF}")
    A("s_getreg_b32 s30, hwreg(HW_REG_XCC_ID, 0, 4)")
    A("v_mov_b32 v251, s30")
    A(f"s_lshl_b32 s30, s{sHG}, 4")
    A(f"s_add_u32 s30, s30, s{sRB}")
    A(f"s_sub_u32 s30, s30, s{sCU}")
    A(f"s_add_u32 s30, s30, {(COLF - ROWF) // 8}")
    A(f"v_mul_u32_u24 v249, s30, v{LN}")
    A(f"v_add_u32 v249, s{sCU}, v249")
    A("v_lshlrev_b32 v249, 3, v249")
    A(f"s_cmp_eq_u32 s{sW}, 0")
    A(f"s_cselect_b32 s{sAC}, {14 - AR_IT}, -1")
    A(f"v_mov_b32 v{WSUM}, 0")
    for i in range(96):
        A(f"v_mov_b32 v{i}, 0")
    A("s_waitcnt vmcnt(0) lgkmcnt(0)")
    A(f"s_add_u32 s{sNON}, s{sNON}, {hex(EPINC)}")
    A(f"v_mov_b32 v250, s{sNON}")
    for p in range(16):
        A(f"v_dot2c_f32_bf16 v{WSUM}, {ONES}, v{WR+p}")
    if PF:
        for k in opt("pf1", [2, 3, 4, 5]):
            A.lines += pf_load(PFA, PFT, k)
    A("s_setprio 1")


def wtr_addr(dst, ct, base):
    A(f"v_lshrrev_b32 v20, 2, v{LN}")
    A("v_bfe_u32 v21, v20, 1, 2")
    if ct is not None:
        A(f"v_xor_b32 v21, {ct}, v21")
    A("v_lshlrev_b32 v20, 7, v20")
    A("v_lshl_add_u32 v20, v21, 5, v20")
    A(f"v_and_b32 v21, 3, v{LN}")
    A("v_lshl_add_u32 v20, v21, 3, v20")
    A(f"v_add_u32 v{dst}, {base}, v20")


def accq(c, t):
    return 64 + (c & 1) * 16 + t * 4 if c >= 4 else (c >> 1) * 32 + t * 8 + (c & 1) * 4


def e_qphase():
    A.label("e_q")
    A.lines.append("@reset")
    A("s_mov_b32 s31, 0")
    A(f"s_mov_b32 s32, {L_X}")
    A("s_mov_b32 s36, 15")
    for i in range(2):
        A(f"v_add_u32 v{XC+i}, s32, v{XB+i}")
        A(f"v_mov_b32 v{WC+i}, v{WB+i}")

    def rd(fs, kk):
        f = FR[fs]
        x = [f"ds_read_b128 {v(f+4*t,4)}, v{XC+kk} offset:{t*2048}" for t in range(4)]
        w = [f"ds_read_b64_tr_b16 {v(f+16+8*seg+4*u+2*j,2)}, v{WC+u} offset:{seg*8192+kk*4096+j*2048}"
             for seg in range(3) for u in range(2) for j in range(2)]
        return [x[0], w[0], w[1], x[1], x[2], x[3]] + w[2:]

    def mf(fs, cs=range(6), snake=True):
        f = FR[fs]
        m = []
        for c in cs:
            for t in range(4):
                if snake and c & 1:
                    t = 3 - t
                a_, b_ = f + 16 + 4 * c, f + 4 * t
                if c >= 4:
                    a_, b_ = b_, a_
                m.append(MF16(accq(c, t), a_, b_))
        return m

    mark("q_wait")
    padat("q0", 0)
    padat("q1", 1)
    A("s_barrier")
    mark("q_go")
    for x in rd(0, 0):
        A(x)
    adv = [[f"s_cmp_eq_u32 s36, s{sAC}", "s_cbranch_scc1 e_arr", "e_arr_ret:"],
           [f"s_add_u32 s31, s31, {WSL}", f"s_sub_u32 s32, s32, {XSL}"],
           [f"s_cmp_ge_u32 s31, {3*WSL}", "s_cselect_b32 s31, 0, s31", f"s_cselect_b32 s32, {L_X}, s32"],
           [f"v_add_u32 v{WC}, s31, v{WB}", f"v_add_u32 v{XC}, s32, v{XB}"],
           [f"v_add_u32 v{WC+1}, s31, v{WB+1}", f"v_add_u32 v{XC+1}, s32, v{XB+1}"],
           ["s_sub_u32 s36, s36, 1", "s_cmp_eq_u32 s36, 0"]]
    if PF:
        A(f"s_add_u32 s{sPK}, s{sPB}, {PFD - 1}")
        adv[5:5] = [[f"s_add_u32 s{sPK}, s{sPK}, 1", f"s_and_b32 s30, s{sPK}, 15"],
                    [f"s_mul_i32 s30, s30, {64*6144}", f"s_cmp_ge_u32 s36, {PFD}"],
                    ["s_cselect_b64 exec, 7, 0", f"buffer_load_dword v{PFT}, v{PFA}, s[{WS_}:{WS_+3}], s30 offen", "s_mov_b64 exec, -1"]]
    A.label("e_loop")
    for ks in range(2):
        m, r = mf(ks), rd(ks ^ 1, ks ^ 1)
        A("s_waitcnt lgkmcnt(0)")
        A(m[0])
        if ks == 1:
            A("s_barrier")
        for i in range(1, 24):
            if i <= 16:
                A(r[i-1])
            elif 7 * ks + i - 17 < len(adv):
                A.lines += adv[7*ks+i-17]
            A(m[i])
    A("s_cbranch_scc0 e_loop")
    m, r = mf(0), rd(1, 1)
    A("s_waitcnt lgkmcnt(0)")
    sal = [[f"s_and_b32 s34, s{sW}, 1", f"s_lshr_b32 s35, s{sW}, 1", f"s_lshl_b32 s30, s{sHG}, 1"],
           ["s_add_u32 s30, s30, s35", "s_lshl_b32 s30, s30, 6", f"s_lshl_b32 s31, s{sRB}, 2"],
           ["s_add_u32 s30, s30, s31", "s_lshl_b32 s31, s34, 1", "s_add_u32 s30, s30, s31"],
           ["s_lshl_b32 s32, s30, 12", f"s_add_u32 s32, s32, s{sL}", "s_add_u32 s33, s32, 4096"]]
    for i in range(24):
        if 1 <= i <= 16:
            A(r[i-1])
        if i == 17:
            A(f"s_cmp_lg_u32 s{sL}, 0")
            A("s_cbranch_scc1 e_nores")
            for ks in range(4):
                A(f"ds_read_b128 {v(P+4*ks,4)}, v{RA+ks}")
            A.label("e_nores")
        if 18 <= i < 22:
            A.lines += sal[i-18]
        A(m[i])
    AV, MV, CSK, CSQ, AK, MK, CSV, IDX = 96, 112, 128, 196, 192, 204, 190, 250
    tab = [f"ds_read2_b32 {v(MK,2)}, v{TA} offset0:128 offset1:144",
           f"ds_read_b128 {v(CSK,4)}, v{TA+2} offset:{T_CS+256}",
           f"ds_read_b128 {v(CSK+4,4)}, v{TA+2} offset:{T_CS+256+64}",
           f"ds_read2_b32 {v(AK,2)}, v{TA} offset0:0 offset1:16",
           f"ds_read2_b32 {v(MK+2,2)}, v{TA} offset0:160 offset1:176",
           f"ds_read2_b32 {v(AK+2,2)}, v{TA} offset0:32 offset1:48",
           f"ds_read2_b32 {v(CSV,2)}, v{TA+3} offset0:0 offset1:16"]
    for t in range(4):
        tab += [f"ds_read_b128 {v(MV+4*t,4)}, v{TA+1} offset:{T_M+64*t}", f"ds_read_b128 {v(AV+4*t,4)}, v{TA+1} offset:{T_A+64*t}"]
    tab += [f"ds_read_b128 {v(CSQ,4)}, v{TA+2} offset:{T_CS}", f"ds_read_b128 {v(CSQ+4,4)}, v{TA+2} offset:{T_CS+64}",
            f"ds_read2_b32 {v(CC,2)}, v{TA+4} offset0:0 offset1:128", f"ds_read_b64 {v(IDX,2)}, v{TA+5} offset:{T_IDX}"]
    so = ["s32", "s33"]

    def sel(hi):
        return ("op_sel:[0,1,0] op_sel_hi:[1,1,1]", "op_sel:[0,1] op_sel_hi:[1,1]") if hi else ("op_sel_hi:[1,0,1]", "op_sel_hi:[1,0]")

    def qk(seg, t, pk=True):
        acc, cs = 32 * seg + 8 * t, (CSQ, CSK)[seg]
        s3, s2 = sel(t & 1)
        if not pk:
            return ([f"v_fma_f32 v{acc+p}, v{cs+p}, -v{MK+t}, v{acc+p}" for p in range(8)] +
                    [f"v_mul_f32 v{acc+p}, v{acc+p}, v{AK+t}" for p in range(8)] +
                    [f"v_cvt_pk_bf16_f32 v{acc+p}, v{acc+2*p}, v{acc+2*p+1}" for p in range(4)])
        o = [f"v_pk_fma_f32 {v(acc+2*p,2)}, {v(cs+2*p,2)}, {v(MK+(t&2),2)}, {v(acc+2*p,2)} {s3} neg_lo:[0,1,0] neg_hi:[0,1,0]" for p in range(4)]
        o += [f"v_pk_mul_f32 {v(acc+2*p,2)}, {v(acc+2*p,2)}, {v(AK+(t&2),2)} {s2}" for p in range(4)]
        o += [f"v_cvt_pk_bf16_f32 v{acc+p}, v{acc+2*p}, v{acc+2*p+1}" for p in range(4)]
        return o
    kep = []
    for t in range(4):
        kep += qk(1, t, opt("kpk", 0) or t >= 2) + [f"buffer_store_dwordx4 {v(32+8*t,4)}, v{KOF}, {WSR}, {so[t>>1]} offen offset:{(t&1)*128} sc1"]
    m = mf(1, [2, 3, 4, 5, 0, 1], False)
    A("s_waitcnt vmcnt(0) lgkmcnt(0)")
    A(m[0])
    A("s_barrier")
    for i in range(1, 24):
        A.lines += tab[2*(i-1):2*i]
        if i == 11:
            A("s_waitcnt lgkmcnt(13)")
        if i >= 11:
            A.lines += kep[3*(i-11):3*(i-10)]
            if opt("kpk", 0) > 1:
                A(f"s_nop {opt('kpk', 0)-2}")
        A(m[i])
    A.lines += kep[39:]
    mark("q_end")
    A("s_waitcnt lgkmcnt(0)")
    for T in range(2):
        for c in range(2):
            acc = 64 + 16 * c + 8 * T
            s3, _ = sel(c)
            for p in range(4):
                A(f"v_pk_fma_f32 {v(acc+2*p,2)}, {v(MV+8*T+2*p,2)}, {v(CSV,2)}, {v(acc+2*p,2)} {s3} neg_lo:[0,1,0] neg_hi:[0,1,0]")
            for p in range(4):
                A(f"v_pk_mul_f32 {v(acc+2*p,2)}, {v(acc+2*p,2)}, {v(AV+8*T+2*p,2)}")
            for p in range(4):
                A(f"v_cvt_pk_bf16_f32 v{acc+p}, v{acc+2*p}, v{acc+2*p+1}")
            A(f"buffer_store_dwordx4 {v(acc,4)}, v{VOF}, {WSR}, {so[T]} offen offset:{2048+c*256} sc1")
    mark("kv_st")
    for t in range(4):
        A(f"ds_write_b128 v{KLD}, {v(32+8*t,4)} offset:{(t>>1)*4096+(t&1)*128}")
        A(f"v_mul_f32 v{AK+t}, {fl(QSCALE)}, v{AK+t}")
    for t in range(4):
        A.lines += qk(0, t)
        A(f"ds_write_b128 v{VLD}, {v(64+16*(t&1)+8*(t>>1),4)} offset:{(t>>1)*4096+2048+(t&1)*256}")
        A(f"ds_write_b128 v{QLD}, {v(8*t,4)} offset:{(t>>1)*2048+(t&1)*256}")
    A(f"s_lshl_b32 s30, s{sHG}, 8")
    A(f"s_lshl_b32 s31, s{sRB}, 4")
    A("s_add_u32 s30, s30, s31")
    A("s_lshl_b32 s31, s34, 3")
    A("s_add_u32 s30, s30, s31")
    A("s_lshl_b32 s31, s35, 2")
    A("s_add_u32 s30, s30, s31")
    A(f"s_add_u32 s30, s30, s{sL}")
    A(f"s_add_u32 s30, s30, {hex(KVF)}")
    flag_store("s30")
    mark("kv_fl")
    A(f"v_readfirstlane_b32 s{sIDX}, v{IDX}")
    A(f"v_readfirstlane_b32 s{sLOC}, v{IDX+1}")
    patch_flag()

    def unswz():
        for ks in range(4):
            A(f"v_permlane32_swap_b32 v{P+4*ks}, v{P+4*ks+2}")
            A(f"v_permlane32_swap_b32 v{P+4*ks+1}, v{P+4*ks+3}")
    skip_if(f"s_cmp_lg_u32 s{sL}, 0", unswz)


def patch_flag():
    A(f"s_lshr_b32 s39, s{sIDX}, 5")
    A(f"s_lshl_b32 s34, s{sRB}, 2")
    A("s_sub_u32 s39, s39, s34")
    A("s_add_u32 s39, s39, 8")
    A("s_cmp_lt_u32 s39, 12")
    A(f"s_cselect_b32 s{sPATCH}, 1, 0")


Q, PM, AD, MX, SU0, SU1, CB, SM_, O, TM = 4, 12, 20, 21, 22, 23, 24, 40, 88, 152
SA, KF, VF, PP = [56, 72], [104, 112], [120, 128], [136, 144]


def att_setup(team):
    A("v_mov_b32 v20, 0xffff")
    A("v_mov_b32 v21, 0xffff0000")
    for p in range(8):
        A(f"v_cndmask_b32 v22, 0, v20, {s(MS+4*p,2)}")
        A(f"v_cndmask_b32 v23, 0, v21, {s(MS+4*p+2,2)}")
        A(f"v_or_b32 v{PM+p}, v22, v23")
    A(f"s_lshl_b32 s34, s{sW4}, 12")
    A(f"s_add_u32 s34, s34, {L_KV+team*KVH}")
    A(f"v_add_u32 v{AD}, s34, v{L16}")
    A(f"s_lshl_b32 s34, s{sW}, 11")
    A(f"s_add_u32 s34, s34, {L_Q}")
    A(f"v_add_u32 v3, s34, v{L16}")
    for i in range(16):
        A(f"v_mov_b32 v{CB+i}, 0")


def att_qread():
    A(f"ds_read_b128 {v(Q,4)}, v3")
    A(f"ds_read_b128 {v(Q+4,4)}, v3 offset:1024")


def attention(team, hook):
    def rdK(buf, d):
        A(f"ds_read_b128 {v(KF[buf],4)}, v{AD} offset:{(8-d)*4096}")
        A(f"ds_read_b128 {v(KF[buf]+4,4)}, v{AD} offset:{(8-d)*4096+1024}")

    def rdV(buf, d):
        A(f"ds_read_b128 {v(VF[buf],4)}, v{AD} offset:{(8-d)*4096+2048}")
        A(f"ds_read_b128 {v(VF[buf]+4,4)}, v{AD} offset:{(8-d)*4096+3072}")

    def neg_switch(d):
        l = newlab("ng")
        A(f"s_cmp_eq_u32 s{sT}, {d-1}")
        A(f"s_cbranch_scc0 {l}")
        for i in range(16):
            A(f"v_mov_b32 v{CB+i}, {fl(-1e30)}")
        A.label(l)

    def smf(dst, buf, c):
        A(MF(dst, KF[buf], Q, c))
        A(MF(dst, KF[buf] + 4, Q + 4))

    def maxes(src, first):
        for p in range(8):
            if first and p == 0:
                A(f"v_max_f32 v{MX}, v{src}, v{src+1}")
            else:
                A(f"v_max3_f32 v{MX}, v{MX}, v{src+2*p}, v{src+2*p+1}")
    rdK(0, 0)
    rdK(1, 1)
    A("s_waitcnt lgkmcnt(2)")
    smf(SM_, 0, "0")
    hook(1, 0)
    for d in range(1, 9):
        b = d & 1
        if d < 8:
            rdK(b ^ 1, d + 1)
        neg_switch(d)
        A(f"s_waitcnt lgkmcnt({2 if d < 8 else 0})")
        smf(SA[b], b, CB)
        if d >= 2:
            maxes(SA[b ^ 1], d == 2)
        hook(1, d)
    rdK(1, 1)
    rdV(0, 0)
    rdV(1, 8)
    for i in range(16):
        A(f"v_cndmask_b32 v{SM_+i}, v{SA[0]+i}, v{SM_+i}, {s(MS+2*i,2)}")
    maxes(SM_, False)
    A(f"v_mov_b32 v{TM}, v{MX}")
    A(f"v_permlane32_swap_b32 v{MX}, v{TM}")
    A(f"v_max_f32 v{MX}, v{MX}, v{TM}")
    for i in range(16):
        A(f"v_sub_f32 v{CB+i}, 0, v{MX}")
    neg_switch(1)
    A("s_waitcnt lgkmcnt(4)")
    smf(SA[1], 1, CB)
    rdK(0, 2)
    for i in range(16):
        A(f"v_sub_f32 v{SM_+i}, v{SM_+i}, v{MX}")
    for i in range(16):
        A(f"v_exp_f32 v{SM_+i}, v{SM_+i}")
    A(f"v_add_f32 v{SU0}, v{SM_}, v{SM_+1}")
    A(f"v_add_f32 v{SU1}, v{SM_+2}, v{SM_+3}")
    for i in range(4, 16):
        A(f"v_add_f32 v{SU0+(i&1)}, v{SU0+(i&1)}, v{SM_+i}")
    for p in range(8):
        A(f"v_cvt_pk_bf16_f32 v{PP[1]+p}, v{SM_+2*p}, v{SM_+2*p+1}")
    for p in range(8):
        A(f"v_and_b32 v{PP[0]+p}, v{PP[1]+p}, v{PM+p}")
    for p in range(8):
        A(f"v_xor_b32 v{PP[1]+p}, v{PP[1]+p}, v{PP[0]+p}")
    A("s_waitcnt lgkmcnt(2)")
    A(MF(O, VF[0], PP[0], "0"))
    A(MF(O, VF[0] + 4, PP[0] + 4))
    A(MF(O, VF[1], PP[1]))
    A(MF(O, VF[1] + 4, PP[1] + 4))
    hook(2, 0)
    for d in range(1, 8):
        b = d & 1
        rdV(b, d)
        if d < 7:
            neg_switch(d + 1)
            A("s_waitcnt lgkmcnt(2)")
            smf(SA[b ^ 1], b ^ 1, CB)
            if d < 6:
                rdK(b, d + 2)
        src = SA[b]
        for i in range(16):
            A(f"v_exp_f32 v{src+i}, v{src+i}")
        for i in range(16):
            A(f"v_add_f32 v{SU0+(i&1)}, v{SU0+(i&1)}, v{src+i}")
        for p in range(8):
            A(f"v_cvt_pk_bf16_f32 v{PP[b]+p}, v{src+2*p}, v{src+2*p+1}")
        A(f"s_waitcnt lgkmcnt({2 if d < 6 else 0})")
        A(MF(O, VF[b], PP[b]))
        A(MF(O, VF[b] + 4, PP[b] + 4))
        hook(2, d)
    A(f"v_add_f32 v{SU0}, v{SU0}, v{SU1}")
    A(f"v_mov_b32 v{TM}, v{SU0}")
    A(f"v_permlane32_swap_b32 v{SU0}, v{TM}")
    A(f"v_add_f32 v{SU0}, v{SU0}, v{TM}")
    A(f"v_rcp_f32 v{SU0}, v{SU0}")
    A(f"s_lshl_b32 s36, s{sT}, 16")
    if not OSH:
        A(f"s_add_u32 s36, s36, s{sL}")
    A(f"s_add_u32 s36, s36, {hex(OFB + team*32768)}")
    A(f"s_lshl_b32 s33, s{sHG}, 11")
    A("s_add_u32 s33, s33, s36")
    A(f"s_lshl_b32 s30, s{sRB}, 9")
    A(f"s_lshl_b32 s31, s{sW}, 6")
    A("s_add_u32 s30, s30, s31")
    A(f"s_add_u32 s30, s30, s{sL}")
    A(f"s_add_u32 s30, s30, {hex(OFL)}")
    A(f"s_lshl_b32 s31, s{sHG}, 2")
    A("s_add_u32 s31, s31, s30")
    for p in range(8):
        A(f"v_pk_mul_f32 {v(O+2*p,2)}, {v(O+2*p,2)}, {v(SU0,2)} op_sel_hi:[1,0]")
    for p in range(8):
        A(f"v_cvt_pk_bf16_f32 v{O+p}, v{O+2*p}, v{O+2*p+1}")

    def st(bits):
        A(f"buffer_store_dwordx4 {v(O,4)}, v{L16}, {WSR}, s33 offen {bits}")
        A(f"buffer_store_dwordx4 {v(O+4,4)}, v{L16}, {WSR}, s33 offen offset:1024 {bits}")
    st_loc(st)
    mark("att_end")


def e_att():
    att_setup(0)
    A("s_waitcnt lgkmcnt(0)")
    mark("x1_wait")
    padat("a0", 0)
    padat("a1", 1)
    A("s_barrier")

    def fix():
        A("s_barrier")
        A(f"s_lshr_b32 s34, s{sIDX}, 5")

        def row():
            A(f"s_and_b32 s32, s{sIDX}, 31")
            A(f"v_and_b32 v0, 31, v{LN}")
            A("v_cmp_eq_u32 vcc, s32, v0")
            A(f"v_lshrrev_b32 v0, 5, v{LN}")
            A("v_lshlrev_b32 v0, 4, v0")
            A(f"s_lshl_b32 s34, s{sCG}, 7")
            A(f"s_add_u32 s34, s34, {hex(X2R)}")
            A("s_mov_b64 exec, vcc")
            for ks in range(4):
                A(f"buffer_load_dwordx4 {v(P+4*ks,4)}, v0, {WSR}, s34 offen offset:{32*ks} sc1")
            A(f"v_mov_b32 v{CC}, 1.0")
            A(f"v_mov_b32 v{DD}, 0")
            A("s_mov_b64 exec, -1")
        skip_if(f"s_cmp_lg_u32 s34, s{sT}", row)
    skip_if(f"s_cmp_eq_u32 s{sPATCH}, 0", fix)
    mark("att_go")
    att_qread()
    XE2 = opt("xe2", 5)
    al = wo_groups([0, 12, 13, 14, 15], EVO, "woa")

    def hook(ps, d):
        k = (ps - 1) * 9 + d
        if k == XE2:
            A("s_barrier")
        if 0 <= k - XE2 < 5:
            A.lines += al[k - XE2]
    attention(0, hook)


def table_loads(T):
    def f():
        A(f"s_add_u32 s32, s{sCI}, {hex(TABLE)}")
        A(f"buffer_load_dwordx4 {v(T,4)}, v{L16}, {WSR}, s32 offen sc1")
    return f


def argmax_lane(T, issued=None):
    poll(table_loads(T), lambda: sent_check(range(T, T + 4), T + 4), issued)
    A(f"v_mov_b32 v{T+4}, v{T}")
    wave_red(T + 4, T + 5, "max")
    A(f"v_cmp_eq_f32 vcc, v{T+4}, v{T}")
    A("s_ff1_i32_b64 s32, vcc")
    A("s_and_b32 s32, s32, 63")


def stat_loads(S, base):
    def f():
        A(f"s_lshl_b32 s30, s{sT}, 13")
        A(f"s_add_u32 s30, s30, {hex(base)}")
        A("s_add_u32 s31, s30, 4096")
        for i in range(8):
            A(f"buffer_load_dwordx4 {v(S+4*i,4)}, v{L16}, {WSR}, s{30+(i>>2)} offen offset:{(i&3)*1024} sc1")
    return f


def stat_core(S, E, t, nc=4, n=8, sw=32):
    for i in range(1, n):
        for c in range(0, nc, 2):
            A(f"v_pk_add_f32 {v(S+c,2)}, {v(S+c,2)}, {v(S+4*i+c,2)}")
    for i in range(nc):
        A(f"v_mov_b32 v{t+i}, v{S+i}")
    for i in range(nc):
        A(f"v_permlane{sw}_swap_b32 v{S+i}, v{t+i}")
    for i in range(nc):
        A(f"v_add_f32 v{S+i}, v{S+i}, v{t+i}")
    A(f"v_mul_f32 v{E+2}, {fl(1/1024)}, v{S}")
    A(f"v_mul_f32 v{S+1}, {fl(1/1024)}, v{S+1}")
    A(f"v_fma_f32 v{S+1}, -v{E+2}, v{E+2}, v{S+1}")
    A(f"v_max_f32 v{S+1}, 0, v{S+1}")
    A(f"v_add_f32 v{E+3}, {fl(EPS)}, v{S+1}")
    A(f"v_rsq_f32 v{E+3}, v{E+3}")


def cand_publish(S, E, t, PR, lay):
    A(f"v_fma_f32 v{E}, -v{E+2}, v{S+3}, v{S+2}")
    A(f"v_and_b32 v{E+1}, 31, v{LN}")
    A(f"v_mul_f32 v{E}, v{E}, v{E+3}")
    A(f"s_lshl_b32 s32, s{sT}, 5")
    A(f"v_add_u32 v{E+1}, s32, v{E+1}")
    A(f"v_mov_b32 v{t}, v{E}")
    wave_red(t, t + 1, "max", 32)
    A(f"v_cmp_eq_f32 vcc, v{t}, v{E}")
    A(f"v_lshrrev_b32 v{t+2}, 5, v{LN}")
    A(f"v_lshlrev_b32 v{t+2}, 4, v{t+2}")
    A(f"s_lshl_b32 s32, s{sT}, 11")
    A(f"s_lshl_b32 s33, s{sCG}, 7")
    A("s_add_u32 s32, s32, s33")
    A(f"s_add_u32 s32, s32, {hex(CAND + lay)}")
    A(f"s_lshl_b32 s34, s{sT}, 4")
    A(f"s_add_u32 s34, s34, {hex(TABLE + lay)}")
    A("s_ff1_i32_b32 s35, vcc_lo")
    A("s_lshl_b32 s35, 1, s35")
    A(f"s_cmp_eq_u32 s{sHG}, 0")
    A("s_cselect_b32 exec_lo, s35, 0")
    A("s_mov_b32 exec_hi, 0")
    cond(newlab("z"), lambda: A(f"buffer_store_dwordx4 {v(E,4)}, v{t+2}, {WSR}, s34 offen sc1"))
    A("s_mov_b32 exec_lo, s35")
    A("s_mov_b32 exec_hi, s35")
    for ks in range(4):
        A(f"buffer_store_dwordx4 {v(PR+4*ks,4)}, v{t+2}, {WSR}, s32 offen offset:{ks*32} sc1")
    A("s_mov_b64 exec, -1")


def xf_off(dst):
    A(f"v_bfe_u32 v{dst}, v{LN}, 4, 1")
    A(f"v_lshlrev_b32 v{dst}, 11, v{dst}")
    A(f"v_lshrrev_b32 v{dst+1}, 5, v{LN}")
    A(f"v_lshl_add_u32 v{dst}, v{dst+1}, 8, v{dst}")
    A(f"v_and_b32 v{dst+1}, 15, v{LN}")
    A(f"v_lshl_add_u32 v{dst}, v{dst+1}, 4, v{dst}")
    A(f"s_lshl_b32 s34, s{sW4}, 12")
    A(f"s_add_u32 s34, s34, {L_X}")
    A(f"v_add_u32 v{dst+1}, s34, v{dst}")


def e_wo():
    D = opt("wod", 8)
    WA, FA, FL, XO, OB = 56, 60, 61, 100, 104
    WF = [32, 40, 48]
    assert OB + 4 * (D + 1) <= 154
    A(f"v_bfe_u32 v33, v{LN}, 2, 2")
    A(f"v_lshrrev_b32 v32, 5, v{LN}")
    A("v_lshl_add_u32 v34, v32, 3, v33")
    A("v_lshlrev_b32 v34, 7, v34")
    A("v_lshrrev_b32 v33, 1, v33")
    A("v_lshl_add_u32 v34, v33, 6, v34")
    A(f"v_bfe_u32 v33, v{LN}, 4, 1")
    A("v_lshl_add_u32 v34, v33, 5, v34")
    A(f"v_and_b32 v33, 3, v{LN}")
    A(f"v_lshl_add_u32 v{WA}, v33, 3, v34")
    A(f"v_xor_b32 v{WA+1}, 64, v{WA}")
    A(f"v_add_u32 v{WA+2}, 0x10000, v{WA}")
    A(f"v_add_u32 v{WA+3}, 0x10000, v{WA+1}")
    A(f"v_and_b32 v{FA}, 15, v{LN}")
    A(f"v_lshlrev_b32 v{FA}, 2, v{FA}")
    W("woa")
    for p in range(16):
        A(f"v_lshlrev_b32 v{2*p}, 16, v{P+p}")
        A(f"v_and_b32 v{2*p+1}, 0xffff0000, v{P+p}")
    for p in range(16):
        A(f"v_pk_fma_f32 {v(2*p,2)}, {v(2*p,2)}, {v(CC,2)}, {v(CC,2)} op_sel:[0,0,1] op_sel_hi:[1,0,1]")
    flag_store("s31", True)
    mark("o_fl")
    A("s_barrier")
    mark("xa")
    emit(wo_groups(range(16, 28), EVO, "wob"))
    xf_off(XO)
    A(f"s_lshl_b32 s37, s{sHG}, 11" if ROT else "s_mov_b32 s37, 0")

    def rd(i):
        f = WF[i % 3]
        return [f"ds_read_b64_tr_b16 {v(f+4*u+2*j,2)}, v{WA+u+2*(i>>5)} offset:{(i&31)*2048+j*512}" for u in range(2) for j in range(2)]

    def ld(i):
        if i == 32:
            A("s_add_u32 s36, s36, 32768")
        if i & 1 == 0:
            A("s_add_u32 s38, s36, s37")
        else:
            A("s_add_u32 s37, s37, 2048")
            A("s_and_b32 s37, s37, 0x7800")
        A(f"buffer_load_dwordx4 {v(OB+4*(i%(D+1)),4)}, v{L16}, {WSR}, s38 offen offset:{(i&1)*1024} sc1 ;@o{i}")

    def fload(off):
        return lambda: A(f"buffer_load_dword v{FL}, v{FA}, {WSR}, s30 offen offset:{off} sc1")
    A.lines += rd(0) + rd(1)
    poll(fload(0), lambda: A(f"v_cmp_ne_u32 vcc, s{sNON}, v{FL}"))
    mark("o_ok0")
    for i in range(D):
        ld(i)
    FB = opt("wofb", 4)
    for i in range(64):
        f, ob = WF[i % 3], OB + 4 * (i % (D + 1))
        r = rd(i + 2) if i + 2 < 64 else []
        if i in (30, 54):
            A("s_barrier")
        W(f"o{i}", 4 if i < 63 else 0)
        A(MF(0, f, ob))
        if i + D == 32 - FB:
            tagged("fb", fload(256))
        if i + D == 32:
            poll(fload(256), lambda: A(f"v_cmp_ne_u32 vcc, s{sNON}, v{FL}"), "fb")
            mark("o_ok1")
        if i + D < 64:
            ld(i + D)
        A.lines += r[:2]
        A(MF(16, f + 4, ob))
        A.lines += r[2:]
    mark("wo_end")
    G = 96
    A(f"s_lshl_b32 s35, s{sRB}, 4")
    A(f"s_add_u32 s35, s35, s{sCG}")
    A("s_lshl_b32 s35, s35, 14")
    A(f"s_lshl_b32 s34, s{sW}, 12")
    A("s_add_u32 s35, s35, s34")
    if not XFO:
        A(f"s_add_u32 s35, s35, {hex(XFB)}")
    A(f"s_lshl_b32 s30, s{sT}, 13")
    A(f"s_add_u32 s30, s30, s{sL}")
    A(f"s_add_u32 s30, s30, {hex(STAT)}")
    A(f"s_lshl_b32 s31, s{sCG}, 9")
    A("s_add_u32 s31, s31, s30")
    for i in range(3):
        A(f"v_mov_b32 v{G+i}, 0")
    A(f"v_mov_b32 v{G+3}, v{WSUM}")
    for p in range(16):
        A(f"v_cvt_pk_bf16_f32 v{P+p}, v{2*p}, v{2*p+1}")

    def xfst():
        st_loc(lambda bits: [A(f"buffer_store_dwordx4 {v(P+4*ks,4)}, v{XO}, {XFR}, s35 offen offset:{ks*512} {opt('xbits', '') or bits}") for ks in range(4)])
        for ks in range(4):
            A(f"ds_write_b128 v{XO+1}, {v(P+4*ks,4)} offset:{ks*512}")
    skip_if(f"s_cmp_lg_u32 s{sL}, 0", xfst)
    for p in range(16):
        A(f"v_dot2c_f32_bf16 v{G}, {ONES}, v{P+p}")
        A(f"v_dot2c_f32_bf16 v{G+1}, v{P+p}, v{P+p}")
        A(f"v_dot2c_f32_bf16 v{G+2}, v{WR+p}, v{P+p}")
    for i in range(4):
        A(f"v_mov_b32 v{48+i}, v{G+i}")
    for i in range(4):
        A(f"v_permlane32_swap_b32 v{G+i}, v{48+i}")
    for i in range(4):
        A(f"v_add_f32 v{G+i}, v{G+i}, v{48+i}")
    A("s_mov_b32 exec_hi, 0")
    A("s_waitcnt vmcnt(0)")
    st_loc(lambda bits: A(f"buffer_store_dwordx4 {v(G,4)}, v{L16}, {WSR}, s31 offen {bits}"))
    A("s_mov_b64 exec, -1")
    mark("st_pub")
    A(f"s_cmp_lg_u32 s{sL}, 0")
    A("s_cbranch_scc1 e_final")
    A(f"s_mov_b32 s{sL}, {LSTR}")
    A(f"s_and_b32 s30, s{sW}, 1")
    A("s_lshl_b32 s30, s30, 13")
    A(f"v_add_u32 v{XB}, s30, v{L16}")
    A(f"v_add_u32 v{XB+1}, 1024, v{XB}")
    if PF:
        pf_setup(PFA)
        A(f"s_add_u32 s{sPB}, s{sPB}, 14")
    for i in range(96):
        A(f"v_mov_b32 v{i}, 0")
    prof_next()
    A("s_waitcnt lgkmcnt(0)")
    A("s_branch e_q")
    A.label("e_arr")
    A("s_mov_b64 exec, 3")
    A(f"s_mov_b32 s{sAC}, {hex(ROWF)}")
    A(f"buffer_store_dwordx2 v[250:251], v249, {WSR}, s{sAC} offen sc1")
    A("s_mov_b64 exec, -1")
    A("s_branch e_arr_ret")
    A.label("e_final")
    S, E = 64, 52
    poll(stat_loads(S, STAT + LSTR), lambda: sent_check(range(S, S + 32), 48))
    mark("st_ok")
    stat_core(S, E, 48)
    cand_publish(S, E, 48, P, LSTR)
    mark("cand")
    A(f"v_add_f32 v{CC}, 1.0, v{E+3}")
    A(f"v_mul_f32 v{DD}, v{E+2}, v{E+3}")
    A(f"v_sub_f32 v{DD}, 0, v{DD}")
    for p in range(16):
        A(f"v_pk_fma_f32 {v(2*p,2)}, {v(2*p,2)}, {v(CC,2)}, {v(CC,2)} op_sel:[0,0,1] op_sel_hi:[1,0,1]")
    for p in range(16):
        A(f"v_cvt_pk_bf16_f32 v{64+p}, v{2*p}, v{2*p+1}")
    for ks in range(4):
        A(f"v_permlane32_swap_b32 v{64+4*ks}, v{64+4*ks+2}")
        A(f"v_permlane32_swap_b32 v{64+4*ks+1}, v{64+4*ks+3}")
    A(f"v_lshl_add_u32 v50, v{E+1}, 11, v50")
    A(f"s_mov_b32 s{sCI}, s{sL}")

    def arg():
        argmax_lane(0)
        A("s_lshl_b64 exec, 1, s32")
        A(f"ds_write_b128 v{TA+5}, v[0:3] offset:{T_IDX}")
        A("s_mov_b64 exec, -1")
    skip_if(f"s_cmp_lg_u32 s{sW}, 0", arg)
    A("s_waitcnt lgkmcnt(0)")
    A("s_barrier")
    A(f"ds_read_b32 v0, v{TA+5} offset:{T_IDX+4}")
    A("s_waitcnt lgkmcnt(0)")
    A("v_and_b32 v0, 0x7ff, v0")
    A(f"v_cmp_ne_u32 vcc, v0, v{E+1}")
    A("s_mov_b64 exec, vcc")
    for ks in range(4):
        A(f"buffer_store_dwordx4 {v(64+4*ks,4)}, v50, s[{TS}:{TS+3}], s33 offen offset:{ks*32} {opt('obits', '')}")
    A("s_mov_b64 exec, -1")
    A("s_branch k_end")


STAG = opt("stag", 1)
FV = [155, 155, 153]


def ffn_addr():
    A(f"v_lshrrev_b32 v20, 2, v{LN}")
    A("v_lshlrev_b32 v20, 2, v20")
    A(f"v_bfe_u32 v21, v{LN}, 1, 1")
    A("v_add_u32 v20, v20, v21")
    A(f"v_mul_u32_u24 v20, {4*7168}, v20")
    A(f"v_and_b32 v21, 1, v{LN}")
    A("v_lshl_add_u32 v20, v21, 4, v20")
    A(f"s_mul_i32 s30, s{sW4}, {256*7168}")
    A(f"s_lshl_b32 s31, s{sF}, 5")
    A("s_add_u32 s30, s30, s31")
    A(f"v_add_u32 v{FV[0]}, s30, v20")
    A("v_lshlrev_b32 v21, 14, v21")
    A(f"v_lshrrev_b32 v20, 1, v{LN}")
    A("v_lshl_add_u32 v20, v20, 4, v21")
    A(f"s_lshl_b32 s30, s{sW4}, 9")
    A(f"s_lshl_b32 s31, s{sF}, 15")
    A("s_add_u32 s30, s30, s31")
    A(f"v_add_u32 v{FV[2]}, s30, v20")


def ffn_srd(which, sd):
    karg, nb = [(40, 1024 * 7168), (48, 1024 * 7168), (56, 3584 * 2048)][which]
    if opt("noffn", 0) >> which & 1:
        nb = 0
    return [f"s_load_dwordx2 s[{sd}:{sd+1}], s[0:1], {karg}", f"s_cmp_lt_u32 s{sF}, 224",
            f"s_cselect_b32 s{sd+2}, {hex(nb)}, 0", f"s_mov_b32 s{sd+3}, 0x20000"]


def ffn_groups(which, sd):
    base = [GW, UW, DW][which]
    gs = []
    for j in range(8):
        g = []
        if which == 2:
            g += [f"s_mov_b32 s{sD0}, {j*2048}"]
        elif STAG:
            g += [f"s_xor_b32 s{sD0}, s{sF}, {j >> 1}", f"s_and_b32 s{sD1}, s{sD0}, 2", f"s_and_b32 s{sD0}, s{sD0}, 3",
                  f"s_mul_i32 s{sD1}, s{sD1}, {2*7168}", f"s_mul_i32 s{sD0}, s{sD0}, {2*7168}", f"s_add_u32 s{sD0}, s{sD0}, s{sD1}"]
            if j & 1:
                g += [f"s_add_u32 s{sD0}, s{sD0}, 7168"]
        else:
            g += [f"s_mov_b32 s{sD0}, {((j & 3) + 8*(j >> 2))*7168}"]
        g += [f"buffer_load_dwordx4 {v(base+4*j,4)}, v{FV[which]}, s[{sd}:{sd+3}], s{sD0} offen {opt('fbits', '')} ;@ffw"]
        gs.append(g)
    return gs


FFS = opt("ffs", [14, 14, 17, 18, 19, 20, 21, 22, 15, 15, 23, 24, 25, 26, 27, 28] + [16] * 8)
LATE = {}


def late(k):
    if k in LATE:
        skip_if(f"s_cmp_lg_u32 s{sL}, 0", lambda: emit(LATE[k]))


WMAP = {}


def ffn_perm():
    A("s_mov_b32 s30, 0x05040100")
    A("s_mov_b32 s31, 0x07060302")
    free = SPARE
    for m, base in enumerate((GW, UW, DW)):
        for p in range(4):
            for c in range(4):
                a_, b_ = base + 8 * p + c, base + 8 * p + 4 + c
                A(f"v_perm_b32 v{free}, v{b_}, v{a_}, s30")
                A(f"v_perm_b32 v{b_}, v{b_}, v{a_}, s31")
                WMAP[(m, p, 2 * c)] = free
                WMAP[(m, p, 2 * c + 1)] = b_
                free = a_


XG = 24


def ffn_xaddr():
    A(f"s_lshl_b32 s32, s{sW4}, 9")
    A(f"s_sub_u32 s34, s{sF}, 224")
    A("s_lshl_b32 s34, s34, 1")
    A(f"s_add_u32 s89, s34, s{sW4}")
    A(f"s_and_b32 s35, s{sW4}, 1")
    A("s_add_u32 s34, s34, s35")
    A("s_lshl_b32 s34, s34, 5")
    A(f"v_lshrrev_b32 v22, 1, v{LN}")
    A(f"v_and_b32 v23, 1, v{LN}")
    A(f"s_cmp_lt_u32 s{sF}, 224")
    A("s_cselect_b32 s32, s32, s34")
    A("s_cselect_b64 vcc, -1, 0")
    A("v_cndmask_b32 v22, v23, v22, vcc")
    A("v_lshl_add_u32 v22, v22, 4, s32")


def xloads():
    A(f"s_lshr_b32 s33, s{sIDX}, 5")
    A("s_lshl_b32 s33, s33, 11")
    A(f"s_add_u32 s33, s33, s{sCI}")
    A(f"s_add_u32 s33, s33, {hex(CAND)}")
    A(f"buffer_load_dwordx4 {v(XG,4)}, v22, {WSR}, s33 offen sc1")


def ffn_gateup():
    AC = 32
    A(f"v_mov_b32 v28, s{sRSTD}")
    A(f"v_mul_f32 v29, s{sMEAN}, v28")
    for p in range(4):
        A(f"v_lshlrev_b32 v30, 16, v{XG+p}")
        A(f"v_and_b32 v31, 0xffff0000, v{XG+p}")
        A("v_fma_f32 v30, v30, v28, -v29")
        A("v_fma_f32 v31, v31, v28, -v29")
        A(f"v_cvt_pk_bf16_f32 v{XG+p}, v30, v31")
    if STAG:
        for b in range(2):
            skip_if(f"s_bitcmp0_b32 s{sF}, {b}",
                    lambda: [A(f"v_swap_b32 v{XG+p}, v{XG+(p ^ (1 << b))}") for p in range(4) if not p >> b & 1])
    for p in range(4):
        for m in range(2):
            for c in range(8):
                acc = AC + 8 * m + c
                A(f"v_dot2_f32_bf16 v{acc}, v{WMAP[(m,p,c)]}, v{XG+p}, {'0' if p == 0 else 'v%d' % acc}")
    A(f"v_lshrrev_b32 v31, 5, v{LN}")
    A("v_lshlrev_b32 v30, 6, v31")
    for c in range(8):
        A(f"v_permlane32_swap_b32 v{AC+c}, v{AC+8+c}")
    for c in range(8):
        A(f"v_add_f32 v{AC+c}, v{AC+c}, v{AC+8+c}")
    A(f"v_and_b32 v31, 1, v{LN}")
    A("v_lshl_add_u32 v30, v31, 5, v30")
    for c in range(4):
        A(f"v_permlane16_swap_b32 v{AC+c}, v{AC+4+c}")
    for c in range(4):
        A(f"v_add_f32 v{AC+c}, v{AC+c}, v{AC+4+c}")
    A(f"v_and_b32 v31, 16, v{LN}")
    A(f"s_lshl_b32 s32, s{sW4}, 7")
    A("v_add3_u32 v30, v31, v30, s32")
    for sh in ("quad_perm:[2,3,0,1]", "row_ror:4", "row_ror:8"):
        for c in range(4):
            A(f"v_add_f32_dpp v{AC+c}, v{AC+c}, v{AC+c} {sh} {DPPF}")
    A("s_mov_b32 exec_lo, 0x00030003")
    A("s_mov_b32 exec_hi, 0x00030003")
    A(f"ds_write_b128 v30, {v(AC,4)} offset:{T_INB}")
    A("s_mov_b64 exec, -1")


def ffn_down():
    A(f"v_and_b32 v30, 1, v{LN}")
    A(f"v_bfe_u32 v31, v{LN}, 1, 3")
    A("v_lshl_add_u32 v30, v30, 3, v31")
    A("v_lshlrev_b32 v30, 2, v30")
    A(f"v_add_u32 v30, {T_INB}, v30")
    for i in range(4):
        A(f"ds_read2_b32 {v(32+2*i,2)}, v30 offset0:{32*i} offset1:{32*i+16}")
    A(f"v_lshrrev_b32 v30, 2, v{LN}")
    A(f"v_mul_u32_u24 v30, {224*64}, v30")
    A(f"v_and_b32 v31, 3, v{LN}")
    A("v_lshl_add_u32 v30, v31, 4, v30")
    A(f"v_and_b32 v31, 1, v{LN}")
    A("v_cmp_eq_u32 vcc, 1, v31")
    A(f"s_mul_i32 s32, s{sW4}, {16*224*64}")
    A(f"s_lshl_b32 s33, s{sF}, 6")
    A("s_add_u32 s32, s32, s33")
    A(f"s_add_u32 s32, s32, s{sCI}")
    A(f"s_add_u32 s32, s32, {hex(PY)}")
    A("s_waitcnt lgkmcnt(0)")
    A("v_pk_add_f32 v[32:33], v[32:33], v[34:35]")
    A("v_pk_add_f32 v[36:37], v[36:37], v[38:39]")
    A("v_pk_add_f32 v[32:33], v[32:33], v[36:37]")
    A(f"v_mul_f32 v34, {fl(-math.log2(math.e))}, v32")
    A("v_exp_f32 v34, v34")
    A("v_mul_f32 v32, v32, v33")
    A("v_add_f32 v34, 1.0, v34")
    A("v_rcp_f32 v34, v34")
    A("v_mul_f32 v32, v32, v34")
    A(f"v_mov_b32_dpp v33, v32 quad_perm:[2,3,2,3] {DPPF}")
    A("v_cvt_pk_bf16_f32 v32, v32, v33")
    for p in range(4):
        A(f"ds_swizzle_b32 v{36+p}, v32 offset:{hex(1 | (4*p) << 5)}")
    A("s_waitcnt lgkmcnt(0)")
    AC = 40
    for p in range(4):
        for c in range(8):
            A(f"v_dot2_f32_bf16 v{AC+c}, v{WMAP[(2,p,c)]}, v{36+p}, {'0' if p == 0 else 'v%d' % (AC+c)}")
    for c in range(8):
        A(f"v_add_f32_dpp v{AC+c}, v{AC+c}, v{AC+c} quad_perm:[1,0,3,2] {DPPF}")
    for c in range(4):
        A(f"v_cndmask_b32 v{AC+c}, v{AC+c}, v{AC+4+c}, vcc")
    A(f"s_cmp_lt_u32 s{sF}, 224")
    A("s_cselect_b64 exec, -1, 0")
    cond(newlab("z"), lambda: A(f"buffer_store_dwordx4 {v(AC,4)}, v30, {WSR}, s32 offen sc1"))
    A("s_mov_b64 exec, -1")


RP = 32


def red_loads():
    A(f"s_mul_i32 s32, s89, {224*64}")
    A(f"s_add_u32 s32, s32, s{sCI}")
    A(f"s_add_u32 s32, s32, {hex(PY)}")
    for i in range(14):
        A(f"buffer_load_dwordx4 {v(RP+4*i,4)}, v{L16}, {WSR}, s32 offen offset:{(i&3)*1024} sc1")
        if i & 3 == 3:
            A("s_add_u32 s32, s32, 4096")


def red_pre():
    A(f"v_and_b32 v30, 2, v{LN}")
    A("v_cmp_eq_u32 vcc, 2, v30")
    A(f"v_mov_b32 v28, s{sRSTD}")
    A(f"v_mul_f32 v29, s{sMEAN}, v28")
    A("v_add_f32 v28, 1.0, v28")
    A(f"v_cndmask_b32 v30, v{XG}, v{XG+2}, vcc")
    A(f"v_cndmask_b32 v31, v{XG+1}, v{XG+3}, vcc")
    A("v_lshlrev_b32 v92, 16, v30")
    A("v_and_b32 v93, 0xffff0000, v30")
    A("v_lshlrev_b32 v94, 16, v31")
    A("v_and_b32 v95, 0xffff0000, v31")
    for c in range(4):
        A(f"v_fma_f32 v{92+c}, v{92+c}, v28, -v29")
    A(f"v_mov_b32 v96, {fl(-math.log2(math.e))}")
    A(f"v_mul_f32 v96, s{sR}, v96")
    A("v_exp_f32 v96, v96")
    A("v_add_f32 v96, 1.0, v96")
    A("v_rcp_f32 v96, v96")


def red_sum():
    for i in range(1, 14):
        for c in range(0, 4, 2):
            A(f"v_pk_add_f32 {v(RP+c,2)}, {v(RP+c,2)}, {v(RP+4*i+c,2)}")
    for sh in ("row_ror:4", "row_ror:8"):
        for c in range(4):
            A(f"v_add_f32_dpp v{RP+c}, v{RP+c}, v{RP+c} {sh} {DPPF}")
    for sw in ("16", "32"):
        for c in range(4):
            A(f"v_mov_b32 v{RP+4+c}, v{RP+c}")
        for c in range(4):
            A(f"v_permlane{sw}_swap_b32 v{RP+c}, v{RP+4+c}")
        for c in range(4):
            A(f"v_add_f32 v{RP+c}, v{RP+c}, v{RP+4+c}")
    for c in range(4):
        A(f"v_fma_f32 v{RP+c}, v{RP+c}, v96, v{92+c}")
    A(f"v_cvt_pk_bf16_f32 v{RP}, v{RP}, v{RP+1}")
    A(f"v_cvt_pk_bf16_f32 v{RP+1}, v{RP+2}, v{RP+3}")


WCH, XCH, WAC = 100, 132, 140


def wch_reads(st):
    A(f"s_min_u32 s30, s{sW4}, 2")
    A("s_lshl_b32 s30, s30, 13")
    A(f"s_add_u32 s30, s30, {L_W + (st % 3)*WSL}")
    wtr_addr(144, None, "s30")
    for ct in range(1, 4):
        A(f"v_xor_b32 v{144+ct}, {32*ct}, v144")
    for ct in range(4):
        for q in range(4):
            A(f"ds_read_b64_tr_b16 {v(WCH+8*ct+2*q,2)}, v{144+ct} offset:{q*2048}")


def cub_base(base):
    A(f"s_min_u32 s32, s{sW4}, 2")
    A("s_lshl_b32 s32, s32, 12")
    A(f"s_lshl_b32 s33, s{sHG}, 14")
    A("s_add_u32 s32, s32, s33")
    A(f"s_add_u32 s32, s32, {hex(base)}")


def wch_reduce(base, x):
    for ct in range(4):
        A(f"v_mov_b32 v{WAC+ct}, 0")
    for q in range(8):
        for ct in range(4):
            A(f"v_dot2c_f32_bf16 v{WAC+ct}, {ONES if x is None else 'v%d' % (x+q)}, v{WCH+8*ct+q}")
    cub_base(base)
    A(f"s_lshl_b32 s33, s{sRB}, 8")
    A("s_add_u32 s32, s32, s33")
    A(f"v_lshlrev_b32 v20, 2, v{LN}")
    tred4(WAC)
    A(f"buffer_store_dword v{WAC}, v20, {WSR}, s32 offen sc1")


def cub_loads(Z, base):
    cub_base(base)
    for i in range(4):
        A(f"buffer_load_dwordx4 {v(Z+4*i,4)}, v{L16}, {WSR}, s32 offen offset:{i*1024} sc1")


def cub_sum(Z):
    for i in range(1, 4):
        for c in range(0, 4, 2):
            A(f"v_pk_add_f32 {v(Z+c,2)}, {v(Z+c,2)}, {v(Z+4*i+c,2)}")
    tred4(Z)


def tab_write(a_, m_, c_, d_, t, alt=False):
    if alt:
        A(f"v_and_b32 v{t}, 15, v{LN}")
        A(f"v_lshrrev_b32 v{t+1}, 5, v{LN}")
        A(f"v_lshl_add_u32 v{t}, v{t}, 1, v{t+1}")
        A(f"v_bfe_u32 v{t+1}, v{LN}, 4, 1")
    else:
        A(f"v_and_b32 v{t}, 31, v{LN}")
        A(f"v_lshrrev_b32 v{t+1}, 5, v{LN}")
    A(f"v_cmp_eq_u32 vcc, 0, v{t+1}")
    A(f"v_lshlrev_b32 v{t+1}, 9, v{t+1}")
    A(f"v_lshl_add_u32 v{t}, v{t}, 2, v{t+1}")
    A(f"s_lshl_b32 s32, s{sW4}, 7")
    A(f"v_add_u32 v{t}, s32, v{t}")
    A(f"v_cndmask_b32 v{t+1}, {m_}, {a_}, vcc")
    A(f"v_cndmask_b32 v{t+2}, {d_}, {c_}, vcc")
    A(f"ds_write_b32 v{t}, v{t+1} offset:{T_A}")
    A(f"ds_write_b32 v{t}, v{t+2} offset:{T_C}")
    A(f"v_and_b32 v{t}, 15, v{LN}")
    A(f"v_lshrrev_b32 v{t+3}, 4, v{LN}")
    A(f"v_lshl_add_u32 v{t}, v{t}, 2, v{t+3}")
    A(f"s_min_u32 s32, s{sW4}, 2")
    A("s_lshl_b32 s32, s32, 8")
    A(f"v_lshl_add_u32 v{t}, v{t}, 2, s32")
    A(f"ds_write_b32 v{t}, v{CSUM} offset:{T_CS}")


def idx_write():
    A(f"v_mov_b32 v20, s{sIDX}")
    A(f"v_mov_b32 v21, s{sLOC}")
    A("v_mov_b32 v19, 0")
    A(f"ds_write_b64 v19, v[20:21] offset:{T_IDX}")


VX, VW, VO = 4, 8, 14


def l_setup(L):
    A(f"v_lshrrev_b32 v21, 3, v{LN}")
    if L == 0:
        A(f"v_lshrrev_b32 v20, 4, v{LN}")
        A(f"v_xor_b32 v20, v20, v{LN}")
        A("v_and_b32 v20, 7, v20")
        A("v_lshlrev_b32 v20, 4, v20")
        A(f"v_lshl_add_u32 v{VX}, v21, 11, v20")
        A(f"v_xor_b32 v{VX+1}, 64, v{VX}")
        A(f"v_add_u32 v{VX+1}, {16384-1024}, v{VX+1}")
        A(f"v_add_u32 v{VX+2}, {2*(16384-1024)}, v{VX}")
        A(f"v_add_u32 v{VX+3}, {2*(16384-1024)}, v{VX+1}")
        A(f"s_lshl_b32 s{sSX}, s{sT}, 16")
        A(f"s_lshl_b32 s{sSW}, s{sHG}, 7")
        A(f"s_lshl_b32 s{sMX}, s{sW4}, 12")
        A(f"s_mul_i32 s{sMW}, s{sW4}, 6144")
        A("v_and_b32 v20, 4, v21")
        A("v_add_u32 v20, v20, v21")
        A("v_mul_u32_u24 v20, 6144, v20")
    else:
        A(f"s_lshl_b32 s{sSX}, s{sRB}, 18")
        A(f"s_add_u32 s{sSX}, s{sSX}, s{sMX}")
        if not XFO:
            A(f"s_add_u32 s{sSX}, s{sSX}, {hex(XFB)}")
        A("v_mul_u32_u24 v20, 6144, v21")
    A("v_and_b32 v21, 6, v21")
    A(f"v_xor_b32 v21, v21, v{LN}")
    A("v_and_b32 v21, 7, v21")
    A("v_lshl_add_u32 v20, v21, 4, v20")
    A(f"s_mul_i32 s32, s{sW4}, 3")
    for m in range(3):
        A("s_bfe_u32 s33, s32, 0x10001")
        A(f"s_mul_i32 s33, s33, {32*6144}")
        A("s_and_b32 s34, s32, 1")
        A(f"s_mul_i32 s34, s34, {(4 if L == 0 else 8)*6144}")
        A("s_add_u32 s33, s33, s34")
        A("s_lshr_b32 s34, s32, 2")
        A("s_lshl_b32 s34, s34, 11")
        A("s_add_u32 s33, s33, s34")
        if m == 1:
            A("s_sub_u32 s33, s33, 2048")
        A(f"v_add_u32 v{VW+2*m}, s33, v20")
        A(f"v_add_u32 v{VW+2*m+1}, {16*6144-1024}, v{VW+2*m}")
        if m < 2:
            A("s_add_u32 s32, s32, 1")


def kreg(st):
    return [f"s_add_u32 s{sD0}, s{(sKa, sKb)[st & 1]}, {st}", f"s_and_b32 s{sD0}, s{sD0}, 15"]


def st_x(L, st, tag=None):
    gs = []
    for q in range(4):
        g = []
        if q == 0:
            g += kreg(st) + [f"s_lshl_b32 s{sD1}, s{sD0}, {7 if L == 0 else 14}", f"s_add_u32 s{sD1}, s{sD1}, s{sSX}",
                             f"s_add_u32 m0, s{sMX}, {L_X - XSL*(st % 3)}"]
        if L == 0:
            g += [f"buffer_load_dwordx4 v{VX+q}, s[{XS}:{XS+3}], s{sD1} offen offset:{q*1024} lds ;@{tag or 'st%d' % st}"]
        else:
            g += [f"buffer_load_dwordx4 v{L16}, {XFR}, s{sD1} offen offset:{q*1024} sc1 lds ;@{tag or 'st%d' % st}"]
        gs.append(g)
    return gs


def st_w(st, tag=None):
    gs = []
    for i in range(6):
        g = []
        if i == 0:
            g += kreg(st) + [f"s_mul_i32 s{sD0}, s{sD0}, {64*6144}", f"s_add_u32 s{sD0}, s{sD0}, s{sSW}"]
        if i & 3 == 0:
            g += [f"s_add_u32 m0, s{sMW}, {L_W + WSL*(st % 3) + 1024*i}"]
        g += [f"buffer_load_dwordx4 v{VW+i}, s[{WS_}:{WS_+3}], s{sD0} offen offset:{(i&3)*1024} lds ;@{tag or 'st%d' % st}"]
        gs.append(g)
    return gs


def q_loop(L, jobs, extra, force, lead, pre={}, post=[]):
    for it in range(16):
        tags = ([f"st{it+1}"] if it < 15 else []) + force.get(it, [])
        if tags:
            W(",".join(tags), 0)
        else:
            A("s_waitcnt lgkmcnt(0)")
        markq(f"w{it}")
        A("s_barrier")
        markq(f"b{it}")
        g = pre.get(it, []) + (st_x(L, it + 3) + st_w(it + 3) if it <= 12 else []) + extra.get(it, [])
        weave(g, lambda: [j() for j in jobs.get(it, [])], lead.get(it, 2), it in post)


def isred(body):
    l = newlab("sk")
    A(f"s_cmp_lt_u32 s{sF}, 224")
    A(f"s_cbranch_scc1 {l}")
    A(f"s_cmp_ge_u32 s{sW4}, 2")
    A(f"s_cbranch_scc1 {l}")
    cond("red", body)
    A.label(l)


def l_layer0():
    A.label("l_start")
    A.lines.append("@reset")
    l_setup(0)
    ptr_fin()
    g = st_x(0, 0) + st_w(0) + st_x(0, 1) + st_w(1) + st_x(0, 2) + st_w(2)
    N0, N1 = opt("n0", 8), opt("n1", 17)
    emit(g[:N0])
    masks()
    wo_voff(VO)
    ffn_addr()
    A.lines += ffn_srd(0, TS2) + ffn_srd(2, TS)
    A(f"s_mov_b32 s{sIDX}, -1")
    A(f"s_mov_b32 s{sPATCH}, 0")
    A(f"s_sub_u32 s30, s{sHG}, s{sRB}")
    A(f"s_add_u32 s30, s30, {(COLF - ROWF) // 128 - 1}")
    A(f"v_and_b32 v15, 16, v{LN}")
    A("v_mul_u32_u24 v15, s30, v15")
    A(f"v_and_b32 v20, 31, v{LN}")
    A("v_add_lshl_u32 v15, v15, v20, 3")
    A(f"s_lshl_b32 s30, s{sRB}, 7")
    A(f"s_add_u32 s30, s30, {hex(ROWF)}")
    A("v_add_u32 v15, s30, v15")
    emit(g[N0:N1])
    W("st0", 0)
    A(f"s_add_u32 s{sNON}, s{sNON}, {hex(EPINC)}")
    A("s_barrier")
    emit(g[N1:])
    S, E, Z = 64, 52, 32

    def clears():
        for i in range(4):
            A(f"v_mov_b32 v{16+i}, -1")
        A(f"s_lshr_b32 s30, s{sW4}, 1")
        A(f"s_mul_i32 s30, s30, {LSTR}")
        A(f"s_and_b32 s31, s{sW4}, 1")
        A("s_lshl_b32 s32, s31, 20")
        A(f"s_lshl_b32 s33, s{sCU}, 10")
        A("s_add_u32 s32, s32, s33")
        A("s_add_u32 s32, s32, s30")
        A(f"s_add_u32 s32, s32, {hex(AR)}")
        for i in range(3):
            A(f"buffer_store_dwordx4 v[16:19], v{L16}, {WSR}, s32 offen sc1 ;@pub")
            A(f"s_add_u32 s32, s32, {256*KB}")
        A(f"s_lshl_b32 s33, s{sCU}, 7")
        A("s_add_u32 s33, s33, s30")
        A(f"s_add_u32 s33, s33, {hex(SM)}")
        A("s_cmp_eq_u32 s31, 0")
        A("s_cselect_b32 s32, s32, s33")
        A("s_cselect_b64 exec, -1, 0xff")
        A(f"buffer_store_dwordx4 v[16:19], v{L16}, {WSR}, s32 offen sc1 ;@pub")
        A("s_mov_b64 exec, -1")

    def part(st):
        A(f"v_and_b32 v28, 31, v{LN}")
        A("v_bfe_u32 v29, v28, 1, 3")
        A(f"v_lshrrev_b32 v30, 5, v{LN}")
        A("v_xor_b32 v29, v29, v30")
        A("v_lshlrev_b32 v29, 4, v29")
        A("v_lshl_add_u32 v28, v28, 7, v29")
        A(f"s_add_u32 s30, s{sMX}, {L_X - XSL*(st % 3)}")
        A("v_add_u32 v28, s30, v28")
        for ks in range(1, 4):
            A(f"v_xor_b32 v{28+ks}, {32*ks}, v28")
        for ks in range(4):
            A(f"ds_read_b128 {v(32+4*ks,4)}, v{28+ks}")
        wch_reads(st)

    def part2():
        for i in range(4):
            A(f"v_mov_b32 v{48+i}, 0")
        A(f"s_lshl_b32 s30, s{sT}, 12")
        A(f"s_lshl_b32 s31, s{sHG}, 8")
        A("s_add_u32 s30, s30, s31")
        A(f"s_add_u32 s30, s30, {hex(STAT0)}")
        A(f"v_lshlrev_b32 v28, 3, v{LN}")
        for p in range(16):
            A(f"v_dot2c_f32_bf16 v{48+2*(p&1)}, {ONES}, v{32+p}")
            A(f"v_dot2c_f32_bf16 v{49+2*(p&1)}, v{32+p}, v{32+p}")
        A("v_pk_add_f32 v[48:49], v[48:49], v[50:51]")
        A("v_mov_b32 v50, v48")
        A("v_mov_b32 v51, v49")
        A("v_permlane32_swap_b32 v48, v50")
        A("v_permlane32_swap_b32 v49, v51")
        A("v_pk_add_f32 v[48:49], v[48:49], v[50:51]")
        A("s_mov_b32 exec_hi, 0")
        A(f"buffer_store_dwordx2 v[48:49], v28, {WSR}, s30 offen sc1 ;@pub")
        A("s_mov_b64 exec, -1")
        tagged("pub", lambda: wch_reduce(CUB0, None))

    def dbgload():
        A(f"buffer_load_dwordx2 v[16:17], v15, {WSR}, 0 offen sc1")

    def arrived():
        poll(dbgload, lambda: A(f"v_cmp_ne_u32 vcc, s{sNON}, v16"), "arr")
        mark("arr")
        A("s_getreg_b32 s30, hwreg(HW_REG_XCC_ID, 0, 4)")
        A("v_cmp_ne_u32 vcc, s30, v17")
        A("s_and_b32 s30, vcc_lo, 0xffff")
        A(f"s_cselect_b32 s{sLOC}, 0, 1")
        idx_write()

    def s0loads():
        A(f"s_lshl_b32 s30, s{sT}, 12")
        A(f"s_add_u32 s30, s30, {hex(STAT0)}")
        for i in range(4):
            A(f"buffer_load_dwordx4 {v(S+4*i,4)}, v{L16}, {WSR}, s30 offen offset:{i*1024} sc1 ;@s0")
        tagged("s0", lambda: cub_loads(Z, CUB0))

    def tables():
        W("s0")
        for i in range(1, 4):
            for c in range(0, 4, 2):
                A(f"v_pk_add_f32 {v(S+c,2)}, {v(S+c,2)}, {v(S+4*i+c,2)}")
        A(f"v_permlane32_swap_b32 v{S}, v{S+2}")
        A(f"v_permlane32_swap_b32 v{S+1}, v{S+3}")
        A(f"v_pk_add_f32 {v(S,2)}, {v(S,2)}, {v(S+2,2)}")
        stat_core(S, E, 48, 2, 1, 16)
        cub_sum(Z)
        A(f"v_mov_b32 v{CSUM}, v{Z}")
        tab_write(f"v{E+3}", f"v{E+2}", "1.0", "0", 48, True)
    SP, CL, AR_, AP = opt("sp", 1), opt("cl", 0), AR_IT, opt("ap", 10)
    jobs, extra = {}, {}
    S0, TB0 = opt("s0", 13), opt("tb0", 14)
    for it, j in ((SP - 1, lambda: part(SP)), (CL, clears), (SP, part2),
                  (AP, lambda: tagged("arr", dbgload)), (AP + 1, arrived), (S0, s0loads), (TB0, tables)):
        jobs.setdefault(it, []).append(j)
    WO0 = opt("wo0", [13] * 3 + [16] * 6)
    ff = ffn_groups(0, TS2) + ffn_groups(1, XS) + ffn_groups(2, TS)
    assert min(FFS[8:16]) >= 14 and max(WO0) <= 16
    extra[13] = [ffn_srd(1, XS)]
    for k, gr in [(FFS[j], ff[j]) for j in list(range(16, 24)) + list(range(16))] + list(zip(WO0, wo_groups(range(1, 10), VO, "wo"))):
        (extra if k < 16 else LATE).setdefault(k, []).append(gr)
    q_loop(0, jobs, extra, {AR_: ["pub"]}, opt("lead0", {CL: 6, AP: 0, AP + 1: 10, S0: 1 if S0 == 13 else 10, TB0: 0}), post=opt("post0", [S0, TB0]))


def l_att():
    A.label("l_att")
    A.lines.append("@reset")
    emit(wo_groups([10, 11], VO, "wo"))
    late(16)
    att_setup(1)
    A(f"s_lshr_b32 s33, s{sW4}, 1")
    A(f"s_add_u32 s33, s33, s{sRB}")
    A("s_sub_u32 s33, s33, 2")

    def halo():
        A(f"s_and_b32 s34, s{sW4}, 1")
        A(f"s_lshl_b32 s35, s{sHG}, 7")
        A("s_lshl_b32 s30, s33, 2")
        A("s_add_u32 s35, s35, s30")
        A("s_lshl_b32 s30, s34, 1")
        A("s_add_u32 s35, s35, s30")
        A("s_lshl_b32 s35, s35, 12")
        A(f"s_add_u32 s35, s35, s{sL}")
        A(f"s_lshl_b32 s30, s{sHG}, 8")
        A("s_lshl_b32 s31, s33, 4")
        A("s_add_u32 s30, s30, s31")
        A("s_lshl_b32 s31, s34, 3")
        A("s_add_u32 s30, s30, s31")
        A(f"s_add_u32 s30, s30, s{sL}")
        A(f"s_add_u32 s30, s30, {hex(KVF)}")
        A(f"v_and_b32 v40, 4, v{LN}")
        poll(lambda: A(f"buffer_load_dword v42, v40, {WSR}, s30 offen sc1"), lambda: A(f"v_cmp_ne_u32 vcc, s{sNON}, v42"))
        mark("kv_ok")
        A(f"s_lshl_b32 s30, s{sW4}, 13")
        for hd in range(2):
            for kv in range(2):
                for tt in range(2):
                    A(f"s_add_u32 m0, s30, {L_KV + hd*KVH + tt*4096}")
                    A(f"s_add_u32 s31, s35, {hd*262144 + tt*4096}")
                    for p in range(2):
                        A(f"buffer_load_dwordx4 v{L16}, {WSR}, s31 offen offset:{(2*kv+p)*1024} sc1 lds ;@h{hd}{kv}")
        W("h00")
    skip_if("s_cmp_lt_i32 s33, 0", halo)
    skip_if(f"s_cmp_eq_u32 s{sPATCH}, 0", lambda: A("s_waitcnt vmcnt(0)"))
    mark("x1_wait")
    A("s_barrier")

    def fix():
        A("s_cmp_lg_u32 s38, 0")
        A("s_cselect_b64 exec, -1, 0")
        A("ds_write_b16 v0, v1")
        A("s_mov_b64 exec, -1")
        A("s_waitcnt lgkmcnt(0)")
        A("s_barrier")
    skip_if(f"s_cmp_eq_u32 s{sPATCH}, 0", fix)
    att_qread()
    A("s_waitcnt vmcnt(0) lgkmcnt(0)")
    A("s_barrier")
    mark("att_go")
    XLA = opt("xla", 13)

    def hook(ps, d):
        if (ps - 1) * 9 + d == XLA:
            A("s_barrier")
        late(17 + (ps - 1) * 9 + d)
    attention(1, hook)
    flag_store("s31", True)
    mark("o_fl")
    late(40)
    wo_voff(VO)
    ffn_xaddr()
    A(f"s_mov_b32 s{sCI}, s{sL}")

    def nxt():
        if 40 in LATE:
            A("s_waitcnt vmcnt(0)")
        if PF:
            pf_setup(18, 35)
            for k in range(PFD):
                A.lines += pf_load(18, 19, k - 2, 35)
        ffn_perm()
        l_setup(1)
        A(f"s_sub_u32 s30, s{sKb}, 1")
        A(f"s_sub_u32 s{sKb}, s{sKa}, 3")
        A(f"s_mov_b32 s{sKa}, s30")
        xf_off(116)
        A(f"v_and_b32 v16, 15, v{LN}")
        A("v_lshlrev_b32 v16, 9, v16")
        srd_load(TS, 64, 4 * MB)
    skip_if(f"s_cmp_lg_u32 s{sL}, 0", nxt)
    A("s_barrier")
    emit(wo_groups(range(28, 32), VO, "wo"))
    A("s_waitcnt vmcnt(0)")
    A("s_barrier")
    A(f"s_cmp_lg_u32 s{sL}, 0")
    A("s_cbranch_scc1 l_tail")


def readsel(T, lane):
    for r_, i in ((sR, 0), (sIDX, 1), (sMEAN, 2), (sRSTD, 3)):
        A(f"v_readlane_b32 s{r_}, v{T+i}, {lane}")
    A(f"s_and_b32 s{sIDX}, s{sIDX}, 2047")


def l_layer1():
    S, E, TB, PR = 64, 52, 16, 100
    A(f"s_mov_b32 s{sL}, {LSTR}")
    emit(st_w(0) + st_w(1))
    A(f"s_lshl_b32 s30, s{sT}, 13")
    A(f"s_add_u32 s30, s30, {hex(STAT)}")
    prof_next()
    W("st0")
    A("s_barrier")
    emit(st_w(2))
    for ks in range(4):
        A(f"ds_read_b128 {v(PR+4*ks,4)}, v117 offset:{ks*512}")
    poll(lambda: A(f"buffer_load_dword v17, v16, {WSR}, s30 offen sc1"), lambda: sent_check([17], 18))
    mark("x_ok")
    emit(st_x(1, 1))
    tagged("stat", stat_loads(S, STAT))

    def stats():
        poll(stat_loads(S, STAT), lambda: sent_check(range(S, S + 32), 48), "stat")
        stat_core(S, E, 48)
        cand_publish(S, E, 48, PR, 0)
        mark("cand")
        A(f"v_add_f32 v56, 1.0, v{E+3}")
        A(f"v_mul_f32 v57, v{E+2}, v{E+3}")
        A("v_mul_f32 v58, v56, v56")
        A("v_sub_f32 v57, 0, v57")
        A(f"v_mul_f32 v58, v58, v{S+1}")
        A(f"v_add_f32 v58, {fl(EPS)}, v58")
        A("v_rsq_f32 v58, v58")
        A("v_mul_f32 v58, v58, v56")
        tab_write("v58", f"v{E+2}", "v56", "v57", 48)

    def arg():
        argmax_lane(TB, "tab")
        readsel(TB, "s32")
        tagged("x", xloads)
        mark("f_arg")
        idx_write()
        patch_flag()

    def gateup():
        poll(xloads, lambda: sent_check(range(XG, XG + 4), 30), "x")
        red_pre()
        ffn_gateup()

    def down():
        ffn_down()
        mark("f_down")

    def red():
        poll(red_loads, lambda: sent_check(range(RP, RP + 56), 30), "red")
        red_sum()
        A("s_lshl_b32 s32, s89, 5")
        A(f"s_add_u32 s32, s32, {hex(X2R)}")
        A(f"v_and_b32 v30, 1, v{LN}")
        A(f"v_bfe_u32 v31, v{LN}, 1, 1")
        A("v_lshlrev_b32 v30, 4, v30")
        A("v_lshl_add_u32 v30, v31, 3, v30")
        A("s_mov_b64 exec, 15")
        A(f"buffer_store_dwordx2 {v(RP,2)}, v30, {WSR}, s32 offen sc1")
        A("s_mov_b64 exec, -1")
        mark("f_red")
    T_, RL, XL, PL = opt("tb", 3), opt("rl", 8), opt("xl", 11), opt("pl", 14)
    SZ = XL + 1

    def x2loads():
        for kk in range(2):
            A(f"buffer_load_dwordx4 {v(XCH+4*kk,4)}, v19, {WSR}, s35 offen offset:{64*kk} sc1")

    def x2():
        A(f"s_add_u32 s35, s{(sKa, sKb)[SZ & 1]}, {SZ}")
        A("s_and_b32 s35, s35, 15")
        A("s_lshl_b32 s35, s35, 7")
        A(f"s_add_u32 s35, s35, {hex(X2R)}")
        A(f"v_and_b32 v19, 48, v{LN}")
        tagged("x2", x2loads)
        wch_reads(SZ)

    def z():
        poll(x2loads, lambda: sent_check(range(XCH, XCH + 8), 30), "x2")
        wch_reduce(CUB + LSTR, XCH)
        mark("f_z")
    Z, XR = 32, 48

    def zloads():
        cub_loads(Z, CUB + LSTR)
        A(f"s_mov_b32 s32, {hex(X2R)}")
        for i in range(2):
            A(f"buffer_load_dwordx4 {v(XR+4*i,4)}, v{L16}, {WSR}, s32 offen offset:{1024*i} sc1")

    def paddr():
        tagged("z", zloads)
        A(f"v_and_b32 v20, 7, v{LN}")
        A(f"v_lshrrev_b32 v21, 4, v{LN}")
        A("v_lshl_add_u32 v21, v20, 2, v21")
        A(f"s_and_b32 s34, s{sIDX}, 31")
        A("s_and_b32 s32, s34, 7")
        A("s_and_b32 s33, s34, 8")
        A("s_lshl_b32 s33, s33, 1")
        A("s_add_u32 s32, s32, s33")
        A("s_lshr_b32 s33, s34, 4")
        A("s_lshl_b32 s33, s33, 3")
        A("s_add_u32 s32, s32, s33")
        A(f"s_cmp_eq_u32 s{sW4}, 1")
        A("s_cselect_b32 s34, s32, s34")
        A("v_mov_b32 v20, s34")
        A(f"s_cmp_ge_u32 s{sW4}, 2")
        A("s_cselect_b64 vcc, -1, 0")
        A("s_cselect_b32 s32, 2048, 0")
        A("v_cndmask_b32 v30, v20, v21, vcc")
        A("v_cndmask_b32 v31, v21, v20, vcc")
        A("v_lshlrev_b32 v0, 4, v30")
        A("v_bfe_u32 v20, v31, 2, 2")
        A("v_lshl_add_u32 v0, v20, 9, v0")
        A("v_lshrrev_b32 v20, 4, v31")
        A("v_lshl_add_u32 v0, v20, 3, v0")
        A("v_and_b32 v20, 3, v31")
        A("v_lshl_add_u32 v0, v20, 1, v0")
        A("s_lshl_b32 s33, s39, 12")
        A("s_add_u32 s33, s33, s32")
        A(f"s_add_u32 s33, s33, {L_KV}")
        A("s_lshl_b32 s34, s39, 11")
        A(f"s_add_u32 s34, s34, {L_Q - 8*2048}")
        A("s_cmp_ge_u32 s39, 8")
        A("s_cselect_b32 s38, 1, 0")
        A("s_movk_i32 s32, 8192")
        A(f"s_cmp_eq_u32 s{sW4}, 0")
        A("s_cselect_b32 s33, s34, s33")
        A(f"s_cselect_b32 s32, s32, {KVH}")
        A("s_cselect_b32 s38, s38, 1")
        A(f"s_cselect_b32 s37, {fl(QSCALE)}, 1.0")
        A(f"v_bfe_u32 v20, v{LN}, 3, 1")
        A("v_mul_u32_u24 v20, s32, v20")
        A("v_add3_u32 v0, v0, v20, s33")

    def pval():
        poll(zloads, lambda: sent_check(range(Z, Z + 24), 30), "z")
        A("v_mov_b32 v28, 0")
        A("v_mov_b32 v29, 0")
        for p in range(8):
            A(f"v_dot2c_f32_bf16 v28, {ONES}, v{XR+p}")
            A(f"v_dot2c_f32_bf16 v29, v{XR+p}, v{XR+p}")
        cub_sum(Z)
        wave_red(28, 30)
        wave_red(29, 30)
        A(f"v_mul_f32 v28, {fl(1/1024)}, v28")
        A(f"v_mul_f32 v29, {fl(1/1024)}, v29")
        A("v_fma_f32 v29, -v28, v28, v29")
        A("v_max_f32 v29, 0, v29")
        A(f"v_add_f32 v29, {fl(EPS)}, v29")
        A("v_rsq_f32 v29, v29")
        A(f"v_fma_f32 v{Z}, -v28, v{CSUM}, v{Z}")
        A("v_mul_f32 v29, s37, v29")
        A(f"v_mul_f32 v{Z}, v{Z}, v29")
        A(f"v_cvt_pk_bf16_f32 v1, v{Z}, v{Z}")
        mark("f_patch")
    pat = lambda f: (lambda: skip_if(f"s_cmp_eq_u32 s{sPATCH}, 0", f, "pat"))
    jobs = {}
    for it, j in ((0, stats), (T_, lambda: tagged("tab", table_loads(TB))), (T_ + 1, arg), (T_ + 2, gateup), (T_ + 3, down),
                  (RL, lambda: isred(lambda: tagged("red", red_loads))), (RL + 1, lambda: isred(red)),
                  (XL, x2), (XL + 1, z), (PL, pat(paddr)), (min(PL + 1, 15), pat(pval))):
        jobs.setdefault(it, []).append(j)
    q_loop(1, jobs, {}, {}, opt("lead", {0: 4, T_: 0, T_ + 1: 0, RL: 0, RL + 1: 10, XL: 0}), {0: st_x(1, 2)})
    A("s_branch l_att")
    A.label("l_tail")
    A.lines.append("@reset")
    A("v_mov_b32 v20, 0")

    def epoch():
        A(f"s_mov_b32 s34, {hex(EPOCH)}")
        flag_store("s34")
    A(f"s_or_b32 s34, s{sCU}, s{sW4}")
    skip_if("s_cmp_lg_u32 s34, 0", epoch)
    A("s_barrier")
    A(f"ds_read_b128 {v(TB,4)}, v20 offset:{T_IDX}")
    A("s_waitcnt lgkmcnt(0)")
    readsel(TB, "0")
    mark("t_arg")
    poll(xloads, lambda: sent_check(range(XG, XG + 4), 30))
    mark("t_x")
    A(f"s_cmp_ge_u32 s{sF}, 224")
    A("s_cbranch_scc1 l_tred")
    ffn_gateup()
    A("s_waitcnt lgkmcnt(0)")
    A("s_barrier")
    ffn_down()
    mark("f_down")
    A("s_branch k_end")
    A.label("l_tred")
    A(f"s_cmp_ge_u32 s{sW4}, 2")
    A("s_cbranch_scc1 k_end")
    red_pre()
    poll(red_loads, lambda: sent_check(range(RP, RP + 56), 30))
    mark("t_py")
    red_sum()
    A(f"s_lshl_b32 s32, s{sIDX}, 11")
    A("s_lshl_b32 s33, s89, 5")
    A("s_add_u32 s32, s32, s33")
    A(f"v_lshlrev_b32 v30, 3, v{LN}")
    A("s_mov_b64 exec, 15")
    A(f"buffer_store_dwordx2 {v(RP,2)}, v30, s[{TS}:{TS+3}], s32 offen sc1")
    A("s_mov_b64 exec, -1")


def main():
    out = [x for x in ARGS if x.endswith(".s")]
    out = out[0] if out else os.path.join(os.path.dirname(os.path.abspath(__file__)), NAME + ".s")
    K = NAME + "_kernel"
    A(f".globl {K}")
    A(".p2align 8")
    A(f".type {K},@function")
    A.label(K)
    cap(ffn_perm)
    prologue()
    e_init()
    e_qphase()
    e_att()
    e_wo()
    l_layer0()
    l_att()
    l_layer1()
    A.label("k_end")
    if PAD:
        skip_if(f"s_cmp_lt_u32 s{sW}, 4", lambda: padat("end"))
    if PROF:
        A("s_waitcnt vmcnt(0)")
        mark("end")
        A(f"s_lshl_b32 s30, s{sCU}, 3")
        A(f"s_add_u32 s30, s30, s{sW}")
        A("s_lshl_b32 s30, s30, 9")
        A(f"s_add_u32 s30, s30, {hex(PROFOFF)}")
        A(f"v_lshlrev_b32 v0, 2, v{LN}")
        A(f"buffer_store_dword v{PRF2}, v0, {WSR}, s30 offen")
        A(f"buffer_store_dword v{PRF}, v0, {WSR}, s30 offen offset:256")
    A.label("k_exit")
    A("s_endpgm")
    assert len(MARKS) <= (64 if "-profq" in ARGS else 32), len(MARKS)
    A.lines = resolve(A.lines)
    A.hazard_pass(verbose="-v" in ARGS)
    txt = "; @launch grid=(256,1,1) block=(512,1,1) lds=163840\n"
    txt += "; marks: " + " ".join(MARKS) + "\n" if PROF else ""
    txt += '.amdgcn_target "amdgcn-amd-amdhsa--gfx950"\n.text\n' + A.text() + '.section .rodata,"a"\n.p2align 6\n'
    txt += f""".amdhsa_kernel {K}
  .amdhsa_next_free_vgpr 256
  .amdhsa_next_free_sgpr 102
  .amdhsa_accum_offset 256
  .amdhsa_group_segment_fixed_size 0
  .amdhsa_kernarg_size 88
  .amdhsa_user_sgpr_count 2
  .amdhsa_user_sgpr_kernarg_segment_ptr 1
  .amdhsa_system_sgpr_workgroup_id_x 1
.end_amdhsa_kernel
"""
    open(out, "w").write(txt)


main()
```

```python
import sys, os, struct, math, re
sys.path.insert(0, os.path.join(os.path.dirname(os.path.abspath(__file__)), "tools"))
from asmlib import *

NAME = "interleave_layers__sliding_block__moe_arch_mod__prompt"
KB, MB = 1 << 10, 1 << 20
ARGS = sys.argv[1:]


def opt(name, default):
    for x in ARGS:
        if x.startswith(name + "="):
            t = x.split("=", 1)[1]
            return eval(t) if isinstance(default, (list, tuple, dict)) else type(default)(t)
    return default


PROF = "-prof" in ARGS
USELOC = opt("loc", 1)
OSH, XFO = opt("osh", 1), opt("xfo", 0)
LSTR = 16 * MB
KVB, OFB, AR = 0, 8 * MB, 12 * MB
STAT, PY, CAND, CUB, SM = AR, AR + 512 * KB, AR + 1408 * KB, AR + 1536 * KB, AR + 1792 * KB
TABLE, X2R, KVF, OFL = SM, SM + 16 * KB, SM + 64 * KB, SM + 72 * KB
EPOCH, ROWF, COLF = SM + 96 * KB, SM + 100 * KB, SM + 104 * KB
EPINC = 0x9E3779B9
XFB = 32 * MB
STAT0, CUB0 = 36 * MB, 37 * MB
PROFOFF = 100 * MB
EPS = 1e-5
QSCALE = (32 ** -0.5) * math.log2(math.e)
ONES = "0x3f803f80"
T_A, T_M, T_CS, T_C, T_D, T_IDX, T_INB = 0, 512, 1024, 2048, 2560, 3072, 3328
L_W, WSL, L_X, XSL = 40960, 24576, 147456, 16384
L_Q, L_KV, KVH = 49152, 65536, 49152
sW, sRB, sHG, sL, sLIM, sW4, sF = 3, 24, 25, 26, 27, 28, 29
MS = 40
sCU, sIDX, sR, sMEAN, sRSTD, sLOC, sCNT, sCI = 72, 73, 74, 75, 76, 77, 78, 79
XS, WOS, TS, WS_, WSP = 4, 8, 12, 16, 20
TS2 = 80
sSX, sSW, sMX, sMW, sNON, sAC = 84, 85, 86, 87, 88, 89
sKa, sKb, sD0, sD1, sCG, sT, sPATCH, sMO = 94, 95, 96, 97, 98, 99, 100, 101
LN, L16, PRF2, PRF = 252, 253, 254, 255
P, WR, CC, DD, WSUM, EVO = 208, 224, 240, 241, 242, 243
GW, UW, DW, SPARE = 156, 188, 220, 155
CSUM = 2


def fl(x):
    return "0x%08x" % struct.unpack("<I", struct.pack("<f", x))[0]


A = Asm()
_lab = [0]
WSR = f"s[{WSP}:{WSP+3}]"
XFR = f"s[{TS}:{TS+3}]" if XFO else WSR


def newlab(p):
    _lab[0] += 1
    return f"{p}_{_lab[0]}"


def srd_fin(d, nbytes):
    A(f"s_mov_b32 s{d+2}, {hex(nbytes)}")
    A(f"s_mov_b32 s{d+3}, 0x20000")


def srd_load(d, karg, nbytes):
    A(f"s_load_dwordx2 s[{d}:{d+1}], s[0:1], {karg}")
    srd_fin(d, nbytes)
    A("s_waitcnt lgkmcnt(0)")


def cap(fn):
    keep = A.lines
    A.lines = []
    fn()
    out = A.lines
    A.lines = keep
    return out


def tagged(tag, fn):
    for ln in cap(fn):
        if ln.startswith("buffer_") and ";@" not in ln:
            ln += f" ;@{tag}"
        A.lines.append(ln)


def W(tags, lgkm=None):
    A.lines.append(f"@wait {tags} {'' if lgkm is None else lgkm}")


def cond(key, fn):
    A.lines.append(f"@cond {key}")
    fn()
    A.lines.append("@endcond")


def resolve(lines):
    out, issued, stack = [], [], []
    for ln in lines:
        if ln.startswith("@cond"):
            stack.append(ln.split()[1])
        elif ln == "@endcond":
            stack.pop()
        elif ln == "@reset":
            issued = []
        elif ln.startswith("@wait"):
            p = ln.split()
            tags = p[1].split(",")
            idx = [i for i, (t, c) in enumerate(issued) if t in tags]
            assert idx, f"wait for unknown tag {tags}"
            n = sum(1 for (t, c) in issued[idx[-1]+1:] if all(k in stack for k in c))
            out.append(f"s_waitcnt vmcnt({min(n, 63)})" + (f" lgkmcnt({p[2]})" if len(p) > 2 else ""))
        else:
            if ln.startswith("buffer_"):
                issued.append((ln.split(";@")[1] if ";@" in ln else None, tuple(stack)))
                ln = ln.split(";@")[0].strip()
            out.append(ln)
    return out


SCCW = ("s_add_", "s_sub_", "s_cmp", "s_and_", "s_or_", "s_xor_", "s_lshl", "s_lshr", "s_min", "s_max", "s_not", "s_bfe", "s_bitcmp")
SCCR = ("s_cselect", "s_cbranch_scc", "s_addc", "s_subb")


def safe_points(body):
    n = len(body)
    safe = [True] * (n + 1)
    pos = {ln[:-1]: i for i, ln in enumerate(body) if ln.endswith(":")}
    ex, depth, lastw = True, 0, -1
    for i, ln in enumerate(body):
        if ln.startswith(("s_cbranch", "s_branch")):
            j = pos[ln.split()[1]]
            for k in range(min(i, j) + 1, max(i, j) + 1):
                safe[k] = False
        if ln.startswith(SCCR):
            for k in range(lastw + 1, i + 1):
                safe[k] = False
        if ln.startswith(SCCW):
            lastw = i
        if re.match(r"s_\w+ exec", ln) or "saveexec" in ln:
            ex = ln == "s_mov_b64 exec, -1"
        if ln.startswith("@cond"):
            depth += 1
        if ln == "@endcond":
            depth -= 1
        if not ex or depth or ln.startswith("s_getpc"):
            safe[i + 1] = False
    return safe


def pieces(fn, k):
    body = cap(fn)
    safe = safe_points(body)
    fr = [(i + 1) / k for i in range(k - 1)] if isinstance(k, int) else k
    cuts = [0]
    for f in fr:
        c = max(int(f * len(body)), cuts[-1])
        while not safe[c]:
            c += 1
        cuts.append(c)
    cuts.append(len(body))
    return [(lambda a=a, b=b: A.lines.extend(body[a:b])) for a, b in zip(cuts, cuts[1:])]


def weave(groups, fn, lead=1, post=False):
    body = cap(fn)
    n = len(body)
    safe = safe_points(body)
    groups = list(groups)
    for g in groups[:lead]:
        A.lines += g
    groups = groups[lead:]
    k = 0
    for i in range(n + 1):
        while k < len(groups) and not post and safe[i] and i >= (k + 1) * n / (len(groups) + 1):
            A.lines += groups[k]
            k += 1
        if i < n:
            A.lines.append(body[i])
    for g in groups[k:]:
        A.lines += g


MARKS = {}


def mark(name):
    if name not in MARKS:
        MARKS[name] = len(MARKS)
    if PROF:
        A("s_memrealtime s[90:91]")
        if "-profq" not in ARGS:
            A("s_memtime s[92:93]")
        A("s_waitcnt lgkmcnt(0)")
        A(f"v_writelane_b32 v{PRF}, s90, {MARKS[name]}")
        if "-profq" not in ARGS:
            A(f"v_writelane_b32 v{PRF}, s92, {MARKS[name]+32}")


PAD = opt("pad", {})


def padat(name, L=None):
    if name not in PAD:
        return
    l, e = newlab("pad"), newlab("pad")
    if L is not None:
        A(f"s_cmp_lg_u32 s{sL}, {L*LSTR}")
        A(f"s_cbranch_scc1 {e}")
    A.label(l)
    A("s_memrealtime s[92:93]")
    A("s_waitcnt lgkmcnt(0)")
    A("s_sub_u32 s92, s92, s90")
    A(f"s_cmp_lt_u32 s92, {PAD[name]}")
    A(f"s_cbranch_scc1 {l}")
    A.label(e)


def markq(name):
    if "-profq" in ARGS:
        mark(name)


def prof_next():
    if PROF:
        A(f"v_mov_b32 v{PRF2}, v{PRF}")
        A(f"v_mov_b32 v{PRF}, 0")


def MF(d, a_, b_, c=None):
    cc = v(d, 16) if c is None else (c if isinstance(c, str) else v(c, 16))
    return f"v_mfma_f32_32x32x16_bf16 {v(d,16)}, {v(a_,4)}, {v(b_,4)}, {cc}"


def MF16(d, a_, b_):
    return f"v_mfma_f32_16x16x32_bf16 {v(d,4)}, {v(a_,4)}, {v(b_,4)}, {v(d,4)}"


DPPF = "row_mask:0xf bank_mask:0xf"


def wave_red(r, t, op="add", n=64):
    for sh in ("quad_perm:[1,0,3,2]", "quad_perm:[2,3,0,1]", "row_half_mirror", "row_mirror"):
        A(f"v_{op}_f32_dpp v{r}, v{r}, v{r} {sh} {DPPF}")
    A(f"v_mov_b32 v{t}, v{r}")
    A(f"v_permlane16_swap_b32 v{r}, v{t}")
    A(f"v_{op}_f32 v{r}, v{r}, v{t}")
    if n == 64:
        A(f"v_mov_b32 v{t}, v{r}")
        A(f"v_permlane32_swap_b32 v{r}, v{t}")
        A(f"v_{op}_f32 v{r}, v{r}, v{t}")


def tred4(r):
    A(f"v_permlane32_swap_b32 v{r}, v{r+2}")
    A(f"v_permlane32_swap_b32 v{r+1}, v{r+3}")
    A(f"v_add_f32 v{r}, v{r}, v{r+2}")
    A(f"v_add_f32 v{r+1}, v{r+1}, v{r+3}")
    A(f"v_permlane16_swap_b32 v{r}, v{r+1}")
    A(f"v_add_f32 v{r}, v{r}, v{r+1}")


def sent_check(regs, t):
    regs = list(regs)
    if len(regs) == 1:
        A(f"v_cmp_eq_u32 vcc, -1, v{regs[0]}")
        return
    if len(regs) == 2:
        A(f"v_max_u32 v{t}, v{regs[0]}, v{regs[1]}")
        rest = []
    else:
        A(f"v_max3_u32 v{t}, v{regs[0]}, v{regs[1]}, v{regs[2]}")
        rest = regs[3:]
    while rest:
        if len(rest) >= 2:
            A(f"v_max3_u32 v{t}, v{t}, v{rest[0]}, v{rest[1]}")
            rest = rest[2:]
        else:
            A(f"v_max_u32 v{t}, v{t}, v{rest[0]}")
            rest = rest[1:]
    A(f"v_cmp_eq_u32 vcc, -1, v{t}")


def poll(loads, check, issued=None):
    top, chk, done = newlab("pl"), newlab("pc"), newlab("pd")
    A(f"s_mov_b32 s{sCNT}, s{sLIM}")
    if issued is not None:
        W(issued)
        A(f"s_branch {chk}")
    A.label(top)
    cond(top, lambda: A.lines.extend(x.split(";@")[0].strip() for x in cap(loads)))
    A("s_waitcnt vmcnt(0)")
    A.label(chk)
    check()
    A(f"s_cbranch_vccz {done}")
    A(f"s_sub_u32 s{sCNT}, s{sCNT}, 1")
    A(f"s_cmp_lg_u32 s{sCNT}, 0")
    A(f"s_cbranch_scc1 {top}")
    A(f"s_mov_b32 s{sLIM}, 1")
    A.label(done)


def skip_if(cmp, body, key=None):
    l = newlab("sk")
    A(cmp)
    A(f"s_cbranch_scc1 {l}")
    cond(key or l, body)
    A.label(l)


def st_loc(fn):
    if not USELOC:
        fn("sc1")
        return
    a_, b_ = newlab("lc"), newlab("lc")
    A(f"s_cmp_lg_u32 s{sLOC}, 0")
    A(f"s_cbranch_scc1 {a_}")
    cond(a_, lambda: fn("sc1"))
    A(f"s_branch {b_}")
    A.label(a_)
    fn("")
    A.label(b_)


def flag_store(so, loc=False):
    A(f"v_mov_b32 v154, s{sNON}")
    A("s_mov_b64 exec, 1")
    A("s_waitcnt vmcnt(0)")
    f = lambda bits: A(f"buffer_store_dword v154, v{L16}, {WSR}, {so} offen {bits}")
    if loc:
        st_loc(f)
    else:
        f("sc1")
    A("s_mov_b64 exec, -1")


def masks():
    for reg in range(16):
        G, r = reg >> 2, reg & 3
        key = 16 * (G & 1) + 8 * (G >> 1) + r
        A(f"s_mov_b32 s{MS+2*reg}, {hex((0xFFFFFFFF << key) & 0xFFFFFFFF)}")
        A(f"s_mov_b32 s{MS+2*reg+1}, {hex((0xFFFFFFFF << (key+4)) & 0xFFFFFFFF)}")


def prologue():
    A("s_cmp_ge_u32 s2, 256")
    A("s_cbranch_scc1 k_exit")
    A(f"s_load_dwordx4 s[{XS}:{XS+3}], s[0:1], 0")
    A(f"s_load_dwordx2 s[{WOS}:{WOS+1}], s[0:1], 16")
    A(f"s_load_dwordx2 s[{WSP}:{WSP+1}], s[0:1], 80")
    A(f"s_load_dwordx2 s[{TS2}:{TS2+1}], s[0:1], 32")
    A("v_lshrrev_b32 v1, 6, v0")
    A(f"v_and_b32 v{LN}, 63, v0")
    A(f"v_readfirstlane_b32 s{sW}, v1")
    A(f"v_lshlrev_b32 v{L16}, 4, v{LN}")
    A("s_and_b32 s30, s2, 7")
    A("s_lshr_b32 s31, s2, 3")
    A("s_and_b32 s32, s31, 1")
    A(f"s_lshl_b32 s33, s30, 1")
    A(f"s_add_u32 s{sRB}, s33, s32")
    A(f"s_lshr_b32 s{sHG}, s31, 1")
    A(f"s_add_u32 s33, s33, s{sHG}")
    A(f"s_add_u32 s{sKa}, s33, s32")
    A(f"s_sub_u32 s{sKb}, s33, s32")
    A(f"s_add_u32 s{sCG}, s{sKb}, 15")
    A(f"s_and_b32 s{sCG}, s{sCG}, 15")
    A(f"s_mul_i32 s{sF}, s30, 28")
    A(f"s_lshl_b32 s32, s30, 2")
    A(f"s_add_u32 s32, s32, {224-28}")
    A("s_cmp_lt_u32 s31, 28")
    A(f"s_cselect_b32 s{sF}, s{sF}, s32")
    A(f"s_add_u32 s{sF}, s{sF}, s31")
    A(f"s_lshl_b32 s{sCU}, s{sRB}, 4")
    A(f"s_add_u32 s{sCU}, s{sCU}, s{sHG}")
    A(f"s_mov_b32 s{sL}, 0")
    A(f"s_mov_b32 s{sLIM}, 20000")
    A(f"s_and_b32 s{sW4}, s{sW}, 3")
    A(f"s_lshl_b32 s{sT}, s{sRB}, 2")
    A(f"s_add_u32 s{sT}, s{sT}, s{sW4}")
    A(f"s_lshl_b32 s{sMO}, s{sW4}, 10")
    srd_fin(WS_, 6 * MB)
    srd_fin(WOS, 2 * MB)
    srd_fin(WSP, 128 * MB)
    srd_fin(TS2, 2048)
    if PROF:
        A(f"v_mov_b32 v{PRF}, 0")
        A(f"v_mov_b32 v{PRF2}, 0")
    mark("start")
    if PAD:
        A("s_memrealtime s[90:91]")
    A(f"s_cmp_ge_u32 s{sW}, 4")
    A("s_cbranch_scc1 l_start")


CPF = opt("cpf", 15)


def code_pf(bit, va, red=1):
    if not CPF >> bit & 1:
        return
    l = newlab("pc")
    n = 128 // red
    A("s_getpc_b64 s[32:33]")
    A.label(l)
    A(f"s_sub_u32 s32, s32, {l}-{NAME}_kernel")
    A("s_subb_u32 s33, s33, 0")
    A("s_lshr_b32 s34, s2, 3")
    A("s_lshl_b32 s34, s34, 2")
    A(f"s_add_u32 s34, s34, s{sW4}")
    A(f"s_and_b32 s34, s34, {n-1}")
    A("s_lshl_b32 s34, s34, 7")
    A(f"v_lshl_add_u32 v{va}, v{LN}, {7 + n.bit_length() - 1}, s34")
    A(f"s_mov_b32 s34, k_exit-{NAME}_kernel")
    A("s_mov_b32 s35, 0x20000")
    A(f"buffer_load_dword v{va}, v{va}, s[32:35], 0 offen")


def ptr_fin():
    A("s_waitcnt lgkmcnt(0)")
    A(f"s_mov_b32 s{sNON}, {hex(EPOCH)}")
    A(f"s_load_dword s{sNON}, s[{WSP}:{WSP+1}], s{sNON}")
    A(f"s_mov_b64 s[{WS_}:{WS_+1}], s[{XS+2}:{XS+3}]")
    srd_fin(XS, 4 * MB)


def wo_voff(dst):
    A(f"v_bfe_u32 v20, v{LN}, 3, 2")
    A(f"v_lshrrev_b32 v21, 5, v{LN}")
    A("v_lshl_add_u32 v20, v21, 3, v20")
    A(f"s_lshr_b32 s32, s{sW4}, 1")
    A("s_lshl_b32 s32, s32, 4")
    A(f"s_and_b32 s33, s{sW4}, 1")
    A("s_lshl_b32 s33, s33, 2")
    A("s_add_u32 s32, s32, s33")
    A("v_add_u32 v20, s32, v20")
    A("v_lshlrev_b32 v20, 11, v20")
    A(f"v_lshrrev_b32 v21, 2, v{LN}")
    A("v_and_b32 v21, 4, v21")
    A(f"v_xor_b32 v21, v21, v{LN}")
    A("v_and_b32 v21, 7, v21")
    A("v_lshl_add_u32 v20, v21, 4, v20")
    A(f"s_lshl_b32 s32, s{sCG}, 7")
    A(f"v_add_u32 v{dst}, s32, v20")


ROT = opt("rot", 1)


def wo_groups(slots, vo, tag):
    gs = []
    for j in slots:
        g = []
        if ROT:
            g += [f"s_add_u32 s{sD0}, s{sHG}, {j & 15}", f"s_and_b32 s{sD0}, s{sD0}, 15", f"s_lshl_b32 s{sD0}, s{sD0}, 17"]
            if j >= 16:
                g += [f"s_add_u32 s{sD0}, s{sD0}, 65536"]
        else:
            g += [f"s_mov_b32 s{sD0}, {(2*(j & 15) + (j >> 4))*65536}"]
        g += [f"s_add_u32 m0, s{sMO}, {4096*j}",
              f"buffer_load_dwordx4 v{vo}, s[{WOS}:{WOS+3}], s{sD0} offen lds ;@{tag}"]
        gs.append(g)
    return gs


def emit(groups):
    for g in groups:
        A.lines += g


FR = [96, 136]
XB, WB, XC, WC = 176, 178, 180, 182
KOF, VOF, KLD, VLD, QLD, TA = 244, 245, 246, 247, 248, 184
RA = 192
AR_IT = opt("ar", 4)


PF, PFD = opt("pf", 1), opt("pfd", 6)
PFA, PFT, sPB, sPK = 190, 191, 84, 85


def pf_setup(va, sPB=sPB):
    A(f"s_lshr_b32 s30, s{WS_}, 7")
    A("s_sub_u32 s30, 3, s30")
    A("s_and_b32 s30, s30, 7")
    A(f"s_and_b32 s31, s{sRB}, 1")
    A("s_lshl_b32 s31, s31, 3")
    A("s_add_u32 s30, s30, s31")
    A(f"s_and_b32 s31, s{sRB}, 14")
    A(f"s_add_u32 s{sPB}, s31, s30")
    A(f"s_lshl_b32 s31, s{sHG}, 2")
    A(f"s_add_u32 s31, s31, s{sW4}")
    A("s_mul_i32 s31, s31, 6144")
    A("s_lshl_b32 s30, s30, 7")
    A("s_add_u32 s30, s30, s31")
    A(f"v_min_u32 v{va}, 2, v{LN}")
    A(f"v_lshl_add_u32 v{va}, v{va}, 11, s30")


def pf_load(va, vt, k, sPB=sPB):
    return [f"s_add_u32 s30, s{sPB}, {k & 15}", "s_and_b32 s30, s30, 15", f"s_mul_i32 s30, s30, {64*6144}",
            f"buffer_load_dword v{vt}, v{va}, s[{WS_}:{WS_+3}], s30 offen"]


def e_init():
    code_pf(0, PFT, opt("cpr", 2))
    ptr_fin()
    A(f"s_load_dwordx2 s[{TS}:{TS+1}], s[0:1], 64")
    srd_fin(TS, 4 * MB)
    TCH = opt("tch", 0)
    if TCH:
        A(f"s_lshl_b32 s30, s{sHG}, 19")
        A(f"s_lshl_b32 s31, s{sRB}, 18")
        tl = [("s30", KVB), ("s31", OFB), ("s31", XFB), ("s30", KVB + LSTR)]
        for i, (r_, b_) in enumerate(tl):
            if TCH >> i & 1:
                A(f"s_add_u32 s32, {r_}, {hex(b_)}")
                if TCH & 256:
                    A(f"buffer_load_dword v{PFT}, off, {WSR}, s32")
                else:
                    A(f"s_load_dword s{sD0}, s[{WSP}:{WSP+1}], s32")
    if PF:
        pf_setup(PFA)
        for k in opt("pf0", [0, 1]):
            A.lines += pf_load(PFA, PFT, k)
    A(f"v_lshrrev_b32 v5, 5, v{LN}")
    A("v_lshlrev_b32 v6, 3, v5")
    A(f"s_lshl_b32 s33, s{sCG}, 7")
    for g in range(8):
        A(f"buffer_load_dwordx2 {v(WR+2*g,2)}, v6, s[{TS2}:{TS2+3}], s33 offen offset:{16*g}")
    masks()
    wo_voff(EVO)
    A(f"s_and_b32 s34, s{sW}, 1")
    A(f"s_lshr_b32 s35, s{sW}, 1")
    A(f"v_and_b32 v4, 15, v{LN}")
    A(f"v_lshrrev_b32 v7, 4, v{LN}")
    A("v_lshrrev_b32 v6, 1, v4")
    A("v_xor_b32 v6, v6, v7")
    A("v_lshlrev_b32 v6, 4, v6")
    A("v_lshl_add_u32 v6, v4, 7, v6")
    A("s_lshl_b32 s30, s34, 13")
    A(f"v_add_u32 v{XB}, s30, v6")
    A(f"v_xor_b32 v{XB+1}, 64, v{XB}")
    A("s_lshl_b32 s30, s35, 1")
    wtr_addr(WB, "s30", L_W)
    A(f"v_xor_b32 v{WB+1}, 32, v{WB}")
    A(f"v_and_b32 v8, 31, v{LN}")
    A("v_bfe_u32 v6, v8, 1, 3")
    A("v_xor_b32 v6, v6, v5")
    A("v_lshlrev_b32 v6, 4, v6")
    A("v_lshl_add_u32 v6, v8, 7, v6")
    A(f"s_lshl_b32 s30, s{sW}, 12")
    A(f"s_add_u32 s30, s30, {L_X}")
    A(f"v_add_u32 v{RA}, s30, v6")
    for ks in range(1, 4):
        A(f"v_xor_b32 v{RA+ks}, {32*ks}, v{RA}")
    A("s_lshl_b32 s30, s34, 8")
    A(f"v_lshl_add_u32 v{TA}, v4, 2, s30")
    A(f"v_lshl_add_u32 v{TA+1}, v7, 4, s30")
    A("s_lshl_b32 s30, s35, 7")
    A(f"v_lshl_add_u32 v{TA+2}, v7, 4, s30")
    A(f"s_add_u32 s30, s30, {T_CS+512}")
    A(f"v_lshl_add_u32 v{TA+3}, v4, 2, s30")
    A(f"s_lshl_b32 s30, s{sW}, 7")
    A(f"s_add_u32 s30, s30, {T_C}")
    A(f"v_lshl_add_u32 v{TA+4}, v8, 2, s30")
    A(f"v_mov_b32 v{TA+5}, 0")
    A("v_lshlrev_b32 v6, 9, v7")
    A(f"v_lshl_add_u32 v{VOF}, v4, 4, v6")
    A("v_and_b32 v9, 8, v4")
    A(f"v_lshl_add_u32 v{KOF}, v9, 4, v{VOF}")
    A(f"s_mul_i32 s30, s35, {KVH}")
    A("s_lshl_b32 s31, s34, 13")
    A("s_add_u32 s30, s30, s31")
    A(f"s_add_u32 s30, s30, {L_KV+8*4096}")
    A(f"v_add_u32 v{KLD}, s30, v{KOF}")
    A(f"v_add_u32 v{VLD}, s30, v{VOF}")
    A(f"s_lshl_b32 s30, s{sW}, 12")
    A(f"s_add_u32 s30, s30, {L_Q}")
    A(f"v_add_u32 v{QLD}, s30, v{VOF}")
    A("s_getreg_b32 s30, hwreg(HW_REG_XCC_ID, 0, 4)")
    A("v_mov_b32 v251, s30")
    A(f"s_lshl_b32 s30, s{sHG}, 4")
    A(f"s_add_u32 s30, s30, s{sRB}")
    A(f"s_sub_u32 s30, s30, s{sCU}")
    A(f"s_add_u32 s30, s30, {(COLF - ROWF) // 8}")
    A(f"v_mul_u32_u24 v249, s30, v{LN}")
    A(f"v_add_u32 v249, s{sCU}, v249")
    A("v_lshlrev_b32 v249, 3, v249")
    A(f"s_cmp_eq_u32 s{sW}, 0")
    A(f"s_cselect_b32 s{sAC}, {14 - AR_IT}, -1")
    A(f"v_mov_b32 v{WSUM}, 0")
    for i in range(96):
        A(f"v_mov_b32 v{i}, 0")
    A("s_waitcnt vmcnt(0) lgkmcnt(0)")
    A(f"s_add_u32 s{sNON}, s{sNON}, {hex(EPINC)}")
    A(f"v_mov_b32 v250, s{sNON}")
    for p in range(16):
        A(f"v_dot2c_f32_bf16 v{WSUM}, {ONES}, v{WR+p}")
    if PF:
        for k in opt("pf1", [2, 3, 4, 5]):
            A.lines += pf_load(PFA, PFT, k)
    A("s_setprio 1")


def wtr_addr(dst, ct, base):
    A(f"v_lshrrev_b32 v20, 2, v{LN}")
    A("v_bfe_u32 v21, v20, 1, 2")
    if ct is not None:
        A(f"v_xor_b32 v21, {ct}, v21")
    A("v_lshlrev_b32 v20, 7, v20")
    A("v_lshl_add_u32 v20, v21, 5, v20")
    A(f"v_and_b32 v21, 3, v{LN}")
    A("v_lshl_add_u32 v20, v21, 3, v20")
    A(f"v_add_u32 v{dst}, {base}, v20")


def accq(c, t):
    return 64 + (c & 1) * 16 + t * 4 if c >= 4 else (c >> 1) * 32 + t * 8 + (c & 1) * 4


def e_qphase():
    A.label("e_q")
    A.lines.append("@reset")
    A("s_mov_b32 s31, 0")
    A(f"s_mov_b32 s32, {L_X}")
    A("s_mov_b32 s36, 15")
    for i in range(2):
        A(f"v_add_u32 v{XC+i}, s32, v{XB+i}")
        A(f"v_mov_b32 v{WC+i}, v{WB+i}")

    def rd(fs, kk):
        f = FR[fs]
        x = [f"ds_read_b128 {v(f+4*t,4)}, v{XC+kk} offset:{t*2048}" for t in range(4)]
        w = [f"ds_read_b64_tr_b16 {v(f+16+8*seg+4*u+2*j,2)}, v{WC+u} offset:{seg*8192+kk*4096+j*2048}"
             for seg in range(3) for u in range(2) for j in range(2)]
        return [x[0], w[0], w[1], x[1], x[2], x[3]] + w[2:]

    def mf(fs, cs=range(6), snake=True):
        f = FR[fs]
        m = []
        for c in cs:
            for t in range(4):
                if snake and c & 1:
                    t = 3 - t
                a_, b_ = f + 16 + 4 * c, f + 4 * t
                if c >= 4:
                    a_, b_ = b_, a_
                m.append(MF16(accq(c, t), a_, b_))
        return m

    mark("q_wait")
    padat("q0", 0)
    padat("q1", 1)
    A("s_barrier")
    mark("q_go")
    for x in rd(0, 0):
        A(x)
    adv = [[f"s_cmp_eq_u32 s36, s{sAC}", "s_cbranch_scc1 e_arr", "e_arr_ret:"],
           [f"s_add_u32 s31, s31, {WSL}", f"s_sub_u32 s32, s32, {XSL}"],
           [f"s_cmp_ge_u32 s31, {3*WSL}", "s_cselect_b32 s31, 0, s31", f"s_cselect_b32 s32, {L_X}, s32"],
           [f"v_add_u32 v{WC}, s31, v{WB}", f"v_add_u32 v{XC}, s32, v{XB}"],
           [f"v_add_u32 v{WC+1}, s31, v{WB+1}", f"v_add_u32 v{XC+1}, s32, v{XB+1}"],
           ["s_sub_u32 s36, s36, 1", "s_cmp_eq_u32 s36, 0"]]
    if PF:
        A(f"s_add_u32 s{sPK}, s{sPB}, {PFD - 1}")
        adv[5:5] = [[f"s_add_u32 s{sPK}, s{sPK}, 1", f"s_and_b32 s30, s{sPK}, 15"],
                    [f"s_mul_i32 s30, s30, {64*6144}", f"s_cmp_ge_u32 s36, {PFD}"],
                    ["s_cselect_b64 exec, 7, 0", f"buffer_load_dword v{PFT}, v{PFA}, s[{WS_}:{WS_+3}], s30 offen", "s_mov_b64 exec, -1"]]
    A.label("e_loop")
    for ks in range(2):
        m, r = mf(ks), rd(ks ^ 1, ks ^ 1)
        A("s_waitcnt lgkmcnt(0)")
        A(m[0])
        if ks == 1:
            A("s_barrier")
        for i in range(1, 24):
            if i <= 16:
                A(r[i-1])
            elif 7 * ks + i - 17 < len(adv):
                A.lines += adv[7*ks+i-17]
            A(m[i])
    A("s_cbranch_scc0 e_loop")
    m, r = mf(0), rd(1, 1)
    A("s_waitcnt lgkmcnt(0)")
    sal = [[f"s_and_b32 s34, s{sW}, 1", f"s_lshr_b32 s35, s{sW}, 1", f"s_lshl_b32 s30, s{sHG}, 1"],
           ["s_add_u32 s30, s30, s35", "s_lshl_b32 s30, s30, 6", f"s_lshl_b32 s31, s{sRB}, 2"],
           ["s_add_u32 s30, s30, s31", "s_lshl_b32 s31, s34, 1", "s_add_u32 s30, s30, s31"],
           ["s_lshl_b32 s32, s30, 12", f"s_add_u32 s32, s32, s{sL}", "s_add_u32 s33, s32, 4096"]]
    for i in range(24):
        if 1 <= i <= 16:
            A(r[i-1])
        if i == 17:
            A(f"s_cmp_lg_u32 s{sL}, 0")
            A("s_cbranch_scc1 e_nores")
            for ks in range(4):
                A(f"ds_read_b128 {v(P+4*ks,4)}, v{RA+ks}")
            A.label("e_nores")
        if 18 <= i < 22:
            A.lines += sal[i-18]
        A(m[i])
    AV, MV, CSK, CSQ, AK, MK, CSV, IDX = 96, 112, 128, 196, 192, 204, 190, 250
    tab = [f"ds_read2_b32 {v(MK,2)}, v{TA} offset0:128 offset1:144",
           f"ds_read_b128 {v(CSK,4)}, v{TA+2} offset:{T_CS+256}",
           f"ds_read_b128 {v(CSK+4,4)}, v{TA+2} offset:{T_CS+256+64}",
           f"ds_read2_b32 {v(AK,2)}, v{TA} offset0:0 offset1:16",
           f"ds_read2_b32 {v(MK+2,2)}, v{TA} offset0:160 offset1:176",
           f"ds_read2_b32 {v(AK+2,2)}, v{TA} offset0:32 offset1:48",
           f"ds_read2_b32 {v(CSV,2)}, v{TA+3} offset0:0 offset1:16"]
    for t in range(4):
        tab += [f"ds_read_b128 {v(MV+4*t,4)}, v{TA+1} offset:{T_M+64*t}", f"ds_read_b128 {v(AV+4*t,4)}, v{TA+1} offset:{T_A+64*t}"]
    tab += [f"ds_read_b128 {v(CSQ,4)}, v{TA+2} offset:{T_CS}", f"ds_read_b128 {v(CSQ+4,4)}, v{TA+2} offset:{T_CS+64}",
            f"ds_read2_b32 {v(CC,2)}, v{TA+4} offset0:0 offset1:128", f"ds_read_b64 {v(IDX,2)}, v{TA+5} offset:{T_IDX}"]
    so = ["s32", "s33"]

    def sel(hi):
        return ("op_sel:[0,1,0] op_sel_hi:[1,1,1]", "op_sel:[0,1] op_sel_hi:[1,1]") if hi else ("op_sel_hi:[1,0,1]", "op_sel_hi:[1,0]")

    def qk(seg, t, pk=True):
        acc, cs = 32 * seg + 8 * t, (CSQ, CSK)[seg]
        s3, s2 = sel(t & 1)
        if not pk:
            return ([f"v_fma_f32 v{acc+p}, v{cs+p}, -v{MK+t}, v{acc+p}" for p in range(8)] +
                    [f"v_mul_f32 v{acc+p}, v{acc+p}, v{AK+t}" for p in range(8)] +
                    [f"v_cvt_pk_bf16_f32 v{acc+p}, v{acc+2*p}, v{acc+2*p+1}" for p in range(4)])
        o = [f"v_pk_fma_f32 {v(acc+2*p,2)}, {v(cs+2*p,2)}, {v(MK+(t&2),2)}, {v(acc+2*p,2)} {s3} neg_lo:[0,1,0] neg_hi:[0,1,0]" for p in range(4)]
        o += [f"v_pk_mul_f32 {v(acc+2*p,2)}, {v(acc+2*p,2)}, {v(AK+(t&2),2)} {s2}" for p in range(4)]
        o += [f"v_cvt_pk_bf16_f32 v{acc+p}, v{acc+2*p}, v{acc+2*p+1}" for p in range(4)]
        return o
    kep = []
    for t in range(4):
        kep += qk(1, t, opt("kpk", 0) or t >= 2) + [f"buffer_store_dwordx4 {v(32+8*t,4)}, v{KOF}, {WSR}, {so[t>>1]} offen offset:{(t&1)*128} sc1"]
    m = mf(1, [2, 3, 4, 5, 0, 1], False)
    A("s_waitcnt vmcnt(0) lgkmcnt(0)")
    A(m[0])
    A("s_barrier")
    for i in range(1, 24):
        A.lines += tab[2*(i-1):2*i]
        if i == 11:
            A("s_waitcnt lgkmcnt(13)")
        if i >= 11:
            A.lines += kep[3*(i-11):3*(i-10)]
            if opt("kpk", 0) > 1:
                A(f"s_nop {opt('kpk', 0)-2}")
        A(m[i])
    A.lines += kep[39:]
    mark("q_end")
    A("s_waitcnt lgkmcnt(0)")
    for T in range(2):
        for c in range(2):
            acc = 64 + 16 * c + 8 * T
            s3, _ = sel(c)
            for p in range(4):
                A(f"v_pk_fma_f32 {v(acc+2*p,2)}, {v(MV+8*T+2*p,2)}, {v(CSV,2)}, {v(acc+2*p,2)} {s3} neg_lo:[0,1,0] neg_hi:[0,1,0]")
            for p in range(4):
                A(f"v_pk_mul_f32 {v(acc+2*p,2)}, {v(acc+2*p,2)}, {v(AV+8*T+2*p,2)}")
            for p in range(4):
                A(f"v_cvt_pk_bf16_f32 v{acc+p}, v{acc+2*p}, v{acc+2*p+1}")
            A(f"buffer_store_dwordx4 {v(acc,4)}, v{VOF}, {WSR}, {so[T]} offen offset:{2048+c*256} sc1")
    mark("kv_st")
    for t in range(4):
        A(f"ds_write_b128 v{KLD}, {v(32+8*t,4)} offset:{(t>>1)*4096+(t&1)*128}")
        A(f"v_mul_f32 v{AK+t}, {fl(QSCALE)}, v{AK+t}")
    for t in range(4):
        A.lines += qk(0, t)
        A(f"ds_write_b128 v{VLD}, {v(64+16*(t&1)+8*(t>>1),4)} offset:{(t>>1)*4096+2048+(t&1)*256}")
        A(f"ds_write_b128 v{QLD}, {v(8*t,4)} offset:{(t>>1)*2048+(t&1)*256}")
    A(f"s_lshl_b32 s30, s{sHG}, 8")
    A(f"s_lshl_b32 s31, s{sRB}, 4")
    A("s_add_u32 s30, s30, s31")
    A("s_lshl_b32 s31, s34, 3")
    A("s_add_u32 s30, s30, s31")
    A("s_lshl_b32 s31, s35, 2")
    A("s_add_u32 s30, s30, s31")
    A(f"s_add_u32 s30, s30, s{sL}")
    A(f"s_add_u32 s30, s30, {hex(KVF)}")
    flag_store("s30")
    mark("kv_fl")
    A(f"v_readfirstlane_b32 s{sIDX}, v{IDX}")
    A(f"v_readfirstlane_b32 s{sLOC}, v{IDX+1}")
    patch_flag()

    def unswz():
        for ks in range(4):
            A(f"v_permlane32_swap_b32 v{P+4*ks}, v{P+4*ks+2}")
            A(f"v_permlane32_swap_b32 v{P+4*ks+1}, v{P+4*ks+3}")
    skip_if(f"s_cmp_lg_u32 s{sL}, 0", unswz)


def patch_flag():
    A(f"s_lshr_b32 s39, s{sIDX}, 5")
    A(f"s_lshl_b32 s34, s{sRB}, 2")
    A("s_sub_u32 s39, s39, s34")
    A("s_add_u32 s39, s39, 8")
    A("s_cmp_lt_u32 s39, 12")
    A(f"s_cselect_b32 s{sPATCH}, 1, 0")


Q, PM, AD, MX, SU0, SU1, CB, SM_, O, TM = 4, 12, 20, 21, 22, 23, 24, 40, 88, 152
SA, KF, VF, PP = [56, 72], [104, 112], [120, 128], [136, 144]


def att_setup(team):
    A("v_mov_b32 v20, 0xffff")
    A("v_mov_b32 v21, 0xffff0000")
    for p in range(8):
        A(f"v_cndmask_b32 v22, 0, v20, {s(MS+4*p,2)}")
        A(f"v_cndmask_b32 v23, 0, v21, {s(MS+4*p+2,2)}")
        A(f"v_or_b32 v{PM+p}, v22, v23")
    A(f"s_lshl_b32 s34, s{sW4}, 12")
    A(f"s_add_u32 s34, s34, {L_KV+team*KVH}")
    A(f"v_add_u32 v{AD}, s34, v{L16}")
    A(f"s_lshl_b32 s34, s{sW}, 11")
    A(f"s_add_u32 s34, s34, {L_Q}")
    A(f"v_add_u32 v3, s34, v{L16}")
    for i in range(16):
        A(f"v_mov_b32 v{CB+i}, 0")


def att_qread():
    A(f"ds_read_b128 {v(Q,4)}, v3")
    A(f"ds_read_b128 {v(Q+4,4)}, v3 offset:1024")


def attention(team, hook):
    def rdK(buf, d):
        A(f"ds_read_b128 {v(KF[buf],4)}, v{AD} offset:{(8-d)*4096}")
        A(f"ds_read_b128 {v(KF[buf]+4,4)}, v{AD} offset:{(8-d)*4096+1024}")

    def rdV(buf, d):
        A(f"ds_read_b128 {v(VF[buf],4)}, v{AD} offset:{(8-d)*4096+2048}")
        A(f"ds_read_b128 {v(VF[buf]+4,4)}, v{AD} offset:{(8-d)*4096+3072}")

    def neg_switch(d):
        l = newlab("ng")
        A(f"s_cmp_eq_u32 s{sT}, {d-1}")
        A(f"s_cbranch_scc0 {l}")
        for i in range(16):
            A(f"v_mov_b32 v{CB+i}, {fl(-1e30)}")
        A.label(l)

    def smf(dst, buf, c):
        A(MF(dst, KF[buf], Q, c))
        A(MF(dst, KF[buf] + 4, Q + 4))

    def maxes(src, first):
        for p in range(8):
            if first and p == 0:
                A(f"v_max_f32 v{MX}, v{src}, v{src+1}")
            else:
                A(f"v_max3_f32 v{MX}, v{MX}, v{src+2*p}, v{src+2*p+1}")
    rdK(0, 0)
    rdK(1, 1)
    A("s_waitcnt lgkmcnt(2)")
    smf(SM_, 0, "0")
    hook(1, 0)
    for d in range(1, 9):
        b = d & 1
        if d < 8:
            rdK(b ^ 1, d + 1)
        neg_switch(d)
        A(f"s_waitcnt lgkmcnt({2 if d < 8 else 0})")
        smf(SA[b], b, CB)
        if d >= 2:
            maxes(SA[b ^ 1], d == 2)
        hook(1, d)
    rdK(1, 1)
    rdV(0, 0)
    rdV(1, 8)
    for i in range(16):
        A(f"v_cndmask_b32 v{SM_+i}, v{SA[0]+i}, v{SM_+i}, {s(MS+2*i,2)}")
    maxes(SM_, False)
    A(f"v_mov_b32 v{TM}, v{MX}")
    A(f"v_permlane32_swap_b32 v{MX}, v{TM}")
    A(f"v_max_f32 v{MX}, v{MX}, v{TM}")
    for i in range(16):
        A(f"v_sub_f32 v{CB+i}, 0, v{MX}")
    neg_switch(1)
    A("s_waitcnt lgkmcnt(4)")
    smf(SA[1], 1, CB)
    rdK(0, 2)
    for i in range(16):
        A(f"v_sub_f32 v{SM_+i}, v{SM_+i}, v{MX}")
    for i in range(16):
        A(f"v_exp_f32 v{SM_+i}, v{SM_+i}")
    A(f"v_add_f32 v{SU0}, v{SM_}, v{SM_+1}")
    A(f"v_add_f32 v{SU1}, v{SM_+2}, v{SM_+3}")
    for i in range(4, 16):
        A(f"v_add_f32 v{SU0+(i&1)}, v{SU0+(i&1)}, v{SM_+i}")
    for p in range(8):
        A(f"v_cvt_pk_bf16_f32 v{PP[1]+p}, v{SM_+2*p}, v{SM_+2*p+1}")
    for p in range(8):
        A(f"v_and_b32 v{PP[0]+p}, v{PP[1]+p}, v{PM+p}")
    for p in range(8):
        A(f"v_xor_b32 v{PP[1]+p}, v{PP[1]+p}, v{PP[0]+p}")
    A("s_waitcnt lgkmcnt(2)")
    A(MF(O, VF[0], PP[0], "0"))
    A(MF(O, VF[0] + 4, PP[0] + 4))
    A(MF(O, VF[1], PP[1]))
    A(MF(O, VF[1] + 4, PP[1] + 4))
    hook(2, 0)
    for d in range(1, 8):
        b = d & 1
        rdV(b, d)
        if d < 7:
            neg_switch(d + 1)
            A("s_waitcnt lgkmcnt(2)")
            smf(SA[b ^ 1], b ^ 1, CB)
            if d < 6:
                rdK(b, d + 2)
        src = SA[b]
        for i in range(16):
            A(f"v_exp_f32 v{src+i}, v{src+i}")
        for i in range(16):
            A(f"v_add_f32 v{SU0+(i&1)}, v{SU0+(i&1)}, v{src+i}")
        for p in range(8):
            A(f"v_cvt_pk_bf16_f32 v{PP[b]+p}, v{src+2*p}, v{src+2*p+1}")
        A(f"s_waitcnt lgkmcnt({2 if d < 6 else 0})")
        A(MF(O, VF[b], PP[b]))
        A(MF(O, VF[b] + 4, PP[b] + 4))
        hook(2, d)
    A(f"v_add_f32 v{SU0}, v{SU0}, v{SU1}")
    A(f"v_mov_b32 v{TM}, v{SU0}")
    A(f"v_permlane32_swap_b32 v{SU0}, v{TM}")
    A(f"v_add_f32 v{SU0}, v{SU0}, v{TM}")
    A(f"v_rcp_f32 v{SU0}, v{SU0}")
    A(f"s_lshl_b32 s36, s{sT}, 16")
    if not OSH:
        A(f"s_add_u32 s36, s36, s{sL}")
    A(f"s_add_u32 s36, s36, {hex(OFB + team*32768)}")
    A(f"s_lshl_b32 s33, s{sHG}, 11")
    A("s_add_u32 s33, s33, s36")
    A(f"s_lshl_b32 s30, s{sRB}, 9")
    A(f"s_lshl_b32 s31, s{sW}, 6")
    A("s_add_u32 s30, s30, s31")
    A(f"s_add_u32 s30, s30, s{sL}")
    A(f"s_add_u32 s30, s30, {hex(OFL)}")
    A(f"s_lshl_b32 s31, s{sHG}, 2")
    A("s_add_u32 s31, s31, s30")
    for p in range(8):
        A(f"v_pk_mul_f32 {v(O+2*p,2)}, {v(O+2*p,2)}, {v(SU0,2)} op_sel_hi:[1,0]")
    for p in range(8):
        A(f"v_cvt_pk_bf16_f32 v{O+p}, v{O+2*p}, v{O+2*p+1}")

    def st(bits):
        A(f"buffer_store_dwordx4 {v(O,4)}, v{L16}, {WSR}, s33 offen {bits}")
        A(f"buffer_store_dwordx4 {v(O+4,4)}, v{L16}, {WSR}, s33 offen offset:1024 {bits}")
    st_loc(st)
    mark("att_end")


WO0, WO1 = opt("wo0", [13] * 3 + [16] * 6), opt("wo1", [16, 16])


def e_att():
    att_setup(0)
    A("s_waitcnt lgkmcnt(0)")
    mark("x1_wait")
    padat("a0", 0)
    padat("a1", 1)
    A("s_barrier")

    def fix():
        A("s_barrier")
        A(f"s_lshr_b32 s34, s{sIDX}, 5")

        def row():
            A(f"s_and_b32 s32, s{sIDX}, 31")
            A(f"v_and_b32 v0, 31, v{LN}")
            A("v_cmp_eq_u32 vcc, s32, v0")
            A(f"v_lshrrev_b32 v0, 5, v{LN}")
            A("v_lshlrev_b32 v0, 4, v0")
            A(f"s_lshl_b32 s34, s{sCG}, 7")
            A(f"s_add_u32 s34, s34, {hex(X2R)}")
            A("s_mov_b64 exec, vcc")
            for ks in range(4):
                A(f"buffer_load_dwordx4 {v(P+4*ks,4)}, v0, {WSR}, s34 offen offset:{32*ks} sc1")
            A(f"v_mov_b32 v{CC}, 1.0")
            A(f"v_mov_b32 v{DD}, 0")
            A("s_mov_b64 exec, -1")
        skip_if(f"s_cmp_lg_u32 s34, s{sT}", row)
    skip_if(f"s_cmp_eq_u32 s{sPATCH}, 0", fix)
    mark("att_go")
    att_qread()
    XE2 = opt("xe2", 5)
    al = wo_groups([0, 12, 13, 14, 15], EVO, "woa")

    def hook(ps, d):
        k = (ps - 1) * 9 + d
        g0 = [g for j, g in zip(WO0, wo_groups(range(1, 10), EVO, "wo0")) if j == 50 + k]
        if g0:
            skip_if(f"s_cmp_lg_u32 s{sL}, 0", lambda: emit(g0))
        emit([g for j, g in zip(WO1, wo_groups([10, 11], EVO, "wo0")) if j == 50 + k])
        if k == XE2:
            A("s_barrier")
        if 0 <= k - XE2 < 5:
            A.lines += al[k - XE2]
    attention(0, hook)


def table_loads(T):
    def f():
        A(f"s_add_u32 s32, s{sCI}, {hex(TABLE)}")
        A(f"buffer_load_dwordx4 {v(T,4)}, v{L16}, {WSR}, s32 offen sc1")
    return f


def argmax_lane(T, issued=None):
    poll(table_loads(T), lambda: sent_check(range(T, T + 4), T + 4), issued)
    A(f"v_mov_b32 v{T+4}, v{T}")
    wave_red(T + 4, T + 5, "max")
    A(f"v_cmp_eq_f32 vcc, v{T+4}, v{T}")
    A("s_ff1_i32_b64 s32, vcc")
    A("s_and_b32 s32, s32, 63")


def stat_loads(S, base):
    def f():
        A(f"s_lshl_b32 s30, s{sT}, 13")
        A(f"s_add_u32 s30, s30, {hex(base)}")
        A("s_add_u32 s31, s30, 4096")
        for i in range(8):
            A(f"buffer_load_dwordx4 {v(S+4*i,4)}, v{L16}, {WSR}, s{30+(i>>2)} offen offset:{(i&3)*1024} sc1")
    return f


def stat_core(S, E, t, nc=4, n=8, sw=32):
    for i in range(1, n):
        for c in range(0, nc, 2):
            A(f"v_pk_add_f32 {v(S+c,2)}, {v(S+c,2)}, {v(S+4*i+c,2)}")
    for i in range(nc):
        A(f"v_mov_b32 v{t+i}, v{S+i}")
    for i in range(nc):
        A(f"v_permlane{sw}_swap_b32 v{S+i}, v{t+i}")
    for i in range(nc):
        A(f"v_add_f32 v{S+i}, v{S+i}, v{t+i}")
    A(f"v_mul_f32 v{E+2}, {fl(1/1024)}, v{S}")
    A(f"v_mul_f32 v{S+1}, {fl(1/1024)}, v{S+1}")
    A(f"v_fma_f32 v{S+1}, -v{E+2}, v{E+2}, v{S+1}")
    A(f"v_max_f32 v{S+1}, 0, v{S+1}")
    A(f"v_add_f32 v{E+3}, {fl(EPS)}, v{S+1}")
    A(f"v_rsq_f32 v{E+3}, v{E+3}")


def cand_publish(S, E, t, PR, lay):
    A(f"v_fma_f32 v{E}, -v{E+2}, v{S+3}, v{S+2}")
    A(f"v_and_b32 v{E+1}, 31, v{LN}")
    A(f"v_mul_f32 v{E}, v{E}, v{E+3}")
    A(f"s_lshl_b32 s32, s{sT}, 5")
    A(f"v_add_u32 v{E+1}, s32, v{E+1}")
    A(f"v_mov_b32 v{t}, v{E}")
    wave_red(t, t + 1, "max", 32)
    A(f"v_cmp_eq_f32 vcc, v{t}, v{E}")
    A(f"v_lshrrev_b32 v{t+2}, 5, v{LN}")
    A(f"v_lshlrev_b32 v{t+2}, 4, v{t+2}")
    A(f"s_lshl_b32 s32, s{sT}, 11")
    A(f"s_lshl_b32 s33, s{sCG}, 7")
    A("s_add_u32 s32, s32, s33")
    A(f"s_add_u32 s32, s32, {hex(CAND + lay)}")
    A(f"s_lshl_b32 s34, s{sT}, 4")
    A(f"s_add_u32 s34, s34, {hex(TABLE + lay)}")
    A("s_ff1_i32_b32 s35, vcc_lo")
    A("s_lshl_b32 s35, 1, s35")
    A(f"s_cmp_eq_u32 s{sHG}, 0")
    A("s_cselect_b32 exec_lo, s35, 0")
    A("s_mov_b32 exec_hi, 0")
    cond(newlab("z"), lambda: A(f"buffer_store_dwordx4 {v(E,4)}, v{t+2}, {WSR}, s34 offen sc1"))
    A("s_mov_b32 exec_lo, s35")
    A("s_mov_b32 exec_hi, s35")
    for ks in range(4):
        A(f"buffer_store_dwordx4 {v(PR+4*ks,4)}, v{t+2}, {WSR}, s32 offen offset:{ks*32} sc1")
    A("s_mov_b64 exec, -1")


def xf_off(dst):
    A(f"v_bfe_u32 v{dst}, v{LN}, 4, 1")
    A(f"v_lshlrev_b32 v{dst}, 11, v{dst}")
    A(f"v_lshrrev_b32 v{dst+1}, 5, v{LN}")
    A(f"v_lshl_add_u32 v{dst}, v{dst+1}, 8, v{dst}")
    A(f"v_and_b32 v{dst+1}, 15, v{LN}")
    A(f"v_lshl_add_u32 v{dst}, v{dst+1}, 4, v{dst}")
    A(f"s_lshl_b32 s34, s{sW4}, 12")
    A(f"s_add_u32 s34, s34, {L_X}")
    A(f"v_add_u32 v{dst+1}, s34, v{dst}")


def e_wo():
    D = opt("wod", 8)
    WA, FA, FL, XO, OB = 56, 60, 61, 100, 104
    WF = [32, 40, 48]
    assert OB + 4 * (D + 1) <= 154
    A(f"v_bfe_u32 v33, v{LN}, 2, 2")
    A(f"v_lshrrev_b32 v32, 5, v{LN}")
    A("v_lshl_add_u32 v34, v32, 3, v33")
    A("v_lshlrev_b32 v34, 7, v34")
    A("v_lshrrev_b32 v33, 1, v33")
    A("v_lshl_add_u32 v34, v33, 6, v34")
    A(f"v_bfe_u32 v33, v{LN}, 4, 1")
    A("v_lshl_add_u32 v34, v33, 5, v34")
    A(f"v_and_b32 v33, 3, v{LN}")
    A(f"v_lshl_add_u32 v{WA}, v33, 3, v34")
    A(f"v_xor_b32 v{WA+1}, 64, v{WA}")
    A(f"v_add_u32 v{WA+2}, 0x10000, v{WA}")
    A(f"v_add_u32 v{WA+3}, 0x10000, v{WA+1}")
    A(f"v_and_b32 v{FA}, 15, v{LN}")
    A(f"v_lshlrev_b32 v{FA}, 2, v{FA}")
    W("woa")
    for p in range(16):
        A(f"v_lshlrev_b32 v{2*p}, 16, v{P+p}")
        A(f"v_and_b32 v{2*p+1}, 0xffff0000, v{P+p}")
    for p in range(16):
        A(f"v_pk_fma_f32 {v(2*p,2)}, {v(2*p,2)}, {v(CC,2)}, {v(CC,2)} op_sel:[0,0,1] op_sel_hi:[1,0,1]")
    flag_store("s31", True)
    mark("o_fl")
    A("s_barrier")
    mark("xa")
    emit(wo_groups(range(16, 28), EVO, "wob"))
    xf_off(XO)
    A(f"s_lshl_b32 s37, s{sHG}, 11" if ROT else "s_mov_b32 s37, 0")

    def rd(i):
        f = WF[i % 3]
        return [f"ds_read_b64_tr_b16 {v(f+4*u+2*j,2)}, v{WA+u+2*(i>>5)} offset:{(i&31)*2048+j*512}" for u in range(2) for j in range(2)]

    def ld(i):
        if i == 32:
            A("s_add_u32 s36, s36, 32768")
        if i & 1 == 0:
            A("s_add_u32 s38, s36, s37")
        else:
            A("s_add_u32 s37, s37, 2048")
            A("s_and_b32 s37, s37, 0x7800")
        A(f"buffer_load_dwordx4 {v(OB+4*(i%(D+1)),4)}, v{L16}, {WSR}, s38 offen offset:{(i&1)*1024} sc1 ;@o{i}")

    def fload(off):
        return lambda: A(f"buffer_load_dword v{FL}, v{FA}, {WSR}, s30 offen offset:{off} sc1")
    A.lines += rd(0) + rd(1)
    poll(fload(0), lambda: A(f"v_cmp_ne_u32 vcc, s{sNON}, v{FL}"))
    mark("o_ok0")
    for i in range(D):
        ld(i)
    FB = opt("wofb", 4)
    for i in range(64):
        f, ob = WF[i % 3], OB + 4 * (i % (D + 1))
        r = rd(i + 2) if i + 2 < 64 else []
        if i in (30, 54):
            A("s_barrier")
        W(f"o{i}", 4 if i < 63 else 0)
        A(MF(0, f, ob))
        if i + D == 32 - FB:
            tagged("fb", fload(256))
        if i + D == 32:
            poll(fload(256), lambda: A(f"v_cmp_ne_u32 vcc, s{sNON}, v{FL}"), "fb")
            mark("o_ok1")
        if i + D < 64:
            ld(i + D)
        A.lines += r[:2]
        A(MF(16, f + 4, ob))
        A.lines += r[2:]
    mark("wo_end")
    G = 96
    A(f"s_lshl_b32 s35, s{sRB}, 4")
    A(f"s_add_u32 s35, s35, s{sCG}")
    A("s_lshl_b32 s35, s35, 14")
    A(f"s_lshl_b32 s34, s{sW}, 12")
    A("s_add_u32 s35, s35, s34")
    if not XFO:
        A(f"s_add_u32 s35, s35, {hex(XFB)}")
    A(f"s_lshl_b32 s30, s{sT}, 13")
    A(f"s_add_u32 s30, s30, s{sL}")
    A(f"s_add_u32 s30, s30, {hex(STAT)}")
    A(f"s_lshl_b32 s31, s{sCG}, 9")
    A("s_add_u32 s31, s31, s30")
    for i in range(3):
        A(f"v_mov_b32 v{G+i}, 0")
    A(f"v_mov_b32 v{G+3}, v{WSUM}")
    for p in range(16):
        A(f"v_cvt_pk_bf16_f32 v{P+p}, v{2*p}, v{2*p+1}")

    def xfst():
        st_loc(lambda bits: [A(f"buffer_store_dwordx4 {v(P+4*ks,4)}, v{XO}, {XFR}, s35 offen offset:{ks*512} {opt('xbits', '') or bits}") for ks in range(4)])
        for ks in range(4):
            A(f"ds_write_b128 v{XO+1}, {v(P+4*ks,4)} offset:{ks*512}")
    skip_if(f"s_cmp_lg_u32 s{sL}, 0", xfst)
    for p in range(16):
        A(f"v_dot2c_f32_bf16 v{G}, {ONES}, v{P+p}")
        A(f"v_dot2c_f32_bf16 v{G+1}, v{P+p}, v{P+p}")
        A(f"v_dot2c_f32_bf16 v{G+2}, v{WR+p}, v{P+p}")
    for i in range(4):
        A(f"v_mov_b32 v{48+i}, v{G+i}")
    for i in range(4):
        A(f"v_permlane32_swap_b32 v{G+i}, v{48+i}")
    for i in range(4):
        A(f"v_add_f32 v{G+i}, v{G+i}, v{48+i}")
    A("s_mov_b32 exec_hi, 0")
    A("s_waitcnt vmcnt(0)")
    st_loc(lambda bits: A(f"buffer_store_dwordx4 {v(G,4)}, v{L16}, {WSR}, s31 offen {bits}"))
    A("s_mov_b64 exec, -1")
    mark("st_pub")
    A(f"s_cmp_lg_u32 s{sL}, 0")
    A("s_cbranch_scc1 e_final")
    A(f"s_mov_b32 s{sL}, {LSTR}")
    A(f"s_and_b32 s30, s{sW}, 1")
    A("s_lshl_b32 s30, s30, 13")
    A(f"v_add_u32 v{XB}, s30, v{L16}")
    A(f"v_add_u32 v{XB+1}, 1024, v{XB}")
    if PF:
        pf_setup(PFA)
        A(f"s_add_u32 s{sPB}, s{sPB}, 14")
    for i in range(96):
        A(f"v_mov_b32 v{i}, 0")
    prof_next()
    A("s_waitcnt lgkmcnt(0)")
    A("s_branch e_q")
    A.label("e_arr")
    A("s_mov_b64 exec, 3")
    A(f"s_mov_b32 s{sAC}, {hex(ROWF)}")
    A(f"buffer_store_dwordx2 v[250:251], v249, {WSR}, s{sAC} offen sc1")
    A("s_mov_b64 exec, -1")
    A("s_branch e_arr_ret")
    A.label("e_final")
    S, E = 64, 52
    poll(stat_loads(S, STAT + LSTR), lambda: sent_check(range(S, S + 32), 48))
    mark("st_ok")
    stat_core(S, E, 48)
    cand_publish(S, E, 48, P, LSTR)
    mark("cand")
    A(f"v_add_f32 v{CC}, 1.0, v{E+3}")
    A(f"v_mul_f32 v{DD}, v{E+2}, v{E+3}")
    A(f"v_sub_f32 v{DD}, 0, v{DD}")
    for p in range(16):
        A(f"v_pk_fma_f32 {v(2*p,2)}, {v(2*p,2)}, {v(CC,2)}, {v(CC,2)} op_sel:[0,0,1] op_sel_hi:[1,0,1]")
    for p in range(16):
        A(f"v_cvt_pk_bf16_f32 v{64+p}, v{2*p}, v{2*p+1}")
    for ks in range(4):
        A(f"v_permlane32_swap_b32 v{64+4*ks}, v{64+4*ks+2}")
        A(f"v_permlane32_swap_b32 v{64+4*ks+1}, v{64+4*ks+3}")
    A(f"v_lshl_add_u32 v50, v{E+1}, 11, v50")
    A(f"s_mov_b32 s{sCI}, s{sL}")

    def arg():
        argmax_lane(0)
        A("s_lshl_b64 exec, 1, s32")
        A(f"ds_write_b128 v{TA+5}, v[0:3] offset:{T_IDX}")
        A("s_mov_b64 exec, -1")
    skip_if(f"s_cmp_lg_u32 s{sW}, 0", arg)
    A("s_waitcnt lgkmcnt(0)")
    A("s_barrier")
    A(f"ds_read_b32 v0, v{TA+5} offset:{T_IDX+4}")
    A("s_waitcnt lgkmcnt(0)")
    A("v_and_b32 v0, 0x7ff, v0")
    A(f"v_cmp_ne_u32 vcc, v0, v{E+1}")
    A("s_mov_b64 exec, vcc")
    for ks in range(4):
        A(f"buffer_store_dwordx4 {v(64+4*ks,4)}, v50, s[{TS}:{TS+3}], s33 offen offset:{ks*32} {opt('obits', '')}")
    A("s_mov_b64 exec, -1")
    A("s_branch k_end")


STAG = opt("stag", 1)
FV = [155, 155, 153]


def ffn_addr():
    A(f"v_lshrrev_b32 v20, 2, v{LN}")
    A("v_lshlrev_b32 v20, 2, v20")
    A(f"v_bfe_u32 v21, v{LN}, 1, 1")
    A("v_add_u32 v20, v20, v21")
    A(f"v_mul_u32_u24 v20, {4*7168}, v20")
    A(f"v_and_b32 v21, 1, v{LN}")
    A("v_lshl_add_u32 v20, v21, 4, v20")
    A(f"s_mul_i32 s30, s{sW4}, {256*7168}")
    A(f"s_lshl_b32 s31, s{sF}, 5")
    A("s_add_u32 s30, s30, s31")
    A(f"v_add_u32 v{FV[0]}, s30, v20")
    A("v_lshlrev_b32 v21, 14, v21")
    A(f"v_lshrrev_b32 v20, 1, v{LN}")
    A("v_lshl_add_u32 v20, v20, 4, v21")
    A(f"s_lshl_b32 s30, s{sW4}, 9")
    A(f"s_lshl_b32 s31, s{sF}, 15")
    A("s_add_u32 s30, s30, s31")
    A(f"v_add_u32 v{FV[2]}, s30, v20")


def ffn_srd(which, sd):
    karg, nb = [(40, 1024 * 7168), (48, 1024 * 7168), (56, 3584 * 2048)][which]
    if opt("noffn", 0) >> which & 1:
        nb = 0
    return [f"s_load_dwordx2 s[{sd}:{sd+1}], s[0:1], {karg}", f"s_cmp_lt_u32 s{sF}, 224",
            f"s_cselect_b32 s{sd+2}, {hex(nb)}, 0", f"s_mov_b32 s{sd+3}, 0x20000"]


def ffn_groups(which, sd):
    base = [GW, UW, DW][which]
    gs = []
    for j in range(8):
        g = []
        if which == 2:
            g += [f"s_mov_b32 s{sD0}, {j*2048}"]
        elif STAG:
            g += [f"s_xor_b32 s{sD0}, s{sF}, {j >> 1}", f"s_and_b32 s{sD1}, s{sD0}, 2", f"s_and_b32 s{sD0}, s{sD0}, 3",
                  f"s_mul_i32 s{sD1}, s{sD1}, {2*7168}", f"s_mul_i32 s{sD0}, s{sD0}, {2*7168}", f"s_add_u32 s{sD0}, s{sD0}, s{sD1}"]
            if j & 1:
                g += [f"s_add_u32 s{sD0}, s{sD0}, 7168"]
        else:
            g += [f"s_mov_b32 s{sD0}, {((j & 3) + 8*(j >> 2))*7168}"]
        g += [f"buffer_load_dwordx4 {v(base+4*j,4)}, v{FV[which]}, s[{sd}:{sd+3}], s{sD0} offen {opt('fbits', '')} ;@ffw"]
        gs.append(g)
    return gs


FFS = opt("ffs", list(range(17, 33)) + [40] * 8)
LATE = {}


def late(k):
    if k in LATE:
        skip_if(f"s_cmp_lg_u32 s{sL}, 0", lambda: emit(LATE[k]))


WMAP = {}


def ffn_perm():
    A("s_mov_b32 s30, 0x05040100")
    A("s_mov_b32 s31, 0x07060302")
    free = SPARE
    for m, base in enumerate((GW, UW, DW)):
        for p in range(4):
            for c in range(4):
                a_, b_ = base + 8 * p + c, base + 8 * p + 4 + c
                A(f"v_perm_b32 v{free}, v{b_}, v{a_}, s30")
                A(f"v_perm_b32 v{b_}, v{b_}, v{a_}, s31")
                WMAP[(m, p, 2 * c)] = free
                WMAP[(m, p, 2 * c + 1)] = b_
                free = a_


XG = 24


def ffn_xaddr():
    A(f"s_lshl_b32 s32, s{sW4}, 9")
    A(f"s_sub_u32 s34, s{sF}, 224")
    A("s_lshl_b32 s34, s34, 1")
    A(f"s_add_u32 s89, s34, s{sW4}")
    A(f"s_and_b32 s35, s{sW4}, 1")
    A("s_add_u32 s34, s34, s35")
    A("s_lshl_b32 s34, s34, 5")
    A(f"v_lshrrev_b32 v22, 1, v{LN}")
    A(f"v_and_b32 v23, 1, v{LN}")
    A(f"s_cmp_lt_u32 s{sF}, 224")
    A("s_cselect_b32 s32, s32, s34")
    A("s_cselect_b64 vcc, -1, 0")
    A("v_cndmask_b32 v22, v23, v22, vcc")
    A("v_lshl_add_u32 v22, v22, 4, s32")


def xloads():
    A(f"s_lshr_b32 s33, s{sIDX}, 5")
    A("s_lshl_b32 s33, s33, 11")
    A(f"s_add_u32 s33, s33, s{sCI}")
    A(f"s_add_u32 s33, s33, {hex(CAND)}")
    A(f"buffer_load_dwordx4 {v(XG,4)}, v22, {WSR}, s33 offen sc1")


def ffn_gateup():
    AC = 32
    A(f"v_mov_b32 v28, s{sRSTD}")
    A(f"v_mul_f32 v29, s{sMEAN}, v28")
    for p in range(4):
        A(f"v_lshlrev_b32 v30, 16, v{XG+p}")
        A(f"v_and_b32 v31, 0xffff0000, v{XG+p}")
        A("v_fma_f32 v30, v30, v28, -v29")
        A("v_fma_f32 v31, v31, v28, -v29")
        A(f"v_cvt_pk_bf16_f32 v{XG+p}, v30, v31")
    if STAG:
        for b in range(2):
            skip_if(f"s_bitcmp0_b32 s{sF}, {b}",
                    lambda: [A(f"v_swap_b32 v{XG+p}, v{XG+(p ^ (1 << b))}") for p in range(4) if not p >> b & 1])
    for p in range(4):
        for m in range(2):
            for c in range(8):
                acc = AC + 8 * m + c
                A(f"v_dot2_f32_bf16 v{acc}, v{WMAP[(m,p,c)]}, v{XG+p}, {'0' if p == 0 else 'v%d' % acc}")
    A(f"v_lshrrev_b32 v31, 5, v{LN}")
    A("v_lshlrev_b32 v30, 6, v31")
    for c in range(8):
        A(f"v_permlane32_swap_b32 v{AC+c}, v{AC+8+c}")
    for c in range(8):
        A(f"v_add_f32 v{AC+c}, v{AC+c}, v{AC+8+c}")
    A(f"v_and_b32 v31, 1, v{LN}")
    A("v_lshl_add_u32 v30, v31, 5, v30")
    for c in range(4):
        A(f"v_permlane16_swap_b32 v{AC+c}, v{AC+4+c}")
    for c in range(4):
        A(f"v_add_f32 v{AC+c}, v{AC+c}, v{AC+4+c}")
    A(f"v_and_b32 v31, 16, v{LN}")
    A(f"s_lshl_b32 s32, s{sW4}, 7")
    A("v_add3_u32 v30, v31, v30, s32")
    for sh in ("quad_perm:[2,3,0,1]", "row_ror:4", "row_ror:8"):
        for c in range(4):
            A(f"v_add_f32_dpp v{AC+c}, v{AC+c}, v{AC+c} {sh} {DPPF}")
    A("s_mov_b32 exec_lo, 0x00030003")
    A("s_mov_b32 exec_hi, 0x00030003")
    A(f"ds_write_b128 v30, {v(AC,4)} offset:{T_INB}")
    A("s_mov_b64 exec, -1")


def ffn_down():
    A(f"v_and_b32 v30, 1, v{LN}")
    A(f"v_bfe_u32 v31, v{LN}, 1, 3")
    A("v_lshl_add_u32 v30, v30, 3, v31")
    A("v_lshlrev_b32 v30, 2, v30")
    A(f"v_add_u32 v30, {T_INB}, v30")
    for i in range(4):
        A(f"ds_read2_b32 {v(32+2*i,2)}, v30 offset0:{32*i} offset1:{32*i+16}")
    A(f"v_lshrrev_b32 v30, 2, v{LN}")
    A(f"v_mul_u32_u24 v30, {224*64}, v30")
    A(f"v_and_b32 v31, 3, v{LN}")
    A("v_lshl_add_u32 v30, v31, 4, v30")
    A(f"v_and_b32 v31, 1, v{LN}")
    A("v_cmp_eq_u32 vcc, 1, v31")
    A(f"s_mul_i32 s32, s{sW4}, {16*224*64}")
    A(f"s_lshl_b32 s33, s{sF}, 6")
    A("s_add_u32 s32, s32, s33")
    A(f"s_add_u32 s32, s32, s{sCI}")
    A(f"s_add_u32 s32, s32, {hex(PY)}")
    A("s_waitcnt lgkmcnt(0)")
    A("v_pk_add_f32 v[32:33], v[32:33], v[34:35]")
    A("v_pk_add_f32 v[36:37], v[36:37], v[38:39]")
    A("v_pk_add_f32 v[32:33], v[32:33], v[36:37]")
    A(f"v_mul_f32 v34, {fl(-math.log2(math.e))}, v32")
    A("v_exp_f32 v34, v34")
    A("v_mul_f32 v32, v32, v33")
    A("v_add_f32 v34, 1.0, v34")
    A("v_rcp_f32 v34, v34")
    A("v_mul_f32 v32, v32, v34")
    A(f"v_mov_b32_dpp v33, v32 quad_perm:[2,3,2,3] {DPPF}")
    A("v_cvt_pk_bf16_f32 v32, v32, v33")
    for p in range(4):
        A(f"ds_swizzle_b32 v{36+p}, v32 offset:{hex(1 | (4*p) << 5)}")
    A("s_waitcnt lgkmcnt(0)")
    AC = 40
    for p in range(4):
        for c in range(8):
            A(f"v_dot2_f32_bf16 v{AC+c}, v{WMAP[(2,p,c)]}, v{36+p}, {'0' if p == 0 else 'v%d' % (AC+c)}")
    for c in range(8):
        A(f"v_add_f32_dpp v{AC+c}, v{AC+c}, v{AC+c} quad_perm:[1,0,3,2] {DPPF}")
    for c in range(4):
        A(f"v_cndmask_b32 v{AC+c}, v{AC+c}, v{AC+4+c}, vcc")
    A(f"s_cmp_lt_u32 s{sF}, 224")
    A("s_cselect_b64 exec, -1, 0")
    cond(newlab("z"), lambda: A(f"buffer_store_dwordx4 {v(AC,4)}, v30, {WSR}, s32 offen sc1"))
    A("s_mov_b64 exec, -1")


RP = 32


def red_loads():
    A(f"s_mul_i32 s32, s89, {224*64}")
    A(f"s_add_u32 s32, s32, s{sCI}")
    A(f"s_add_u32 s32, s32, {hex(PY)}")
    for i in range(14):
        A(f"buffer_load_dwordx4 {v(RP+4*i,4)}, v{L16}, {WSR}, s32 offen offset:{(i&3)*1024} sc1")
        if i & 3 == 3:
            A("s_add_u32 s32, s32, 4096")


def red_pre():
    A(f"v_and_b32 v30, 2, v{LN}")
    A("v_cmp_eq_u32 vcc, 2, v30")
    A(f"v_mov_b32 v28, s{sRSTD}")
    A(f"v_mul_f32 v29, s{sMEAN}, v28")
    A("v_add_f32 v28, 1.0, v28")
    A(f"v_cndmask_b32 v30, v{XG}, v{XG+2}, vcc")
    A(f"v_cndmask_b32 v31, v{XG+1}, v{XG+3}, vcc")
    A("v_lshlrev_b32 v92, 16, v30")
    A("v_and_b32 v93, 0xffff0000, v30")
    A("v_lshlrev_b32 v94, 16, v31")
    A("v_and_b32 v95, 0xffff0000, v31")
    for c in range(4):
        A(f"v_fma_f32 v{92+c}, v{92+c}, v28, -v29")
    A(f"v_mov_b32 v96, {fl(-math.log2(math.e))}")
    A(f"v_mul_f32 v96, s{sR}, v96")
    A("v_exp_f32 v96, v96")
    A("v_add_f32 v96, 1.0, v96")
    A("v_rcp_f32 v96, v96")


def red_sum():
    for i in range(1, 14):
        for c in range(0, 4, 2):
            A(f"v_pk_add_f32 {v(RP+c,2)}, {v(RP+c,2)}, {v(RP+4*i+c,2)}")
    for sh in ("row_ror:4", "row_ror:8"):
        for c in range(4):
            A(f"v_add_f32_dpp v{RP+c}, v{RP+c}, v{RP+c} {sh} {DPPF}")
    for sw in ("16", "32"):
        for c in range(4):
            A(f"v_mov_b32 v{RP+4+c}, v{RP+c}")
        for c in range(4):
            A(f"v_permlane{sw}_swap_b32 v{RP+c}, v{RP+4+c}")
        for c in range(4):
            A(f"v_add_f32 v{RP+c}, v{RP+c}, v{RP+4+c}")
    for c in range(4):
        A(f"v_fma_f32 v{RP+c}, v{RP+c}, v96, v{92+c}")
    A(f"v_cvt_pk_bf16_f32 v{RP}, v{RP}, v{RP+1}")
    A(f"v_cvt_pk_bf16_f32 v{RP+1}, v{RP+2}, v{RP+3}")


WCH, XCH, WAC = 100, 132, 140


def wch_reads(st):
    A(f"s_min_u32 s30, s{sW4}, 2")
    A("s_lshl_b32 s30, s30, 13")
    A(f"s_add_u32 s30, s30, {L_W + (st % 3)*WSL}")
    wtr_addr(144, None, "s30")
    for ct in range(1, 4):
        A(f"v_xor_b32 v{144+ct}, {32*ct}, v144")
    for ct in range(4):
        for q in range(4):
            A(f"ds_read_b64_tr_b16 {v(WCH+8*ct+2*q,2)}, v{144+ct} offset:{q*2048}")


def cub_base(base):
    A(f"s_min_u32 s32, s{sW4}, 2")
    A("s_lshl_b32 s32, s32, 12")
    A(f"s_lshl_b32 s33, s{sHG}, 14")
    A("s_add_u32 s32, s32, s33")
    A(f"s_add_u32 s32, s32, {hex(base)}")


def wch_reduce(base, x):
    for ct in range(4):
        A(f"v_mov_b32 v{WAC+ct}, 0")
    for q in range(8):
        for ct in range(4):
            A(f"v_dot2c_f32_bf16 v{WAC+ct}, {ONES if x is None else 'v%d' % (x+q)}, v{WCH+8*ct+q}")
    cub_base(base)
    A(f"s_lshl_b32 s33, s{sRB}, 8")
    A("s_add_u32 s32, s32, s33")
    A(f"v_lshlrev_b32 v20, 2, v{LN}")
    tred4(WAC)
    A(f"buffer_store_dword v{WAC}, v20, {WSR}, s32 offen sc1")


def cub_loads(Z, base):
    cub_base(base)
    for i in range(4):
        A(f"buffer_load_dwordx4 {v(Z+4*i,4)}, v{L16}, {WSR}, s32 offen offset:{i*1024} sc1")


def cub_sum(Z):
    for i in range(1, 4):
        for c in range(0, 4, 2):
            A(f"v_pk_add_f32 {v(Z+c,2)}, {v(Z+c,2)}, {v(Z+4*i+c,2)}")
    tred4(Z)


def tab_write(a_, m_, c_, d_, t, alt=False):
    if alt:
        A(f"v_and_b32 v{t}, 15, v{LN}")
        A(f"v_lshrrev_b32 v{t+1}, 5, v{LN}")
        A(f"v_lshl_add_u32 v{t}, v{t}, 1, v{t+1}")
        A(f"v_bfe_u32 v{t+1}, v{LN}, 4, 1")
    else:
        A(f"v_and_b32 v{t}, 31, v{LN}")
        A(f"v_lshrrev_b32 v{t+1}, 5, v{LN}")
    A(f"v_cmp_eq_u32 vcc, 0, v{t+1}")
    A(f"v_lshlrev_b32 v{t+1}, 9, v{t+1}")
    A(f"v_lshl_add_u32 v{t}, v{t}, 2, v{t+1}")
    A(f"s_lshl_b32 s32, s{sW4}, 7")
    A(f"v_add_u32 v{t}, s32, v{t}")
    A(f"v_cndmask_b32 v{t+1}, {m_}, {a_}, vcc")
    A(f"v_cndmask_b32 v{t+2}, {d_}, {c_}, vcc")
    A(f"ds_write_b32 v{t}, v{t+1} offset:{T_A}")
    A(f"ds_write_b32 v{t}, v{t+2} offset:{T_C}")
    A(f"v_and_b32 v{t}, 15, v{LN}")
    A(f"v_lshrrev_b32 v{t+3}, 4, v{LN}")
    A(f"v_lshl_add_u32 v{t}, v{t}, 2, v{t+3}")
    A(f"s_min_u32 s32, s{sW4}, 2")
    A("s_lshl_b32 s32, s32, 8")
    A(f"v_lshl_add_u32 v{t}, v{t}, 2, s32")
    A(f"ds_write_b32 v{t}, v{CSUM} offset:{T_CS}")


def idx_write():
    A(f"v_mov_b32 v20, s{sIDX}")
    A(f"v_mov_b32 v21, s{sLOC}")
    A("v_mov_b32 v19, 0")
    A(f"ds_write_b64 v19, v[20:21] offset:{T_IDX}")


VX, VW, VO = 4, 8, 14


def l_setup(L):
    A(f"v_lshrrev_b32 v21, 3, v{LN}")
    if L == 0:
        A(f"v_lshrrev_b32 v20, 4, v{LN}")
        A(f"v_xor_b32 v20, v20, v{LN}")
        A("v_and_b32 v20, 7, v20")
        A("v_lshlrev_b32 v20, 4, v20")
        A(f"v_lshl_add_u32 v{VX}, v21, 11, v20")
        A(f"v_xor_b32 v{VX+1}, 64, v{VX}")
        A(f"v_add_u32 v{VX+1}, {16384-1024}, v{VX+1}")
        A(f"v_add_u32 v{VX+2}, {2*(16384-1024)}, v{VX}")
        A(f"v_add_u32 v{VX+3}, {2*(16384-1024)}, v{VX+1}")
        A(f"s_lshl_b32 s{sSX}, s{sT}, 16")
        A(f"s_lshl_b32 s{sSW}, s{sHG}, 7")
        A(f"s_lshl_b32 s{sMX}, s{sW4}, 12")
        A(f"s_mul_i32 s{sMW}, s{sW4}, 6144")
        A("v_and_b32 v20, 4, v21")
        A("v_add_u32 v20, v20, v21")
        A("v_mul_u32_u24 v20, 6144, v20")
    else:
        A(f"s_lshl_b32 s{sSX}, s{sRB}, 18")
        A(f"s_add_u32 s{sSX}, s{sSX}, s{sMX}")
        if not XFO:
            A(f"s_add_u32 s{sSX}, s{sSX}, {hex(XFB)}")
        A("v_mul_u32_u24 v20, 6144, v21")
    A("v_and_b32 v21, 6, v21")
    A(f"v_xor_b32 v21, v21, v{LN}")
    A("v_and_b32 v21, 7, v21")
    A("v_lshl_add_u32 v20, v21, 4, v20")
    A(f"s_mul_i32 s32, s{sW4}, 3")
    for m in range(3):
        A("s_bfe_u32 s33, s32, 0x10001")
        A(f"s_mul_i32 s33, s33, {32*6144}")
        A("s_and_b32 s34, s32, 1")
        A(f"s_mul_i32 s34, s34, {(4 if L == 0 else 8)*6144}")
        A("s_add_u32 s33, s33, s34")
        A("s_lshr_b32 s34, s32, 2")
        A("s_lshl_b32 s34, s34, 11")
        A("s_add_u32 s33, s33, s34")
        if m == 1:
            A("s_sub_u32 s33, s33, 2048")
        A(f"v_add_u32 v{VW+2*m}, s33, v20")
        A(f"v_add_u32 v{VW+2*m+1}, {16*6144-1024}, v{VW+2*m}")
        if m < 2:
            A("s_add_u32 s32, s32, 1")


def kreg(st):
    return [f"s_add_u32 s{sD0}, s{(sKa, sKb)[st & 1]}, {st}", f"s_and_b32 s{sD0}, s{sD0}, 15"]


def st_x(L, st, tag=None):
    gs = []
    for q in range(4):
        g = []
        if q == 0:
            g += kreg(st) + [f"s_lshl_b32 s{sD1}, s{sD0}, {7 if L == 0 else 14}", f"s_add_u32 s{sD1}, s{sD1}, s{sSX}",
                             f"s_add_u32 m0, s{sMX}, {L_X - XSL*(st % 3)}"]
        if L == 0:
            g += [f"buffer_load_dwordx4 v{VX+q}, s[{XS}:{XS+3}], s{sD1} offen offset:{q*1024} lds ;@{tag or 'st%d' % st}"]
        else:
            g += [f"buffer_load_dwordx4 v{L16}, {XFR}, s{sD1} offen offset:{q*1024} sc1 lds ;@{tag or 'st%d' % st}"]
        gs.append(g)
    return gs


def st_w(st, tag=None):
    gs = []
    for i in range(6):
        g = []
        if i == 0:
            g += kreg(st) + [f"s_mul_i32 s{sD0}, s{sD0}, {64*6144}", f"s_add_u32 s{sD0}, s{sD0}, s{sSW}"]
        if i & 3 == 0:
            g += [f"s_add_u32 m0, s{sMW}, {L_W + WSL*(st % 3) + 1024*i}"]
        g += [f"buffer_load_dwordx4 v{VW+i}, s[{WS_}:{WS_+3}], s{sD0} offen offset:{(i&3)*1024} lds ;@{tag or 'st%d' % st}"]
        gs.append(g)
    return gs


def q_loop(L, jobs, extra, force, lead, pre={}, post=[]):
    for it in range(16):
        tags = ([f"st{it+1}"] if it < 15 else []) + force.get(it, [])
        if tags:
            W(",".join(tags), 0)
        else:
            A("s_waitcnt lgkmcnt(0)")
        markq(f"w{it}")
        A("s_barrier")
        markq(f"b{it}")
        g = pre.get(it, []) + (st_x(L, it + 3) + st_w(it + 3) if it <= 12 else []) + extra.get(it, [])
        weave(g, lambda: [j() for j in jobs.get(it, [])], lead.get(it, 2), it in post)


def isred(body):
    l = newlab("sk")
    A(f"s_cmp_lt_u32 s{sF}, 224")
    A(f"s_cbranch_scc1 {l}")
    A(f"s_cmp_ge_u32 s{sW4}, 2")
    A(f"s_cbranch_scc1 {l}")
    cond("red", body)
    A.label(l)


def l_layer0():
    A.label("l_start")
    A.lines.append("@reset")
    l_setup(0)
    ptr_fin()
    g = st_x(0, 0) + st_w(0) + st_x(0, 1) + st_w(1) + st_x(0, 2) + st_w(2)
    N0, N1 = opt("n0", 8), opt("n1", 17)
    emit(g[:N0])
    masks()
    wo_voff(VO)
    ffn_addr()
    A.lines += ffn_srd(0, TS2) + ffn_srd(2, TS)
    A(f"s_mov_b32 s{sIDX}, -1")
    A(f"s_mov_b32 s{sPATCH}, 0")
    A(f"s_sub_u32 s30, s{sHG}, s{sRB}")
    A(f"s_add_u32 s30, s30, {(COLF - ROWF) // 128 - 1}")
    A(f"v_and_b32 v15, 16, v{LN}")
    A("v_mul_u32_u24 v15, s30, v15")
    A(f"v_and_b32 v20, 31, v{LN}")
    A("v_add_lshl_u32 v15, v15, v20, 3")
    A(f"s_lshl_b32 s30, s{sRB}, 7")
    A(f"s_add_u32 s30, s30, {hex(ROWF)}")
    A("v_add_u32 v15, s30, v15")
    emit(g[N0:N1])
    W("st0", 0)
    A(f"s_add_u32 s{sNON}, s{sNON}, {hex(EPINC)}")
    A("s_barrier")
    emit(g[N1:])
    S, E, Z = 64, 52, 32

    def clears():
        for i in range(4):
            A(f"v_mov_b32 v{16+i}, -1")
        A(f"s_lshr_b32 s30, s{sW4}, 1")
        A(f"s_mul_i32 s30, s30, {LSTR}")
        A(f"s_and_b32 s31, s{sW4}, 1")
        A("s_lshl_b32 s32, s31, 20")
        A(f"s_lshl_b32 s33, s{sCU}, 10")
        A("s_add_u32 s32, s32, s33")
        A("s_add_u32 s32, s32, s30")
        A(f"s_add_u32 s32, s32, {hex(AR)}")
        for i in range(3):
            A(f"buffer_store_dwordx4 v[16:19], v{L16}, {WSR}, s32 offen sc1 ;@pub")
            A(f"s_add_u32 s32, s32, {256*KB}")
        A(f"s_lshl_b32 s33, s{sCU}, 7")
        A("s_add_u32 s33, s33, s30")
        A(f"s_add_u32 s33, s33, {hex(SM)}")
        A("s_cmp_eq_u32 s31, 0")
        A("s_cselect_b32 s32, s32, s33")
        A("s_cselect_b64 exec, -1, 0xff")
        A(f"buffer_store_dwordx4 v[16:19], v{L16}, {WSR}, s32 offen sc1 ;@pub")
        A("s_mov_b64 exec, -1")

    def part(st):
        A(f"v_and_b32 v28, 31, v{LN}")
        A("v_bfe_u32 v29, v28, 1, 3")
        A(f"v_lshrrev_b32 v30, 5, v{LN}")
        A("v_xor_b32 v29, v29, v30")
        A("v_lshlrev_b32 v29, 4, v29")
        A("v_lshl_add_u32 v28, v28, 7, v29")
        A(f"s_add_u32 s30, s{sMX}, {L_X - XSL*(st % 3)}")
        A("v_add_u32 v28, s30, v28")
        for ks in range(1, 4):
            A(f"v_xor_b32 v{28+ks}, {32*ks}, v28")
        for ks in range(4):
            A(f"ds_read_b128 {v(32+4*ks,4)}, v{28+ks}")
        wch_reads(st)

    def part2():
        for i in range(4):
            A(f"v_mov_b32 v{48+i}, 0")
        A(f"s_lshl_b32 s30, s{sT}, 12")
        A(f"s_lshl_b32 s31, s{sHG}, 8")
        A("s_add_u32 s30, s30, s31")
        A(f"s_add_u32 s30, s30, {hex(STAT0)}")
        A(f"v_lshlrev_b32 v28, 3, v{LN}")
        for p in range(16):
            A(f"v_dot2c_f32_bf16 v{48+2*(p&1)}, {ONES}, v{32+p}")
            A(f"v_dot2c_f32_bf16 v{49+2*(p&1)}, v{32+p}, v{32+p}")
        A("v_pk_add_f32 v[48:49], v[48:49], v[50:51]")
        A("v_mov_b32 v50, v48")
        A("v_mov_b32 v51, v49")
        A("v_permlane32_swap_b32 v48, v50")
        A("v_permlane32_swap_b32 v49, v51")
        A("v_pk_add_f32 v[48:49], v[48:49], v[50:51]")
        A("s_mov_b32 exec_hi, 0")
        A(f"buffer_store_dwordx2 v[48:49], v28, {WSR}, s30 offen sc1 ;@pub")
        A("s_mov_b64 exec, -1")
        tagged("pub", lambda: wch_reduce(CUB0, None))

    def dbgload():
        A(f"buffer_load_dwordx2 v[16:17], v15, {WSR}, 0 offen sc1")

    def arrived():
        poll(dbgload, lambda: A(f"v_cmp_ne_u32 vcc, s{sNON}, v16"), "arr")
        mark("arr")
        A("s_getreg_b32 s30, hwreg(HW_REG_XCC_ID, 0, 4)")
        A("v_cmp_ne_u32 vcc, s30, v17")
        A("s_and_b32 s30, vcc_lo, 0xffff")
        A(f"s_cselect_b32 s{sLOC}, 0, 1")
        idx_write()

    def s0loads():
        A(f"s_lshl_b32 s30, s{sT}, 12")
        A(f"s_add_u32 s30, s30, {hex(STAT0)}")
        for i in range(4):
            A(f"buffer_load_dwordx4 {v(S+4*i,4)}, v{L16}, {WSR}, s30 offen offset:{i*1024} sc1 ;@s0")
        tagged("s0", lambda: cub_loads(Z, CUB0))

    def tables():
        W("s0")
        for i in range(1, 4):
            for c in range(0, 4, 2):
                A(f"v_pk_add_f32 {v(S+c,2)}, {v(S+c,2)}, {v(S+4*i+c,2)}")
        A(f"v_permlane32_swap_b32 v{S}, v{S+2}")
        A(f"v_permlane32_swap_b32 v{S+1}, v{S+3}")
        A(f"v_pk_add_f32 {v(S,2)}, {v(S,2)}, {v(S+2,2)}")
        stat_core(S, E, 48, 2, 1, 16)
        cub_sum(Z)
        A(f"v_mov_b32 v{CSUM}, v{Z}")
        tab_write(f"v{E+3}", f"v{E+2}", "1.0", "0", 48, True)
    SP, CL, AR_, AP = opt("sp", 1), opt("cl", 0), AR_IT, opt("ap", 10)
    jobs, extra = {}, {}
    S0, TB0 = opt("s0", 13), opt("tb0", 14)
    for it, j in ((SP - 1, lambda: part(SP)), (CL, clears), (SP, part2), (opt("cp0", 9), lambda: code_pf(1, 154)),
                  (AP, lambda: tagged("arr", dbgload)), (AP + 1, arrived), (S0, s0loads), (TB0, tables)):
        jobs.setdefault(it, []).append(j)
    ff = ffn_groups(0, TS2) + ffn_groups(1, XS) + ffn_groups(2, TS)
    assert min(FFS[8:16]) >= 14 and all(x <= 16 or 50 <= x < 59 for x in WO0)
    extra[13] = [ffn_srd(1, XS)]
    for k, gr in [(FFS[j], ff[j]) for j in list(range(16, 24)) + list(range(16))] + list(zip(WO0, wo_groups(range(1, 10), VO, "wo"))):
        (extra if k < 16 else LATE).setdefault(k, []).append(gr)
    q_loop(0, jobs, extra, {AR_: ["pub"]}, opt("lead0", {CL: 6, AP: 0, AP + 1: 10, S0: 1 if S0 == 13 else 10, TB0: 0}), post=opt("post0", [S0, TB0]))


def l_att():
    A.label("l_att")
    A.lines.append("@reset")
    emit([g for j, g in zip(WO1, wo_groups([10, 11], VO, "wo")) if j == 16])
    late(16)
    att_setup(1)
    A(f"s_lshr_b32 s33, s{sW4}, 1")
    A(f"s_add_u32 s33, s33, s{sRB}")
    A("s_sub_u32 s33, s33, 2")

    def halo():
        A(f"s_and_b32 s34, s{sW4}, 1")
        A(f"s_lshl_b32 s35, s{sHG}, 7")
        A("s_lshl_b32 s30, s33, 2")
        A("s_add_u32 s35, s35, s30")
        A("s_lshl_b32 s30, s34, 1")
        A("s_add_u32 s35, s35, s30")
        A("s_lshl_b32 s35, s35, 12")
        A(f"s_add_u32 s35, s35, s{sL}")
        A(f"s_lshl_b32 s30, s{sHG}, 8")
        A("s_lshl_b32 s31, s33, 4")
        A("s_add_u32 s30, s30, s31")
        A("s_lshl_b32 s31, s34, 3")
        A("s_add_u32 s30, s30, s31")
        A(f"s_add_u32 s30, s30, s{sL}")
        A(f"s_add_u32 s30, s30, {hex(KVF)}")
        A(f"v_and_b32 v40, 4, v{LN}")
        poll(lambda: A(f"buffer_load_dword v42, v40, {WSR}, s30 offen sc1"), lambda: A(f"v_cmp_ne_u32 vcc, s{sNON}, v42"))
        mark("kv_ok")
        A(f"s_lshl_b32 s30, s{sW4}, 13")
        for hd in range(2):
            for kv in range(2):
                for tt in range(2):
                    A(f"s_add_u32 m0, s30, {L_KV + hd*KVH + tt*4096}")
                    A(f"s_add_u32 s31, s35, {hd*262144 + tt*4096}")
                    for p in range(2):
                        A(f"buffer_load_dwordx4 v{L16}, {WSR}, s31 offen offset:{(2*kv+p)*1024} sc1 lds ;@h{hd}{kv}")
        W("h00")
    skip_if("s_cmp_lt_i32 s33, 0", halo)
    skip_if(f"s_cmp_eq_u32 s{sPATCH}, 0", lambda: A("s_waitcnt vmcnt(0)"))
    mark("x1_wait")
    A("s_barrier")

    def fix():
        A("s_cmp_lg_u32 s38, 0")
        A("s_cselect_b64 exec, -1, 0")
        A("ds_write_b16 v0, v1")
        A("s_mov_b64 exec, -1")
        A("s_waitcnt lgkmcnt(0)")
        A("s_barrier")
    skip_if(f"s_cmp_eq_u32 s{sPATCH}, 0", fix)
    att_qread()
    A("s_waitcnt vmcnt(0) lgkmcnt(0)")
    A("s_barrier")
    mark("att_go")
    XLA = opt("xla", 13)

    def hook(ps, d):
        if (ps - 1) * 9 + d == XLA:
            A("s_barrier")
        late(17 + (ps - 1) * 9 + d)
    attention(1, hook)
    flag_store("s31", True)
    mark("o_fl")
    late(40)
    wo_voff(VO)
    ffn_xaddr()
    A(f"s_mov_b32 s{sCI}, s{sL}")

    def nxt():
        if 40 in LATE:
            A("s_waitcnt vmcnt(0)")
        code_pf(2, 19)
        if PF:
            pf_setup(18, 35)
            for k in range(PFD):
                A.lines += pf_load(18, 19, k - 2, 35)
        ffn_perm()
        l_setup(1)
        A(f"s_sub_u32 s30, s{sKb}, 1")
        A(f"s_sub_u32 s{sKb}, s{sKa}, 3")
        A(f"s_mov_b32 s{sKa}, s30")
        xf_off(116)
        A(f"v_and_b32 v16, 15, v{LN}")
        A("v_lshlrev_b32 v16, 9, v16")
        srd_load(TS, 64, 4 * MB)
    skip_if(f"s_cmp_lg_u32 s{sL}, 0", nxt)
    A("s_barrier")
    emit(wo_groups(range(28, 32), VO, "wo"))
    A("s_waitcnt vmcnt(0)")
    A("s_barrier")
    A(f"s_cmp_lg_u32 s{sL}, 0")
    A("s_cbranch_scc1 l_tail")


def readsel(T, lane):
    for r_, i in ((sR, 0), (sIDX, 1), (sMEAN, 2), (sRSTD, 3)):
        A(f"v_readlane_b32 s{r_}, v{T+i}, {lane}")
    A(f"s_and_b32 s{sIDX}, s{sIDX}, 2047")


def l_layer1():
    S, E, TB, PR = 64, 52, 16, 100
    A(f"s_mov_b32 s{sL}, {LSTR}")
    emit(st_w(0) + st_w(1))
    A(f"s_lshl_b32 s30, s{sT}, 13")
    A(f"s_add_u32 s30, s30, {hex(STAT)}")
    prof_next()
    W("st0")
    A("s_barrier")
    emit(st_w(2))
    for ks in range(4):
        A(f"ds_read_b128 {v(PR+4*ks,4)}, v117 offset:{ks*512}")
    poll(lambda: A(f"buffer_load_dword v17, v16, {WSR}, s30 offen sc1"), lambda: sent_check([17], 18))
    mark("x_ok")
    emit(st_x(1, 1))
    tagged("stat", stat_loads(S, STAT))

    def stats():
        poll(stat_loads(S, STAT), lambda: sent_check(range(S, S + 32), 48), "stat")
        stat_core(S, E, 48)
        cand_publish(S, E, 48, PR, 0)
        mark("cand")
        A(f"v_add_f32 v56, 1.0, v{E+3}")
        A(f"v_mul_f32 v57, v{E+2}, v{E+3}")
        A("v_mul_f32 v58, v56, v56")
        A("v_sub_f32 v57, 0, v57")
        A(f"v_mul_f32 v58, v58, v{S+1}")
        A(f"v_add_f32 v58, {fl(EPS)}, v58")
        A("v_rsq_f32 v58, v58")
        A("v_mul_f32 v58, v58, v56")
        tab_write("v58", f"v{E+2}", "v56", "v57", 48)

    def arg():
        argmax_lane(TB, "tab")
        readsel(TB, "s32")
        tagged("x", xloads)
        mark("f_arg")
        idx_write()
        patch_flag()

    def gateup():
        poll(xloads, lambda: sent_check(range(XG, XG + 4), 30), "x")
        red_pre()
        ffn_gateup()

    def down():
        ffn_down()
        mark("f_down")

    def red():
        poll(red_loads, lambda: sent_check(range(RP, RP + 56), 30), "red")
        red_sum()
        A("s_lshl_b32 s32, s89, 5")
        A(f"s_add_u32 s32, s32, {hex(X2R)}")
        A(f"v_and_b32 v30, 1, v{LN}")
        A(f"v_bfe_u32 v31, v{LN}, 1, 1")
        A("v_lshlrev_b32 v30, 4, v30")
        A("v_lshl_add_u32 v30, v31, 3, v30")
        A("s_mov_b64 exec, 15")
        A(f"buffer_store_dwordx2 {v(RP,2)}, v30, {WSR}, s32 offen sc1")
        A("s_mov_b64 exec, -1")
        mark("f_red")
    T_, RL, XL, PL = opt("tb", 3), opt("rl", 8), opt("xl", 11), opt("pl", 14)
    SZ = XL + 1

    def x2loads():
        for kk in range(2):
            A(f"buffer_load_dwordx4 {v(XCH+4*kk,4)}, v19, {WSR}, s35 offen offset:{64*kk} sc1")

    def x2():
        A(f"s_add_u32 s35, s{(sKa, sKb)[SZ & 1]}, {SZ}")
        A("s_and_b32 s35, s35, 15")
        A("s_lshl_b32 s35, s35, 7")
        A(f"s_add_u32 s35, s35, {hex(X2R)}")
        A(f"v_and_b32 v19, 48, v{LN}")
        tagged("x2", x2loads)
        wch_reads(SZ)

    def z():
        poll(x2loads, lambda: sent_check(range(XCH, XCH + 8), 30), "x2")
        wch_reduce(CUB + LSTR, XCH)
        mark("f_z")
    Z, XR = 32, 48

    def zloads():
        cub_loads(Z, CUB + LSTR)
        A(f"s_mov_b32 s32, {hex(X2R)}")
        for i in range(2):
            A(f"buffer_load_dwordx4 {v(XR+4*i,4)}, v{L16}, {WSR}, s32 offen offset:{1024*i} sc1")

    def paddr():
        tagged("z", zloads)
        A(f"v_and_b32 v20, 7, v{LN}")
        A(f"v_lshrrev_b32 v21, 4, v{LN}")
        A("v_lshl_add_u32 v21, v20, 2, v21")
        A(f"s_and_b32 s34, s{sIDX}, 31")
        A("s_and_b32 s32, s34, 7")
        A("s_and_b32 s33, s34, 8")
        A("s_lshl_b32 s33, s33, 1")
        A("s_add_u32 s32, s32, s33")
        A("s_lshr_b32 s33, s34, 4")
        A("s_lshl_b32 s33, s33, 3")
        A("s_add_u32 s32, s32, s33")
        A(f"s_cmp_eq_u32 s{sW4}, 1")
        A("s_cselect_b32 s34, s32, s34")
        A("v_mov_b32 v20, s34")
        A(f"s_cmp_ge_u32 s{sW4}, 2")
        A("s_cselect_b64 vcc, -1, 0")
        A("s_cselect_b32 s32, 2048, 0")
        A("v_cndmask_b32 v30, v20, v21, vcc")
        A("v_cndmask_b32 v31, v21, v20, vcc")
        A("v_lshlrev_b32 v0, 4, v30")
        A("v_bfe_u32 v20, v31, 2, 2")
        A("v_lshl_add_u32 v0, v20, 9, v0")
        A("v_lshrrev_b32 v20, 4, v31")
        A("v_lshl_add_u32 v0, v20, 3, v0")
        A("v_and_b32 v20, 3, v31")
        A("v_lshl_add_u32 v0, v20, 1, v0")
        A("s_lshl_b32 s33, s39, 12")
        A("s_add_u32 s33, s33, s32")
        A(f"s_add_u32 s33, s33, {L_KV}")
        A("s_lshl_b32 s34, s39, 11")
        A(f"s_add_u32 s34, s34, {L_Q - 8*2048}")
        A("s_cmp_ge_u32 s39, 8")
        A("s_cselect_b32 s38, 1, 0")
        A("s_movk_i32 s32, 8192")
        A(f"s_cmp_eq_u32 s{sW4}, 0")
        A("s_cselect_b32 s33, s34, s33")
        A(f"s_cselect_b32 s32, s32, {KVH}")
        A("s_cselect_b32 s38, s38, 1")
        A(f"s_cselect_b32 s37, {fl(QSCALE)}, 1.0")
        A(f"v_bfe_u32 v20, v{LN}, 3, 1")
        A("v_mul_u32_u24 v20, s32, v20")
        A("v_add3_u32 v0, v0, v20, s33")

    def pval():
        poll(zloads, lambda: sent_check(range(Z, Z + 24), 30), "z")
        A("v_mov_b32 v28, 0")
        A("v_mov_b32 v29, 0")
        for p in range(8):
            A(f"v_dot2c_f32_bf16 v28, {ONES}, v{XR+p}")
            A(f"v_dot2c_f32_bf16 v29, v{XR+p}, v{XR+p}")
        cub_sum(Z)
        wave_red(28, 30)
        wave_red(29, 30)
        A(f"v_mul_f32 v28, {fl(1/1024)}, v28")
        A(f"v_mul_f32 v29, {fl(1/1024)}, v29")
        A("v_fma_f32 v29, -v28, v28, v29")
        A("v_max_f32 v29, 0, v29")
        A(f"v_add_f32 v29, {fl(EPS)}, v29")
        A("v_rsq_f32 v29, v29")
        A(f"v_fma_f32 v{Z}, -v28, v{CSUM}, v{Z}")
        A("v_mul_f32 v29, s37, v29")
        A(f"v_mul_f32 v{Z}, v{Z}, v29")
        A(f"v_cvt_pk_bf16_f32 v1, v{Z}, v{Z}")
        mark("f_patch")
    pat = lambda f: (lambda: skip_if(f"s_cmp_eq_u32 s{sPATCH}, 0", f, "pat"))
    jobs = {}
    for it, j in ((0, stats), (T_, lambda: tagged("tab", table_loads(TB))), (T_ + 1, arg), (T_ + 2, gateup), (T_ + 3, down),
                  (RL, lambda: isred(lambda: tagged("red", red_loads))), (RL + 1, lambda: isred(red)),
                  (XL, x2), (XL + 1, z), (13, lambda: code_pf(3, 154)), (PL, pat(paddr)), (min(PL + 1, 15), pat(pval))):
        jobs.setdefault(it, []).append(j)
    q_loop(1, jobs, {}, {}, opt("lead", {0: 4, T_: 0, T_ + 1: 0, RL: 0, RL + 1: 10, XL: 0}), {0: st_x(1, 2)})
    A("s_branch l_att")
    A.label("l_tail")
    A.lines.append("@reset")
    A("v_mov_b32 v20, 0")

    def epoch():
        A(f"s_mov_b32 s34, {hex(EPOCH)}")
        flag_store("s34")
    A(f"s_or_b32 s34, s{sCU}, s{sW4}")
    skip_if("s_cmp_lg_u32 s34, 0", epoch)
    A("s_barrier")
    A(f"ds_read_b128 {v(TB,4)}, v20 offset:{T_IDX}")
    A("s_waitcnt lgkmcnt(0)")
    readsel(TB, "0")
    mark("t_arg")
    poll(xloads, lambda: sent_check(range(XG, XG + 4), 30))
    mark("t_x")
    A(f"s_cmp_ge_u32 s{sF}, 224")
    A("s_cbranch_scc1 l_tred")
    ffn_gateup()
    A("s_waitcnt lgkmcnt(0)")
    A("s_barrier")
    ffn_down()
    mark("f_down")
    A("s_branch k_end")
    A.label("l_tred")
    A(f"s_cmp_ge_u32 s{sW4}, 2")
    A("s_cbranch_scc1 k_end")
    red_pre()
    poll(red_loads, lambda: sent_check(range(RP, RP + 56), 30))
    mark("t_py")
    red_sum()
    A(f"s_lshl_b32 s32, s{sIDX}, 11")
    A("s_lshl_b32 s33, s89, 5")
    A("s_add_u32 s32, s32, s33")
    A(f"v_lshlrev_b32 v30, 3, v{LN}")
    A("s_mov_b64 exec, 15")
    A(f"buffer_store_dwordx2 {v(RP,2)}, v30, s[{TS}:{TS+3}], s32 offen sc1")
    A("s_mov_b64 exec, -1")


def main():
    out = [x for x in ARGS if x.endswith(".s")]
    out = out[0] if out else os.path.join(os.path.dirname(os.path.abspath(__file__)), NAME + ".s")
    K = NAME + "_kernel"
    A(f".globl {K}")
    A(".p2align 8")
    A(f".type {K},@function")
    A.label(K)
    cap(ffn_perm)
    prologue()
    e_init()
    e_qphase()
    e_att()
    e_wo()
    l_layer0()
    l_att()
    l_layer1()
    A.label("k_end")
    if PAD:
        skip_if(f"s_cmp_lt_u32 s{sW}, 4", lambda: padat("end"))
    if PROF:
        A("s_waitcnt vmcnt(0)")
        mark("end")
        A(f"s_lshl_b32 s30, s{sCU}, 3")
        A(f"s_add_u32 s30, s30, s{sW}")
        A("s_lshl_b32 s30, s30, 9")
        A(f"s_add_u32 s30, s30, {hex(PROFOFF)}")
        A(f"v_lshlrev_b32 v0, 2, v{LN}")
        A(f"buffer_store_dword v{PRF2}, v0, {WSR}, s30 offen")
        A(f"buffer_store_dword v{PRF}, v0, {WSR}, s30 offen offset:256")
    A.label("k_exit")
    A("s_endpgm")
    assert len(MARKS) <= (64 if "-profq" in ARGS else 32), len(MARKS)
    A.lines = resolve(A.lines)
    A.hazard_pass(verbose="-v" in ARGS)
    txt = "; @launch grid=(256,1,1) block=(512,1,1) lds=163840\n"
    txt += "; marks: " + " ".join(MARKS) + "\n" if PROF else ""
    txt += '.amdgcn_target "amdgcn-amd-amdhsa--gfx950"\n.text\n' + A.text() + '.section .rodata,"a"\n.p2align 6\n'
    txt += f""".amdhsa_kernel {K}
  .amdhsa_next_free_vgpr 256
  .amdhsa_next_free_sgpr 102
  .amdhsa_accum_offset 256
  .amdhsa_group_segment_fixed_size 0
  .amdhsa_kernarg_size 88
  .amdhsa_user_sgpr_count 2
  .amdhsa_user_sgpr_kernarg_segment_ptr 1
  .amdhsa_system_sgpr_workgroup_id_x 1
.end_amdhsa_kernel
"""
    open(out, "w").write(txt)


main()
```

```python
import sys, os, struct, math, re
sys.path.insert(0, os.path.join(os.path.dirname(os.path.abspath(__file__)), "tools"))
from asmlib import *

NAME = "interleave_layers__sliding_block__moe_arch_mod__prompt"
KB, MB = 1 << 10, 1 << 20
ARGS = sys.argv[1:]


def opt(name, default):
    for x in ARGS:
        if x.startswith(name + "="):
            t = x.split("=", 1)[1]
            return eval(t) if isinstance(default, (list, tuple, dict)) else type(default)(t)
    return default


PROF = "-prof" in ARGS
USELOC = opt("loc", 1)
OSH, XFO = opt("osh", 1), opt("xfo", 0)
LSTR = 16 * MB
KVB, OFB, AR = 0, 8 * MB, 12 * MB
STAT, PY, CAND, CUB, SM = AR, AR + 512 * KB, AR + 1408 * KB, AR + 1536 * KB, AR + 1792 * KB
TABLE, X2R, KVF, OFL = SM, SM + 16 * KB, SM + 64 * KB, SM + 72 * KB
EPOCH, ROWF, COLF = SM + 96 * KB, SM + 100 * KB, SM + 104 * KB
EPINC = 0x9E3779B9
XFB = 32 * MB
STAT0, CUB0 = 36 * MB, 37 * MB
PROFOFF = 100 * MB
EPS = 1e-5
QSCALE = (32 ** -0.5) * math.log2(math.e)
ONES = "0x3f803f80"
T_A, T_M, T_CS, T_C, T_D, T_IDX, T_INB = 0, 512, 1024, 2048, 2560, 3072, 3328
L_W, WSL, L_X, XSL = 40960, 24576, 147456, 16384
L_Q, L_KV, KVH = 49152, 65536, 49152
sW, sRB, sHG, sL, sLIM, sW4, sF = 3, 24, 25, 26, 27, 28, 29
MS = 40
sCU, sIDX, sR, sMEAN, sRSTD, sLOC, sCNT, sCI = 72, 73, 74, 75, 76, 77, 78, 79
XS, WOS, TS, WS_, WSP = 4, 8, 12, 16, 20
TS2 = 80
sSX, sSW, sMX, sMW, sNON, sAC = 84, 85, 86, 87, 88, 89
sKa, sKb, sD0, sD1, sCG, sT, sPATCH, sMO = 94, 95, 96, 97, 98, 99, 100, 101
LN, L16, PRF2, PRF = 252, 253, 254, 255
P, WR, CC, DD, WSUM, EVO = 208, 224, 240, 241, 242, 243
GW, UW, DW, SPARE = 156, 188, 220, 155
CSUM = 2


def fl(x):
    return "0x%08x" % struct.unpack("<I", struct.pack("<f", x))[0]


A = Asm()
_lab = [0]
WSR = f"s[{WSP}:{WSP+3}]"
XFR = f"s[{TS}:{TS+3}]" if XFO else WSR


def newlab(p):
    _lab[0] += 1
    return f"{p}_{_lab[0]}"


def srd_fin(d, nbytes):
    A(f"s_mov_b32 s{d+2}, {hex(nbytes)}")
    A(f"s_mov_b32 s{d+3}, 0x20000")


def srd_load(d, karg, nbytes):
    A(f"s_load_dwordx2 s[{d}:{d+1}], s[0:1], {karg}")
    srd_fin(d, nbytes)
    A("s_waitcnt lgkmcnt(0)")


def cap(fn):
    keep = A.lines
    A.lines = []
    fn()
    out = A.lines
    A.lines = keep
    return out


def tagged(tag, fn):
    for ln in cap(fn):
        if ln.startswith("buffer_") and ";@" not in ln:
            ln += f" ;@{tag}"
        A.lines.append(ln)


def plain(fn):
    def f():
        for ln in cap(fn):
            m = re.fullmatch(r"v_pk_add_f32 v\[(\d+):\d+\], v\[(\d+):\d+\], v\[(\d+):\d+\]", ln)
            if m and opt("plain", 1):
                d, a_, b_ = map(int, m.groups())
                A.lines += [f"v_add_f32 v{d+i}, v{a_+i}, v{b_+i}" for i in range(2)]
            else:
                A.lines.append(ln)
    return f


def cut(fn):
    body = cap(fn)
    c = [-1] + [i for i, x in enumerate(body) if x == "@cut"] + [len(body)]
    return [(lambda a=a, b=b: A.lines.extend(body[a+1:b])) for a, b in zip(c, c[1:])]


def W(tags, lgkm=None):
    A.lines.append(f"@wait {tags} {'' if lgkm is None else lgkm}")


def cond(key, fn):
    A.lines.append(f"@cond {key}")
    fn()
    A.lines.append("@endcond")


def resolve(lines):
    out, issued, stack = [], [], []
    for ln in lines:
        if ln.startswith("@cond"):
            stack.append(ln.split()[1])
        elif ln == "@endcond":
            stack.pop()
        elif ln == "@cut":
            pass
        elif ln == "@reset":
            issued = []
        elif ln.startswith("@wait"):
            p = ln.split()
            tags = p[1].split(",")
            idx = [i for i, (t, c) in enumerate(issued) if t in tags]
            assert idx, f"wait for unknown tag {tags}"
            n = sum(1 for (t, c) in issued[idx[-1]+1:] if all(k in stack for k in c))
            out.append(f"s_waitcnt vmcnt({min(n, 63)})" + (f" lgkmcnt({p[2]})" if len(p) > 2 else ""))
        else:
            if ln.startswith("buffer_"):
                issued.append((ln.split(";@")[1] if ";@" in ln else None, tuple(stack)))
                ln = ln.split(";@")[0].strip()
            out.append(ln)
    return out


SCCW = ("s_add_", "s_sub_", "s_cmp", "s_and_", "s_or_", "s_xor_", "s_lshl", "s_lshr", "s_min", "s_max", "s_not", "s_bfe", "s_bitcmp")
SCCR = ("s_cselect", "s_cbranch_scc", "s_addc", "s_subb")


def safe_points(body):
    n = len(body)
    safe = [True] * (n + 1)
    pos = {ln[:-1]: i for i, ln in enumerate(body) if ln.endswith(":")}
    ex, depth, lastw = True, 0, -1
    for i, ln in enumerate(body):
        if ln.startswith(("s_cbranch", "s_branch")):
            j = pos[ln.split()[1]]
            for k in range(min(i, j) + 1, max(i, j) + 1):
                safe[k] = False
        if ln.startswith(SCCR):
            for k in range(lastw + 1, i + 1):
                safe[k] = False
        if ln.startswith(SCCW):
            lastw = i
        if re.match(r"s_\w+ exec", ln) or "saveexec" in ln:
            ex = ln == "s_mov_b64 exec, -1"
        if ln.startswith("@cond"):
            depth += 1
        if ln == "@endcond":
            depth -= 1
        if not ex or depth or ln.startswith("s_getpc"):
            safe[i + 1] = False
    return safe


def pieces(fn, k):
    body = cap(fn)
    safe = safe_points(body)
    fr = [(i + 1) / k for i in range(k - 1)] if isinstance(k, int) else k
    cuts = [0]
    for f in fr:
        c = max(int(f * len(body)), cuts[-1])
        while not safe[c]:
            c += 1
        cuts.append(c)
    cuts.append(len(body))
    return [(lambda a=a, b=b: A.lines.extend(body[a:b])) for a, b in zip(cuts, cuts[1:])]


def weave(groups, fn, lead=1, post=False):
    body = cap(fn)
    n = len(body)
    safe = safe_points(body)
    groups = list(groups)
    for g in groups[:lead]:
        A.lines += g
    groups = groups[lead:]
    k = 0
    lim = n
    if opt("wlim", 1):
        lim = min([i for i, x in enumerate(body) if x.startswith(("v_dot2", "buffer_store"))] + [n])
        while not safe[lim]:
            lim -= 1
    for i in range(n + 1):
        while k < len(groups) and not post and safe[i] and i >= (k + 1) * lim / (len(groups) + (lim == n)):
            A.lines += groups[k]
            k += 1
        if i < n:
            A.lines.append(body[i])
    for g in groups[k:]:
        A.lines += g


MARKS = {}


def mark(name):
    if name not in MARKS:
        MARKS[name] = len(MARKS)
    if PROF:
        A("s_memrealtime s[90:91]")
        if "-profq" not in ARGS:
            A("s_memtime s[92:93]")
        A("s_waitcnt lgkmcnt(0)")
        A(f"v_writelane_b32 v{PRF}, s90, {MARKS[name]}")
        if "-profq" not in ARGS:
            A(f"v_writelane_b32 v{PRF}, s92, {MARKS[name]+32}")


PAD = opt("pad", {})


def padat(name, L=None):
    if name not in PAD:
        return
    l, e = newlab("pad"), newlab("pad")
    if L is not None:
        A(f"s_cmp_lg_u32 s{sL}, {L*LSTR}")
        A(f"s_cbranch_scc1 {e}")
    A.label(l)
    A("s_memrealtime s[92:93]")
    A("s_waitcnt lgkmcnt(0)")
    A("s_sub_u32 s92, s92, s90")
    A(f"s_cmp_lt_u32 s92, {PAD[name]}")
    A(f"s_cbranch_scc1 {l}")
    A.label(e)


def markq(name):
    if "-profq" in ARGS:
        mark(name)


def prof_next():
    if PROF:
        A(f"v_mov_b32 v{PRF2}, v{PRF}")
        A(f"v_mov_b32 v{PRF}, 0")


def MF(d, a_, b_, c=None):
    cc = v(d, 16) if c is None else (c if isinstance(c, str) else v(c, 16))
    return f"v_mfma_f32_32x32x16_bf16 {v(d,16)}, {v(a_,4)}, {v(b_,4)}, {cc}"


def MF16(d, a_, b_):
    return f"v_mfma_f32_16x16x32_bf16 {v(d,4)}, {v(a_,4)}, {v(b_,4)}, {v(d,4)}"


DPPF = "row_mask:0xf bank_mask:0xf"


def wave_red(r, t, op="add", n=64):
    for sh in ("quad_perm:[1,0,3,2]", "quad_perm:[2,3,0,1]", "row_half_mirror", "row_mirror"):
        A(f"v_{op}_f32_dpp v{r}, v{r}, v{r} {sh} {DPPF}")
    A(f"v_mov_b32 v{t}, v{r}")
    A(f"v_permlane16_swap_b32 v{r}, v{t}")
    A(f"v_{op}_f32 v{r}, v{r}, v{t}")
    if n == 64:
        A(f"v_mov_b32 v{t}, v{r}")
        A(f"v_permlane32_swap_b32 v{r}, v{t}")
        A(f"v_{op}_f32 v{r}, v{r}, v{t}")


def tred4(r):
    A(f"v_permlane32_swap_b32 v{r}, v{r+2}")
    A(f"v_permlane32_swap_b32 v{r+1}, v{r+3}")
    A(f"v_add_f32 v{r}, v{r}, v{r+2}")
    A(f"v_add_f32 v{r+1}, v{r+1}, v{r+3}")
    A(f"v_permlane16_swap_b32 v{r}, v{r+1}")
    A(f"v_add_f32 v{r}, v{r}, v{r+1}")


SST = opt("sst", 4)


def sent_check(regs, t, step=1):
    regs = list(regs)[::step]
    if len(regs) == 1:
        A(f"v_cmp_eq_u32 vcc, -1, v{regs[0]}")
        return
    if len(regs) == 2:
        A(f"v_max_u32 v{t}, v{regs[0]}, v{regs[1]}")
        rest = []
    else:
        A(f"v_max3_u32 v{t}, v{regs[0]}, v{regs[1]}, v{regs[2]}")
        rest = regs[3:]
    while rest:
        if len(rest) >= 2:
            A(f"v_max3_u32 v{t}, v{t}, v{rest[0]}, v{rest[1]}")
            rest = rest[2:]
        else:
            A(f"v_max_u32 v{t}, v{t}, v{rest[0]}")
            rest = rest[1:]
    A(f"v_cmp_eq_u32 vcc, -1, v{t}")


def poll(loads, check, issued=None):
    top, chk, done = newlab("pl"), newlab("pc"), newlab("pd")
    A(f"s_mov_b32 s{sCNT}, s{sLIM}")
    if issued is not None:
        if isinstance(issued, int):
            A(f"s_waitcnt vmcnt({issued})")
        else:
            W(issued)
        A(f"s_branch {chk}")
    A.label(top)
    cond(top, lambda: A.lines.extend(x.split(";@")[0].strip() for x in cap(loads)))
    A("s_waitcnt vmcnt(0)")
    A.label(chk)
    check()
    A(f"s_cbranch_vccz {done}")
    A(f"s_sub_u32 s{sCNT}, s{sCNT}, 1")
    A(f"s_cmp_lg_u32 s{sCNT}, 0")
    A(f"s_cbranch_scc1 {top}")
    A(f"s_mov_b32 s{sLIM}, 1")
    A.label(done)


def skip_if(cmp, body, key=None):
    l = newlab("sk")
    A(cmp)
    A(f"s_cbranch_scc1 {l}")
    cond(key or l, body)
    A.label(l)


def st_loc(fn):
    if not USELOC:
        fn("sc1")
        return
    a_, b_ = newlab("lc"), newlab("lc")
    A(f"s_cmp_lg_u32 s{sLOC}, 0")
    A(f"s_cbranch_scc1 {a_}")
    cond(a_, lambda: fn("sc1"))
    A(f"s_branch {b_}")
    A.label(a_)
    fn("")
    A.label(b_)


def flag_store(so, loc=False):
    A(f"v_mov_b32 v154, s{sNON}")
    A("s_mov_b64 exec, 1")
    A("s_waitcnt vmcnt(0)")
    f = lambda bits: A(f"buffer_store_dword v154, v{L16}, {WSR}, {so} offen {bits}")
    if loc:
        st_loc(f)
    else:
        f("sc1")
    A("s_mov_b64 exec, -1")


def masks():
    for reg in range(16):
        G, r = reg >> 2, reg & 3
        key = 16 * (G & 1) + 8 * (G >> 1) + r
        A(f"s_mov_b32 s{MS+2*reg}, {hex((0xFFFFFFFF << key) & 0xFFFFFFFF)}")
        A(f"s_mov_b32 s{MS+2*reg+1}, {hex((0xFFFFFFFF << (key+4)) & 0xFFFFFFFF)}")


def prologue():
    A("s_cmp_ge_u32 s2, 256")
    A("s_cbranch_scc1 k_exit")
    A(f"s_load_dwordx4 s[{XS}:{XS+3}], s[0:1], 0")
    A(f"s_load_dwordx2 s[{WOS}:{WOS+1}], s[0:1], 16")
    A(f"s_load_dwordx2 s[{WSP}:{WSP+1}], s[0:1], 80")
    A(f"s_load_dwordx2 s[{TS2}:{TS2+1}], s[0:1], 32")
    A("v_lshrrev_b32 v1, 6, v0")
    A(f"v_and_b32 v{LN}, 63, v0")
    A(f"v_readfirstlane_b32 s{sW}, v1")
    A(f"v_lshlrev_b32 v{L16}, 4, v{LN}")
    A("s_and_b32 s30, s2, 7")
    A("s_lshr_b32 s31, s2, 3")
    A("s_and_b32 s32, s31, 1")
    A(f"s_lshl_b32 s33, s30, 1")
    A(f"s_add_u32 s{sRB}, s33, s32")
    A(f"s_lshr_b32 s{sHG}, s31, 1")
    A(f"s_add_u32 s33, s33, s{sHG}")
    A(f"s_add_u32 s{sKa}, s33, s32")
    A(f"s_sub_u32 s{sKb}, s33, s32")
    A(f"s_add_u32 s{sCG}, s{sKb}, 15")
    A(f"s_and_b32 s{sCG}, s{sCG}, 15")
    A(f"s_mul_i32 s{sF}, s30, 28")
    A(f"s_lshl_b32 s32, s30, 2")
    A(f"s_add_u32 s32, s32, {224-28}")
    A("s_cmp_lt_u32 s31, 28")
    A(f"s_cselect_b32 s{sF}, s{sF}, s32")
    A(f"s_add_u32 s{sF}, s{sF}, s31")
    A(f"s_lshl_b32 s{sCU}, s{sRB}, 4")
    A(f"s_add_u32 s{sCU}, s{sCU}, s{sHG}")
    A(f"s_mov_b32 s{sL}, 0")
    A(f"s_mov_b32 s{sLIM}, 20000")
    A(f"s_and_b32 s{sW4}, s{sW}, 3")
    A(f"s_lshl_b32 s{sT}, s{sRB}, 2")
    A(f"s_add_u32 s{sT}, s{sT}, s{sW4}")
    A(f"s_lshl_b32 s{sMO}, s{sW4}, 10")
    srd_fin(WS_, 6 * MB)
    srd_fin(WOS, 2 * MB)
    srd_fin(WSP, 128 * MB)
    srd_fin(TS2, 2048)
    if PROF:
        A(f"v_mov_b32 v{PRF}, 0")
        A(f"v_mov_b32 v{PRF2}, 0")
    mark("start")
    if PAD:
        A("s_memrealtime s[90:91]")
    A(f"s_cmp_ge_u32 s{sW}, 4")
    A("s_cbranch_scc1 l_start")


CPF = opt("cpf", 15)


def code_pf(bit, va, red=1):
    if not CPF >> bit & 1:
        return
    l = newlab("pc")
    n = 128 // red
    A("s_getpc_b64 s[32:33]")
    A.label(l)
    A(f"s_sub_u32 s32, s32, {l}-{NAME}_kernel")
    A("s_subb_u32 s33, s33, 0")
    A("s_lshr_b32 s34, s2, 3")
    A("s_lshl_b32 s34, s34, 2")
    A(f"s_add_u32 s34, s34, s{sW4}")
    A(f"s_and_b32 s34, s34, {n-1}")
    A("s_lshl_b32 s34, s34, 7")
    A(f"v_lshl_add_u32 v{va}, v{LN}, {7 + n.bit_length() - 1}, s34")
    A(f"s_mov_b32 s34, k_exit-{NAME}_kernel")
    A("s_mov_b32 s35, 0x20000")
    A(f"buffer_load_dword v{va}, v{va}, s[32:35], 0 offen")


def ptr_fin():
    A("s_waitcnt lgkmcnt(0)")
    A(f"s_mov_b32 s{sNON}, {hex(EPOCH)}")
    A(f"s_load_dword s{sNON}, s[{WSP}:{WSP+1}], s{sNON}")
    A(f"s_mov_b64 s[{WS_}:{WS_+1}], s[{XS+2}:{XS+3}]")
    srd_fin(XS, 4 * MB)


def wo_voff(dst):
    A(f"v_bfe_u32 v20, v{LN}, 3, 2")
    A(f"v_lshrrev_b32 v21, 5, v{LN}")
    A("v_lshl_add_u32 v20, v21, 3, v20")
    A(f"s_lshr_b32 s32, s{sW4}, 1")
    A("s_lshl_b32 s32, s32, 4")
    A(f"s_and_b32 s33, s{sW4}, 1")
    A("s_lshl_b32 s33, s33, 2")
    A("s_add_u32 s32, s32, s33")
    A("v_add_u32 v20, s32, v20")
    A("v_lshlrev_b32 v20, 11, v20")
    A(f"v_lshrrev_b32 v21, 2, v{LN}")
    A("v_and_b32 v21, 4, v21")
    A(f"v_xor_b32 v21, v21, v{LN}")
    A("v_and_b32 v21, 7, v21")
    A("v_lshl_add_u32 v20, v21, 4, v20")
    A(f"s_lshl_b32 s32, s{sCG}, 7")
    A(f"v_add_u32 v{dst}, s32, v20")


ROT = opt("rot", 1)


def wo_groups(slots, vo, tag):
    gs = []
    for j in slots:
        g = []
        if ROT:
            g += [f"s_add_u32 s{sD0}, s{sHG}, {j & 15}", f"s_and_b32 s{sD0}, s{sD0}, 15", f"s_lshl_b32 s{sD0}, s{sD0}, 17"]
            if j >= 16:
                g += [f"s_add_u32 s{sD0}, s{sD0}, 65536"]
        else:
            g += [f"s_mov_b32 s{sD0}, {(2*(j & 15) + (j >> 4))*65536}"]
        g += [f"s_add_u32 m0, s{sMO}, {4096*j}",
              f"buffer_load_dwordx4 v{vo}, s[{WOS}:{WOS+3}], s{sD0} offen lds ;@{tag}"]
        gs.append(g)
    return gs


def emit(groups):
    for g in groups:
        A.lines += g


FR = [96, 136]
XB, WB, XC, WC = 176, 178, 180, 182
KOF, VOF, KLD, VLD, QLD, TA = 244, 245, 246, 247, 248, 184
RA = 192
AR_IT = opt("ar", 4)


PF, PFD = opt("pf", 1), opt("pfd", 6)
PFA, PFT, sPB, sPK = 190, 191, 84, 85


def pf_setup(va, sPB=sPB):
    A(f"s_lshr_b32 s30, s{WS_}, 7")
    A("s_sub_u32 s30, 3, s30")
    A("s_and_b32 s30, s30, 7")
    A(f"s_and_b32 s31, s{sRB}, 1")
    A("s_lshl_b32 s31, s31, 3")
    A("s_add_u32 s30, s30, s31")
    A(f"s_and_b32 s31, s{sRB}, 14")
    A(f"s_add_u32 s{sPB}, s31, s30")
    A(f"s_lshl_b32 s31, s{sHG}, 2")
    A(f"s_add_u32 s31, s31, s{sW4}")
    A("s_mul_i32 s31, s31, 6144")
    A("s_lshl_b32 s30, s30, 7")
    A("s_add_u32 s30, s30, s31")
    A(f"v_min_u32 v{va}, 2, v{LN}")
    A(f"v_lshl_add_u32 v{va}, v{va}, 11, s30")


def pf_load(va, vt, k, sPB=sPB):
    return [f"s_add_u32 s30, s{sPB}, {k & 15}", "s_and_b32 s30, s30, 15", f"s_mul_i32 s30, s30, {64*6144}",
            f"buffer_load_dword v{vt}, v{va}, s[{WS_}:{WS_+3}], s30 offen"]


def e_init():
    code_pf(0, PFT, opt("cpr", 2))
    ptr_fin()
    A(f"s_load_dwordx2 s[{TS}:{TS+1}], s[0:1], 64")
    srd_fin(TS, 4 * MB)
    TCH = opt("tch", 0)
    if TCH:
        A(f"s_lshl_b32 s30, s{sHG}, 19")
        A(f"s_lshl_b32 s31, s{sRB}, 18")
        tl = [("s30", KVB), ("s31", OFB), ("s31", XFB), ("s30", KVB + LSTR)]
        for i, (r_, b_) in enumerate(tl):
            if TCH >> i & 1:
                A(f"s_add_u32 s32, {r_}, {hex(b_)}")
                if TCH & 256:
                    A(f"buffer_load_dword v{PFT}, off, {WSR}, s32")
                else:
                    A(f"s_load_dword s{sD0}, s[{WSP}:{WSP+1}], s32")
    if PF:
        pf_setup(PFA)
        for k in opt("pf0", [0, 1]):
            A.lines += pf_load(PFA, PFT, k)
    A(f"v_lshrrev_b32 v5, 5, v{LN}")
    A("v_lshlrev_b32 v6, 3, v5")
    A(f"s_lshl_b32 s33, s{sCG}, 7")
    for g in range(8):
        A(f"buffer_load_dwordx2 {v(WR+2*g,2)}, v6, s[{TS2}:{TS2+3}], s33 offen offset:{16*g}")
    masks()
    wo_voff(EVO)
    A(f"s_and_b32 s34, s{sW}, 1")
    A(f"s_lshr_b32 s35, s{sW}, 1")
    A(f"v_and_b32 v4, 15, v{LN}")
    A(f"v_lshrrev_b32 v7, 4, v{LN}")
    A("v_lshrrev_b32 v6, 1, v4")
    A("v_xor_b32 v6, v6, v7")
    A("v_lshlrev_b32 v6, 4, v6")
    A("v_lshl_add_u32 v6, v4, 7, v6")
    A("s_lshl_b32 s30, s34, 13")
    A(f"v_add_u32 v{XB}, s30, v6")
    A(f"v_xor_b32 v{XB+1}, 64, v{XB}")
    A("s_lshl_b32 s30, s35, 1")
    wtr_addr(WB, "s30", L_W)
    A(f"v_xor_b32 v{WB+1}, 32, v{WB}")
    A(f"v_and_b32 v8, 31, v{LN}")
    A("v_bfe_u32 v6, v8, 1, 3")
    A("v_xor_b32 v6, v6, v5")
    A("v_lshlrev_b32 v6, 4, v6")
    A("v_lshl_add_u32 v6, v8, 7, v6")
    A(f"s_lshl_b32 s30, s{sW}, 12")
    A(f"s_add_u32 s30, s30, {L_X}")
    A(f"v_add_u32 v{RA}, s30, v6")
    for ks in range(1, 4):
        A(f"v_xor_b32 v{RA+ks}, {32*ks}, v{RA}")
    A("s_lshl_b32 s30, s34, 8")
    A(f"v_lshl_add_u32 v{TA}, v4, 2, s30")
    A(f"v_lshl_add_u32 v{TA+1}, v7, 4, s30")
    A("s_lshl_b32 s30, s35, 7")
    A(f"v_lshl_add_u32 v{TA+2}, v7, 4, s30")
    A(f"s_add_u32 s30, s30, {T_CS+512}")
    A(f"v_lshl_add_u32 v{TA+3}, v4, 2, s30")
    A(f"s_lshl_b32 s30, s{sW}, 7")
    A(f"s_add_u32 s30, s30, {T_C}")
    A(f"v_lshl_add_u32 v{TA+4}, v8, 2, s30")
    A(f"v_mov_b32 v{TA+5}, 0")
    A("v_lshlrev_b32 v6, 9, v7")
    A(f"v_lshl_add_u32 v{VOF}, v4, 4, v6")
    A("v_and_b32 v9, 8, v4")
    A(f"v_lshl_add_u32 v{KOF}, v9, 4, v{VOF}")
    A(f"s_mul_i32 s30, s35, {KVH}")
    A("s_lshl_b32 s31, s34, 13")
    A("s_add_u32 s30, s30, s31")
    A(f"s_add_u32 s30, s30, {L_KV+8*4096}")
    A(f"v_add_u32 v{KLD}, s30, v{KOF}")
    A(f"v_add_u32 v{VLD}, s30, v{VOF}")
    A(f"s_lshl_b32 s30, s{sW}, 12")
    A(f"s_add_u32 s30, s30, {L_Q}")
    A(f"v_add_u32 v{QLD}, s30, v{VOF}")
    A("s_getreg_b32 s30, hwreg(HW_REG_XCC_ID, 0, 4)")
    A("v_mov_b32 v251, s30")
    A(f"s_lshl_b32 s30, s{sHG}, 4")
    A(f"s_add_u32 s30, s30, s{sRB}")
    A(f"s_sub_u32 s30, s30, s{sCU}")
    A(f"s_add_u32 s30, s30, {(COLF - ROWF) // 8}")
    A(f"v_mul_u32_u24 v249, s30, v{LN}")
    A(f"v_add_u32 v249, s{sCU}, v249")
    A("v_lshlrev_b32 v249, 3, v249")
    A(f"s_cmp_eq_u32 s{sW}, 0")
    A(f"s_cselect_b32 s{sAC}, {14 - AR_IT}, -1")
    A(f"v_mov_b32 v{WSUM}, 0")
    for i in range(96):
        A(f"v_mov_b32 v{i}, 0")
    A("s_waitcnt vmcnt(0) lgkmcnt(0)")
    A(f"s_add_u32 s{sNON}, s{sNON}, {hex(EPINC)}")
    A(f"v_mov_b32 v250, s{sNON}")
    for p in range(16):
        A(f"v_dot2c_f32_bf16 v{WSUM}, {ONES}, v{WR+p}")
    if PF:
        for k in opt("pf1", [2, 3, 4, 5]):
            A.lines += pf_load(PFA, PFT, k)
    A("s_setprio 1")


def wtr_addr(dst, ct, base):
    A(f"v_lshrrev_b32 v20, 2, v{LN}")
    A("v_bfe_u32 v21, v20, 1, 2")
    if ct is not None:
        A(f"v_xor_b32 v21, {ct}, v21")
    A("v_lshlrev_b32 v20, 7, v20")
    A("v_lshl_add_u32 v20, v21, 5, v20")
    A(f"v_and_b32 v21, 3, v{LN}")
    A("v_lshl_add_u32 v20, v21, 3, v20")
    A(f"v_add_u32 v{dst}, {base}, v20")


def accq(c, t):
    return 64 + (c & 1) * 16 + t * 4 if c >= 4 else (c >> 1) * 32 + t * 8 + (c & 1) * 4


def e_qphase():
    A.label("e_q")
    A.lines.append("@reset")
    A("s_mov_b32 s31, 0")
    A(f"s_mov_b32 s32, {L_X}")
    A("s_mov_b32 s36, 15")
    for i in range(2):
        A(f"v_add_u32 v{XC+i}, s32, v{XB+i}")
        A(f"v_mov_b32 v{WC+i}, v{WB+i}")

    def rd(fs, kk):
        f = FR[fs]
        x = [f"ds_read_b128 {v(f+4*t,4)}, v{XC+kk} offset:{t*2048}" for t in range(4)]
        w = [f"ds_read_b64_tr_b16 {v(f+16+8*seg+4*u+2*j,2)}, v{WC+u} offset:{seg*8192+kk*4096+j*2048}"
             for seg in range(3) for u in range(2) for j in range(2)]
        return [x[0], w[0], w[1], x[1], x[2], x[3]] + w[2:]

    def mf(fs, cs=range(6), snake=True):
        f = FR[fs]
        m = []
        for c in cs:
            for t in range(4):
                if snake and c & 1:
                    t = 3 - t
                a_, b_ = f + 16 + 4 * c, f + 4 * t
                if c >= 4:
                    a_, b_ = b_, a_
                m.append(MF16(accq(c, t), a_, b_))
        return m

    mark("q_wait")
    padat("q0", 0)
    padat("q1", 1)
    A("s_barrier")
    mark("q_go")
    for x in rd(0, 0):
        A(x)
    adv = [[f"s_cmp_eq_u32 s36, s{sAC}", "s_cbranch_scc1 e_arr", "e_arr_ret:"],
           [f"s_add_u32 s31, s31, {WSL}", f"s_sub_u32 s32, s32, {XSL}"],
           [f"s_cmp_ge_u32 s31, {3*WSL}", "s_cselect_b32 s31, 0, s31", f"s_cselect_b32 s32, {L_X}, s32"],
           [f"v_add_u32 v{WC}, s31, v{WB}", f"v_add_u32 v{XC}, s32, v{XB}"],
           [f"v_add_u32 v{WC+1}, s31, v{WB+1}", f"v_add_u32 v{XC+1}, s32, v{XB+1}"],
           ["s_sub_u32 s36, s36, 1", "s_cmp_eq_u32 s36, 0"]]
    if PF:
        A(f"s_add_u32 s{sPK}, s{sPB}, {PFD - 1}")
        adv[5:5] = [[f"s_add_u32 s{sPK}, s{sPK}, 1", f"s_and_b32 s30, s{sPK}, 15"],
                    [f"s_mul_i32 s30, s30, {64*6144}", f"s_cmp_ge_u32 s36, {PFD}"],
                    ["s_cselect_b64 exec, 7, 0", f"buffer_load_dword v{PFT}, v{PFA}, s[{WS_}:{WS_+3}], s30 offen", "s_mov_b64 exec, -1"]]
    A.label("e_loop")
    for ks in range(2):
        m, r = mf(ks), rd(ks ^ 1, ks ^ 1)
        A("s_waitcnt lgkmcnt(0)")
        A(m[0])
        if ks == 1:
            A("s_barrier")
        for i in range(1, 24):
            if i <= 16:
                A(r[i-1])
            elif 7 * ks + i - 17 < len(adv):
                A.lines += adv[7*ks+i-17]
            A(m[i])
    A("s_cbranch_scc0 e_loop")
    m, r = mf(0), rd(1, 1)
    A("s_waitcnt lgkmcnt(0)")
    sal = [[f"s_and_b32 s34, s{sW}, 1", f"s_lshr_b32 s35, s{sW}, 1", f"s_lshl_b32 s30, s{sHG}, 1"],
           ["s_add_u32 s30, s30, s35", "s_lshl_b32 s30, s30, 6", f"s_lshl_b32 s31, s{sRB}, 2"],
           ["s_add_u32 s30, s30, s31", "s_lshl_b32 s31, s34, 1", "s_add_u32 s30, s30, s31"],
           ["s_lshl_b32 s32, s30, 12", f"s_add_u32 s32, s32, s{sL}", "s_add_u32 s33, s32, 4096"]]
    for i in range(24):
        if 1 <= i <= 16:
            A(r[i-1])
        if i == 17:
            A(f"s_cmp_lg_u32 s{sL}, 0")
            A("s_cbranch_scc1 e_nores")
            for ks in range(4):
                A(f"ds_read_b128 {v(P+4*ks,4)}, v{RA+ks}")
            A.label("e_nores")
        if 18 <= i < 22:
            A.lines += sal[i-18]
        A(m[i])
    AV, MV, CSK, CSQ, AK, MK, CSV, IDX = 96, 112, 128, 196, 192, 204, 190, 250
    tab = [f"ds_read2_b32 {v(MK,2)}, v{TA} offset0:128 offset1:144",
           f"ds_read_b128 {v(CSK,4)}, v{TA+2} offset:{T_CS+256}",
           f"ds_read_b128 {v(CSK+4,4)}, v{TA+2} offset:{T_CS+256+64}",
           f"ds_read2_b32 {v(AK,2)}, v{TA} offset0:0 offset1:16",
           f"ds_read2_b32 {v(MK+2,2)}, v{TA} offset0:160 offset1:176",
           f"ds_read2_b32 {v(AK+2,2)}, v{TA} offset0:32 offset1:48",
           f"ds_read2_b32 {v(CSV,2)}, v{TA+3} offset0:0 offset1:16"]
    for t in range(4):
        tab += [f"ds_read_b128 {v(MV+4*t,4)}, v{TA+1} offset:{T_M+64*t}", f"ds_read_b128 {v(AV+4*t,4)}, v{TA+1} offset:{T_A+64*t}"]
    tab += [f"ds_read_b128 {v(CSQ,4)}, v{TA+2} offset:{T_CS}", f"ds_read_b128 {v(CSQ+4,4)}, v{TA+2} offset:{T_CS+64}",
            f"ds_read2_b32 {v(CC,2)}, v{TA+4} offset0:0 offset1:128", f"ds_read_b64 {v(IDX,2)}, v{TA+5} offset:{T_IDX}"]
    so = ["s32", "s33"]

    def sel(hi):
        return ("op_sel:[0,1,0] op_sel_hi:[1,1,1]", "op_sel:[0,1] op_sel_hi:[1,1]") if hi else ("op_sel_hi:[1,0,1]", "op_sel_hi:[1,0]")

    def qk(seg, t, pk=True):
        acc, cs = 32 * seg + 8 * t, (CSQ, CSK)[seg]
        s3, s2 = sel(t & 1)
        if not pk:
            return ([f"v_fma_f32 v{acc+p}, v{cs+p}, -v{MK+t}, v{acc+p}" for p in range(8)] +
                    [f"v_mul_f32 v{acc+p}, v{acc+p}, v{AK+t}" for p in range(8)] +
                    [f"v_cvt_pk_bf16_f32 v{acc+p}, v{acc+2*p}, v{acc+2*p+1}" for p in range(4)])
        o = [f"v_pk_fma_f32 {v(acc+2*p,2)}, {v(cs+2*p,2)}, {v(MK+(t&2),2)}, {v(acc+2*p,2)} {s3} neg_lo:[0,1,0] neg_hi:[0,1,0]" for p in range(4)]
        o += [f"v_pk_mul_f32 {v(acc+2*p,2)}, {v(acc+2*p,2)}, {v(AK+(t&2),2)} {s2}" for p in range(4)]
        o += [f"v_cvt_pk_bf16_f32 v{acc+p}, v{acc+2*p}, v{acc+2*p+1}" for p in range(4)]
        return o
    kep = []
    for t in range(4):
        kep += qk(1, t, opt("kpk", 0) or t >= 2) + [f"buffer_store_dwordx4 {v(32+8*t,4)}, v{KOF}, {WSR}, {so[t>>1]} offen offset:{(t&1)*128} sc1"]
    m = mf(1, [2, 3, 4, 5, 0, 1], False)
    A("s_waitcnt vmcnt(0) lgkmcnt(0)")
    A(m[0])
    A("s_barrier")
    for i in range(1, 24):
        A.lines += tab[2*(i-1):2*i]
        if i == 11:
            A("s_waitcnt lgkmcnt(13)")
        if i >= 11:
            A.lines += kep[3*(i-11):3*(i-10)]
            if opt("kpk", 0) > 1:
                A(f"s_nop {opt('kpk', 0)-2}")
        A(m[i])
    A.lines += kep[39:]
    mark("q_end")
    A("s_waitcnt lgkmcnt(0)")
    for T in range(2):
        for c in range(2):
            acc = 64 + 16 * c + 8 * T
            s3, _ = sel(c)
            for p in range(4):
                A(f"v_pk_fma_f32 {v(acc+2*p,2)}, {v(MV+8*T+2*p,2)}, {v(CSV,2)}, {v(acc+2*p,2)} {s3} neg_lo:[0,1,0] neg_hi:[0,1,0]")
            for p in range(4):
                A(f"v_pk_mul_f32 {v(acc+2*p,2)}, {v(acc+2*p,2)}, {v(AV+8*T+2*p,2)}")
            for p in range(4):
                A(f"v_cvt_pk_bf16_f32 v{acc+p}, v{acc+2*p}, v{acc+2*p+1}")
            A(f"buffer_store_dwordx4 {v(acc,4)}, v{VOF}, {WSR}, {so[T]} offen offset:{2048+c*256} sc1")
    mark("kv_st")
    for t in range(4):
        A(f"ds_write_b128 v{KLD}, {v(32+8*t,4)} offset:{(t>>1)*4096+(t&1)*128}")
        A(f"v_mul_f32 v{AK+t}, {fl(QSCALE)}, v{AK+t}")
    for t in range(4):
        A.lines += qk(0, t)
        A(f"ds_write_b128 v{VLD}, {v(64+16*(t&1)+8*(t>>1),4)} offset:{(t>>1)*4096+2048+(t&1)*256}")
        A(f"ds_write_b128 v{QLD}, {v(8*t,4)} offset:{(t>>1)*2048+(t&1)*256}")
    A(f"s_lshl_b32 s30, s{sHG}, 8")
    A(f"s_lshl_b32 s31, s{sRB}, 4")
    A("s_add_u32 s30, s30, s31")
    A("s_lshl_b32 s31, s34, 3")
    A("s_add_u32 s30, s30, s31")
    A("s_lshl_b32 s31, s35, 2")
    A("s_add_u32 s30, s30, s31")
    A(f"s_add_u32 s30, s30, s{sL}")
    A(f"s_add_u32 s30, s30, {hex(KVF)}")
    flag_store("s30")
    mark("kv_fl")
    A(f"v_readfirstlane_b32 s{sIDX}, v{IDX}")
    A(f"v_readfirstlane_b32 s{sLOC}, v{IDX+1}")
    patch_flag()

    def unswz():
        for ks in range(4):
            A(f"v_permlane32_swap_b32 v{P+4*ks}, v{P+4*ks+2}")
            A(f"v_permlane32_swap_b32 v{P+4*ks+1}, v{P+4*ks+3}")
    skip_if(f"s_cmp_lg_u32 s{sL}, 0", unswz)


def patch_flag():
    A(f"s_lshr_b32 s39, s{sIDX}, 5")
    A(f"s_lshl_b32 s34, s{sRB}, 2")
    A("s_sub_u32 s39, s39, s34")
    A("s_add_u32 s39, s39, 8")
    A("s_cmp_lt_u32 s39, 12")
    A(f"s_cselect_b32 s{sPATCH}, 1, 0")


Q, PM, AD, MX, SU0, SU1, CB, SM_, O, TM = 4, 12, 20, 21, 22, 23, 24, 40, 88, 152
SA, KF, VF, PP = [56, 72], [104, 112], [120, 128], [136, 144]


def att_setup(team):
    A("v_mov_b32 v20, 0xffff")
    A("v_mov_b32 v21, 0xffff0000")
    for p in range(8):
        A(f"v_cndmask_b32 v22, 0, v20, {s(MS+4*p,2)}")
        A(f"v_cndmask_b32 v23, 0, v21, {s(MS+4*p+2,2)}")
        A(f"v_or_b32 v{PM+p}, v22, v23")
    A(f"s_lshl_b32 s34, s{sW4}, 12")
    A(f"s_add_u32 s34, s34, {L_KV+team*KVH}")
    A(f"v_add_u32 v{AD}, s34, v{L16}")
    A(f"s_lshl_b32 s34, s{sW}, 11")
    A(f"s_add_u32 s34, s34, {L_Q}")
    A(f"v_add_u32 v3, s34, v{L16}")
    for i in range(16):
        A(f"v_mov_b32 v{CB+i}, 0")


def att_qread():
    A(f"ds_read_b128 {v(Q,4)}, v3")
    A(f"ds_read_b128 {v(Q+4,4)}, v3 offset:1024")


def attention(team, hook):
    def rdK(buf, d):
        A(f"ds_read_b128 {v(KF[buf],4)}, v{AD} offset:{(8-d)*4096}")
        A(f"ds_read_b128 {v(KF[buf]+4,4)}, v{AD} offset:{(8-d)*4096+1024}")

    def rdV(buf, d):
        A(f"ds_read_b128 {v(VF[buf],4)}, v{AD} offset:{(8-d)*4096+2048}")
        A(f"ds_read_b128 {v(VF[buf]+4,4)}, v{AD} offset:{(8-d)*4096+3072}")

    def neg_switch(d):
        l = newlab("ng")
        A(f"s_cmp_eq_u32 s{sT}, {d-1}")
        A(f"s_cbranch_scc0 {l}")
        for i in range(16):
            A(f"v_mov_b32 v{CB+i}, {fl(-1e30)}")
        A.label(l)

    def smf(dst, buf, c):
        A(MF(dst, KF[buf], Q, c))
        A(MF(dst, KF[buf] + 4, Q + 4))

    def maxes(src, first):
        for p in range(8):
            if first and p == 0:
                A(f"v_max_f32 v{MX}, v{src}, v{src+1}")
            else:
                A(f"v_max3_f32 v{MX}, v{MX}, v{src+2*p}, v{src+2*p+1}")
    rdK(0, 0)
    rdK(1, 1)
    A("s_waitcnt lgkmcnt(2)")
    smf(SM_, 0, "0")
    hook(1, 0)
    for d in range(1, 9):
        b = d & 1
        if d < 8:
            rdK(b ^ 1, d + 1)
        neg_switch(d)
        A(f"s_waitcnt lgkmcnt({2 if d < 8 else 0})")
        smf(SA[b], b, CB)
        if d >= 2:
            maxes(SA[b ^ 1], d == 2)
        hook(1, d)
    rdK(1, 1)
    rdV(0, 0)
    rdV(1, 8)
    for i in range(16):
        A(f"v_cndmask_b32 v{SM_+i}, v{SA[0]+i}, v{SM_+i}, {s(MS+2*i,2)}")
    maxes(SM_, False)
    A(f"v_mov_b32 v{TM}, v{MX}")
    A(f"v_permlane32_swap_b32 v{MX}, v{TM}")
    A(f"v_max_f32 v{MX}, v{MX}, v{TM}")
    for i in range(16):
        A(f"v_sub_f32 v{CB+i}, 0, v{MX}")
    neg_switch(1)
    A("s_waitcnt lgkmcnt(4)")
    smf(SA[1], 1, CB)
    rdK(0, 2)
    for i in range(16):
        A(f"v_sub_f32 v{SM_+i}, v{SM_+i}, v{MX}")
    for i in range(16):
        A(f"v_exp_f32 v{SM_+i}, v{SM_+i}")
    A(f"v_add_f32 v{SU0}, v{SM_}, v{SM_+1}")
    A(f"v_add_f32 v{SU1}, v{SM_+2}, v{SM_+3}")
    for i in range(4, 16):
        A(f"v_add_f32 v{SU0+(i&1)}, v{SU0+(i&1)}, v{SM_+i}")
    for p in range(8):
        A(f"v_cvt_pk_bf16_f32 v{PP[1]+p}, v{SM_+2*p}, v{SM_+2*p+1}")
    for p in range(8):
        A(f"v_and_b32 v{PP[0]+p}, v{PP[1]+p}, v{PM+p}")
    for p in range(8):
        A(f"v_xor_b32 v{PP[1]+p}, v{PP[1]+p}, v{PP[0]+p}")
    A("s_waitcnt lgkmcnt(2)")
    A(MF(O, VF[0], PP[0], "0"))
    A(MF(O, VF[0] + 4, PP[0] + 4))
    A(MF(O, VF[1], PP[1]))
    A(MF(O, VF[1] + 4, PP[1] + 4))
    hook(2, 0)
    for d in range(1, 8):
        b = d & 1
        rdV(b, d)
        if d < 7:
            neg_switch(d + 1)
            A("s_waitcnt lgkmcnt(2)")
            smf(SA[b ^ 1], b ^ 1, CB)
            if d < 6:
                rdK(b, d + 2)
        src = SA[b]
        for i in range(16):
            A(f"v_exp_f32 v{src+i}, v{src+i}")
        for i in range(16):
            A(f"v_add_f32 v{SU0+(i&1)}, v{SU0+(i&1)}, v{src+i}")
        for p in range(8):
            A(f"v_cvt_pk_bf16_f32 v{PP[b]+p}, v{src+2*p}, v{src+2*p+1}")
        A(f"s_waitcnt lgkmcnt({2 if d < 6 else 0})")
        A(MF(O, VF[b], PP[b]))
        A(MF(O, VF[b] + 4, PP[b] + 4))
        hook(2, d)
    A(f"v_add_f32 v{SU0}, v{SU0}, v{SU1}")
    A(f"v_mov_b32 v{TM}, v{SU0}")
    A(f"v_permlane32_swap_b32 v{SU0}, v{TM}")
    A(f"v_add_f32 v{SU0}, v{SU0}, v{TM}")
    A(f"v_rcp_f32 v{SU0}, v{SU0}")
    A(f"s_lshl_b32 s36, s{sT}, 16")
    if not OSH:
        A(f"s_add_u32 s36, s36, s{sL}")
    A(f"s_add_u32 s36, s36, {hex(OFB + team*32768)}")
    A(f"s_lshl_b32 s33, s{sHG}, 11")
    A("s_add_u32 s33, s33, s36")
    A(f"s_lshl_b32 s30, s{sRB}, 9")
    A(f"s_lshl_b32 s31, s{sW}, 6")
    A("s_add_u32 s30, s30, s31")
    A(f"s_add_u32 s30, s30, s{sL}")
    A(f"s_add_u32 s30, s30, {hex(OFL)}")
    A(f"s_lshl_b32 s31, s{sHG}, 2")
    A("s_add_u32 s31, s31, s30")
    for p in range(8):
        A(f"v_pk_mul_f32 {v(O+2*p,2)}, {v(O+2*p,2)}, {v(SU0,2)} op_sel_hi:[1,0]")
    for p in range(8):
        A(f"v_cvt_pk_bf16_f32 v{O+p}, v{O+2*p}, v{O+2*p+1}")

    def st(bits):
        A(f"buffer_store_dwordx4 {v(O,4)}, v{L16}, {WSR}, s33 offen {bits}")
        A(f"buffer_store_dwordx4 {v(O+4,4)}, v{L16}, {WSR}, s33 offen offset:1024 {bits}")
    st_loc(st)
    mark("att_end")


WO0, WO1 = opt("wo0", [13] * 3 + [16] * 6), opt("wo1", [16, 16])


def e_att():
    att_setup(0)
    A("s_waitcnt lgkmcnt(0)")
    mark("x1_wait")
    padat("a0", 0)
    padat("a1", 1)
    A("s_barrier")

    def fix():
        A("s_barrier")
        att_qread()
        A(f"s_lshr_b32 s34, s{sIDX}, 5")
        A("s_waitcnt lgkmcnt(0)")
        A("s_barrier")

        def row():
            A(f"s_and_b32 s32, s{sIDX}, 31")
            A(f"v_and_b32 v0, 31, v{LN}")
            A("v_cmp_eq_u32 vcc, s32, v0")
            A(f"v_lshrrev_b32 v0, 5, v{LN}")
            A("v_lshlrev_b32 v0, 4, v0")
            A(f"s_lshl_b32 s34, s{sCG}, 7")
            A(f"s_add_u32 s34, s34, {hex(X2R)}")
            A("s_mov_b64 exec, vcc")
            for ks in range(4):
                A(f"buffer_load_dwordx4 {v(P+4*ks,4)}, v0, {WSR}, s34 offen offset:{32*ks} sc1")
            A(f"v_mov_b32 v{CC}, 1.0")
            A(f"v_mov_b32 v{DD}, 0")
            A("s_mov_b64 exec, -1")
        skip_if(f"s_cmp_lg_u32 s34, s{sT}", row)
    skip_if(f"s_cmp_eq_u32 s{sPATCH}, 0", fix)
    mark("att_go")
    skip_if(f"s_cmp_lg_u32 s{sPATCH}, 0", att_qread)
    XE2 = opt("xe2", 5)
    al = wo_groups([0, 12, 13, 14, 15], EVO, "woa")

    def hook(ps, d):
        k = (ps - 1) * 9 + d
        g0 = [g for j, g in zip(WO0, wo_groups(range(1, 10), EVO, "wo0")) if j == 50 + k]
        if g0:
            skip_if(f"s_cmp_lg_u32 s{sL}, 0", lambda: emit(g0))
        emit([g for j, g in zip(WO1, wo_groups([10, 11], EVO, "wo0")) if j == 50 + k])
        if k == XE2:
            skip_if(f"s_cmp_lg_u32 s{sPATCH}, 0", lambda: A("s_barrier"))
        if 0 <= k - XE2 < 5:
            A.lines += al[k - XE2]
    attention(0, hook)


def table_loads(T):
    def f():
        A(f"s_add_u32 s32, s{sCI}, {hex(TABLE)}")
        A(f"buffer_load_dwordx4 {v(T,4)}, v{L16}, {WSR}, s32 offen sc1")
    return f


def argmax_lane(T, issued=None):
    poll(table_loads(T), lambda: sent_check(range(T, T + 4), T + 4), issued)
    A(f"v_mov_b32 v{T+4}, v{T}")
    wave_red(T + 4, T + 5, "max")
    A(f"v_cmp_eq_f32 vcc, v{T+4}, v{T}")
    A("s_ff1_i32_b64 s32, vcc")
    A("s_and_b32 s32, s32, 63")


def stat_loads(S, base):
    def f():
        A(f"s_lshl_b32 s30, s{sT}, 13")
        A(f"s_add_u32 s30, s30, {hex(base)}")
        A("s_add_u32 s31, s30, 4096")
        for i in range(8):
            A(f"buffer_load_dwordx4 {v(S+4*i,4)}, v{L16}, {WSR}, s{30+(i>>2)} offen offset:{(i&3)*1024} sc1")
    return f


def stat_core(S, E, t, nc=4, n=8, sw=32):
    for i in range(1, n):
        for c in range(0, nc, 2):
            A(f"v_pk_add_f32 {v(S+c,2)}, {v(S+c,2)}, {v(S+4*i+c,2)}")
    for i in range(nc):
        A(f"v_mov_b32 v{t+i}, v{S+i}")
    for i in range(nc):
        A(f"v_permlane{sw}_swap_b32 v{S+i}, v{t+i}")
    for i in range(nc):
        A(f"v_add_f32 v{S+i}, v{S+i}, v{t+i}")
    A(f"v_mul_f32 v{E+2}, {fl(1/1024)}, v{S}")
    A(f"v_mul_f32 v{S+1}, {fl(1/1024)}, v{S+1}")
    A(f"v_fma_f32 v{S+1}, -v{E+2}, v{E+2}, v{S+1}")
    A(f"v_max_f32 v{S+1}, 0, v{S+1}")
    A(f"v_add_f32 v{E+3}, {fl(EPS)}, v{S+1}")
    A(f"v_rsq_f32 v{E+3}, v{E+3}")


def cand_publish(S, E, t, PR, lay):
    A(f"v_fma_f32 v{E}, -v{E+2}, v{S+3}, v{S+2}")
    A(f"v_and_b32 v{E+1}, 31, v{LN}")
    A(f"v_mul_f32 v{E}, v{E}, v{E+3}")
    A(f"s_lshl_b32 s32, s{sT}, 5")
    A(f"v_add_u32 v{E+1}, s32, v{E+1}")
    A(f"v_mov_b32 v{t}, v{E}")
    wave_red(t, t + 1, "max", 32)
    A(f"v_cmp_eq_f32 vcc, v{t}, v{E}")
    A(f"v_lshrrev_b32 v{t+2}, 5, v{LN}")
    A(f"v_lshlrev_b32 v{t+2}, 4, v{t+2}")
    A(f"s_lshl_b32 s32, s{sT}, 11")
    A(f"s_lshl_b32 s33, s{sCG}, 7")
    A("s_add_u32 s32, s32, s33")
    A(f"s_add_u32 s32, s32, {hex(CAND + lay)}")
    A(f"s_lshl_b32 s34, s{sT}, 4")
    A(f"s_add_u32 s34, s34, {hex(TABLE + lay)}")
    A("s_ff1_i32_b32 s35, vcc_lo")
    A("s_lshl_b32 s35, 1, s35")
    A(f"s_cmp_eq_u32 s{sHG}, 0")
    A("s_cselect_b32 exec_lo, s35, 0")
    A("s_mov_b32 exec_hi, 0")
    cond(newlab("z"), lambda: A(f"buffer_store_dwordx4 {v(E,4)}, v{t+2}, {WSR}, s34 offen sc1"))
    A("s_mov_b32 exec_lo, s35")
    A("s_mov_b32 exec_hi, s35")
    for ks in range(4):
        A(f"buffer_store_dwordx4 {v(PR+4*ks,4)}, v{t+2}, {WSR}, s32 offen offset:{ks*32} sc1")
    A("s_mov_b64 exec, -1")


def xf_off(dst):
    A(f"v_bfe_u32 v{dst}, v{LN}, 4, 1")
    A(f"v_lshlrev_b32 v{dst}, 11, v{dst}")
    A(f"v_lshrrev_b32 v{dst+1}, 5, v{LN}")
    A(f"v_lshl_add_u32 v{dst}, v{dst+1}, 8, v{dst}")
    A(f"v_and_b32 v{dst+1}, 15, v{LN}")
    A(f"v_lshl_add_u32 v{dst}, v{dst+1}, 4, v{dst}")
    A(f"s_lshl_b32 s34, s{sW4}, 12")
    A(f"s_add_u32 s34, s34, {L_X}")
    A(f"v_add_u32 v{dst+1}, s34, v{dst}")


def e_wo():
    D = opt("wod", 8)
    WA, FA, FL, XO, OB = 56, 60, 61, 100, 104
    WF = [32, 40, 48]
    assert OB + 4 * (D + 1) <= 154
    A(f"v_bfe_u32 v33, v{LN}, 2, 2")
    A(f"v_lshrrev_b32 v32, 5, v{LN}")
    A("v_lshl_add_u32 v34, v32, 3, v33")
    A("v_lshlrev_b32 v34, 7, v34")
    A("v_lshrrev_b32 v33, 1, v33")
    A("v_lshl_add_u32 v34, v33, 6, v34")
    A(f"v_bfe_u32 v33, v{LN}, 4, 1")
    A("v_lshl_add_u32 v34, v33, 5, v34")
    A(f"v_and_b32 v33, 3, v{LN}")
    A(f"v_lshl_add_u32 v{WA}, v33, 3, v34")
    A(f"v_xor_b32 v{WA+1}, 64, v{WA}")
    A(f"v_add_u32 v{WA+2}, 0x10000, v{WA}")
    A(f"v_add_u32 v{WA+3}, 0x10000, v{WA+1}")
    A(f"v_and_b32 v{FA}, 15, v{LN}")
    A(f"v_lshlrev_b32 v{FA}, 2, v{FA}")
    W("woa")
    for p in range(16):
        A(f"v_lshlrev_b32 v{2*p}, 16, v{P+p}")
        A(f"v_and_b32 v{2*p+1}, 0xffff0000, v{P+p}")
    for p in range(16):
        A(f"v_pk_fma_f32 {v(2*p,2)}, {v(2*p,2)}, {v(CC,2)}, {v(CC,2)} op_sel:[0,0,1] op_sel_hi:[1,0,1]")
    flag_store("s31", True)
    mark("o_fl")
    A("s_barrier")
    mark("xa")
    emit(wo_groups(range(16, 28), EVO, "wob"))
    xf_off(XO)
    A(f"s_lshl_b32 s37, s{sHG}, 11" if ROT else "s_mov_b32 s37, 0")

    def rd(i):
        f = WF[i % 3]
        return [f"ds_read_b64_tr_b16 {v(f+4*u+2*j,2)}, v{WA+u+2*(i>>5)} offset:{(i&31)*2048+j*512}" for u in range(2) for j in range(2)]

    def ld(i):
        if i == 32:
            A("s_add_u32 s36, s36, 32768")
        if i & 1 == 0:
            A("s_add_u32 s38, s36, s37")
        else:
            A("s_add_u32 s37, s37, 2048")
            A("s_and_b32 s37, s37, 0x7800")
        A(f"buffer_load_dwordx4 {v(OB+4*(i%(D+1)),4)}, v{L16}, {WSR}, s38 offen offset:{(i&1)*1024} sc1 ;@o{i}")

    def fload(off):
        return lambda: A(f"buffer_load_dword v{FL}, v{FA}, {WSR}, s30 offen offset:{off} sc1")
    A.lines += rd(0) + rd(1)
    poll(fload(0), lambda: A(f"v_cmp_ne_u32 vcc, s{sNON}, v{FL}"))
    mark("o_ok0")
    for i in range(D):
        ld(i)
    FB = opt("wofb", 4)
    for i in range(64):
        f, ob = WF[i % 3], OB + 4 * (i % (D + 1))
        r = rd(i + 2) if i + 2 < 64 else []
        if i in (30, 54):
            A("s_barrier")
        W(f"o{i}", 4 if i < 63 else 0)
        A(MF(0, f, ob))
        if i + D == 32 - FB:
            tagged("fb", fload(256))
        if i + D == 32:
            poll(fload(256), lambda: A(f"v_cmp_ne_u32 vcc, s{sNON}, v{FL}"), "fb")
            mark("o_ok1")
        if i + D < 64:
            ld(i + D)
        A.lines += r[:2]
        A(MF(16, f + 4, ob))
        A.lines += r[2:]
    mark("wo_end")
    G = 96
    A(f"s_lshl_b32 s35, s{sRB}, 4")
    A(f"s_add_u32 s35, s35, s{sCG}")
    A("s_lshl_b32 s35, s35, 14")
    A(f"s_lshl_b32 s34, s{sW}, 12")
    A("s_add_u32 s35, s35, s34")
    if not XFO:
        A(f"s_add_u32 s35, s35, {hex(XFB)}")
    A(f"s_lshl_b32 s30, s{sT}, 13")
    A(f"s_add_u32 s30, s30, s{sL}")
    A(f"s_add_u32 s30, s30, {hex(STAT)}")
    A(f"s_lshl_b32 s31, s{sCG}, 9")
    A("s_add_u32 s31, s31, s30")
    for i in range(3):
        A(f"v_mov_b32 v{G+i}, 0")
    A(f"v_mov_b32 v{G+3}, v{WSUM}")
    for p in range(16):
        A(f"v_cvt_pk_bf16_f32 v{P+p}, v{2*p}, v{2*p+1}")

    def xfst():
        st_loc(lambda bits: [A(f"buffer_store_dwordx4 {v(P+4*ks,4)}, v{XO}, {XFR}, s35 offen offset:{ks*512} {opt('xbits', '') or bits}") for ks in range(4)])
        for ks in range(4):
            A(f"ds_write_b128 v{XO+1}, {v(P+4*ks,4)} offset:{ks*512}")
    skip_if(f"s_cmp_lg_u32 s{sL}, 0", xfst)
    for p in range(16):
        A(f"v_dot2c_f32_bf16 v{G}, {ONES}, v{P+p}")
        A(f"v_dot2c_f32_bf16 v{G+1}, v{P+p}, v{P+p}")
        A(f"v_dot2c_f32_bf16 v{G+2}, v{WR+p}, v{P+p}")
    for i in range(4):
        A(f"v_mov_b32 v{48+i}, v{G+i}")
    for i in range(4):
        A(f"v_permlane32_swap_b32 v{G+i}, v{48+i}")
    for i in range(4):
        A(f"v_add_f32 v{G+i}, v{G+i}, v{48+i}")
    A("s_mov_b32 exec_hi, 0")
    A("s_waitcnt vmcnt(0)")
    st_loc(lambda bits: A(f"buffer_store_dwordx4 {v(G,4)}, v{L16}, {WSR}, s31 offen {bits}"))
    A("s_mov_b64 exec, -1")
    mark("st_pub")
    A(f"s_cmp_lg_u32 s{sL}, 0")
    A("s_cbranch_scc1 e_final")
    A(f"s_mov_b32 s{sL}, {LSTR}")
    A(f"s_and_b32 s30, s{sW}, 1")
    A("s_lshl_b32 s30, s30, 13")
    A(f"v_add_u32 v{XB}, s30, v{L16}")
    A(f"v_add_u32 v{XB+1}, 1024, v{XB}")
    if PF:
        pf_setup(PFA)
        A(f"s_add_u32 s{sPB}, s{sPB}, 14")
    for i in range(96):
        A(f"v_mov_b32 v{i}, 0")
    prof_next()
    A("s_waitcnt lgkmcnt(0)")
    A("s_branch e_q")
    A.label("e_arr")
    A("s_mov_b64 exec, 3")
    A(f"s_mov_b32 s{sAC}, {hex(ROWF)}")
    A(f"buffer_store_dwordx2 v[250:251], v249, {WSR}, s{sAC} offen sc1")
    A("s_mov_b64 exec, -1")
    A("s_branch e_arr_ret")
    A.label("e_final")
    S, E = 64, 52
    poll(stat_loads(S, STAT + LSTR), lambda: sent_check(range(S, S + 32), 48, SST))
    mark("st_ok")
    stat_core(S, E, 48)
    cand_publish(S, E, 48, P, LSTR)
    mark("cand")
    A(f"v_add_f32 v{CC}, 1.0, v{E+3}")
    A(f"v_mul_f32 v{DD}, v{E+2}, v{E+3}")
    A(f"v_sub_f32 v{DD}, 0, v{DD}")
    for p in range(16):
        A(f"v_pk_fma_f32 {v(2*p,2)}, {v(2*p,2)}, {v(CC,2)}, {v(CC,2)} op_sel:[0,0,1] op_sel_hi:[1,0,1]")
    for p in range(16):
        A(f"v_cvt_pk_bf16_f32 v{64+p}, v{2*p}, v{2*p+1}")
    for ks in range(4):
        A(f"v_permlane32_swap_b32 v{64+4*ks}, v{64+4*ks+2}")
        A(f"v_permlane32_swap_b32 v{64+4*ks+1}, v{64+4*ks+3}")
    A(f"v_lshl_add_u32 v50, v{E+1}, 11, v50")
    A(f"s_mov_b32 s{sCI}, s{sL}")

    def arg():
        argmax_lane(0)
        A("s_lshl_b64 exec, 1, s32")
        A(f"ds_write_b128 v{TA+5}, v[0:3] offset:{T_IDX}")
        A("s_mov_b64 exec, -1")
    skip_if(f"s_cmp_lg_u32 s{sW}, 0", arg)
    A("s_waitcnt lgkmcnt(0)")
    A("s_barrier")
    A(f"ds_read_b32 v0, v{TA+5} offset:{T_IDX+4}")
    A("s_waitcnt lgkmcnt(0)")
    A("v_and_b32 v0, 0x7ff, v0")
    A(f"v_cmp_ne_u32 vcc, v0, v{E+1}")
    A("s_mov_b64 exec, vcc")
    for ks in range(4):
        A(f"buffer_store_dwordx4 {v(64+4*ks,4)}, v50, s[{TS}:{TS+3}], s33 offen offset:{ks*32} {opt('obits', '')}")
    A("s_mov_b64 exec, -1")
    A("s_branch k_end")


STAG = opt("stag", 1)
FV = [155, 155, 153]


def ffn_addr():
    A(f"v_lshrrev_b32 v20, 2, v{LN}")
    A("v_lshlrev_b32 v20, 2, v20")
    A(f"v_bfe_u32 v21, v{LN}, 1, 1")
    A("v_add_u32 v20, v20, v21")
    A(f"v_mul_u32_u24 v20, {4*7168}, v20")
    A(f"v_and_b32 v21, 1, v{LN}")
    A("v_lshl_add_u32 v20, v21, 4, v20")
    A(f"s_mul_i32 s30, s{sW4}, {256*7168}")
    A(f"s_lshl_b32 s31, s{sF}, 5")
    A("s_add_u32 s30, s30, s31")
    A(f"v_add_u32 v{FV[0]}, s30, v20")
    A("v_lshlrev_b32 v21, 14, v21")
    A(f"v_lshrrev_b32 v20, 1, v{LN}")
    A("v_lshl_add_u32 v20, v20, 4, v21")
    A(f"s_lshl_b32 s30, s{sW4}, 9")
    A(f"s_lshl_b32 s31, s{sF}, 15")
    A("s_add_u32 s30, s30, s31")
    A(f"v_add_u32 v{FV[2]}, s30, v20")


def ffn_srd(which, sd):
    karg, nb = [(40, 1024 * 7168), (48, 1024 * 7168), (56, 3584 * 2048)][which]
    if opt("noffn", 0) >> which & 1:
        nb = 0
    return [f"s_load_dwordx2 s[{sd}:{sd+1}], s[0:1], {karg}", f"s_cmp_lt_u32 s{sF}, 224",
            f"s_cselect_b32 s{sd+2}, {hex(nb)}, 0", f"s_mov_b32 s{sd+3}, 0x20000"]


def ffn_groups(which, sd):
    base = [GW, UW, DW][which]
    gs = []
    for j in range(8):
        g = []
        if which == 2:
            g += [f"s_mov_b32 s{sD0}, {j*2048}"]
        elif STAG:
            g += [f"s_xor_b32 s{sD0}, s{sF}, {j >> 1}", f"s_and_b32 s{sD1}, s{sD0}, 2", f"s_and_b32 s{sD0}, s{sD0}, 3",
                  f"s_mul_i32 s{sD1}, s{sD1}, {2*7168}", f"s_mul_i32 s{sD0}, s{sD0}, {2*7168}", f"s_add_u32 s{sD0}, s{sD0}, s{sD1}"]
            if j & 1:
                g += [f"s_add_u32 s{sD0}, s{sD0}, 7168"]
        else:
            g += [f"s_mov_b32 s{sD0}, {((j & 3) + 8*(j >> 2))*7168}"]
        g += [f"buffer_load_dwordx4 {v(base+4*j,4)}, v{FV[which]}, s[{sd}:{sd+3}], s{sD0} offen {opt('fbits', '')} ;@ffw"]
        gs.append(g)
    return gs


FFS = opt("ffs", list(range(17, 33)) + [40] * 8)
LATE = {}


def late(k):
    if k in LATE:
        skip_if(f"s_cmp_lg_u32 s{sL}, 0", lambda: emit(LATE[k]))


WMAP = {}


def ffn_perm():
    A("s_mov_b32 s30, 0x05040100")
    A("s_mov_b32 s31, 0x07060302")
    free = SPARE
    for m, base in enumerate((GW, UW, DW)):
        for p in range(4):
            for c in range(4):
                a_, b_ = base + 8 * p + c, base + 8 * p + 4 + c
                A(f"v_perm_b32 v{free}, v{b_}, v{a_}, s30")
                A(f"v_perm_b32 v{b_}, v{b_}, v{a_}, s31")
                WMAP[(m, p, 2 * c)] = free
                WMAP[(m, p, 2 * c + 1)] = b_
                free = a_


XG = 24


def ffn_xaddr():
    A(f"s_lshl_b32 s32, s{sW4}, 9")
    A(f"s_sub_u32 s34, s{sF}, 224")
    A("s_lshl_b32 s34, s34, 1")
    A(f"s_add_u32 s89, s34, s{sW4}")
    A(f"s_and_b32 s35, s{sW4}, 1")
    A("s_add_u32 s34, s34, s35")
    A("s_lshl_b32 s34, s34, 5")
    A(f"v_lshrrev_b32 v22, 1, v{LN}")
    A(f"v_and_b32 v23, 1, v{LN}")
    A(f"s_cmp_lt_u32 s{sF}, 224")
    A("s_cselect_b32 s32, s32, s34")
    A("s_cselect_b64 vcc, -1, 0")
    A("v_cndmask_b32 v22, v23, v22, vcc")
    A("v_lshl_add_u32 v22, v22, 4, s32")


def xloads():
    A(f"s_lshr_b32 s33, s{sIDX}, 5")
    A("s_lshl_b32 s33, s33, 11")
    A(f"s_add_u32 s33, s33, s{sCI}")
    A(f"s_add_u32 s33, s33, {hex(CAND)}")
    A(f"buffer_load_dwordx4 {v(XG,4)}, v22, {WSR}, s33 offen sc1")


def ffn_gateup():
    AC = 32
    A(f"v_mov_b32 v28, s{sRSTD}")
    A(f"v_mul_f32 v29, s{sMEAN}, v28")
    for p in range(4):
        A(f"v_lshlrev_b32 v30, 16, v{XG+p}")
        A(f"v_and_b32 v31, 0xffff0000, v{XG+p}")
        A("v_fma_f32 v30, v30, v28, -v29")
        A("v_fma_f32 v31, v31, v28, -v29")
        A(f"v_cvt_pk_bf16_f32 v{XG+p}, v30, v31")
    if STAG:
        for b in range(2):
            skip_if(f"s_bitcmp0_b32 s{sF}, {b}",
                    lambda: [A(f"v_swap_b32 v{XG+p}, v{XG+(p ^ (1 << b))}") for p in range(4) if not p >> b & 1])
    for p in range(4):
        for m in range(2):
            for c in range(8):
                acc = AC + 8 * m + c
                A(f"v_dot2_f32_bf16 v{acc}, v{WMAP[(m,p,c)]}, v{XG+p}, {'0' if p == 0 else 'v%d' % acc}")
    A.lines.append("@cut")
    A(f"v_lshrrev_b32 v31, 5, v{LN}")
    A("v_lshlrev_b32 v30, 6, v31")
    for c in range(8):
        A(f"v_permlane32_swap_b32 v{AC+c}, v{AC+8+c}")
    for c in range(8):
        A(f"v_add_f32 v{AC+c}, v{AC+c}, v{AC+8+c}")
    A(f"v_and_b32 v31, 1, v{LN}")
    A("v_lshl_add_u32 v30, v31, 5, v30")
    for c in range(4):
        A(f"v_permlane16_swap_b32 v{AC+c}, v{AC+4+c}")
    for c in range(4):
        A(f"v_add_f32 v{AC+c}, v{AC+c}, v{AC+4+c}")
    A(f"v_and_b32 v31, 16, v{LN}")
    A(f"s_lshl_b32 s32, s{sW4}, 7")
    A("v_add3_u32 v30, v31, v30, s32")
    for sh in ("quad_perm:[2,3,0,1]", "row_ror:4", "row_ror:8"):
        for c in range(4):
            A(f"v_add_f32_dpp v{AC+c}, v{AC+c}, v{AC+c} {sh} {DPPF}")
    A("s_mov_b32 exec_lo, 0x00030003")
    A("s_mov_b32 exec_hi, 0x00030003")
    A(f"ds_write_b128 v30, {v(AC,4)} offset:{T_INB}")
    A("s_mov_b64 exec, -1")


def ffn_down():
    A(f"v_and_b32 v30, 1, v{LN}")
    A(f"v_bfe_u32 v31, v{LN}, 1, 3")
    A("v_lshl_add_u32 v30, v30, 3, v31")
    A("v_lshlrev_b32 v30, 2, v30")
    A(f"v_add_u32 v30, {T_INB}, v30")
    for i in range(4):
        A(f"ds_read2_b32 {v(32+2*i,2)}, v30 offset0:{32*i} offset1:{32*i+16}")
    A(f"v_lshrrev_b32 v30, 2, v{LN}")
    A(f"v_mul_u32_u24 v30, {224*64}, v30")
    A(f"v_and_b32 v31, 3, v{LN}")
    A("v_lshl_add_u32 v30, v31, 4, v30")
    A(f"v_and_b32 v31, 1, v{LN}")
    A("v_cmp_eq_u32 vcc, 1, v31")
    A(f"s_mul_i32 s32, s{sW4}, {16*224*64}")
    A(f"s_lshl_b32 s33, s{sF}, 6")
    A("s_add_u32 s32, s32, s33")
    A(f"s_add_u32 s32, s32, s{sCI}")
    A(f"s_add_u32 s32, s32, {hex(PY)}")
    A("s_waitcnt lgkmcnt(0)")
    A("v_pk_add_f32 v[32:33], v[32:33], v[34:35]")
    A("v_pk_add_f32 v[36:37], v[36:37], v[38:39]")
    A("v_pk_add_f32 v[32:33], v[32:33], v[36:37]")
    A(f"v_mul_f32 v34, {fl(-math.log2(math.e))}, v32")
    A("v_exp_f32 v34, v34")
    A("v_mul_f32 v32, v32, v33")
    A("v_add_f32 v34, 1.0, v34")
    A("v_rcp_f32 v34, v34")
    A("v_mul_f32 v32, v32, v34")
    A(f"v_mov_b32_dpp v33, v32 quad_perm:[2,3,2,3] {DPPF}")
    A("v_cvt_pk_bf16_f32 v32, v32, v33")
    for p in range(4):
        A(f"ds_swizzle_b32 v{36+p}, v32 offset:{hex(1 | (4*p) << 5)}")
    A("s_waitcnt lgkmcnt(0)")
    AC = 40
    for p in range(4):
        for c in range(8):
            A(f"v_dot2_f32_bf16 v{AC+c}, v{WMAP[(2,p,c)]}, v{36+p}, {'0' if p == 0 else 'v%d' % (AC+c)}")
    A.lines.append("@cut")
    for c in range(8):
        A(f"v_add_f32_dpp v{AC+c}, v{AC+c}, v{AC+c} quad_perm:[1,0,3,2] {DPPF}")
    for c in range(4):
        A(f"v_cndmask_b32 v{AC+c}, v{AC+c}, v{AC+4+c}, vcc")
    A(f"s_cmp_lt_u32 s{sF}, 224")
    A("s_cselect_b64 exec, -1, 0")
    cond(newlab("z"), lambda: A(f"buffer_store_dwordx4 {v(AC,4)}, v30, {WSR}, s32 offen sc1"))
    A("s_mov_b64 exec, -1")


RP = 32


def red_loads():
    A(f"s_mul_i32 s32, s89, {224*64}")
    A(f"s_add_u32 s32, s32, s{sCI}")
    A(f"s_add_u32 s32, s32, {hex(PY)}")
    for i in range(14):
        A(f"buffer_load_dwordx4 {v(RP+4*i,4)}, v{L16}, {WSR}, s32 offen offset:{(i&3)*1024} sc1")
        if i & 3 == 3:
            A("s_add_u32 s32, s32, 4096")


def red_pre():
    A(f"v_and_b32 v30, 2, v{LN}")
    A("v_cmp_eq_u32 vcc, 2, v30")
    A(f"v_mov_b32 v28, s{sRSTD}")
    A(f"v_mul_f32 v29, s{sMEAN}, v28")
    A("v_add_f32 v28, 1.0, v28")
    A(f"v_cndmask_b32 v30, v{XG}, v{XG+2}, vcc")
    A(f"v_cndmask_b32 v31, v{XG+1}, v{XG+3}, vcc")
    A("v_lshlrev_b32 v92, 16, v30")
    A("v_and_b32 v93, 0xffff0000, v30")
    A("v_lshlrev_b32 v94, 16, v31")
    A("v_and_b32 v95, 0xffff0000, v31")
    for c in range(4):
        A(f"v_fma_f32 v{92+c}, v{92+c}, v28, -v29")
    A(f"v_mov_b32 v96, {fl(-math.log2(math.e))}")
    A(f"v_mul_f32 v96, s{sR}, v96")
    A("v_exp_f32 v96, v96")
    A("v_add_f32 v96, 1.0, v96")
    A("v_rcp_f32 v96, v96")


def red_sum():
    for i in range(1, 14):
        for c in range(0, 4, 2):
            A(f"v_pk_add_f32 {v(RP+c,2)}, {v(RP+c,2)}, {v(RP+4*i+c,2)}")
    for sh in ("row_ror:4", "row_ror:8"):
        for c in range(4):
            A(f"v_add_f32_dpp v{RP+c}, v{RP+c}, v{RP+c} {sh} {DPPF}")
    for sw in ("16", "32"):
        for c in range(4):
            A(f"v_mov_b32 v{RP+4+c}, v{RP+c}")
        for c in range(4):
            A(f"v_permlane{sw}_swap_b32 v{RP+c}, v{RP+4+c}")
        for c in range(4):
            A(f"v_add_f32 v{RP+c}, v{RP+c}, v{RP+4+c}")
    for c in range(4):
        A(f"v_fma_f32 v{RP+c}, v{RP+c}, v96, v{92+c}")
    A(f"v_cvt_pk_bf16_f32 v{RP}, v{RP}, v{RP+1}")
    A(f"v_cvt_pk_bf16_f32 v{RP+1}, v{RP+2}, v{RP+3}")


WCH, XCH, WAC = 100, 132, 140


def wch_reads(st):
    A(f"s_min_u32 s30, s{sW4}, 2")
    A("s_lshl_b32 s30, s30, 13")
    A(f"s_add_u32 s30, s30, {L_W + (st % 3)*WSL}")
    wtr_addr(144, None, "s30")
    for ct in range(1, 4):
        A(f"v_xor_b32 v{144+ct}, {32*ct}, v144")
    for ct in range(4):
        for q in range(4):
            A(f"ds_read_b64_tr_b16 {v(WCH+8*ct+2*q,2)}, v{144+ct} offset:{q*2048}")


def cub_base(base):
    A(f"s_min_u32 s32, s{sW4}, 2")
    A("s_lshl_b32 s32, s32, 12")
    A(f"s_lshl_b32 s33, s{sHG}, 14")
    A("s_add_u32 s32, s32, s33")
    A(f"s_add_u32 s32, s32, {hex(base)}")


def wch_reduce(base, x):
    for ct in range(4):
        A(f"v_mov_b32 v{WAC+ct}, 0")
    for q in range(8):
        for ct in range(4):
            A(f"v_dot2c_f32_bf16 v{WAC+ct}, {ONES if x is None else 'v%d' % (x+q)}, v{WCH+8*ct+q}")
    A.lines.append("@cut")
    cub_base(base)
    A(f"s_lshl_b32 s33, s{sRB}, 8")
    A("s_add_u32 s32, s32, s33")
    A(f"v_lshlrev_b32 v20, 2, v{LN}")
    tred4(WAC)
    A(f"buffer_store_dword v{WAC}, v20, {WSR}, s32 offen sc1")


def cub_loads(Z, base):
    cub_base(base)
    for i in range(4):
        A(f"buffer_load_dwordx4 {v(Z+4*i,4)}, v{L16}, {WSR}, s32 offen offset:{i*1024} sc1")


def cub_sum(Z):
    for i in range(1, 4):
        for c in range(0, 4, 2):
            A(f"v_pk_add_f32 {v(Z+c,2)}, {v(Z+c,2)}, {v(Z+4*i+c,2)}")
    tred4(Z)


def tab_write(a_, m_, c_, d_, t, alt=False):
    if alt:
        A(f"v_and_b32 v{t}, 15, v{LN}")
        A(f"v_lshrrev_b32 v{t+1}, 5, v{LN}")
        A(f"v_lshl_add_u32 v{t}, v{t}, 1, v{t+1}")
        A(f"v_bfe_u32 v{t+1}, v{LN}, 4, 1")
    else:
        A(f"v_and_b32 v{t}, 31, v{LN}")
        A(f"v_lshrrev_b32 v{t+1}, 5, v{LN}")
    A(f"v_cmp_eq_u32 vcc, 0, v{t+1}")
    A(f"v_lshlrev_b32 v{t+1}, 9, v{t+1}")
    A(f"v_lshl_add_u32 v{t}, v{t}, 2, v{t+1}")
    A(f"s_lshl_b32 s32, s{sW4}, 7")
    A(f"v_add_u32 v{t}, s32, v{t}")
    A(f"v_cndmask_b32 v{t+1}, {m_}, {a_}, vcc")
    A(f"v_cndmask_b32 v{t+2}, {d_}, {c_}, vcc")
    A(f"ds_write_b32 v{t}, v{t+1} offset:{T_A}")
    A(f"ds_write_b32 v{t}, v{t+2} offset:{T_C}")
    A(f"v_and_b32 v{t}, 15, v{LN}")
    A(f"v_lshrrev_b32 v{t+3}, 4, v{LN}")
    A(f"v_lshl_add_u32 v{t}, v{t}, 2, v{t+3}")
    A(f"s_min_u32 s32, s{sW4}, 2")
    A("s_lshl_b32 s32, s32, 8")
    A(f"v_lshl_add_u32 v{t}, v{t}, 2, s32")
    A(f"ds_write_b32 v{t}, v{CSUM} offset:{T_CS}")


def idx_write():
    A(f"v_mov_b32 v20, s{sIDX}")
    A(f"v_mov_b32 v21, s{sLOC}")
    A("v_mov_b32 v19, 0")
    A(f"ds_write_b64 v19, v[20:21] offset:{T_IDX}")


VX, VW, VO = 4, 8, 14


def l_setup(L):
    A(f"v_lshrrev_b32 v21, 3, v{LN}")
    if L == 0:
        A(f"v_lshrrev_b32 v20, 4, v{LN}")
        A(f"v_xor_b32 v20, v20, v{LN}")
        A("v_and_b32 v20, 7, v20")
        A("v_lshlrev_b32 v20, 4, v20")
        A(f"v_lshl_add_u32 v{VX}, v21, 11, v20")
        A(f"v_xor_b32 v{VX+1}, 64, v{VX}")
        A(f"v_add_u32 v{VX+1}, {16384-1024}, v{VX+1}")
        A(f"v_add_u32 v{VX+2}, {2*(16384-1024)}, v{VX}")
        A(f"v_add_u32 v{VX+3}, {2*(16384-1024)}, v{VX+1}")
        A(f"s_lshl_b32 s{sSX}, s{sT}, 16")
        A(f"s_lshl_b32 s{sSW}, s{sHG}, 7")
        A(f"s_lshl_b32 s{sMX}, s{sW4}, 12")
        A(f"s_mul_i32 s{sMW}, s{sW4}, 6144")
        A("v_and_b32 v20, 4, v21")
        A("v_add_u32 v20, v20, v21")
        A("v_mul_u32_u24 v20, 6144, v20")
    else:
        A(f"s_lshl_b32 s{sSX}, s{sRB}, 18")
        A(f"s_add_u32 s{sSX}, s{sSX}, s{sMX}")
        if not XFO:
            A(f"s_add_u32 s{sSX}, s{sSX}, {hex(XFB)}")
        A("v_mul_u32_u24 v20, 6144, v21")
    A("v_and_b32 v21, 6, v21")
    A(f"v_xor_b32 v21, v21, v{LN}")
    A("v_and_b32 v21, 7, v21")
    A("v_lshl_add_u32 v20, v21, 4, v20")
    A(f"s_mul_i32 s32, s{sW4}, 3")
    for m in range(3):
        A("s_bfe_u32 s33, s32, 0x10001")
        A(f"s_mul_i32 s33, s33, {32*6144}")
        A("s_and_b32 s34, s32, 1")
        A(f"s_mul_i32 s34, s34, {(4 if L == 0 else 8)*6144}")
        A("s_add_u32 s33, s33, s34")
        A("s_lshr_b32 s34, s32, 2")
        A("s_lshl_b32 s34, s34, 11")
        A("s_add_u32 s33, s33, s34")
        if m == 1:
            A("s_sub_u32 s33, s33, 2048")
        A(f"v_add_u32 v{VW+2*m}, s33, v20")
        A(f"v_add_u32 v{VW+2*m+1}, {16*6144-1024}, v{VW+2*m}")
        if m < 2:
            A("s_add_u32 s32, s32, 1")


def kreg(st):
    return [f"s_add_u32 s{sD0}, s{(sKa, sKb)[st & 1]}, {st}", f"s_and_b32 s{sD0}, s{sD0}, 15"]


def st_x(L, st, tag=None):
    gs = []
    for q in range(4):
        g = []
        if q == 0:
            g += kreg(st) + [f"s_lshl_b32 s{sD1}, s{sD0}, {7 if L == 0 else 14}", f"s_add_u32 s{sD1}, s{sD1}, s{sSX}",
                             f"s_add_u32 m0, s{sMX}, {L_X - XSL*(st % 3)}"]
        if L == 0:
            g += [f"buffer_load_dwordx4 v{VX+q}, s[{XS}:{XS+3}], s{sD1} offen offset:{q*1024} lds ;@{tag or 'st%d' % st}"]
        else:
            g += [f"buffer_load_dwordx4 v{L16}, {XFR}, s{sD1} offen offset:{q*1024} sc1 lds ;@{tag or 'st%d' % st}"]
        gs.append(g)
    return gs


def st_w(st, tag=None):
    gs = []
    for i in range(6):
        g = []
        if i == 0:
            g += kreg(st) + [f"s_mul_i32 s{sD0}, s{sD0}, {64*6144}", f"s_add_u32 s{sD0}, s{sD0}, s{sSW}"]
        if i & 3 == 0:
            g += [f"s_add_u32 m0, s{sMW}, {L_W + WSL*(st % 3) + 1024*i}"]
        g += [f"buffer_load_dwordx4 v{VW+i}, s[{WS_}:{WS_+3}], s{sD0} offen offset:{(i&3)*1024} lds ;@{tag or 'st%d' % st}"]
        gs.append(g)
    return gs


def q_loop(L, jobs, extra, force, lead, pre={}, post=[], first={}, dlead=2):
    for it in range(16):
        tags = ([f"st{it+1}"] if it < 15 else []) + force.get(it, [])
        if tags:
            W(",".join(tags), 0)
        else:
            A("s_waitcnt lgkmcnt(0)")
        pq = opt("pq", ())
        fine = pq and pq[0] <= it < pq[1]
        mq = markq if fine or not pq else lambda x: None
        mq(f"w{it}")
        A("s_barrier")
        mq(f"b{it}")
        for j in first.get(it, []):
            j()
        g = pre.get(it, []) + (st_x(L, it + 3) + st_w(it + 3) if it <= 12 else []) + extra.get(it, [])
        weave(g, lambda: [j() for j in [lambda: fine and mq(f"d{it}")] + jobs.get(it, [])], lead.get(it, dlead), it in post)
        if fine:
            mq(f"j{it}")


def isred(body, k=1):
    if k > 1:
        for x in pieces(body, k):
            isred(x)
        return
    l = newlab("sk")
    A(f"s_cmp_lt_u32 s{sF}, 224")
    A(f"s_cbranch_scc1 {l}")
    A(f"s_cmp_ge_u32 s{sW4}, 2")
    A(f"s_cbranch_scc1 {l}")
    cond("red", body)
    A.label(l)


def l_layer0():
    A.label("l_start")
    A.lines.append("@reset")
    l_setup(0)
    ptr_fin()
    g = st_x(0, 0) + st_w(0) + st_x(0, 1) + st_w(1) + st_x(0, 2) + st_w(2)
    N0, N1 = opt("n0", 8), opt("n1", 17)
    emit(g[:N0])
    masks()
    wo_voff(VO)
    ffn_addr()
    A.lines += ffn_srd(0, TS2) + ffn_srd(2, TS)
    A(f"s_mov_b32 s{sIDX}, -1")
    A(f"s_mov_b32 s{sPATCH}, 0")
    A(f"s_sub_u32 s30, s{sHG}, s{sRB}")
    A(f"s_add_u32 s30, s30, {(COLF - ROWF) // 128 - 1}")
    A(f"v_and_b32 v15, 16, v{LN}")
    A("v_mul_u32_u24 v15, s30, v15")
    A(f"v_and_b32 v20, 31, v{LN}")
    A("v_add_lshl_u32 v15, v15, v20, 3")
    A(f"s_lshl_b32 s30, s{sRB}, 7")
    A(f"s_add_u32 s30, s30, {hex(ROWF)}")
    A("v_add_u32 v15, s30, v15")
    emit(g[N0:N1])
    W("st0", 0)
    A(f"s_add_u32 s{sNON}, s{sNON}, {hex(EPINC)}")
    A("s_barrier")
    emit(g[N1:])
    S, E, Z = 64, 52, 32

    def clears():
        for i in range(4):
            A(f"v_mov_b32 v{16+i}, -1")
        A(f"s_lshr_b32 s30, s{sW4}, 1")
        A(f"s_mul_i32 s30, s30, {LSTR}")
        A(f"s_and_b32 s31, s{sW4}, 1")
        A("s_lshl_b32 s32, s31, 20")
        A(f"s_lshl_b32 s33, s{sCU}, 10")
        A("s_add_u32 s32, s32, s33")
        A("s_add_u32 s32, s32, s30")
        A(f"s_add_u32 s32, s32, {hex(AR)}")
        for i in range(3):
            A(f"buffer_store_dwordx4 v[16:19], v{L16}, {WSR}, s32 offen sc1 ;@pub")
            A(f"s_add_u32 s32, s32, {256*KB}")
        A(f"s_lshl_b32 s33, s{sCU}, 7")
        A("s_add_u32 s33, s33, s30")
        A(f"s_add_u32 s33, s33, {hex(SM)}")
        A("s_cmp_eq_u32 s31, 0")
        A("s_cselect_b32 s32, s32, s33")
        A("s_cselect_b64 exec, -1, 0xff")
        A(f"buffer_store_dwordx4 v[16:19], v{L16}, {WSR}, s32 offen sc1 ;@pub")
        A("s_mov_b64 exec, -1")

    def part(st):
        A(f"v_and_b32 v28, 31, v{LN}")
        A("v_bfe_u32 v29, v28, 1, 3")
        A(f"v_lshrrev_b32 v30, 5, v{LN}")
        A("v_xor_b32 v29, v29, v30")
        A("v_lshlrev_b32 v29, 4, v29")
        A("v_lshl_add_u32 v28, v28, 7, v29")
        A(f"s_add_u32 s30, s{sMX}, {L_X - XSL*(st % 3)}")
        A("v_add_u32 v28, s30, v28")
        for ks in range(1, 4):
            A(f"v_xor_b32 v{28+ks}, {32*ks}, v28")
        for ks in range(4):
            A(f"ds_read_b128 {v(32+4*ks,4)}, v{28+ks}")
        wch_reads(st)

    def part2():
        cs = cut(lambda: tagged("pub", lambda: wch_reduce(CUB0, None)))
        for i in range(4):
            A(f"v_mov_b32 v{48+i}, 0")
        cs[0]()
        for p in range(16):
            A(f"v_dot2c_f32_bf16 v{48+2*(p&1)}, {ONES}, v{32+p}")
            A(f"v_dot2c_f32_bf16 v{49+2*(p&1)}, v{32+p}, v{32+p}")
        A.lines.append("@cut")
        A(f"s_lshl_b32 s30, s{sT}, 12")
        A(f"s_lshl_b32 s31, s{sHG}, 8")
        A("s_add_u32 s30, s30, s31")
        A(f"s_add_u32 s30, s30, {hex(STAT0)}")
        A(f"v_lshlrev_b32 v28, 3, v{LN}")
        A("v_pk_add_f32 v[48:49], v[48:49], v[50:51]")
        A("v_mov_b32 v50, v48")
        A("v_mov_b32 v51, v49")
        A("v_permlane32_swap_b32 v48, v50")
        A("v_permlane32_swap_b32 v49, v51")
        A("v_pk_add_f32 v[48:49], v[48:49], v[50:51]")
        A("s_mov_b32 exec_hi, 0")
        A(f"buffer_store_dwordx2 v[48:49], v28, {WSR}, s30 offen sc1 ;@pub")
        A("s_mov_b64 exec, -1")
        cs[1]()

    def dbgload():
        A(f"buffer_load_dwordx2 v[16:17], v15, {WSR}, 0 offen sc1")

    def arrived():
        poll(dbgload, lambda: A(f"v_cmp_ne_u32 vcc, s{sNON}, v16"), "arr")
        mark("arr")
        A("s_getreg_b32 s30, hwreg(HW_REG_XCC_ID, 0, 4)")
        A("v_cmp_ne_u32 vcc, s30, v17")
        A("s_and_b32 s30, vcc_lo, 0xffff")
        A(f"s_cselect_b32 s{sLOC}, 0, 1")
        idx_write()

    def s0loads():
        A(f"s_lshl_b32 s30, s{sT}, 12")
        A(f"s_add_u32 s30, s30, {hex(STAT0)}")
        for i in range(4):
            A(f"buffer_load_dwordx4 {v(S+4*i,4)}, v{L16}, {WSR}, s30 offen offset:{i*1024} sc1 ;@s0")
        tagged("s0", lambda: cub_loads(Z, CUB0))

    def tables():
        W("s0")
        for i in range(1, 4):
            for c in range(0, 4, 2):
                A(f"v_pk_add_f32 {v(S+c,2)}, {v(S+c,2)}, {v(S+4*i+c,2)}")
        A(f"v_permlane32_swap_b32 v{S}, v{S+2}")
        A(f"v_permlane32_swap_b32 v{S+1}, v{S+3}")
        A(f"v_pk_add_f32 {v(S,2)}, {v(S,2)}, {v(S+2,2)}")
        stat_core(S, E, 48, 2, 1, 16)
        cub_sum(Z)
        A(f"v_mov_b32 v{CSUM}, v{Z}")
        tab_write(f"v{E+3}", f"v{E+2}", "1.0", "0", 48, True)
    SP, CL, AR_, AP = opt("sp", 1), opt("cl", 0), AR_IT, opt("ap", 10)
    jobs, extra = {}, {}
    S0, TB0 = opt("s0", 13), opt("tb0", 14)
    p2 = cut(plain(part2))
    for it, j in ((SP - 1, lambda: part(SP)), (CL, clears), (SP, p2[0]), (opt("sp2", SP + 1), p2[1]), (opt("cp0", 9), lambda: code_pf(1, 154)),
                  (AP, lambda: tagged("arr", dbgload)), (AP + 1, arrived), (S0, s0loads), (TB0, plain(tables))):
        jobs.setdefault(it, []).append(j)
    ff = ffn_groups(0, TS2) + ffn_groups(1, XS) + ffn_groups(2, TS)
    assert min(FFS[8:16]) >= 14 and all(x <= 16 or 50 <= x < 59 for x in WO0)
    extra[13] = [ffn_srd(1, XS)]
    for k, gr in [(FFS[j], ff[j]) for j in list(range(16, 24)) + list(range(16))] + list(zip(WO0, wo_groups(range(1, 10), VO, "wo"))):
        (extra if k < 16 else LATE).setdefault(k, []).append(gr)
    q_loop(0, jobs, extra, {AR_: ["pub"]}, opt("lead0", {CL: 2, AP: 0, AP + 1: 10, S0: 1 if S0 == 13 else 10, TB0: 0}), post=opt("post0", [S0, TB0]))


ZZ, ZX, ZT = 56, 72, 80


def zloads():
    cub_loads(ZZ, CUB + LSTR)
    A(f"s_mov_b32 s32, {hex(X2R)}")
    for i in range(2):
        A(f"buffer_load_dwordx4 {v(ZX+4*i,4)}, v{L16}, {WSR}, s32 offen offset:{1024*i} sc1")


def l_patch():
    A.label("l_patch")
    a, b, t = ZT, ZT + 1, ZT + 2
    poll(zloads, lambda: sent_check(range(ZZ, ZZ + 24), t), 16)
    A(f"v_mov_b32 v{a}, 0")
    A(f"v_mov_b32 v{b}, 0")
    for p in range(8):
        A(f"v_dot2c_f32_bf16 v{a}, {ONES}, v{ZX+p}")
        A(f"v_dot2c_f32_bf16 v{b}, v{ZX+p}, v{ZX+p}")
    cub_sum(ZZ)
    x, y = cap(lambda: wave_red(a, t)), cap(lambda: wave_red(b, t + 1))
    for i, j in zip(x, y):
        A.lines += [i, j]
    A(f"v_mul_f32 v{a}, {fl(1/1024)}, v{a}")
    A(f"v_mul_f32 v{b}, {fl(1/1024)}, v{b}")
    A(f"v_fma_f32 v{b}, -v{a}, v{a}, v{b}")
    A(f"v_max_f32 v{b}, 0, v{b}")
    A(f"v_add_f32 v{b}, {fl(EPS)}, v{b}")
    A(f"v_rsq_f32 v{b}, v{b}")
    A(f"v_fma_f32 v{ZZ}, -v{a}, v{CSUM}, v{ZZ}")
    A(f"v_mul_f32 v{b}, s37, v{b}")
    A(f"v_mul_f32 v{ZZ}, v{ZZ}, v{b}")
    A(f"v_cvt_pk_bf16_f32 v1, v{ZZ}, v{ZZ}")
    mark("f_patch")
    A("s_cmp_lg_u32 s38, 0")
    A("s_waitcnt vmcnt(0)")
    A("s_barrier")
    A("s_cselect_b64 exec, -1, 0")
    A("ds_write_b16 v0, v1")
    A("s_mov_b64 exec, -1")
    A("s_waitcnt lgkmcnt(0)")
    A("s_barrier")
    A("s_branch l_patched")


def l_att():
    A.label("l_att")
    A.lines.append("@reset")
    emit([g for j, g in zip(WO1, wo_groups([10, 11], VO, "wo")) if j == 16])
    late(16)
    att_setup(1)
    A(f"s_lshr_b32 s36, s{sW4}, 1")
    A(f"s_add_u32 s36, s36, s{sRB}")
    A("s_sub_u32 s36, s36, 2")

    def halo():
        A(f"s_and_b32 s34, s{sW4}, 1")
        A(f"s_lshl_b32 s35, s{sHG}, 7")
        A("s_lshl_b32 s30, s36, 2")
        A("s_add_u32 s35, s35, s30")
        A("s_lshl_b32 s30, s34, 1")
        A("s_add_u32 s35, s35, s30")
        A("s_lshl_b32 s35, s35, 12")
        A(f"s_add_u32 s35, s35, s{sL}")
        A(f"s_lshl_b32 s30, s{sHG}, 8")
        A("s_lshl_b32 s31, s36, 4")
        A("s_add_u32 s30, s30, s31")
        A("s_lshl_b32 s31, s34, 3")
        A("s_add_u32 s30, s30, s31")
        A(f"s_add_u32 s30, s30, s{sL}")
        A(f"s_add_u32 s30, s30, {hex(KVF)}")
        A(f"v_and_b32 v40, 4, v{LN}")
        poll(lambda: A(f"buffer_load_dword v42, v40, {WSR}, s30 offen sc1"), lambda: A(f"v_cmp_ne_u32 vcc, s{sNON}, v42"))
        mark("kv_ok")
    skip_if("s_cmp_lt_i32 s36, 0", halo)
    skip_if(f"s_cmp_eq_u32 s{sPATCH}, 0", zloads)
    A("s_cmp_lt_i32 s36, 0")
    A("s_cbranch_scc1 l_nohalo")
    A(f"s_lshl_b32 s30, s{sW4}, 13")
    for hd in range(2):
        for kv in range(2):
            for tt in range(2):
                A(f"s_add_u32 m0, s30, {L_KV + hd*KVH + tt*4096}")
                A(f"s_add_u32 s31, s35, {hd*262144 + tt*4096}")
                for p in range(2):
                    A(f"buffer_load_dwordx4 v{L16}, {WSR}, s31 offen offset:{(2*kv+p)*1024} sc1 lds")
    A("s_branch l_halo")
    A.label("l_nohalo")
    A("s_waitcnt vmcnt(0)")
    A.label("l_halo")
    A(f"s_cmp_lg_u32 s{sPATCH}, 0")
    A("s_cbranch_scc1 l_patch")
    A("s_waitcnt vmcnt(12)")
    mark("x1_wait")
    A("s_barrier")
    A.label("l_patched")
    att_qread()
    A("s_waitcnt vmcnt(0) lgkmcnt(0)")
    A("s_barrier")
    mark("att_go")
    XLA = opt("xla", 13)

    def hook(ps, d):
        if (ps - 1) * 9 + d == XLA:
            A("s_barrier")
        late(17 + (ps - 1) * 9 + d)
    attention(1, hook)
    flag_store("s31", True)
    mark("o_fl")
    late(40)
    wo_voff(VO)
    ffn_xaddr()
    A(f"s_mov_b32 s{sCI}, s{sL}")

    def nxt():
        if 40 in LATE:
            A("s_waitcnt vmcnt(0)")
        code_pf(2, 19)
        if PF:
            pf_setup(18, 35)
            for k in range(PFD):
                A.lines += pf_load(18, 19, k - 2, 35)
        ffn_perm()
        l_setup(1)
        A(f"s_sub_u32 s30, s{sKb}, 1")
        A(f"s_sub_u32 s{sKb}, s{sKa}, 3")
        A(f"s_mov_b32 s{sKa}, s30")
        xf_off(116)
        A(f"v_and_b32 v16, 15, v{LN}")
        A("v_lshlrev_b32 v16, 9, v16")
        srd_load(TS, 64, 4 * MB)
    skip_if(f"s_cmp_lg_u32 s{sL}, 0", nxt)
    A("s_barrier")
    emit(wo_groups(range(28, 32), VO, "wo"))
    A("s_waitcnt vmcnt(0)")
    A("s_barrier")
    A(f"s_cmp_lg_u32 s{sL}, 0")
    A("s_cbranch_scc1 l_tail")


def readsel(T, lane):
    for r_, i in ((sR, 0), (sIDX, 1), (sMEAN, 2), (sRSTD, 3)):
        A(f"v_readlane_b32 s{r_}, v{T+i}, {lane}")
    A(f"s_and_b32 s{sIDX}, s{sIDX}, 2047")


def l_layer1():
    S, E, TB, PR = 64, 52, 16, 32
    GATE = opt("gate", 1)
    A(f"s_mov_b32 s{sL}, {LSTR}")
    A("s_mov_b32 s36, 0")

    def gate(st):
        A.lines += kreg(st)

        def chk():
            A("v_cmp_ne_u32 vcc, -1, v17")
            A("s_mov_b32 s36, vcc_lo")
            if GATE:
                A(f"s_bitcmp0_b32 s36, s{sD0}")
            else:
                A("s_cmp_lg_u32 s36, -1")
            A("s_cselect_b64 vcc, -1, 0")

        def spin():
            A(f"s_lshl_b32 s30, s{sT}, 13")
            A(f"s_add_u32 s30, s30, {hex(STAT)}")
            poll(lambda: A(f"buffer_load_dword v17, v16, {WSR}, s30 offen sc1"), chk)
        skip_if(f"s_bitcmp1_b32 s36, s{sD0}", spin)
    emit(st_w(0) + st_w(1))
    prof_next()
    if GATE:
        gate(1)
        mark("x_ok")
        emit(st_x(1, 1))
    W("st0")
    A("s_barrier")
    emit(st_w(2))
    for ks in range(4):
        A(f"ds_read_b128 {v(PR+4*ks,4)}, v117 offset:{ks*512}")
    if not GATE:
        gate(1)
        mark("x_ok")
        emit(st_x(1, 1))
    SC = dict(stL=0, st1=0, st2=0, st3=1, tabL=3, arg=4, gu1=5, gu2=6, dn1=7, dn2=7, redL=10, red1=11, red2=11, x2L=14, wch=13, z=15, pad=14)
    SC.update(opt("sc", {}))
    if SC["stL"] < 0:
        tagged("stat", stat_loads(S, STAT))
    gate(2)
    emit(st_x(1, 2))

    def st1():
        poll(stat_loads(S, STAT), lambda: sent_check(range(S, S + 32), 48, SST), "stat")
        stat_core(S, E, 48)

    def st2():
        cand_publish(S, E, 48, PR, 0)
        mark("cand")

    def st3():
        A(f"v_add_f32 v56, 1.0, v{E+3}")
        A(f"v_mul_f32 v57, v{E+2}, v{E+3}")
        A("v_mul_f32 v58, v56, v56")
        A("v_sub_f32 v57, 0, v57")
        A(f"v_mul_f32 v58, v58, v{S+1}")
        A(f"v_add_f32 v58, {fl(EPS)}, v58")
        A("v_rsq_f32 v58, v58")
        A("v_mul_f32 v58, v58, v56")
        tab_write("v58", f"v{E+2}", "v56", "v57", 48)

    def arg():
        argmax_lane(TB, "tab")
        readsel(TB, "s32")
        tagged("x", xloads)
        mark("f_arg")
        idx_write()
        patch_flag()

    def gateup():
        poll(xloads, lambda: sent_check(range(XG, XG + 4), 30), "x")
        isred(red_pre)
        ffn_gateup()

    def down():
        ffn_down()
        mark("f_down")

    def red():
        poll(red_loads, lambda: sent_check(range(RP, RP + 56), 30, SST), "red")
        red_sum()
        A("s_lshl_b32 s32, s89, 5")
        A(f"s_add_u32 s32, s32, {hex(X2R)}")
        A(f"v_and_b32 v30, 1, v{LN}")
        A(f"v_bfe_u32 v31, v{LN}, 1, 1")
        A("v_lshlrev_b32 v30, 4, v30")
        A("v_lshl_add_u32 v30, v31, 3, v30")
        A("s_mov_b64 exec, 15")
        A(f"buffer_store_dwordx2 {v(RP,2)}, v30, {WSR}, s32 offen sc1")
        A("s_mov_b64 exec, -1")
        mark("f_red")
    SZ = SC["wch"] + 1

    def x2loads():
        A(f"s_add_u32 s35, s{(sKa, sKb)[SZ & 1]}, {SZ}")
        A("s_and_b32 s35, s35, 15")
        A("s_lshl_b32 s35, s35, 7")
        A(f"s_add_u32 s35, s35, {hex(X2R)}")
        A(f"v_and_b32 v19, 48, v{LN}")
        for kk in range(2):
            A(f"buffer_load_dwordx4 {v(XCH+4*kk,4)}, v19, {WSR}, s35 offen offset:{64*kk} sc1")

    def z():
        poll(x2loads, lambda: sent_check(range(XCH, XCH + 8), 30), "x2")
        wch_reduce(CUB + LSTR, XCH)
        mark("f_z")

    def paddr():
        A(f"v_and_b32 v20, 7, v{LN}")
        A(f"v_lshrrev_b32 v21, 4, v{LN}")
        A("v_lshl_add_u32 v21, v20, 2, v21")
        A(f"s_and_b32 s34, s{sIDX}, 31")
        A("s_and_b32 s32, s34, 7")
        A("s_and_b32 s33, s34, 8")
        A("s_lshl_b32 s33, s33, 1")
        A("s_add_u32 s32, s32, s33")
        A("s_lshr_b32 s33, s34, 4")
        A("s_lshl_b32 s33, s33, 3")
        A("s_add_u32 s32, s32, s33")
        A(f"s_cmp_eq_u32 s{sW4}, 1")
        A("s_cselect_b32 s34, s32, s34")
        A("v_mov_b32 v20, s34")
        A(f"s_cmp_ge_u32 s{sW4}, 2")
        A("s_cselect_b64 vcc, -1, 0")
        A("s_cselect_b32 s32, 2048, 0")
        A("v_cndmask_b32 v30, v20, v21, vcc")
        A("v_cndmask_b32 v31, v21, v20, vcc")
        A("v_lshlrev_b32 v0, 4, v30")
        A("v_bfe_u32 v20, v31, 2, 2")
        A("v_lshl_add_u32 v0, v20, 9, v0")
        A("v_lshrrev_b32 v20, 4, v31")
        A("v_lshl_add_u32 v0, v20, 3, v0")
        A("v_and_b32 v20, 3, v31")
        A("v_lshl_add_u32 v0, v20, 1, v0")
        A("s_lshl_b32 s33, s39, 12")
        A("s_add_u32 s33, s33, s32")
        A(f"s_add_u32 s33, s33, {L_KV}")
        A("s_lshl_b32 s34, s39, 11")
        A(f"s_add_u32 s34, s34, {L_Q - 8*2048}")
        A("s_cmp_ge_u32 s39, 8")
        A("s_cselect_b32 s38, 1, 0")
        A("s_movk_i32 s32, 8192")
        A(f"s_cmp_eq_u32 s{sW4}, 0")
        A("s_cselect_b32 s33, s34, s33")
        A(f"s_cselect_b32 s32, s32, {KVH}")
        A("s_cselect_b32 s38, s38, 1")
        A(f"s_cselect_b32 s37, {fl(QSCALE)}, 1.0")
        A(f"v_bfe_u32 v20, v{LN}, 3, 1")
        A("v_mul_u32_u24 v20, s32, v20")
        A("v_add3_u32 v0, v0, v20, s33")

    pat = lambda f: (lambda: skip_if(f"s_cmp_eq_u32 s{sPATCH}, 0", f, "pat"))
    gu, dn, rd = cut(gateup), cut(plain(down)), pieces(plain(red), [opt("rdf", 0.5)])
    jobs, first = {}, {}
    for k, j in (("stL", lambda: tagged("stat", stat_loads(S, STAT))), ("tabL", lambda: tagged("tab", table_loads(TB))),
                 ("redL", lambda: isred(lambda: tagged("red", red_loads))), ("x2L", lambda: tagged("x2", x2loads))):
        first.setdefault(SC[k], []).append(j)
    for it in range(SC["st1"] + 1):
        first.setdefault(it, []).append(lambda it=it: gate(it + 3))
    for k, j in (("st1", plain(st1)), ("st2", st2), ("st3", st3), ("arg", arg), ("gu1", gu[0]), ("gu2", gu[1]), ("dn1", dn[0]), ("dn2", dn[1]),
                 ("red1", lambda: isred(rd[0], 4)), ("red2", lambda: isred(rd[1], 4)), ("wch", lambda: wch_reads(SZ)), ("pad", pat(paddr)), ("z", z)):
        jobs.setdefault(SC[k], []).append(j)
    jobs.setdefault(13, []).append(lambda: code_pf(3, 154))
    assert SC["st3"] <= 14 and SC["arg"] <= 14 and SC["gu2"] < SC["dn1"] and SC["wch"] < SC["z"] and SC["st1"] < SC["tabL"]
    assert SC["st3"] < SC["redL"] and SC["dn2"] < SC["redL"] and SC["dn2"] <= SC["pad"] and SC["arg"] < SC["x2L"] and SC["dn2"] <= 13
    q_loop(1, jobs, {}, {}, opt("lead", {}), first=first, dlead=opt("dlead", 2))
    A("s_branch l_att")
    l_patch()
    A.label("l_tail")
    A.lines.append("@reset")
    A("v_mov_b32 v20, 0")

    def epoch():
        A(f"s_mov_b32 s34, {hex(EPOCH)}")
        flag_store("s34")
    A(f"s_or_b32 s34, s{sCU}, s{sW4}")
    skip_if("s_cmp_lg_u32 s34, 0", epoch)
    A("s_barrier")
    A(f"ds_read_b128 {v(TB,4)}, v20 offset:{T_IDX}")
    A("s_waitcnt lgkmcnt(0)")
    readsel(TB, "0")
    mark("t_arg")
    poll(xloads, lambda: sent_check(range(XG, XG + 4), 30))
    mark("t_x")
    A(f"s_cmp_ge_u32 s{sF}, 224")
    A("s_cbranch_scc1 l_tred")
    ffn_gateup()
    A("s_waitcnt lgkmcnt(0)")
    A("s_barrier")
    ffn_down()
    mark("f_down")
    A("s_branch k_end")
    A.label("l_tred")
    A(f"s_cmp_ge_u32 s{sW4}, 2")
    A("s_cbranch_scc1 k_end")
    red_pre()
    poll(red_loads, lambda: sent_check(range(RP, RP + 56), 30, SST))
    mark("t_py")
    red_sum()
    A(f"s_lshl_b32 s32, s{sIDX}, 11")
    A("s_lshl_b32 s33, s89, 5")
    A("s_add_u32 s32, s32, s33")
    A(f"v_lshlrev_b32 v30, 3, v{LN}")
    A("s_mov_b64 exec, 15")
    A(f"buffer_store_dwordx2 {v(RP,2)}, v30, s[{TS}:{TS+3}], s32 offen sc1")
    A("s_mov_b64 exec, -1")


def main():
    out = [x for x in ARGS if x.endswith(".s")]
    out = out[0] if out else os.path.join(os.path.dirname(os.path.abspath(__file__)), NAME + ".s")
    K = NAME + "_kernel"
    A(f".globl {K}")
    A(".p2align 8")
    A(f".type {K},@function")
    A.label(K)
    cap(ffn_perm)
    prologue()
    e_init()
    e_qphase()
    e_att()
    e_wo()
    l_layer0()
    l_att()
    l_layer1()
    A.label("k_end")
    if PAD:
        skip_if(f"s_cmp_lt_u32 s{sW}, 4", lambda: padat("end"))
    if PROF:
        A("s_waitcnt vmcnt(0)")
        mark("end")
        A(f"s_lshl_b32 s30, s{sCU}, 3")
        A(f"s_add_u32 s30, s30, s{sW}")
        A("s_lshl_b32 s30, s30, 9")
        A(f"s_add_u32 s30, s30, {hex(PROFOFF)}")
        A(f"v_lshlrev_b32 v0, 2, v{LN}")
        A(f"buffer_store_dword v{PRF2}, v0, {WSR}, s30 offen")
        A(f"buffer_store_dword v{PRF}, v0, {WSR}, s30 offen offset:256")
    A.label("k_exit")
    A("s_endpgm")
    assert len(MARKS) <= (64 if "-profq" in ARGS else 32), len(MARKS)
    A.lines = resolve(A.lines)
    A.hazard_pass(verbose="-v" in ARGS)
    txt = "; @launch grid=(256,1,1) block=(512,1,1) lds=163840\n"
    txt += "; marks: " + " ".join(MARKS) + "\n" if PROF else ""
    txt += '.amdgcn_target "amdgcn-amd-amdhsa--gfx950"\n.text\n' + A.text() + '.section .rodata,"a"\n.p2align 6\n'
    txt += f""".amdhsa_kernel {K}
  .amdhsa_next_free_vgpr 256
  .amdhsa_next_free_sgpr 102
  .amdhsa_accum_offset 256
  .amdhsa_group_segment_fixed_size 0
  .amdhsa_kernarg_size 88
  .amdhsa_user_sgpr_count 2
  .amdhsa_user_sgpr_kernarg_segment_ptr 1
  .amdhsa_system_sgpr_workgroup_id_x 1
.end_amdhsa_kernel
"""
    open(out, "w").write(txt)


main()
```

```python
import re

TRANS = ("v_exp_f32", "v_log_f32", "v_rcp_f32", "v_rsq_f32", "v_sqrt_f32", "v_sin_f32", "v_cos_f32",
         "v_rcp_iflag_f32")


def v(i, n=1):
    return f"v{i}" if n == 1 else f"v[{i}:{i+n-1}]"


def s(i, n=1):
    return f"s{i}" if n == 1 else f"s[{i}:{i+n-1}]"


def a(i, n=1):
    return f"a{i}" if n == 1 else f"a[{i}:{i+n-1}]"


_REG = re.compile(r"^-?\|?([vsa])(\d+)\|?$")
_RNG = re.compile(r"^-?\|?([vsa])\[(\d+):(\d+)\]\|?$")


def regs_of(tok):
    tok = tok.strip()
    m = _REG.match(tok)
    if m:
        return {(m.group(1), int(m.group(2)))}
    m = _RNG.match(tok)
    if m:
        return {(m.group(1), i) for i in range(int(m.group(2)), int(m.group(3)) + 1)}
    if tok in ("vcc", "vcc_lo", "vcc_hi"):
        return {("s", "vcc")}
    if tok in ("exec", "exec_lo", "exec_hi"):
        return {("s", "exec")}
    if tok == "m0":
        return {("s", "m0")}
    return set()


class Ins:
    def __init__(self, text):
        self.text = text
        t = text.split(";")[0].strip()
        self.label = t.endswith(":")
        self.dirv = t.startswith(".")
        self.op = ""
        self.w = set()
        self.r = set()
        self.ops = []
        if self.label or self.dirv or not t:
            return
        p = t.split(None, 1)
        self.op = op = p[0]
        rest = p[1] if len(p) > 1 else ""
        toks = [x.strip() for x in rest.split(",")] if rest else []
        mods = ""
        if toks:
            q = toks[-1].split(None, 1)
            toks[-1] = q[0]
            mods = q[1] if len(q) > 1 else ""
        cut = len(toks)
        for i, x in enumerate(toks):
            if "[" in x and "]" not in x and not re.match(r"^-?\|?[vsa]\[", x):
                cut = i + 1
                q = x.split(None, 1)
                toks[i] = q[0]
                break
        toks = [x.split()[0] if x else x for x in toks[:cut]]
        self.ops = toks
        self.mods = rest
        R = [regs_of(x) for x in toks]
        self.mfma = op.startswith("v_mfma")
        self.valu = op.startswith("v_") and not self.mfma
        self.salu = op.startswith("s_")
        self.vmem = op.startswith(("buffer_", "global_"))
        self.ds = op.startswith("ds_")
        self.trans = op.replace("_e32", "").replace("_e64", "") in TRANS
        self.dpp = ("row_" in rest or "quad_perm" in rest or "wave_" in rest) and self.valu
        self.perm = op.startswith("v_permlane")
        self.lds_dma = self.vmem and re.search(r"\blds\b", rest) is not None
        allr = set().union(*R) if R else set()
        if self.mfma:
            self.w = R[0]
            self.A, self.B, self.C = R[1], R[2], R[3]
            self.r = R[1] | R[2] | R[3]
            self.passes = 8 if "32x32" in op else 4
        elif self.valu:
            if (self.perm and "swap" in op) or op.startswith("v_swap"):
                self.w = R[0] | R[1]
                self.r = R[0] | R[1]
            elif op.startswith("v_cmpx"):
                self.w = {("s", "exec")} | R[0]
                self.r = set().union(*R[1:])
            elif op.startswith(("v_add_co", "v_sub_co", "v_addc_co", "v_subb_co", "v_div_scale")):
                self.w = R[0] | R[1]
                self.r = set().union(*R[2:])
            elif op == "v_nop":
                pass
            else:
                self.w = R[0]
                self.r = set().union(*R[1:]) if len(R) > 1 else set()
                if op.startswith(("v_fmac", "v_mac", "v_dot2c", "v_writelane")) or self.dpp or "sdwa" in op or "dst_sel" in rest:
                    self.r = self.r | R[0]
                if op.startswith("v_cndmask") and len(toks) == 3:
                    self.r = self.r | {("s", "vcc")}
        elif self.vmem:
            if "_load" in op and not self.lds_dma:
                self.w = R[0]
                self.r = set().union(*R[1:])
            elif "atomic" in op and re.search(r"\bsc0\b", rest):
                self.w = R[0]
                self.r = allr
            else:
                self.r = allr
            if self.lds_dma:
                self.r = self.r | {("s", "m0")}
            self.wide = ("store" in op and ("x3" in op or "x4" in op)) or "cmpswap_x2" in op
            self.data = R[0] if op.startswith("buffer_") else (R[1] if len(R) > 1 else set())
        elif self.ds:
            if op.startswith(("ds_read", "ds_bpermute", "ds_permute", "ds_swizzle")) or "_rtn" in op:
                self.w = R[0]
                self.r = set().union(*R[1:]) if len(R) > 1 else set()
            else:
                self.r = allr
        elif self.salu:
            if op.startswith(("s_cmp", "s_cbranch", "s_branch", "s_waitcnt", "s_barrier", "s_nop", "s_endpgm",
                              "s_setprio", "s_sleep", "s_bitcmp", "s_setreg")):
                self.r = allr
            else:
                self.w = R[0] if R else set()
                self.r = set().union(*R[1:]) if len(R) > 1 else set()
                if "saveexec" in op:
                    self.w = self.w | {("s", "exec")}

    def states(self):
        if self.op == "s_nop":
            return int(self.ops[0]) + 1
        return 1


def need(p, c):
    n = 0
    vw = {x for x in p.w if x[0] in "va"}
    sw = {x for x in p.w if x[0] == "s"}
    if p.valu and p.op.startswith("v_dot"):
        if c.op == p.op:
            ab = set().union(*[regs_of(x) for x in c.ops[1:3]])
            if vw & ab:
                n = max(n, 3)
        elif vw & (c.r | c.w):
            n = max(n, 3)
    if p.valu:
        if c.mfma and vw & c.r:
            n = max(n, 2)
        if c.mfma and p.op.startswith("v_pk_"):
            n = max(n, 1)
        if c.valu:
            if p.trans and not c.trans and vw & c.r:
                n = max(n, 1)
            if (c.dpp or c.perm) and vw & c.r:
                n = max(n, 2)
            if c.op.startswith(("v_readfirstlane", "v_readlane")) and vw & c.r:
                n = max(n, 1)
            if sw & c.r:
                n = max(n, 4 if c.op.startswith(("v_readlane", "v_writelane", "v_div_fmas")) else 2)
            if ("s", "exec") in sw:
                n = max(n, 5 if c.dpp else 4)
            if ("op_sel" in p.mods and not p.op.startswith("v_pk_")) or "dst_sel" in p.mods:
                if vw & (c.r | c.w):
                    n = max(n, 1)
        if c.vmem and sw & c.r:
            n = max(n, 5)
        if c.mfma and ("s", "exec") in sw:
            n = max(n, 4)
    if p.mfma:
        big = p.passes == 8
        if c.mfma:
            if p.w & (c.A | c.B):
                n = max(n, 12 if big else 8)
            if p.w & c.C and not (p.w == c.C and p.passes == c.passes):
                n = max(n, 10 if big else 6)
            if p.w & c.w and not (p.w == c.C):
                n = max(n, 0)
        elif c.valu or c.vmem or c.ds:
            if p.w & (c.r | c.w):
                n = max(n, 12 if big else 8)
            if (c.valu) and p.C & c.w:
                n = max(n, 7 if big else 3)
    if p.vmem and getattr(p, "wide", False):
        if p.data & c.w:
            n = max(n, 2 if c.valu else 1)
    if p.salu and ("s", "m0") in sw and c.vmem and c.lds_dma:
        n = max(n, 1)
    return n


class Asm:
    def __init__(self):
        self.lines = []

    def __call__(self, text):
        for ln in text.split("\n"):
            ln = ln.strip()
            if ln:
                self.lines.append(ln)

    def label(self, name):
        self.lines.append(name + ":")

    def hazard_pass(self, verbose=False):
        ins = [Ins(x) for x in self.lines]
        inserted = 0
        changed = True
        while changed:
            changed = False
            br = {}
            for x in ins:
                if x.op.startswith(("s_cbranch", "s_branch")):
                    br.setdefault(x.ops[0], []).append(x)
            for k, x in enumerate(ins):
                x.idx = k
            pad = {}
            for i, c in enumerate(ins):
                if not c.op or c.op == "s_nop":
                    continue
                worst = 0
                why = None
                stack = [(i - 1, 0)]
                seen = set()
                while stack:
                    j, d = stack.pop()
                    while j >= 0 and d < 13:
                        if (j, d) in seen:
                            break
                        seen.add((j, d))
                        p = ins[j]
                        if p.label:
                            for b in br.get(p.text[:-1], []):
                                stack.append((b.idx, d))
                            k = j - 1
                            while k >= 0 and not ins[k].op:
                                if ins[k].label:
                                    break
                                k -= 1
                            if k >= 0 and ins[k].op in ("s_branch", "s_endpgm"):
                                break
                            j -= 1
                            continue
                        if not p.op:
                            j -= 1
                            continue
                        n = need(p, c)
                        if n - d > worst:
                            worst = n - d
                            why = p.text
                        d += p.states() + pad.get(j, 0)
                        j -= 1
                if worst > 0:
                    if verbose:
                        print(f"hazard: +{worst} before '{c.text}' (after '{why}')")
                    pad[i] = worst
                    inserted += 1
                    changed = True
            if pad:
                new = []
                for i, c in enumerate(ins):
                    if i in pad:
                        new.append(Ins(f"s_nop {pad[i]-1}"))
                    new.append(c)
                ins = new
        self.lines = [x.text for x in ins]
        return inserted

    def text(self):
        out = []
        for ln in self.lines:
            if ln.endswith(":") or ln.startswith("."):
                out.append(ln)
            else:
                out.append("    " + ln)
        return "\n".join(out) + "\n"


def align_pass(lines, wnop=1.5, wpro=0.1, anti=False):
    import subprocess, tempfile, os
    B = "bin/"
    d = tempfile.mkdtemp()
    open(d + "/a.s", "w").write('.amdgcn_target "amdgcn-amd-amdhsa--gfx950"\n.text\n' + "\n".join(lines) + "\n")
    subprocess.check_call([B + "clang", "-target", "amdgcn-amd-amdhsa", "-mcpu=gfx950", "-c", d + "/a.s", "-o", d + "/a.o"])
    dis = subprocess.check_output([B + "llvm-objdump", "-d", d + "/a.o"], text=True)
    enc = [(x.split()[0], len(x.split("//")[1].split()) - 1) for x in dis.split("\n") if "//" in x]
    idx = [i for i, x in enumerate(lines) if Ins(x).op]
    assert len(idx) == len(enc), (len(idx), len(enc))
    bad = 0 if anti else 1
    best = [(0.0, None), (1e9, None)]
    prev = ""
    for k, (op, n) in enumerate(enc):
        nb = [(1e18, None), (1e18, None)]
        for par in (0, 1):
            c, ch = best[par]
            acts = [("", n, 0, 0.0)]
            if n == 1 and op.endswith("_e32") and not op.startswith(("v_readfirstlane", "v_swap", "v_dot2c", "v_nop")):
                acts.append(("p", 2, 0, wpro))
            if not prev.startswith("s_getpc"):
                acts.append(("n", n, 1, 0.01 if prev in ("s_branch", "s_endpgm") else wnop))
            for a_, sz, pre, w in acts:
                p0 = (par + pre) & 1
                cc = c + w + (1.0 if sz == 2 and p0 == bad else 0.0)
                p1 = (p0 + sz) & 1
                if cc < nb[p1][0]:
                    nb[p1] = (cc, (a_, k, ch) if a_ else ch)
        best = nb
        prev = op
    c, ch = min(best, key=lambda x: x[0])
    out = list(lines)
    np_ = nn = 0
    while ch:
        a_, k, ch = ch
        i = idx[k]
        if a_ == "p":
            t = out[i].split(None, 1)
            out[i] = t[0].replace("_e32", "") + "_e64 " + t[1]
            np_ += 1
        else:
            j = idx[k-1] + 1 if k and enc[k-1][0] in ("s_branch", "s_endpgm") else i
            out.insert(j, "s_nop 0")
            nn += 1
    off = mis = 0
    for op, n in enc:
        mis += n == 2 and off & 1
        off += n
    print(f"align: {mis} of {sum(n == 2 for _, n in enc)} wide misaligned before; cost {c:.0f}, widened {np_}, nops {nn}")
    return out
```

```python
import sys, os, struct, math, re
sys.path.insert(0, os.path.join(os.path.dirname(os.path.abspath(__file__)), "tools"))
from asmlib import *

NAME = "interleave_layers__sliding_block__moe_arch_mod__prompt"
KB, MB = 1 << 10, 1 << 20
ARGS = sys.argv[1:]


def opt(name, default):
    for x in ARGS:
        if x.startswith(name + "="):
            t = x.split("=", 1)[1]
            return eval(t) if isinstance(default, (list, tuple, dict)) else type(default)(t)
    return default


PROF = "-prof" in ARGS
USELOC = opt("loc", 1)
OSH, XFO = opt("osh", 1), opt("xfo", 0)
LSTR = 16 * MB
KVB, OFB, AR = 0, 8 * MB, 12 * MB
STAT, PY, CAND, CUB, SM = AR, AR + 512 * KB, AR + 1408 * KB, AR + 1536 * KB, AR + 1792 * KB
TABLE, X2R, KVF, OFL = SM, SM + 16 * KB, SM + 64 * KB, SM + 72 * KB
EPOCH, ROWF, COLF = SM + 96 * KB, SM + 100 * KB, SM + 104 * KB
EPINC = 0x9E3779B9
XFB = 32 * MB
STAT0, CUB0 = 36 * MB, 37 * MB
PROFOFF = 100 * MB
EPS = 1e-5
QSCALE = (32 ** -0.5) * math.log2(math.e)
ONES = "0x3f803f80"
T_A, T_M, T_CS, T_C, T_D, T_IDX, T_INB = 0, 512, 1024, 2048, 2560, 3072, 3328
L_W, WSL, L_X, XSL = 40960, 24576, 147456, 16384
L_Q, L_KV, KVH = 49152, 65536, 49152
sW, sRB, sHG, sL, sLIM, sW4, sF = 3, 24, 25, 26, 27, 28, 29
MS = 40
sCU, sIDX, sR, sMEAN, sRSTD, sLOC, sCNT, sCI = 72, 73, 74, 75, 76, 77, 78, 79
XS, WOS, TS, WS_, WSP = 4, 8, 12, 16, 20
TS2 = 80
sSX, sSW, sMX, sMW, sNON, sAC = 84, 85, 86, 87, 88, 89
sKa, sKb, sD0, sD1, sCG, sT, sPATCH, sMO = 94, 95, 96, 97, 98, 99, 100, 101
LN, L16, PRF2, PRF = 252, 253, 254, 255
P, WR, CC, DD, WSUM, EVO = 208, 224, 240, 241, 242, 243
GW, UW, DW, SPARE = 156, 188, 220, 155
CSUM = 2


def fl(x):
    return "0x%08x" % struct.unpack("<I", struct.pack("<f", x))[0]


A = Asm()
_lab = [0]
WSR = f"s[{WSP}:{WSP+3}]"
XFR = f"s[{TS}:{TS+3}]" if XFO else WSR


def newlab(p):
    _lab[0] += 1
    return f"{p}_{_lab[0]}"


def srd_fin(d, nbytes):
    A(f"s_mov_b32 s{d+2}, {hex(nbytes)}")
    A(f"s_mov_b32 s{d+3}, 0x20000")


def srd_load(d, karg, nbytes):
    A(f"s_load_dwordx2 s[{d}:{d+1}], s[0:1], {karg}")
    srd_fin(d, nbytes)
    A("s_waitcnt lgkmcnt(0)")


def cap(fn):
    keep = A.lines
    A.lines = []
    fn()
    out = A.lines
    A.lines = keep
    return out


def tagged(tag, fn):
    for ln in cap(fn):
        if ln.startswith("buffer_") and ";@" not in ln:
            ln += f" ;@{tag}"
        A.lines.append(ln)


def plain(fn):
    def f():
        for ln in cap(fn):
            m = re.fullmatch(r"v_pk_add_f32 v\[(\d+):\d+\], v\[(\d+):\d+\], v\[(\d+):\d+\]", ln)
            if m and opt("plain", 1):
                d, a_, b_ = map(int, m.groups())
                A.lines += [f"v_add_f32 v{d+i}, v{a_+i}, v{b_+i}" for i in range(2)]
            else:
                A.lines.append(ln)
    return f


def cut(fn):
    body = cap(fn)
    c = [-1] + [i for i, x in enumerate(body) if x == "@cut"] + [len(body)]
    return [(lambda a=a, b=b: A.lines.extend(body[a+1:b])) for a, b in zip(c, c[1:])]


def W(tags, lgkm=None):
    A.lines.append(f"@wait {tags} {'' if lgkm is None else lgkm}")


def cond(key, fn):
    A.lines.append(f"@cond {key}")
    fn()
    A.lines.append("@endcond")


def resolve(lines):
    out, issued, stack = [], [], []
    for ln in lines:
        if ln.startswith("@cond"):
            stack.append(ln.split()[1])
        elif ln == "@endcond":
            stack.pop()
        elif ln == "@cut":
            pass
        elif ln == "@reset":
            issued = []
        elif ln.startswith("@wait"):
            p = ln.split()
            tags = p[1].split(",")
            idx = [i for i, (t, c) in enumerate(issued) if t in tags]
            assert idx, f"wait for unknown tag {tags}"
            n = sum(1 for (t, c) in issued[idx[-1]+1:] if all(k in stack for k in c))
            out.append(f"s_waitcnt vmcnt({min(n, 63)})" + (f" lgkmcnt({p[2]})" if len(p) > 2 else ""))
        else:
            if ln.startswith("buffer_"):
                issued.append((ln.split(";@")[1] if ";@" in ln else None, tuple(stack)))
                ln = ln.split(";@")[0].strip()
            out.append(ln)
    return out


SCCW = ("s_add_", "s_sub_", "s_cmp", "s_and_", "s_or_", "s_xor_", "s_lshl", "s_lshr", "s_min", "s_max", "s_not", "s_bfe", "s_bitcmp")
SCCR = ("s_cselect", "s_cbranch_scc", "s_addc", "s_subb")


def safe_points(body):
    n = len(body)
    safe = [True] * (n + 1)
    pos = {ln[:-1]: i for i, ln in enumerate(body) if ln.endswith(":")}
    ex, depth, lastw = True, 0, -1
    for i, ln in enumerate(body):
        if ln.startswith(("s_cbranch", "s_branch")):
            j = pos[ln.split()[1]]
            for k in range(min(i, j) + 1, max(i, j) + 1):
                safe[k] = False
        if ln.startswith(SCCR):
            for k in range(lastw + 1, i + 1):
                safe[k] = False
        if ln.startswith(SCCW):
            lastw = i
        if re.match(r"s_\w+ exec", ln) or "saveexec" in ln:
            ex = ln == "s_mov_b64 exec, -1"
        if ln.startswith("@cond"):
            depth += 1
        if ln == "@endcond":
            depth -= 1
        if not ex or depth or ln.startswith("s_getpc"):
            safe[i + 1] = False
    return safe


def pieces(fn, k):
    body = cap(fn)
    safe = safe_points(body)
    fr = [(i + 1) / k for i in range(k - 1)] if isinstance(k, int) else k
    cuts = [0]
    for f in fr:
        c = max(int(f * len(body)), cuts[-1])
        while not safe[c]:
            c += 1
        cuts.append(c)
    cuts.append(len(body))
    return [(lambda a=a, b=b: A.lines.extend(body[a:b])) for a, b in zip(cuts, cuts[1:])]


def weave(groups, fn, lead=1, post=False):
    body = cap(fn)
    n = len(body)
    safe = safe_points(body)
    groups = list(groups)
    for g in groups[:lead]:
        A.lines += g
    groups = groups[lead:]
    k = 0
    lim = n
    if opt("wlim", 1):
        lim = min([i for i, x in enumerate(body) if x.startswith(("v_dot2", "buffer_store"))] + [n])
        while not safe[lim]:
            lim -= 1
    for i in range(n + 1):
        while k < len(groups) and not post and safe[i] and i >= (k + 1) * lim / (len(groups) + (lim == n)):
            A.lines += groups[k]
            k += 1
        if i < n:
            A.lines.append(body[i])
    for g in groups[k:]:
        A.lines += g


MARKS = {}


def mark(name):
    if name not in MARKS:
        MARKS[name] = len(MARKS)
    if PROF:
        A("s_memrealtime s[90:91]")
        if "-profq" not in ARGS:
            A("s_memtime s[92:93]")
        A("s_waitcnt lgkmcnt(0)")
        A(f"v_writelane_b32 v{PRF}, s90, {MARKS[name]}")
        if "-profq" not in ARGS:
            A(f"v_writelane_b32 v{PRF}, s92, {MARKS[name]+32}")


PAD = opt("pad", {})


def padat(name, L=None):
    if name not in PAD:
        return
    l, e = newlab("pad"), newlab("pad")
    if L is not None:
        A(f"s_cmp_lg_u32 s{sL}, {L*LSTR}")
        A(f"s_cbranch_scc1 {e}")
    A.label(l)
    A("s_memrealtime s[92:93]")
    A("s_waitcnt lgkmcnt(0)")
    A("s_sub_u32 s92, s92, s90")
    A(f"s_cmp_lt_u32 s92, {PAD[name]}")
    A(f"s_cbranch_scc1 {l}")
    A.label(e)


def markq(name):
    if "-profq" in ARGS:
        mark(name)


def prof_next():
    if PROF:
        A(f"v_mov_b32 v{PRF2}, v{PRF}")
        A(f"v_mov_b32 v{PRF}, 0")


def MF(d, a_, b_, c=None):
    cc = v(d, 16) if c is None else (c if isinstance(c, str) else v(c, 16))
    return f"v_mfma_f32_32x32x16_bf16 {v(d,16)}, {v(a_,4)}, {v(b_,4)}, {cc}"


def MF16(d, a_, b_):
    return f"v_mfma_f32_16x16x32_bf16 {v(d,4)}, {v(a_,4)}, {v(b_,4)}, {v(d,4)}"


DPPF = "row_mask:0xf bank_mask:0xf"


def wave_red(r, t, op="add", n=64):
    for sh in ("quad_perm:[1,0,3,2]", "quad_perm:[2,3,0,1]", "row_half_mirror", "row_mirror"):
        A(f"v_{op}_f32_dpp v{r}, v{r}, v{r} {sh} {DPPF}")
    A(f"v_mov_b32 v{t}, v{r}")
    A(f"v_permlane16_swap_b32 v{r}, v{t}")
    A(f"v_{op}_f32 v{r}, v{r}, v{t}")
    if n == 64:
        A(f"v_mov_b32 v{t}, v{r}")
        A(f"v_permlane32_swap_b32 v{r}, v{t}")
        A(f"v_{op}_f32 v{r}, v{r}, v{t}")


def tred4(r):
    A(f"v_permlane32_swap_b32 v{r}, v{r+2}")
    A(f"v_permlane32_swap_b32 v{r+1}, v{r+3}")
    A(f"v_add_f32 v{r}, v{r}, v{r+2}")
    A(f"v_add_f32 v{r+1}, v{r+1}, v{r+3}")
    A(f"v_permlane16_swap_b32 v{r}, v{r+1}")
    A(f"v_add_f32 v{r}, v{r}, v{r+1}")


SST = opt("sst", 4)


def sent_check(regs, t, step=1):
    regs = list(regs)[::step]
    if len(regs) == 1:
        A(f"v_cmp_eq_u32 vcc, -1, v{regs[0]}")
        return
    if len(regs) == 2:
        A(f"v_max_u32 v{t}, v{regs[0]}, v{regs[1]}")
        rest = []
    else:
        A(f"v_max3_u32 v{t}, v{regs[0]}, v{regs[1]}, v{regs[2]}")
        rest = regs[3:]
    while rest:
        if len(rest) >= 2:
            A(f"v_max3_u32 v{t}, v{t}, v{rest[0]}, v{rest[1]}")
            rest = rest[2:]
        else:
            A(f"v_max_u32 v{t}, v{t}, v{rest[0]}")
            rest = rest[1:]
    A(f"v_cmp_eq_u32 vcc, -1, v{t}")


def poll(loads, check, issued=None):
    top, chk, done = newlab("pl"), newlab("pc"), newlab("pd")
    A(f"s_mov_b32 s{sCNT}, s{sLIM}")
    if issued is not None:
        if isinstance(issued, int):
            A(f"s_waitcnt vmcnt({issued})")
        else:
            W(issued)
        A(f"s_branch {chk}")
    A.label(top)
    cond(top, lambda: A.lines.extend(x.split(";@")[0].strip() for x in cap(loads)))
    A("s_waitcnt vmcnt(0)")
    A.label(chk)
    check()
    A(f"s_cbranch_vccz {done}")
    A(f"s_sub_u32 s{sCNT}, s{sCNT}, 1")
    A(f"s_cmp_lg_u32 s{sCNT}, 0")
    A(f"s_cbranch_scc1 {top}")
    A(f"s_mov_b32 s{sLIM}, 1")
    A.label(done)


def skip_if(cmp, body, key=None):
    l = newlab("sk")
    A(cmp)
    A(f"s_cbranch_scc1 {l}")
    cond(key or l, body)
    A.label(l)


def st_loc(fn):
    if not USELOC:
        fn("sc1")
        return
    a_, b_ = newlab("lc"), newlab("lc")
    A(f"s_cmp_lg_u32 s{sLOC}, 0")
    A(f"s_cbranch_scc1 {a_}")
    cond(a_, lambda: fn("sc1"))
    A(f"s_branch {b_}")
    A.label(a_)
    fn("")
    A.label(b_)


def flag_store(so, loc=False):
    A(f"v_mov_b32 v154, s{sNON}")
    A("s_mov_b64 exec, 1")
    A("s_waitcnt vmcnt(0)")
    f = lambda bits: A(f"buffer_store_dword v154, v{L16}, {WSR}, {so} offen {bits}")
    if loc:
        st_loc(f)
    else:
        f("sc1")
    A("s_mov_b64 exec, -1")


def masks():
    for reg in range(16):
        G, r = reg >> 2, reg & 3
        key = 16 * (G & 1) + 8 * (G >> 1) + r
        A(f"s_mov_b32 s{MS+2*reg}, {hex((0xFFFFFFFF << key) & 0xFFFFFFFF)}")
        A(f"s_mov_b32 s{MS+2*reg+1}, {hex((0xFFFFFFFF << (key+4)) & 0xFFFFFFFF)}")


def prologue():
    A("s_cmp_ge_u32 s2, 256")
    A("s_cbranch_scc1 k_exit")
    A(f"s_load_dwordx4 s[{XS}:{XS+3}], s[0:1], 0")
    A(f"s_load_dwordx2 s[{WOS}:{WOS+1}], s[0:1], 16")
    A(f"s_load_dwordx2 s[{WSP}:{WSP+1}], s[0:1], 80")
    A(f"s_load_dwordx2 s[{TS2}:{TS2+1}], s[0:1], 32")
    A("v_lshrrev_b32 v1, 6, v0")
    A(f"v_and_b32 v{LN}, 63, v0")
    A(f"v_readfirstlane_b32 s{sW}, v1")
    A(f"v_lshlrev_b32 v{L16}, 4, v{LN}")
    A("s_and_b32 s30, s2, 7")
    A("s_lshr_b32 s31, s2, 3")
    A("s_and_b32 s32, s31, 1")
    A(f"s_lshl_b32 s33, s30, 1")
    A(f"s_add_u32 s{sRB}, s33, s32")
    A(f"s_lshr_b32 s{sHG}, s31, 1")
    A(f"s_add_u32 s33, s33, s{sHG}")
    A(f"s_add_u32 s{sKa}, s33, s32")
    A(f"s_sub_u32 s{sKb}, s33, s32")
    A(f"s_add_u32 s{sCG}, s{sKb}, 15")
    A(f"s_and_b32 s{sCG}, s{sCG}, 15")
    A(f"s_mul_i32 s{sF}, s30, 28")
    A(f"s_lshl_b32 s32, s30, 2")
    A(f"s_add_u32 s32, s32, {224-28}")
    A("s_cmp_lt_u32 s31, 28")
    A(f"s_cselect_b32 s{sF}, s{sF}, s32")
    A(f"s_add_u32 s{sF}, s{sF}, s31")
    A(f"s_lshl_b32 s{sCU}, s{sRB}, 4")
    A(f"s_add_u32 s{sCU}, s{sCU}, s{sHG}")
    A(f"s_mov_b32 s{sL}, 0")
    A(f"s_mov_b32 s{sLIM}, 20000")
    A(f"s_and_b32 s{sW4}, s{sW}, 3")
    A(f"s_lshl_b32 s{sT}, s{sRB}, 2")
    A(f"s_add_u32 s{sT}, s{sT}, s{sW4}")
    A(f"s_lshl_b32 s{sMO}, s{sW4}, 10")
    srd_fin(WS_, 6 * MB)
    srd_fin(WOS, 2 * MB)
    srd_fin(WSP, 128 * MB)
    srd_fin(TS2, 2048)
    if PROF:
        A(f"v_mov_b32 v{PRF}, 0")
        A(f"v_mov_b32 v{PRF2}, 0")
    mark("start")
    if PAD:
        A("s_memrealtime s[90:91]")
    A(f"s_cmp_ge_u32 s{sW}, 4")
    A("s_cbranch_scc1 l_start")


CPF = opt("cpf", 15)
WBK, WBH = opt("wb", 0), opt("wbh", 3)


def code_pf(bit, va, red=1):
    if not CPF >> bit & 1:
        return
    l = newlab("pc")
    n = 128 // red
    A("s_getpc_b64 s[32:33]")
    A.label(l)
    A(f"s_sub_u32 s32, s32, {l}-{NAME}_kernel")
    A("s_subb_u32 s33, s33, 0")
    A("s_lshr_b32 s34, s2, 3")
    A("s_lshl_b32 s34, s34, 2")
    A(f"s_add_u32 s34, s34, s{sW4}")
    A(f"s_and_b32 s34, s34, {n-1}")
    A("s_lshl_b32 s34, s34, 7")
    A(f"v_lshl_add_u32 v{va}, v{LN}, {7 + n.bit_length() - 1}, s34")
    A(f"s_mov_b32 s34, k_exit-{NAME}_kernel")
    A("s_mov_b32 s35, 0x20000")
    A(f"buffer_load_dword v{va}, v{va}, s[32:35], 0 offen")


def ptr_fin():
    A("s_waitcnt lgkmcnt(0)")
    A(f"s_mov_b32 s{sNON}, {hex(EPOCH)}")
    A(f"s_load_dword s{sNON}, s[{WSP}:{WSP+1}], s{sNON}")
    A(f"s_mov_b64 s[{WS_}:{WS_+1}], s[{XS+2}:{XS+3}]")
    srd_fin(XS, 4 * MB)


def wo_voff(dst):
    A(f"v_bfe_u32 v20, v{LN}, 3, 2")
    A(f"v_lshrrev_b32 v21, 5, v{LN}")
    A("v_lshl_add_u32 v20, v21, 3, v20")
    A(f"s_lshr_b32 s32, s{sW4}, 1")
    A("s_lshl_b32 s32, s32, 4")
    A(f"s_and_b32 s33, s{sW4}, 1")
    A("s_lshl_b32 s33, s33, 2")
    A("s_add_u32 s32, s32, s33")
    A("v_add_u32 v20, s32, v20")
    A("v_lshlrev_b32 v20, 11, v20")
    A(f"v_lshrrev_b32 v21, 2, v{LN}")
    A("v_and_b32 v21, 4, v21")
    A(f"v_xor_b32 v21, v21, v{LN}")
    A("v_and_b32 v21, 7, v21")
    A("v_lshl_add_u32 v20, v21, 4, v20")
    A(f"s_lshl_b32 s32, s{sCG}, 7")
    A(f"v_add_u32 v{dst}, s32, v20")


ROT = opt("rot", 1)


def wo_groups(slots, vo, tag):
    gs = []
    for j in slots:
        g = []
        if ROT:
            g += [f"s_add_u32 s{sD0}, s{sHG}, {j & 15}", f"s_and_b32 s{sD0}, s{sD0}, 15", f"s_lshl_b32 s{sD0}, s{sD0}, 17"]
            if j >= 16:
                g += [f"s_add_u32 s{sD0}, s{sD0}, 65536"]
        else:
            g += [f"s_mov_b32 s{sD0}, {(2*(j & 15) + (j >> 4))*65536}"]
        g += [f"s_add_u32 m0, s{sMO}, {4096*j}",
              f"buffer_load_dwordx4 v{vo}, s[{WOS}:{WOS+3}], s{sD0} offen lds ;@{tag}"]
        gs.append(g)
    return gs


def emit(groups):
    for g in groups:
        A.lines += g


FR = [96, 136]
XB, WB, XC, WC = 176, 178, 180, 182
KOF, VOF, KLD, VLD, QLD, TA = 244, 245, 246, 247, 248, 184
RA = 192
AR_IT = opt("ar", 4)


PF, PFD = opt("pf", 1), opt("pfd", 6)
PFA, PFT, sPB, sPK = 190, 191, 84, 85


def pf_setup(va, sPB=sPB):
    A(f"s_lshr_b32 s30, s{WS_}, 7")
    A("s_sub_u32 s30, 3, s30")
    A("s_and_b32 s30, s30, 7")
    A(f"s_and_b32 s31, s{sRB}, 1")
    A("s_lshl_b32 s31, s31, 3")
    A("s_add_u32 s30, s30, s31")
    A(f"s_and_b32 s31, s{sRB}, 14")
    A(f"s_add_u32 s{sPB}, s31, s30")
    A(f"s_lshl_b32 s31, s{sHG}, 2")
    A(f"s_add_u32 s31, s31, s{sW4}")
    A("s_mul_i32 s31, s31, 6144")
    A("s_lshl_b32 s30, s30, 7")
    A("s_add_u32 s30, s30, s31")
    A(f"v_min_u32 v{va}, 2, v{LN}")
    A(f"v_lshl_add_u32 v{va}, v{va}, 11, s30")


def pf_load(va, vt, k, sPB=sPB):
    return [f"s_add_u32 s30, s{sPB}, {k & 15}", "s_and_b32 s30, s30, 15", f"s_mul_i32 s30, s30, {64*6144}",
            f"buffer_load_dword v{vt}, v{va}, s[{WS_}:{WS_+3}], s30 offen"]


FPF = opt("fpf", [7] * 4)
FPM = opt("fpm", [0])
FPR, FPN, FPA, sFM = opt("fpr", 8), opt("fpn", 1), 196, 86


def fpf_setup():
    A("s_lshr_b32 s30, s2, 3")
    A("s_lshl_b32 s30, s30, 2")
    A(f"s_add_u32 s30, s30, s{sW}")
    A("s_and_b32 s31, s2, 7")
    nm = len(FPM)
    mg = -(-65536 // (7 * nm))
    assert all(mg * l >> 16 == l // (7 * nm) for l in range(64)) and 7 * nm * FPR <= 64
    A(f"v_mul_u32_u24 v4, {mg}, v{LN}")
    A("v_lshrrev_b32 v4, 16, v4")
    A(f"v_mul_u32_u24 v5, {7*nm}, v4")
    A(f"v_sub_u32 v5, v{LN}, v5")
    A(f"v_min_u32 v4, {FPR-1}, v4")
    A("v_lshl_add_u32 v4, v4, 7, s30")
    A("v_mul_u32_u24 v6, 37, v5")
    A("v_lshrrev_b32 v6, 8, v6")
    A("v_mul_u32_u24 v7, 7, v6")
    A("v_sub_u32 v5, v5, v7")
    A(f"v_mad_u32_u24 v6, v6, {FPM[1]-FPM[0] if nm > 1 else 0}, {FPM[0]}")
    A("v_cmp_eq_u32 vcc, 2, v6")
    A("v_mov_b32 v7, 7168")
    A("v_mov_b32 v8, 896")
    A("v_cndmask_b32 v7, v7, v8, vcc")
    A("v_mul_u32_u24 v4, v4, v7")
    A(f"v_mul_u32_u24 v{FPA+2}, {128*FPR}, v7")
    A("v_lshl_add_u32 v4, v5, 7, v4")
    A(f"v_mov_b32 v7, {896*1024}")
    A("v_cndmask_b32 v7, v8, v7, vcc")
    A("v_mad_u32_u24 v4, v7, s31, v4")
    for i in range(2):
        A(f"v_mov_b32 v{FPA+i}, s{36+i}")
        A(f"v_mov_b32 v7, s{74+i}")
        A(f"v_cndmask_b32 v{FPA+i}, v{FPA+i}, v7, vcc")
    A("v_cmp_eq_u32 vcc, 1, v6")
    for i in range(2):
        A(f"v_mov_b32 v7, s{38+i}")
        A(f"v_cndmask_b32 v{FPA+i}, v{FPA+i}, v7, vcc")
    A(f"v_add_co_u32 v{FPA}, vcc, v{FPA}, v4")
    A(f"v_addc_co_u32 v{FPA+1}, vcc, 0, v{FPA+1}, vcc")
    st = opt("fps", 1)
    mk = [sum(1 << (15 - f - st * i) for i in range(opt('fpe', 8 // FPR // FPN))) for f in FPF]
    fo = opt("fpo", 6)
    assert all(m & ((1 << fo) - 1) == 0 for m in mk)
    A(f"s_mov_b32 s30, {hex(mk[0] | mk[1] << 16)}")
    A(f"s_mov_b32 s31, {hex(mk[2] | mk[3] << 16)}")
    A(f"s_lshl_b32 s{sFM}, s{sW}, 4")
    A(f"s_lshr_b64 s[30:31], s[30:31], s{sFM}")
    A(f"s_and_b32 s{sFM}, s30, 0xffff")
    if fo > 1:
        A(f"s_mul_i32 s30, s{sHG}, {fo}")
        A("s_lshr_b32 s30, s30, 4")
        A(f"s_lshr_b32 s{sFM}, s{sFM}, s30")


def fpf_step():
    A.label("e_fpf")
    A(f"s_bitset0_b32 s{sFM}, s36")
    A(f"s_bfm_b64 exec, {7*len(FPM)*FPR}, 0")
    for i in range(FPN):
        A(f"global_load_dword v{PFT}, {v(FPA,2)}, off {opt('fpb', '')}")
        A(f"v_add_co_u32 v{FPA}, vcc, v{FPA}, v{FPA+2}")
        A(f"v_addc_co_u32 v{FPA+1}, vcc, 0, v{FPA+1}, vcc")
    A("s_mov_b64 exec, -1")
    A("s_branch e_fpf_ret")


def e_init():
    code_pf(0, PFT, opt("cpr", 2))
    if FPF:
        A("s_load_dwordx4 s[36:39], s[0:1], 40")
        A("s_load_dwordx2 s[74:75], s[0:1], 56")
    ptr_fin()
    if FPF:
        fpf_setup()
    A(f"s_load_dwordx2 s[{TS}:{TS+1}], s[0:1], 64")
    srd_fin(TS, 4 * MB)
    TCH = opt("tch", 0)
    if TCH:
        A(f"s_lshl_b32 s30, s{sHG}, 19")
        A(f"s_lshl_b32 s31, s{sRB}, 18")
        tl = [("s30", KVB), ("s31", OFB), ("s31", XFB), ("s30", KVB + LSTR)]
        for i, (r_, b_) in enumerate(tl):
            if TCH >> i & 1:
                A(f"s_add_u32 s32, {r_}, {hex(b_)}")
                if TCH & 256:
                    A(f"buffer_load_dword v{PFT}, off, {WSR}, s32")
                else:
                    A(f"s_load_dword s{sD0}, s[{WSP}:{WSP+1}], s32")
    if PF:
        pf_setup(PFA)
        for k in opt("pf0", [0, 1]):
            A.lines += pf_load(PFA, PFT, k)
    A(f"v_lshrrev_b32 v5, 5, v{LN}")
    A("v_lshlrev_b32 v6, 3, v5")
    A(f"s_lshl_b32 s33, s{sCG}, 7")
    for g in range(8):
        A(f"buffer_load_dwordx2 {v(WR+2*g,2)}, v6, s[{TS2}:{TS2+3}], s33 offen offset:{16*g}")
    masks()
    wo_voff(EVO)
    A(f"s_and_b32 s34, s{sW}, 1")
    A(f"s_lshr_b32 s35, s{sW}, 1")
    A(f"v_and_b32 v4, 15, v{LN}")
    A(f"v_lshrrev_b32 v7, 4, v{LN}")
    A("v_lshrrev_b32 v6, 1, v4")
    A("v_xor_b32 v6, v6, v7")
    A("v_lshlrev_b32 v6, 4, v6")
    A("v_lshl_add_u32 v6, v4, 7, v6")
    A("s_lshl_b32 s30, s34, 13")
    A(f"v_add_u32 v{XB}, s30, v6")
    A(f"v_xor_b32 v{XB+1}, 64, v{XB}")
    A("s_lshl_b32 s30, s35, 1")
    wtr_addr(WB, "s30", L_W)
    A(f"v_xor_b32 v{WB+1}, 32, v{WB}")
    A(f"v_and_b32 v8, 31, v{LN}")
    A("v_bfe_u32 v6, v8, 1, 3")
    A("v_xor_b32 v6, v6, v5")
    A("v_lshlrev_b32 v6, 4, v6")
    A("v_lshl_add_u32 v6, v8, 7, v6")
    A(f"s_lshl_b32 s30, s{sW}, 12")
    A(f"s_add_u32 s30, s30, {L_X}")
    A(f"v_add_u32 v{RA}, s30, v6")
    for ks in range(1, 4):
        A(f"v_xor_b32 v{RA+ks}, {32*ks}, v{RA}")
    A("s_lshl_b32 s30, s34, 8")
    A(f"v_lshl_add_u32 v{TA}, v4, 2, s30")
    A(f"v_lshl_add_u32 v{TA+1}, v7, 4, s30")
    A("s_lshl_b32 s30, s35, 7")
    A(f"v_lshl_add_u32 v{TA+2}, v7, 4, s30")
    A(f"s_add_u32 s30, s30, {T_CS+512}")
    A(f"v_lshl_add_u32 v{TA+3}, v4, 2, s30")
    A(f"s_lshl_b32 s30, s{sW}, 7")
    A(f"s_add_u32 s30, s30, {T_C}")
    A(f"v_lshl_add_u32 v{TA+4}, v8, 2, s30")
    A(f"v_mov_b32 v{TA+5}, 0")
    A("v_lshlrev_b32 v6, 9, v7")
    A(f"v_lshl_add_u32 v{VOF}, v4, 4, v6")
    A("v_and_b32 v9, 8, v4")
    A(f"v_lshl_add_u32 v{KOF}, v9, 4, v{VOF}")
    A(f"s_mul_i32 s30, s35, {KVH}")
    A("s_lshl_b32 s31, s34, 13")
    A("s_add_u32 s30, s30, s31")
    A(f"s_add_u32 s30, s30, {L_KV+8*4096}")
    A(f"v_add_u32 v{KLD}, s30, v{KOF}")
    A(f"v_add_u32 v{VLD}, s30, v{VOF}")
    A(f"s_lshl_b32 s30, s{sW}, 12")
    A(f"s_add_u32 s30, s30, {L_Q}")
    A(f"v_add_u32 v{QLD}, s30, v{VOF}")
    A("s_getreg_b32 s30, hwreg(HW_REG_XCC_ID, 0, 4)")
    A("v_mov_b32 v251, s30")
    A(f"s_lshl_b32 s30, s{sHG}, 4")
    A(f"s_add_u32 s30, s30, s{sRB}")
    A(f"s_sub_u32 s30, s30, s{sCU}")
    A(f"s_add_u32 s30, s30, {(COLF - ROWF) // 8}")
    A(f"v_mul_u32_u24 v249, s30, v{LN}")
    A(f"v_add_u32 v249, s{sCU}, v249")
    A("v_lshlrev_b32 v249, 3, v249")
    A(f"s_cmp_eq_u32 s{sW}, 0")
    A(f"s_cselect_b32 s{sAC}, {14 - AR_IT}, -1")
    A(f"v_mov_b32 v{WSUM}, 0")
    for i in range(96):
        A(f"v_mov_b32 v{i}, 0")
    A("s_waitcnt vmcnt(0) lgkmcnt(0)")
    A(f"s_add_u32 s{sNON}, s{sNON}, {hex(EPINC)}")
    A(f"v_mov_b32 v250, s{sNON}")
    for p in range(16):
        A(f"v_dot2c_f32_bf16 v{WSUM}, {ONES}, v{WR+p}")
    if PF:
        for k in opt("pf1", [2, 3, 4, 5]):
            A.lines += pf_load(PFA, PFT, k)
    A("s_setprio 1")


def wtr_addr(dst, ct, base):
    A(f"v_lshrrev_b32 v20, 2, v{LN}")
    A("v_bfe_u32 v21, v20, 1, 2")
    if ct is not None:
        A(f"v_xor_b32 v21, {ct}, v21")
    A("v_lshlrev_b32 v20, 7, v20")
    A("v_lshl_add_u32 v20, v21, 5, v20")
    A(f"v_and_b32 v21, 3, v{LN}")
    A("v_lshl_add_u32 v20, v21, 3, v20")
    A(f"v_add_u32 v{dst}, {base}, v20")


def accq(c, t):
    return 64 + (c & 1) * 16 + t * 4 if c >= 4 else (c >> 1) * 32 + t * 8 + (c & 1) * 4


def e_qphase():
    A.label("e_q")
    A.lines.append("@reset")
    A("s_mov_b32 s31, 0")
    A(f"s_mov_b32 s32, {L_X}")
    A("s_mov_b32 s36, 15")
    for i in range(2):
        A(f"v_add_u32 v{XC+i}, s32, v{XB+i}")
        A(f"v_mov_b32 v{WC+i}, v{WB+i}")

    def rd(fs, kk):
        f = FR[fs]
        x = [f"ds_read_b128 {v(f+4*t,4)}, v{XC+kk} offset:{t*2048}" for t in range(4)]
        w = [f"ds_read_b64_tr_b16 {v(f+16+8*seg+4*u+2*j,2)}, v{WC+u} offset:{seg*8192+kk*4096+j*2048}"
             for seg in range(3) for u in range(2) for j in range(2)]
        return [x[0], w[0], w[1], x[1], x[2], x[3]] + w[2:]

    def mf(fs, cs=range(6), snake=True):
        f = FR[fs]
        m = []
        for c in cs:
            for t in range(4):
                if snake and c & 1:
                    t = 3 - t
                a_, b_ = f + 16 + 4 * c, f + 4 * t
                if c >= 4:
                    a_, b_ = b_, a_
                m.append(MF16(accq(c, t), a_, b_))
        return m

    mark("q_wait")
    padat("q0", 0)
    padat("q1", 1)
    A("s_barrier")
    mark("q_go")
    for x in rd(0, 0):
        A(x)
    adv = [[f"s_cmp_eq_u32 s36, s{sAC}", "s_cbranch_scc1 e_arr", "e_arr_ret:"],
           [f"s_add_u32 s31, s31, {WSL}", f"s_sub_u32 s32, s32, {XSL}"],
           [f"s_cmp_ge_u32 s31, {3*WSL}", "s_cselect_b32 s31, 0, s31", f"s_cselect_b32 s32, {L_X}, s32"],
           [f"v_add_u32 v{WC}, s31, v{WB}", f"v_add_u32 v{XC}, s32, v{XB}"],
           [f"v_add_u32 v{WC+1}, s31, v{WB+1}", f"v_add_u32 v{XC+1}, s32, v{XB+1}"],
           ["s_sub_u32 s36, s36, 1", "s_cmp_eq_u32 s36, 0"]]
    if PF:
        A(f"s_add_u32 s{sPK}, s{sPB}, {PFD - 1}")
        adv[5:5] = [[f"s_add_u32 s{sPK}, s{sPK}, 1", f"s_and_b32 s30, s{sPK}, 15"],
                    [f"s_mul_i32 s30, s30, {64*6144}", f"s_cmp_ge_u32 s36, {PFD}"],
                    ["s_cselect_b64 exec, 7, 0", f"buffer_load_dword v{PFT}, v{PFA}, s[{WS_}:{WS_+3}], s30 offen", "s_mov_b64 exec, -1"]]
    if FPF:
        fp = opt("fpp", len(adv) - 1)
        adv[fp:fp] = [[f"s_bitcmp1_b32 s{sFM}, s36", "s_cbranch_scc1 e_fpf", "e_fpf_ret:"]]
    A.label("e_loop")
    for ks in range(2):
        m, r = mf(ks), rd(ks ^ 1, ks ^ 1)
        A("s_waitcnt lgkmcnt(0)")
        A(m[0])
        if ks == 1:
            A("s_barrier")
        for i in range(1, 24):
            if i <= 16:
                A(r[i-1])
            elif 7 * ks + i - 17 < len(adv):
                A.lines += adv[7*ks+i-17]
            A(m[i])
    A("s_cbranch_scc0 e_loop")
    m, r = mf(0), rd(1, 1)
    A("s_waitcnt lgkmcnt(0)")
    sal = [[f"s_and_b32 s34, s{sW}, 1", f"s_lshr_b32 s35, s{sW}, 1", f"s_lshl_b32 s30, s{sHG}, 1"],
           ["s_add_u32 s30, s30, s35", "s_lshl_b32 s30, s30, 6", f"s_lshl_b32 s31, s{sRB}, 2"],
           ["s_add_u32 s30, s30, s31", "s_lshl_b32 s31, s34, 1", "s_add_u32 s30, s30, s31"],
           ["s_lshl_b32 s32, s30, 12", f"s_add_u32 s32, s32, s{sL}", "s_add_u32 s33, s32, 4096"]]
    for i in range(24):
        if 1 <= i <= 16:
            A(r[i-1])
        if i == 17:
            A(f"s_cmp_lg_u32 s{sL}, 0")
            A("s_cbranch_scc1 e_nores")
            for ks in range(4):
                A(f"ds_read_b128 {v(P+4*ks,4)}, v{RA+ks}")
            A.label("e_nores")
        if 18 <= i < 22:
            A.lines += sal[i-18]
        A(m[i])
    AV, MV, CSK, CSQ, AK, MK, CSV, IDX = 96, 112, 128, 196, 192, 204, 190, 250
    tab = [f"ds_read2_b32 {v(MK,2)}, v{TA} offset0:128 offset1:144",
           f"ds_read_b128 {v(CSK,4)}, v{TA+2} offset:{T_CS+256}",
           f"ds_read_b128 {v(CSK+4,4)}, v{TA+2} offset:{T_CS+256+64}",
           f"ds_read2_b32 {v(AK,2)}, v{TA} offset0:0 offset1:16",
           f"ds_read2_b32 {v(MK+2,2)}, v{TA} offset0:160 offset1:176",
           f"ds_read2_b32 {v(AK+2,2)}, v{TA} offset0:32 offset1:48",
           f"ds_read2_b32 {v(CSV,2)}, v{TA+3} offset0:0 offset1:16"]
    for t in range(4):
        tab += [f"ds_read_b128 {v(MV+4*t,4)}, v{TA+1} offset:{T_M+64*t}", f"ds_read_b128 {v(AV+4*t,4)}, v{TA+1} offset:{T_A+64*t}"]
    tab += [f"ds_read_b128 {v(CSQ,4)}, v{TA+2} offset:{T_CS}", f"ds_read_b128 {v(CSQ+4,4)}, v{TA+2} offset:{T_CS+64}",
            f"ds_read2_b32 {v(CC,2)}, v{TA+4} offset0:0 offset1:128", f"ds_read_b64 {v(IDX,2)}, v{TA+5} offset:{T_IDX}"]
    so = ["s32", "s33"]

    def sel(hi):
        return ("op_sel:[0,1,0] op_sel_hi:[1,1,1]", "op_sel:[0,1] op_sel_hi:[1,1]") if hi else ("op_sel_hi:[1,0,1]", "op_sel_hi:[1,0]")

    def qk(seg, t, pk=True):
        acc, cs = 32 * seg + 8 * t, (CSQ, CSK)[seg]
        s3, s2 = sel(t & 1)
        if not pk:
            return ([f"v_fma_f32 v{acc+p}, v{cs+p}, -v{MK+t}, v{acc+p}" for p in range(8)] +
                    [f"v_mul_f32 v{acc+p}, v{acc+p}, v{AK+t}" for p in range(8)] +
                    [f"v_cvt_pk_bf16_f32 v{acc+p}, v{acc+2*p}, v{acc+2*p+1}" for p in range(4)])
        o = [f"v_pk_fma_f32 {v(acc+2*p,2)}, {v(cs+2*p,2)}, {v(MK+(t&2),2)}, {v(acc+2*p,2)} {s3} neg_lo:[0,1,0] neg_hi:[0,1,0]" for p in range(4)]
        o += [f"v_pk_mul_f32 {v(acc+2*p,2)}, {v(acc+2*p,2)}, {v(AK+(t&2),2)} {s2}" for p in range(4)]
        o += [f"v_cvt_pk_bf16_f32 v{acc+p}, v{acc+2*p}, v{acc+2*p+1}" for p in range(4)]
        return o
    kep = []
    for t in range(4):
        kep += qk(1, t, opt("kpk", 0) or t >= 2) + [f"buffer_store_dwordx4 {v(32+8*t,4)}, v{KOF}, {WSR}, {so[t>>1]} offen offset:{(t&1)*128} sc1"]
    m = mf(1, [2, 3, 4, 5, 0, 1], False)
    A("s_waitcnt vmcnt(0) lgkmcnt(0)")
    A(m[0])
    A("s_barrier")
    for i in range(1, 24):
        A.lines += tab[2*(i-1):2*i]
        if i == 11:
            A("s_waitcnt lgkmcnt(13)")
        if i >= 11:
            A.lines += kep[3*(i-11):3*(i-10)]
            if opt("kpk", 0) > 1:
                A(f"s_nop {opt('kpk', 0)-2}")
        A(m[i])
    A.lines += kep[39:]
    mark("q_end")
    A("s_waitcnt lgkmcnt(0)")
    for T in range(2):
        for c in range(2):
            acc = 64 + 16 * c + 8 * T
            s3, _ = sel(c)
            for p in range(4):
                A(f"v_pk_fma_f32 {v(acc+2*p,2)}, {v(MV+8*T+2*p,2)}, {v(CSV,2)}, {v(acc+2*p,2)} {s3} neg_lo:[0,1,0] neg_hi:[0,1,0]")
            for p in range(4):
                A(f"v_pk_mul_f32 {v(acc+2*p,2)}, {v(acc+2*p,2)}, {v(AV+8*T+2*p,2)}")
            for p in range(4):
                A(f"v_cvt_pk_bf16_f32 v{acc+p}, v{acc+2*p}, v{acc+2*p+1}")
            A(f"buffer_store_dwordx4 {v(acc,4)}, v{VOF}, {WSR}, {so[T]} offen offset:{2048+c*256} sc1")
    mark("kv_st")
    for t in range(4):
        A(f"ds_write_b128 v{KLD}, {v(32+8*t,4)} offset:{(t>>1)*4096+(t&1)*128}")
        A(f"v_mul_f32 v{AK+t}, {fl(QSCALE)}, v{AK+t}")
    for t in range(4):
        A.lines += qk(0, t)
        A(f"ds_write_b128 v{VLD}, {v(64+16*(t&1)+8*(t>>1),4)} offset:{(t>>1)*4096+2048+(t&1)*256}")
        A(f"ds_write_b128 v{QLD}, {v(8*t,4)} offset:{(t>>1)*2048+(t&1)*256}")
    A(f"s_lshl_b32 s30, s{sHG}, 8")
    A(f"s_lshl_b32 s31, s{sRB}, 4")
    A("s_add_u32 s30, s30, s31")
    A("s_lshl_b32 s31, s34, 3")
    A("s_add_u32 s30, s30, s31")
    A("s_lshl_b32 s31, s35, 2")
    A("s_add_u32 s30, s30, s31")
    A(f"s_add_u32 s30, s30, s{sL}")
    A(f"s_add_u32 s30, s30, {hex(KVF)}")
    A(f"v_readfirstlane_b32 s{sIDX}, v{IDX}")
    A(f"v_readfirstlane_b32 s{sLOC}, v{IDX+1}")
    patch_flag()

    def unswz():
        for ks in range(4):
            A(f"v_permlane32_swap_b32 v{P+4*ks}, v{P+4*ks+2}")
            A(f"v_permlane32_swap_b32 v{P+4*ks+1}, v{P+4*ks+3}")
    skip_if(f"s_cmp_lg_u32 s{sL}, 0", unswz)


def patch_flag():
    A(f"s_lshr_b32 s39, s{sIDX}, 5")
    A(f"s_lshl_b32 s34, s{sRB}, 2")
    A("s_sub_u32 s39, s39, s34")
    A("s_add_u32 s39, s39, 8")
    A("s_lshr_b32 s34, s39, 3")
    A("s_add_u32 s34, s34, 1")
    A("s_cmp_lt_u32 s39, 12")
    A(f"s_cselect_b32 s{sPATCH}, s34, 0")


Q, PM, AD, MX, SU0, SU1, CB, SM_, O, TM = 4, 12, 20, 21, 22, 23, 24, 40, 88, 152
SA, KF, VF, PP = [56, 72], [104, 112], [120, 128], [136, 144]


SEL, SUM, AD0, AD1 = 40, 44, 22, 23
sN, sPH, sTA = 74, 75, 76
MIR = opt("mir", 1)


def att_masks():
    A("v_mov_b32 v20, 0xffff")
    A("v_mov_b32 v21, 0xffff0000")
    for p in range(8):
        A(f"v_cndmask_b32 v22, 0, v20, {s(MS+4*p,2)}")
        A(f"v_cndmask_b32 v23, 0, v21, {s(MS+4*p+2,2)}")
        A(f"v_or_b32 v{PM+p}, v22, v23")


def att_base(team):
    A(f"s_and_b32 s34, s{sTA}, 3")
    A("s_lshl_b32 s33, s34, 12")
    A(f"s_add_u32 s33, s33, {L_KV+team*KVH}")
    A(f"v_add_u32 v{AD}, s33, v{L16}")


def att_setup(team):
    att_masks()
    A(f"s_xor_b32 s{sTA}, s{sT}, {3 if team and MIR else 0}")
    att_base(team)
    A(f"v_add_u32 v{AD0}, {8*4096}, v{AD}")
    A(f"v_add_u32 v{AD1}, {L_KV+team*KVH+7*4096}, v{L16}")
    A(f"s_add_u32 s{sN}, s34, 1")
    A(f"s_mov_b32 s{sPH}, 0")
    A("s_lshl_b32 s34, s34, 11")
    A(f"s_add_u32 s34, s34, {L_Q+team*8192}")
    A(f"v_add_u32 v3, s34, v{L16}")
    A(f"v_mov_b32 v{MX}, {fl(-1e30)}")
    for i in range(16):
        A(f"v_cndmask_b32 v{CB+i}, v{MX}, 0, {s(MS+2*i,2)}")
    A(f"v_lshrrev_b32 v{SEL}, 2, v{LN}")
    A(f"v_xor_b32 v{SEL}, v{SEL}, v{LN}")
    A(f"v_bfe_u32 v{SEL}, v{SEL}, 2, 1")
    A(f"v_add_u32 v{SEL}, -1, v{SEL}")
    A(f"v_and_b32 v{SEL}, {ONES}, v{SEL}")
    for i in range(1, 4):
        A(f"v_mov_b32 v{SEL+i}, v{SEL}")
    for i in range(4):
        A(f"v_mov_b32 v{SUM+i}, 0")
    for i in range(16):
        A(f"v_mov_b32 v{O+i}, 0")


def attention(team, pre, mid, hook, nh=8):
    n = f"a{team}{newlab('')}"
    KA, KB_, K0, VA, VB, PA, PB = KF[0], KF[0] + 4, KF[1], VF[0], [VF[0] + 4, VF[1]], PP[0], PP[0] + 4

    def rd(r, j, o):
        A(f"ds_read_b128 {v(r,4)}, v{AD1 if j else AD0} offset:{j*4096+o}")
    rd(K0, 0, 0)
    rd(K0 + 4, 0, 1024)
    A("s_waitcnt lgkmcnt(0)")
    A(MF(SA[0], K0, Q, CB))
    A(MF(SA[0], K0 + 4, Q + 4))
    rd(KA, 1, 0)
    rd(VB[0], 0, 3072)
    rd(KB_, 1, 1024)
    rd(VA, 0, 2048)
    pre()
    A(f"v_max3_f32 v{MX}, v{SA[0]}, v{SA[0]+1}, v{SA[0]+2}")
    A(f"v_max3_f32 v{TM}, v{SA[0]+3}, v{SA[0]+4}, v{SA[0]+5}")
    for p in range(3, 8):
        r = (TM, MX)[p & 1]
        A(f"v_max3_f32 v{r}, v{r}, v{SA[0]+2*p}, v{SA[0]+2*p+1}")
    A(f"v_max_f32 v{MX}, v{MX}, v{TM}")
    A(f"v_mov_b32 v{TM}, v{MX}")
    A(f"v_permlane32_swap_b32 v{MX}, v{TM}")
    A(f"v_max_f32 v{MX}, v{MX}, v{TM}")
    for i in range(16):
        A(f"v_sub_f32 v{CB+i}, 0, v{MX}")
    A(f"s_branch {n}_go")
    A.label(f"{n}_mid")
    A(f"s_cmp_ge_u32 s{sTA}, 8")
    A("s_cselect_b32 s33, 0, -1")
    for p in range(8):
        A(f"v_not_b32 v{PM+p}, v{PM+p}")
        A(f"v_or_b32 v{PM+p}, s33, v{PM+p}")
    A(f"s_and_b32 s32, s{sTA}, 3")
    A(f"s_cmp_ge_u32 s{sTA}, 8")
    A("s_cselect_b32 s32, s32, 4")
    A(f"s_sub_u32 s{sN}, 8, s32")
    A("s_lshl_b32 s32, s32, 12")
    A(f"s_add_u32 s32, s32, {L_KV+team*KVH}")
    A(f"v_add_u32 v{AD0}, s32, v{L16}")
    A(f"v_add_u32 v{AD1}, s32, v{L16}")
    A(f"s_cmp_eq_u32 s{sL}, 0")
    A(f"s_cselect_b32 s{sPH}, 2, 1")
    mid()
    A(f"s_cmp_lt_u32 s{sTA}, 4")
    A(f"s_cbranch_scc1 {n}_none")
    rd(K0, 0, 0)
    rd(K0 + 4, 0, 1024)
    rd(KA, 1, 0)
    rd(VB[0], 0, 3072)
    rd(KB_, 1, 1024)
    rd(VA, 0, 2048)
    A("s_waitcnt lgkmcnt(4)")
    A.label(f"{n}_go")
    A(MF(SA[0], K0, Q, CB))
    A(MF(SA[0], K0 + 4, Q + 4))

    def hk(k):
        body = cap(lambda: hook(k))
        if body:
            skip_if(f"s_cmp_eq_u32 s{sPH}, 0", lambda: A.lines.extend(body), "hk")

    def body(j, last):
        b = j & 1
        S, N = SA[b], SA[b ^ 1]
        E = lambda a_, z: [A(f"v_exp_f32 v{S+i}, v{S+i}") for i in range(a_, z)]

        def C(a_, z):
            for p in range(a_, z):
                A(f"v_cvt_pk_bf16_f32 v{PA+p}, v{S+2*p}, v{S+2*p+1}")
            if j == 0 and not last and z & 3 == 0:
                for p in range(z - 4, z):
                    A(f"v_and_b32 v{PA+p}, v{PA+p}, v{PM+p}")
        jk = j + 2 if j < 6 else j
        nl, nf = not last, j or last
        op = {"qa": lambda: nl and (A("s_waitcnt lgkmcnt(3)"), A(MF(N, KA, Q, CB))), "ka": lambda: nl and rd(KA, jk, 0),
              "pb": lambda: nf and A(MF(O, VB[b ^ 1], PB)), "vb": lambda: nl and rd(VB[b ^ 1], j + 1, 3072),
              "qb": lambda: nl and (A("s_waitcnt lgkmcnt(2)"), A(MF(N, KB_, Q + 4))), "kb": lambda: nl and rd(KB_, jk, 1024),
              "sb": lambda: nf and A(MF16(SUM, SEL, PB)), "sa": lambda: A(MF16(SUM, SEL, PA)),
              "pa": lambda: (last and A("s_waitcnt lgkmcnt(0)"), A(MF(O, VA, PA))), "va": lambda: nl and rd(VA, j + 1, 2048),
              "h0": lambda: (last or j < 3) and hk(6 if last else 2 * j), "h1": lambda: (last or j < 3) and hk(7 if last else 2 * j + 1)}
        ne = nc = 0
        for x in opt("ao", "qa,ka,e3,pb,vb,e3,qb,kb,e2,c2,sb,c2,e2,pa,va,h0,e4,sa,e2,c4,h1").split(","):
            if x in op:
                op[x]()
            elif x[0] == "e":
                E(ne, ne + int(x[1:]))
                ne += int(x[1:])
            else:
                C(nc, nc + int(x[1:]))
                nc += int(x[1:])
        assert ne == 16 and nc == 8
    for j in range(7):
        if j:
            A(f"s_cmp_eq_u32 s{sN}, {j+1}")
            A(f"s_cbranch_scc1 {n}_t{j&1}")
        body(j, False)
        if j == 0:
            A(f"s_cmp_eq_u32 s{sN}, 1")
            A(f"s_cbranch_scc1 {n}_e0")
    for b in (1, 0):
        A.label(f"{n}_t{b}")
        body(b, True)
        A.label(f"{n}_e{b}")
        A(f"s_cmp_eq_u32 s{sPH}, 0")
        A(MF16(SUM, SEL, PB))
        A(MF(O, VB[b], PB))
        A(f"s_cbranch_scc1 {n}_mid")
        A(f"s_branch {n}_fin")
    A.label(f"{n}_none")
    cond("hk", lambda: [hook(k) for k in range(8)])
    A.label(f"{n}_fin")
    att_addr(team)
    A(f"v_cmp_nlt_f32 vcc, {fl(2.0**60)}, v{SUM}") if opt("fexact", 0) else A(f"v_cmp_ngt_f32 vcc, {fl(2.0**60)}, v{SUM}")
    A(f"v_rcp_f32 v{SU0}, v{SUM}")
    A(f"s_cbranch_vccnz att_exact{team}")
    A.label(f"att_ret{team}" + (n if opt("ub", "") else ""))
    att_store()


def att_qread():
    A(f"ds_read_b128 {v(Q,4)}, v3")
    A(f"ds_read_b128 {v(Q+4,4)}, v3 offset:1024")


def att_exact(team):
    A.label(f"att_exact{team}")
    A("s_waitcnt lgkmcnt(0)")
    att_masks()
    att_base(team)
    for i in range(16):
        A(f"v_mov_b32 v{CB+i}, 0")

    def rdK(buf, d):
        A(f"ds_read_b128 {v(KF[buf],4)}, v{AD} offset:{(8-d)*4096}")
        A(f"ds_read_b128 {v(KF[buf]+4,4)}, v{AD} offset:{(8-d)*4096+1024}")

    def rdV(buf, d):
        A(f"ds_read_b128 {v(VF[buf],4)}, v{AD} offset:{(8-d)*4096+2048}")
        A(f"ds_read_b128 {v(VF[buf]+4,4)}, v{AD} offset:{(8-d)*4096+3072}")

    def neg_switch(d):
        l = newlab("ng")
        A(f"s_cmp_eq_u32 s{sTA}, {d-1}")
        A(f"s_cbranch_scc0 {l}")
        for i in range(16):
            A(f"v_mov_b32 v{CB+i}, {fl(-1e30)}")
        A.label(l)

    def smf(dst, buf, c):
        A(MF(dst, KF[buf], Q, c))
        A(MF(dst, KF[buf] + 4, Q + 4))

    def maxes(src, first):
        for p in range(8):
            if first and p == 0:
                A(f"v_max_f32 v{MX}, v{src}, v{src+1}")
            else:
                A(f"v_max3_f32 v{MX}, v{MX}, v{src+2*p}, v{src+2*p+1}")
    rdK(0, 0)
    rdK(1, 1)
    A("s_waitcnt lgkmcnt(2)")
    smf(SM_, 0, "0")
    for d in range(1, 9):
        b = d & 1
        if d < 8:
            rdK(b ^ 1, d + 1)
        neg_switch(d)
        A(f"s_waitcnt lgkmcnt({2 if d < 8 else 0})")
        smf(SA[b], b, CB)
        if d >= 2:
            maxes(SA[b ^ 1], d == 2)
    rdK(1, 1)
    rdV(0, 0)
    rdV(1, 8)
    for i in range(16):
        A(f"v_cndmask_b32 v{SM_+i}, v{SA[0]+i}, v{SM_+i}, {s(MS+2*i,2)}")
    maxes(SM_, False)
    A(f"v_mov_b32 v{TM}, v{MX}")
    A(f"v_permlane32_swap_b32 v{MX}, v{TM}")
    A(f"v_max_f32 v{MX}, v{MX}, v{TM}")
    for i in range(16):
        A(f"v_sub_f32 v{CB+i}, 0, v{MX}")
    neg_switch(1)
    A("s_waitcnt lgkmcnt(4)")
    smf(SA[1], 1, CB)
    rdK(0, 2)
    for i in range(16):
        A(f"v_sub_f32 v{SM_+i}, v{SM_+i}, v{MX}")
    for i in range(16):
        A(f"v_exp_f32 v{SM_+i}, v{SM_+i}")
    A(f"v_add_f32 v{SU0}, v{SM_}, v{SM_+1}")
    A(f"v_add_f32 v{SU1}, v{SM_+2}, v{SM_+3}")
    for i in range(4, 16):
        A(f"v_add_f32 v{SU0+(i&1)}, v{SU0+(i&1)}, v{SM_+i}")
    for p in range(8):
        A(f"v_cvt_pk_bf16_f32 v{PP[1]+p}, v{SM_+2*p}, v{SM_+2*p+1}")
    for p in range(8):
        A(f"v_and_b32 v{PP[0]+p}, v{PP[1]+p}, v{PM+p}")
    for p in range(8):
        A(f"v_xor_b32 v{PP[1]+p}, v{PP[1]+p}, v{PP[0]+p}")
    A("s_waitcnt lgkmcnt(2)")
    A(MF(O, VF[0], PP[0], "0"))
    A(MF(O, VF[0] + 4, PP[0] + 4))
    A(MF(O, VF[1], PP[1]))
    A(MF(O, VF[1] + 4, PP[1] + 4))
    for d in range(1, 8):
        b = d & 1
        rdV(b, d)
        if d < 7:
            neg_switch(d + 1)
            A("s_waitcnt lgkmcnt(2)")
            smf(SA[b ^ 1], b ^ 1, CB)
            if d < 6:
                rdK(b, d + 2)
        src = SA[b]
        for i in range(16):
            A(f"v_exp_f32 v{src+i}, v{src+i}")
        for i in range(16):
            A(f"v_add_f32 v{SU0+(i&1)}, v{SU0+(i&1)}, v{src+i}")
        for p in range(8):
            A(f"v_cvt_pk_bf16_f32 v{PP[b]+p}, v{src+2*p}, v{src+2*p+1}")
        A(f"s_waitcnt lgkmcnt({2 if d < 6 else 0})")
        A(MF(O, VF[b], PP[b]))
        A(MF(O, VF[b] + 4, PP[b] + 4))
    A(f"v_add_f32 v{SU0}, v{SU0}, v{SU1}")
    A(f"v_mov_b32 v{TM}, v{SU0}")
    A(f"v_permlane32_swap_b32 v{SU0}, v{TM}")
    A(f"v_add_f32 v{SU0}, v{SU0}, v{TM}")
    A(f"v_rcp_f32 v{SU0}, v{SU0}")
    A(f"s_lshl_b32 s33, s{sHG}, 11")
    A("s_add_u32 s33, s33, s36")
    A(f"s_branch att_ret{team}")


def att_addr(team):
    A(f"s_lshl_b32 s36, s{sTA}, 16")
    if not OSH:
        A(f"s_add_u32 s36, s36, s{sL}")
    A(f"s_add_u32 s36, s36, {hex(OFB + team*32768)}")
    A(f"s_lshl_b32 s33, s{sHG}, 11")
    A("s_add_u32 s33, s33, s36")
    A(f"s_lshl_b32 s30, s{sRB}, 9")
    A(f"s_and_b32 s31, s{sTA}, 3")
    A("s_lshl_b32 s31, s31, 6")
    A("s_add_u32 s30, s30, s31")
    A(f"s_add_u32 s30, s30, s{sL}")
    A(f"s_add_u32 s30, s30, {hex(OFL + team*256)}")
    A(f"s_lshl_b32 s31, s{sHG}, 2")
    A("s_add_u32 s31, s31, s30")


def att_store():
    for p in range(8):
        A(f"v_pk_mul_f32 {v(O+2*p,2)}, {v(O+2*p,2)}, {v(SU0,2)} op_sel_hi:[1,0]")
    for p in range(8):
        A(f"v_cvt_pk_bf16_f32 v{O+p}, v{O+2*p}, v{O+2*p+1}")

    def st(bits):
        A(f"buffer_store_dwordx4 {v(O,4)}, v{L16}, {WSR}, s33 offen {bits}")
        A(f"buffer_store_dwordx4 {v(O+4,4)}, v{L16}, {WSR}, s33 offen offset:1024 {bits}")
    st_loc(st)
    mark("att_end")


WO0, WO1 = opt("wo0", [13] * 3 + [16] * 6), opt("wo1", [16, 16])


XE2, XLA = opt("xe2", 1), opt("xla", 5)


def e_att():
    att_setup(0)
    padat("a0", 0)
    padat("a1", 1)

    def kvfl():
        flag_store("s30")
        mark("kv_fl")
    skip_if(f"s_cmp_lg_u32 s{sPATCH}, 2", kvfl)
    A("s_waitcnt lgkmcnt(0)")
    mark("x0_wait")
    A("s_barrier")

    def fix():
        A(f"s_lshr_b32 s34, s{sIDX}, 5")

        def row():
            A(f"s_and_b32 s32, s{sIDX}, 31")
            A(f"v_and_b32 v0, 31, v{LN}")
            A("v_cmp_eq_u32 vcc, s32, v0")
            A(f"v_lshrrev_b32 v0, 5, v{LN}")
            A("v_lshlrev_b32 v0, 3, v0")
            A(f"s_lshl_b32 s34, s{sCG}, 7")
            A(f"s_add_u32 s34, s34, {hex(X2R)}")
            A("s_mov_b64 exec, vcc")
            for ks in range(8):
                A(f"buffer_load_dwordx2 {v(P+2*ks,2)}, v0, {WSR}, s34 offen offset:{16*ks} sc1")
            A(f"v_mov_b32 v{CC}, 1.0")
            A(f"v_mov_b32 v{DD}, 0")
            A("s_mov_b64 exec, -1")
        skip_if(f"s_cmp_lg_u32 s34, s{sT}", row)
        A("s_barrier")
    skip_if(f"s_cmp_lg_u32 s{sPATCH}, 2", fix)
    mark("a_go")
    att_qread()
    al = wo_groups([0, 12, 13, 14, 15], EVO, "woa")
    AL = opt("al", [0, 1, 2, 3, 4])

    def mid():
        mark("a_end")
        A("s_barrier")
        skip_if(f"s_cmp_lg_u32 s{sPATCH}, 1", lambda: A("s_barrier"))
        mark("att_go")

    def hook(k):
        if k == XE2:
            A("s_barrier")
        emit([g for j, g in zip(AL, al) if j == k])
    attention(0, lambda: skip_if(f"s_cmp_eq_u32 s{sPATCH}, 2", kvfl), mid, hook)


def table_loads(T):
    def f():
        A(f"s_add_u32 s32, s{sCI}, {hex(TABLE)}")
        A(f"buffer_load_dwordx4 {v(T,4)}, v{L16}, {WSR}, s32 offen sc1")
    return f


def argmax_lane(T, issued=None):
    poll(table_loads(T), lambda: sent_check(range(T, T + 4), T + 4), issued)
    A(f"v_mov_b32 v{T+4}, v{T}")
    wave_red(T + 4, T + 5, "max")
    A(f"v_cmp_eq_f32 vcc, v{T+4}, v{T}")
    A("s_ff1_i32_b64 s32, vcc")
    A("s_and_b32 s32, s32, 63")


def stat_loads(S, base):
    def f():
        A(f"s_lshl_b32 s30, s{sT}, 13")
        A(f"s_add_u32 s30, s30, {hex(base)}")
        A("s_add_u32 s31, s30, 4096")
        for i in range(8):
            A(f"buffer_load_dwordx4 {v(S+4*i,4)}, v{L16}, {WSR}, s{30+(i>>2)} offen offset:{(i&3)*1024} sc1")
    return f


def stat_core(S, E, t, nc=4, n=8, sw=32):
    for i in range(1, n):
        for c in range(0, nc, 2):
            A(f"v_pk_add_f32 {v(S+c,2)}, {v(S+c,2)}, {v(S+4*i+c,2)}")
    for i in range(nc):
        A(f"v_mov_b32 v{t+i}, v{S+i}")
    for i in range(nc):
        A(f"v_permlane{sw}_swap_b32 v{S+i}, v{t+i}")
    for i in range(nc):
        A(f"v_add_f32 v{S+i}, v{S+i}, v{t+i}")
    A(f"v_mul_f32 v{E+2}, {fl(1/1024)}, v{S}")
    A(f"v_mul_f32 v{S+1}, {fl(1/1024)}, v{S+1}")
    A(f"v_fma_f32 v{S+1}, -v{E+2}, v{E+2}, v{S+1}")
    A(f"v_max_f32 v{S+1}, 0, v{S+1}")
    A(f"v_add_f32 v{E+3}, {fl(EPS)}, v{S+1}")
    A(f"v_rsq_f32 v{E+3}, v{E+3}")


def cand_publish(S, E, t, PR, lay):
    A(f"v_fma_f32 v{E}, -v{E+2}, v{S+3}, v{S+2}")
    A(f"v_and_b32 v{E+1}, 31, v{LN}")
    A(f"v_mul_f32 v{E}, v{E}, v{E+3}")
    A(f"s_lshl_b32 s32, s{sT}, 5")
    A(f"v_add_u32 v{E+1}, s32, v{E+1}")
    A(f"v_mov_b32 v{t}, v{E}")
    wave_red(t, t + 1, "max", 32)
    A(f"v_cmp_eq_f32 vcc, v{t}, v{E}")
    A(f"v_lshrrev_b32 v{t+2}, 5, v{LN}")
    A(f"v_lshlrev_b32 v{t+2}, 4, v{t+2}")
    A(f"v_add_lshl_u32 v{t+3}, v{t+2}, s{sHG}, 27")
    A(f"s_lshl_b32 s32, s{sT}, 11")
    A(f"s_lshl_b32 s33, s{sCG}, 7")
    A("s_add_u32 s32, s32, s33")
    A(f"s_add_u32 s32, s32, {hex(CAND + lay)}")
    A(f"s_lshl_b32 s34, s{sT}, 4")
    A(f"s_add_u32 s34, s34, {hex(TABLE + lay)}")
    A("s_ff1_i32_b32 s35, vcc_lo")
    A("s_lshl_b32 s35, 1, s35")
    A("s_mov_b32 exec_lo, s35")
    A("s_mov_b32 exec_hi, s35")
    A(f"buffer_store_dwordx4 {v(E,4)}, v{t+3}, {WSR}, s34 offen sc1")
    for ks in range(4):
        A(f"buffer_store_dwordx4 {v(PR+4*ks,4)}, v{t+2}, {WSR}, s32 offen offset:{ks*32} sc1")
    A("s_mov_b64 exec, -1")


def xf_off(dst):
    A(f"v_bfe_u32 v{dst}, v{LN}, 4, 1")
    A(f"v_lshlrev_b32 v{dst}, 11, v{dst}")
    A(f"v_lshrrev_b32 v{dst+1}, 5, v{LN}")
    A(f"v_lshl_add_u32 v{dst}, v{dst+1}, 8, v{dst}")
    A(f"v_and_b32 v{dst+1}, 15, v{LN}")
    A(f"v_lshl_add_u32 v{dst}, v{dst+1}, 4, v{dst}")
    A(f"s_lshl_b32 s34, s{sW4}, 12")
    A(f"s_add_u32 s34, s34, {L_X}")
    A(f"v_add_u32 v{dst+1}, s34, v{dst}")


def e_wo():
    D = opt("wod", 8)
    WA, FA, FL, XO, OB = 56, 60, 61, 100, 104
    WF = [32, 40, 48]
    assert OB + 4 * (D + 1) <= 154
    A(f"v_bfe_u32 v33, v{LN}, 2, 2")
    A(f"v_lshrrev_b32 v32, 5, v{LN}")
    A("v_lshl_add_u32 v34, v32, 3, v33")
    A("v_lshlrev_b32 v34, 7, v34")
    A("v_lshrrev_b32 v33, 1, v33")
    A("v_lshl_add_u32 v34, v33, 6, v34")
    A(f"v_bfe_u32 v33, v{LN}, 4, 1")
    A("v_lshl_add_u32 v34, v33, 5, v34")
    A(f"v_and_b32 v33, 3, v{LN}")
    A(f"v_lshl_add_u32 v{WA}, v33, 3, v34")
    A(f"v_xor_b32 v{WA+1}, 64, v{WA}")
    A(f"v_add_u32 v{WA+2}, 0x10000, v{WA}")
    A(f"v_add_u32 v{WA+3}, 0x10000, v{WA+1}")
    A(f"v_and_b32 v{FA}, 15, v{LN}")
    A(f"v_lshlrev_b32 v{FA}, 2, v{FA}")
    A("s_waitcnt vmcnt(2)")
    XAF = opt("xaf", 1)
    if XAF:
        A(f"s_and_b32 s35, s{sT}, {3 if XAF == 1 else 0}")
        skip_if("s_cmp_lg_u32 s35, 0", lambda: A("s_barrier"))
    for p in range(16):
        A(f"v_lshlrev_b32 v{2*p}, 16, v{P+p}")
        A(f"v_and_b32 v{2*p+1}, 0xffff0000, v{P+p}")
    for p in range(16):
        A(f"v_pk_fma_f32 {v(2*p,2)}, {v(2*p,2)}, {v(CC,2)}, {v(CC,2)} op_sel:[0,0,1] op_sel_hi:[1,0,1]")
    flag_store("s31", True)
    mark("o_fl")
    if XAF:
        skip_if("s_cmp_eq_u32 s35, 0", lambda: A("s_barrier"))
    else:
        A("s_barrier")
    mark("xa")
    emit(wo_groups(range(16, 28), EVO, "wob"))
    xf_off(XO)
    A(f"s_lshl_b32 s37, s{sHG}, 11" if ROT else "s_mov_b32 s37, 0")

    def rd(i):
        f = WF[i % 3]
        return [f"ds_read_b64_tr_b16 {v(f+4*u+2*j,2)}, v{WA+u+2*(i>>5)} offset:{(i&31)*2048+j*512}" for u in range(2) for j in range(2)]

    def ld(i):
        if i == 32:
            A("s_add_u32 s36, s36, 32768")
        if i & 1 == 0:
            A("s_add_u32 s38, s36, s37")
        else:
            A("s_add_u32 s37, s37, 2048")
            A("s_and_b32 s37, s37, 0x7800")
        A(f"buffer_load_dwordx4 {v(OB+4*(i%(D+1)),4)}, v{L16}, {WSR}, s38 offen offset:{(i&1)*1024} sc1 ;@o{i}")

    def fload(off):
        return lambda: A(f"buffer_load_dword v{FL}, v{FA}, {WSR}, s30 offen offset:{off} sc1")
    A.lines += rd(0) + rd(1)
    poll(fload(0), lambda: A(f"v_cmp_ne_u32 vcc, s{sNON}, v{FL}"))
    mark("o_ok0")
    for i in range(D):
        ld(i)
    FB = opt("wofb", 4)
    for i in range(64):
        f, ob = WF[i % 3], OB + 4 * (i % (D + 1))
        r = rd(i + 2) if i + 2 < 64 else []
        if i in (30, 54):
            A("s_barrier")
        W(f"o{i}", 4 if i < 63 else 0)
        A(MF(0, f, ob))
        if i + D == 32 - FB:
            tagged("fb", fload(256))
        if i + D == 32:
            poll(fload(256), lambda: A(f"v_cmp_ne_u32 vcc, s{sNON}, v{FL}"), "fb")
            mark("o_ok1")
        if i + D < 64:
            ld(i + D)
        A.lines += r[:2]
        A(MF(16, f + 4, ob))
        A.lines += r[2:]
    mark("wo_end")
    G = 96
    A(f"s_lshl_b32 s35, s{sRB}, 4")
    A(f"s_add_u32 s35, s35, s{sCG}")
    A("s_lshl_b32 s35, s35, 14")
    A(f"s_lshl_b32 s34, s{sW}, 12")
    A("s_add_u32 s35, s35, s34")
    if not XFO:
        A(f"s_add_u32 s35, s35, {hex(XFB)}")
    A(f"s_lshl_b32 s30, s{sT}, 13")
    A(f"s_add_u32 s30, s30, s{sL}")
    A(f"s_add_u32 s30, s30, {hex(STAT)}")
    A(f"s_lshl_b32 s31, s{sCG}, 9")
    A("s_add_u32 s31, s31, s30")
    for i in range(3):
        A(f"v_mov_b32 v{G+i}, 0")
    A(f"v_mov_b32 v{G+3}, v{WSUM}")
    for p in range(16):
        A(f"v_cvt_pk_bf16_f32 v{P+p}, v{2*p}, v{2*p+1}")

    def xfst():
        st_loc(lambda bits: [A(f"buffer_store_dwordx4 {v(P+4*ks,4)}, v{XO}, {XFR}, s35 offen offset:{ks*512} {opt('xbits', '') or bits}") for ks in range(4)])
        for ks in range(4):
            A(f"ds_write_b128 v{XO+1}, {v(P+4*ks,4)} offset:{ks*512}")
    skip_if(f"s_cmp_lg_u32 s{sL}, 0", xfst)
    for p in range(16):
        A(f"v_dot2c_f32_bf16 v{G}, {ONES}, v{P+p}")
        A(f"v_dot2c_f32_bf16 v{G+1}, v{P+p}, v{P+p}")
        A(f"v_dot2c_f32_bf16 v{G+2}, v{WR+p}, v{P+p}")
    for i in range(4):
        A(f"v_mov_b32 v{48+i}, v{G+i}")
    for i in range(4):
        A(f"v_permlane32_swap_b32 v{G+i}, v{48+i}")
    for i in range(4):
        A(f"v_add_f32 v{G+i}, v{G+i}, v{48+i}")
    A("s_mov_b32 exec_hi, 0")
    A("s_waitcnt vmcnt(0)")
    st_loc(lambda bits: A(f"buffer_store_dwordx4 {v(G,4)}, v{L16}, {WSR}, s31 offen {bits}"))
    A("s_mov_b64 exec, -1")
    mark("st_pub")
    A(f"s_cmp_lg_u32 s{sL}, 0")
    A("s_cbranch_scc1 e_final")
    A(f"s_mov_b32 s{sL}, {LSTR}")
    A(f"s_and_b32 s30, s{sW}, 1")
    A("s_lshl_b32 s30, s30, 13")
    A(f"v_add_u32 v{XB}, s30, v{L16}")
    A(f"v_add_u32 v{XB+1}, 1024, v{XB}")
    if PF:
        pf_setup(PFA)
        A(f"s_add_u32 s{sPB}, s{sPB}, 14")
    for i in range(96):
        A(f"v_mov_b32 v{i}, 0")
    if WBK & 2:
        A(f"s_lshl_b32 s30, s{sHG}, 2")
        A(f"s_add_u32 s30, s30, s{sW}")
        A(f"s_cmp_eq_u32 s30, {4*WBH+1}")
        A(f"s_cselect_b32 s{sAC}, {14 - opt('wbi', 8)}, -1")
    prof_next()
    A("s_waitcnt lgkmcnt(0)")
    A("s_branch e_q")
    if FPF:
        fpf_step()
    A.label("e_arr")
    if WBK & 2:
        A(f"s_cmp_eq_u32 s{sL}, 0")
        A("s_cbranch_scc1 e_arr0")
        A("buffer_wbl2 sc1")
        A("s_branch e_arr_ret")
        A.label("e_arr0")
    A("s_mov_b64 exec, 3")
    A(f"s_mov_b32 s{sAC}, {hex(ROWF)}")
    A(f"buffer_store_dwordx2 v[250:251], v249, {WSR}, s{sAC} offen sc1")
    A("s_mov_b64 exec, -1")
    A("s_branch e_arr_ret")
    A.label("e_final")
    S, E = 64, 52
    poll(stat_loads(S, STAT + LSTR), lambda: sent_check(range(S, S + 32), 48, SST))
    mark("st_ok")
    stat_core(S, E, 48)
    cand_publish(S, E, 48, P, LSTR)
    mark("cand")
    A(f"v_add_f32 v{CC}, 1.0, v{E+3}")
    A(f"v_mul_f32 v{DD}, v{E+2}, v{E+3}")
    A(f"v_sub_f32 v{DD}, 0, v{DD}")
    for p in range(16):
        A(f"v_pk_fma_f32 {v(2*p,2)}, {v(2*p,2)}, {v(CC,2)}, {v(CC,2)} op_sel:[0,0,1] op_sel_hi:[1,0,1]")
    for p in range(16):
        A(f"v_cvt_pk_bf16_f32 v{64+p}, v{2*p}, v{2*p+1}")
    for ks in range(4):
        A(f"v_permlane32_swap_b32 v{64+4*ks}, v{64+4*ks+2}")
        A(f"v_permlane32_swap_b32 v{64+4*ks+1}, v{64+4*ks+3}")
    A(f"v_lshl_add_u32 v50, v{E+1}, 11, v50")
    A(f"s_mov_b32 s{sCI}, s{sL}")

    def arg():
        argmax_lane(0)
        A("s_lshl_b64 exec, 1, s32")
        A(f"ds_write_b128 v{TA+5}, v[0:3] offset:{T_IDX}")
        A("s_mov_b64 exec, -1")
    skip_if(f"s_cmp_lg_u32 s{sW}, 0", arg)
    A("s_waitcnt lgkmcnt(0)")
    A("s_barrier")
    A(f"ds_read_b32 v0, v{TA+5} offset:{T_IDX+4}")
    A("s_waitcnt lgkmcnt(0)")
    A("v_and_b32 v0, 0x7ff, v0")
    A(f"v_cmp_ne_u32 vcc, v0, v{E+1}")
    A("s_mov_b64 exec, vcc")
    for ks in range(4):
        A(f"buffer_store_dwordx4 {v(64+4*ks,4)}, v50, s[{TS}:{TS+3}], s33 offen offset:{ks*32} {opt('obits', '')}")
    A("s_mov_b64 exec, -1")
    if WBK & 4:
        A(f"s_lshl_b32 s30, s{sHG}, 2")
        A(f"s_add_u32 s30, s30, s{sW}")
        A(f"s_and_b32 s30, s30, {opt('wbm', 63)}")
        A(f"s_cmp_lg_u32 s30, {(4*WBH+1) & opt('wbm', 63)}")
        A("s_cbranch_scc1 k_end")
        A("s_waitcnt vmcnt(0)")
        A("buffer_wbl2 sc1")
    A("s_branch k_end")


STAG = opt("stag", 1)
FV = [155, 155, 153]


def ffn_addr():
    A(f"v_lshrrev_b32 v20, 2, v{LN}")
    A("v_lshlrev_b32 v20, 2, v20")
    A(f"v_bfe_u32 v21, v{LN}, 1, 1")
    A("v_add_u32 v20, v20, v21")
    A(f"v_mul_u32_u24 v20, {4*7168}, v20")
    A(f"v_and_b32 v21, 1, v{LN}")
    A("v_lshl_add_u32 v20, v21, 4, v20")
    A(f"s_mul_i32 s30, s{sW4}, {256*7168}")
    A(f"s_lshl_b32 s31, s{sF}, 5")
    A("s_add_u32 s30, s30, s31")
    A(f"v_add_u32 v{FV[0]}, s30, v20")
    A("v_lshlrev_b32 v21, 14, v21")
    A(f"v_lshrrev_b32 v20, 1, v{LN}")
    A("v_lshl_add_u32 v20, v20, 4, v21")
    A(f"s_lshl_b32 s30, s{sW4}, 9")
    A(f"s_lshl_b32 s31, s{sF}, 15")
    A("s_add_u32 s30, s30, s31")
    A(f"v_add_u32 v{FV[2]}, s30, v20")


def ffn_srd(which, sd):
    karg, nb = [(40, 1024 * 7168), (48, 1024 * 7168), (56, 3584 * 2048)][which]
    if opt("noffn", 0) >> which & 1:
        nb = 0
    return [f"s_load_dwordx2 s[{sd}:{sd+1}], s[0:1], {karg}", f"s_cmp_lt_u32 s{sF}, 224",
            f"s_cselect_b32 s{sd+2}, {hex(nb)}, 0", f"s_mov_b32 s{sd+3}, 0x20000"]


def ffn_groups(which, sd):
    base = [GW, UW, DW][which]
    gs = []
    for j in range(8):
        g = []
        if which == 2:
            g += [f"s_mov_b32 s{sD0}, {j*2048}"]
        elif STAG:
            g += [f"s_xor_b32 s{sD0}, s{sF}, {j >> 1}", f"s_and_b32 s{sD1}, s{sD0}, 2", f"s_and_b32 s{sD0}, s{sD0}, 3",
                  f"s_mul_i32 s{sD1}, s{sD1}, {2*7168}", f"s_mul_i32 s{sD0}, s{sD0}, {2*7168}", f"s_add_u32 s{sD0}, s{sD0}, s{sD1}"]
            if j & 1:
                g += [f"s_add_u32 s{sD0}, s{sD0}, 7168"]
        else:
            g += [f"s_mov_b32 s{sD0}, {((j & 3) + 8*(j >> 2))*7168}"]
        g += [f"buffer_load_dwordx4 {v(base+4*j,4)}, v{FV[which]}, s[{sd}:{sd+3}], s{sD0} offen {opt('fbits', '')} ;@ffw"]
        gs.append(g)
    return gs


FFS = opt("ffs", [26] * 8 + [18, 18, 19, 19, 20, 21, 22, 23] + [40] * 8)
LATE = {}


def late(k):
    if k in LATE:
        skip_if(f"s_cmp_lg_u32 s{sL}, 0", lambda: emit(LATE[k]))


WMAP = {}


def ffn_perm():
    A("s_mov_b32 s30, 0x05040100")
    A("s_mov_b32 s31, 0x07060302")
    free = SPARE
    for m, base in enumerate((GW, UW, DW)):
        for p in range(4):
            for c in range(4):
                a_, b_ = base + 8 * p + c, base + 8 * p + 4 + c
                A(f"v_perm_b32 v{free}, v{b_}, v{a_}, s30")
                A(f"v_perm_b32 v{b_}, v{b_}, v{a_}, s31")
                WMAP[(m, p, 2 * c)] = free
                WMAP[(m, p, 2 * c + 1)] = b_
                free = a_


XG = 24
RQ = opt("rq", 2)


def ffn_xaddr():
    A(f"s_lshl_b32 s32, s{sW4}, 9")
    A(f"s_sub_u32 s34, s{sF}, 224")
    A("s_lshl_b32 s34, s34, 2")
    A(f"s_mul_i32 s35, s{sW4}, {RQ}")
    A("s_and_b32 s33, s35, 3")
    A("s_add_u32 s34, s34, s33")
    A("s_cmp_lt_u32 s35, 4")
    A("s_cselect_b32 s89, s34, -1")
    A(f"v_and_b32 v23, {RQ-1}, v{LN}")
    A("v_add_u32 v23, s34, v23")
    A(f"v_lshrrev_b32 v22, 5, v{LN}")
    A("v_and_or_b32 v23, v23, -2, v22")
    A(f"v_lshrrev_b32 v22, 1, v{LN}")
    A(f"s_cmp_lt_u32 s{sF}, 224")
    A("s_cselect_b32 s32, s32, 0")
    A("s_cselect_b64 vcc, -1, 0")
    A("v_cndmask_b32 v22, v23, v22, vcc")
    A("v_lshl_add_u32 v22, v22, 4, s32")


def xloads():
    A(f"s_lshr_b32 s33, s{sIDX}, 5")
    A("s_lshl_b32 s33, s33, 11")
    A(f"s_add_u32 s33, s33, s{sCI}")
    A(f"s_add_u32 s33, s33, {hex(CAND)}")
    A(f"buffer_load_dwordx4 {v(XG,4)}, v22, {WSR}, s33 offen sc1")


def isffn(body):
    skip_if(f"s_cmp_ge_u32 s{sF}, 224", body) if opt("skf", 1) else body()


def ffn_gateup():
    AC = 32
    A(f"v_mov_b32 v28, s{sRSTD}")
    A(f"v_mul_f32 v29, s{sMEAN}, v28")
    for p in range(4):
        A(f"v_lshlrev_b32 v30, 16, v{XG+p}")
        A(f"v_and_b32 v31, 0xffff0000, v{XG+p}")
        A("v_fma_f32 v30, v30, v28, -v29")
        A("v_fma_f32 v31, v31, v28, -v29")
        A(f"v_cvt_pk_bf16_f32 v{XG+p}, v30, v31")
    if STAG:
        for b in range(2):
            skip_if(f"s_bitcmp0_b32 s{sF}, {b}",
                    lambda: [A(f"v_swap_b32 v{XG+p}, v{XG+(p ^ (1 << b))}") for p in range(4) if not p >> b & 1])
    isffn(lambda: [A(f"v_dot2_f32_bf16 v{AC+8*m+c}, v{WMAP[(m,p,c)]}, v{XG+p}, {'0' if p == 0 else 'v%d' % (AC+8*m+c)}")
                   for p in range(4) for m in range(2) for c in range(8)])
    A.lines.append("@cut")
    A(f"v_lshrrev_b32 v31, 5, v{LN}")
    A("v_lshlrev_b32 v30, 6, v31")
    for c in range(8):
        A(f"v_permlane32_swap_b32 v{AC+c}, v{AC+8+c}")
    for c in range(8):
        A(f"v_add_f32 v{AC+c}, v{AC+c}, v{AC+8+c}")
    A(f"v_and_b32 v31, 1, v{LN}")
    A("v_lshl_add_u32 v30, v31, 5, v30")
    for c in range(4):
        A(f"v_permlane16_swap_b32 v{AC+c}, v{AC+4+c}")
    for c in range(4):
        A(f"v_add_f32 v{AC+c}, v{AC+c}, v{AC+4+c}")
    A(f"v_and_b32 v31, 16, v{LN}")
    A(f"s_lshl_b32 s32, s{sW4}, 7")
    A("v_add3_u32 v30, v31, v30, s32")
    for sh in ("quad_perm:[2,3,0,1]", "row_ror:4", "row_ror:8"):
        for c in range(4):
            A(f"v_add_f32_dpp v{AC+c}, v{AC+c}, v{AC+c} {sh} {DPPF}")
    A("s_mov_b32 exec_lo, 0x00030003")
    A("s_mov_b32 exec_hi, 0x00030003")
    A(f"ds_write_b128 v30, {v(AC,4)} offset:{T_INB}")
    A("s_mov_b64 exec, -1")


def ffn_down():
    A(f"v_and_b32 v30, 1, v{LN}")
    A(f"v_bfe_u32 v31, v{LN}, 1, 3")
    A("v_lshl_add_u32 v30, v30, 3, v31")
    A("v_lshlrev_b32 v30, 2, v30")
    A(f"v_add_u32 v30, {T_INB}, v30")
    for i in range(4):
        A(f"ds_read2_b32 {v(32+2*i,2)}, v30 offset0:{32*i} offset1:{32*i+16}")
    A(f"v_lshrrev_b32 v30, {RQ.bit_length()}, v{LN}")
    A(f"v_mul_u32_u24 v30, {224*16*RQ}, v30")
    if RQ > 1:
        A(f"v_and_b32 v31, {2*RQ-2}, v{LN}")
        A("v_lshl_add_u32 v30, v31, 3, v30")
    A(f"s_add_u32 s32, s{sF}, 32")
    A("s_lshr_b32 s32, s32, 8")
    A("v_lshl_add_u32 v30, s32, 31, v30")
    A(f"s_mul_i32 s32, s{sW4}, {32*224*16}")
    A(f"s_mul_i32 s33, s{sF}, {16*RQ}")
    A("s_add_u32 s32, s32, s33")
    A(f"s_add_u32 s32, s32, s{sCI}")
    A(f"s_add_u32 s32, s32, {hex(PY)}")
    A("s_waitcnt lgkmcnt(0)")
    A("v_pk_add_f32 v[32:33], v[32:33], v[34:35]")
    A("v_pk_add_f32 v[36:37], v[36:37], v[38:39]")
    A("v_pk_add_f32 v[32:33], v[32:33], v[36:37]")
    A(f"v_mul_f32 v34, {fl(-math.log2(math.e))}, v32")
    A("v_exp_f32 v34, v34")
    A("v_mul_f32 v32, v32, v33")
    A("v_add_f32 v34, 1.0, v34")
    A("v_rcp_f32 v34, v34")
    A("v_mul_f32 v32, v32, v34")
    A(f"v_mov_b32_dpp v33, v32 quad_perm:[2,3,2,3] {DPPF}")
    A("v_cvt_pk_bf16_f32 v32, v32, v33")
    for p in range(4):
        A(f"ds_swizzle_b32 v{36+p}, v32 offset:{hex(1 | (4*p) << 5)}")
    A("s_waitcnt lgkmcnt(0)")
    AC = 40
    isffn(lambda: [A(f"v_dot2_f32_bf16 v{AC+c}, v{WMAP[(2,p,c)]}, v{36+p}, {'0' if p == 0 else 'v%d' % (AC+c)}")
                   for p in range(4) for c in range(8)])
    A.lines.append("@cut")
    for c in range(8):
        A(f"v_add_f32_dpp v{AC+c}, v{AC+c}, v{AC+c} quad_perm:[1,0,3,2] {DPPF}")
    A("s_mov_b32 exec_lo, 0x55555555")
    A("s_mov_b32 exec_hi, 0x55555555")
    for c in range(4):
        A(f"v_cvt_pk_bf16_f32 v{AC+c}, v{AC+2*c}, v{AC+2*c+1}")
    A(f"buffer_store_dwordx4 {v(AC,4)}, v30, {WSR}, s32 offen sc1")
    A("s_mov_b64 exec, -1")


NR = -(-7 * RQ // 2)
RP, RS = 88 - 4 * NR, 24


def red_loads():
    A(f"s_mul_i32 s32, s89, {224*16}")
    A(f"s_add_u32 s32, s32, s{sCI}")
    A(f"s_add_u32 s32, s32, {hex(PY)}")
    for i in range(NR):
        if RQ == 1 and i == 3:
            A("s_mov_b32 exec_hi, 0")
        A(f"buffer_load_dwordx4 {v(RP+4*i,4)}, v{L16}, {WSR}, s32 offen offset:{(i&3)*1024} sc1")
        if i & 3 == 3 and RQ > 1:
            A("s_add_u32 s32, s32, 4096")
    if RQ == 1:
        A("s_mov_b64 exec, -1")


def red_chk():
    sent_check(range(RP, RP + 4 * NR), 30, SST)


def red_pre():
    A(f"v_and_b32 v30, 16, v{LN}")
    A("v_cmp_eq_u32 vcc, 16, v30")
    A(f"v_mov_b32 v28, s{sRSTD}")
    A(f"v_mul_f32 v29, s{sMEAN}, v28")
    A("v_add_f32 v28, 1.0, v28")
    A(f"v_cndmask_b32 v30, v{XG}, v{XG+1}, vcc")
    A(f"v_cndmask_b32 v31, v{XG+2}, v{XG+3}, vcc")
    if RQ == 1:
        A("s_bitcmp1_b32 s89, 0")
        A("s_cselect_b64 vcc, -1, 0")
    else:
        A("s_mov_b32 vcc_lo, 0xaaaaaaaa")
        A("s_mov_b32 vcc_hi, 0xaaaaaaaa")
    A(f"v_mov_b32 v96, {fl(-math.log2(math.e))}")
    A(f"v_mul_f32 v96, s{sR}, v96")
    A("v_exp_f32 v96, v96")
    A("v_cndmask_b32 v30, v30, v31, vcc")
    A("v_lshlrev_b32 v92, 16, v30")
    A("v_and_b32 v93, 0xffff0000, v30")
    for c in range(2):
        A(f"v_fma_f32 v{92+c}, v{92+c}, v28, -v29")
    A("v_add_f32 v96, 1.0, v96")
    A("v_rcp_f32 v96, v96")
    for c in range(4 * (RQ == 1)):
        A(f"v_mov_b32 v{RP+12+c}, 0")


def red_sum():
    R, T = RS, 88
    for d in range(4):
        A(f"v_lshlrev_b32 v{R+2*d}, 16, v{RP+d}")
        A(f"v_and_b32 v{R+2*d+1}, 0xffff0000, v{RP+d}")
    for i in range(1, NR):
        for d in range(0, 4, 2):
            for e in range(2):
                A(f"v_lshlrev_b32 v{T+2*e}, 16, v{RP+4*i+d+e}")
                A(f"v_and_b32 v{T+2*e+1}, 0xffff0000, v{RP+4*i+d+e}")
            for e in range(2):
                A(f"v_pk_add_f32 {v(R+2*d+2*e,2)}, {v(R+2*d+2*e,2)}, {v(T+2*e,2)}")
    for n, sw in ((4, 32), (2, 16)):
        for c in range(n):
            A(f"v_permlane{sw}_swap_b32 v{R+c}, v{R+n+c}")
        for c in range(n):
            A(f"v_add_f32 v{R+c}, v{R+c}, v{R+n+c}")
    for sh in ("quad_perm:[1,0,3,2]", "quad_perm:[2,3,0,1]", "row_ror:4", "row_ror:8")[RQ >> 1:]:
        for c in range(2):
            A(f"v_add_f32_dpp v{R+c}, v{R+c}, v{R+c} {sh} {DPPF}")
    for c in range(2):
        A(f"v_fma_f32 v{R+4+c}, v{R+c}, v96, v{92+c}")
    for c in range(4):
        A(f"v_cvt_pk_bf16_f32 v{R+c}, v{R+4}, v{R+5}")
    A(f"v_permlane16_swap_b32 v{R}, v{R+1}")
    A(f"v_permlane16_swap_b32 v{R+2}, v{R+3}")
    A(f"v_permlane32_swap_b32 v{R}, v{R+2}")
    A(f"v_permlane32_swap_b32 v{R+1}, v{R+3}")


WCH, XCH, WAC = 100, 132, 140


def wch_reads(st):
    A(f"s_min_u32 s30, s{sW4}, 2")
    A("s_lshl_b32 s30, s30, 13")
    A(f"s_add_u32 s30, s30, {L_W + (st % 3)*WSL}")
    wtr_addr(144, None, "s30")
    for ct in range(1, 4):
        A(f"v_xor_b32 v{144+ct}, {32*ct}, v144")
    for ct in range(4):
        for q in range(4):
            A(f"ds_read_b64_tr_b16 {v(WCH+8*ct+2*q,2)}, v{144+ct} offset:{q*2048}")


def cub_base(base):
    A(f"s_min_u32 s32, s{sW4}, 2")
    A("s_lshl_b32 s32, s32, 12")
    A(f"s_lshl_b32 s33, s{sHG}, 14")
    A("s_add_u32 s32, s32, s33")
    A(f"s_add_u32 s32, s32, {hex(base)}")


def wch_reduce(base, x):
    for ct in range(4):
        A(f"v_mov_b32 v{WAC+ct}, 0")
    for q in range(8):
        for ct in range(4):
            A(f"v_dot2c_f32_bf16 v{WAC+ct}, {ONES if x is None else 'v%d' % (x+q)}, v{WCH+8*ct+q}")
    A.lines.append("@cut")
    cub_base(base)
    A(f"s_lshl_b32 s33, s{sRB}, 8")
    A("s_add_u32 s32, s32, s33")
    A(f"v_lshlrev_b32 v20, 2, v{LN}")
    tred4(WAC)
    A(f"buffer_store_dword v{WAC}, v20, {WSR}, s32 offen sc1")


def cub_loads(Z, base):
    cub_base(base)
    for i in range(4):
        A(f"buffer_load_dwordx4 {v(Z+4*i,4)}, v{L16}, {WSR}, s32 offen offset:{i*1024} sc1")


def cub_sum(Z):
    for i in range(1, 4):
        for c in range(0, 4, 2):
            A(f"v_pk_add_f32 {v(Z+c,2)}, {v(Z+c,2)}, {v(Z+4*i+c,2)}")
    tred4(Z)


def tab_write(a_, m_, c_, d_, t, alt=False):
    if alt:
        A(f"v_and_b32 v{t}, 15, v{LN}")
        A(f"v_lshrrev_b32 v{t+1}, 5, v{LN}")
        A(f"v_lshl_add_u32 v{t}, v{t}, 1, v{t+1}")
        A(f"v_bfe_u32 v{t+1}, v{LN}, 4, 1")
    else:
        A(f"v_and_b32 v{t}, 31, v{LN}")
        A(f"v_lshrrev_b32 v{t+1}, 5, v{LN}")
    A(f"v_cmp_eq_u32 vcc, 0, v{t+1}")
    A(f"v_lshlrev_b32 v{t+1}, 9, v{t+1}")
    A(f"v_lshl_add_u32 v{t}, v{t}, 2, v{t+1}")
    A(f"s_lshl_b32 s32, s{sW4}, 7")
    A(f"v_add_u32 v{t}, s32, v{t}")
    A(f"v_cndmask_b32 v{t+1}, {m_}, {a_}, vcc")
    A(f"v_cndmask_b32 v{t+2}, {d_}, {c_}, vcc")
    A(f"ds_write_b32 v{t}, v{t+1} offset:{T_A}")
    A(f"ds_write_b32 v{t}, v{t+2} offset:{T_C}")
    A(f"v_and_b32 v{t}, 15, v{LN}")
    A(f"v_lshrrev_b32 v{t+3}, 4, v{LN}")
    A(f"v_lshl_add_u32 v{t}, v{t}, 2, v{t+3}")
    A(f"s_min_u32 s32, s{sW4}, 2")
    A("s_lshl_b32 s32, s32, 8")
    A(f"v_lshl_add_u32 v{t}, v{t}, 2, s32")
    A(f"ds_write_b32 v{t}, v{CSUM} offset:{T_CS}")


def idx_write():
    A(f"v_mov_b32 v20, s{sIDX}")
    A(f"v_mov_b32 v21, s{sLOC}")
    A("v_mov_b32 v19, 0")
    A(f"ds_write_b64 v19, v[20:21] offset:{T_IDX}")


VX, VW, VO = 4, 8, 14


def l_setup(L):
    A(f"v_lshrrev_b32 v21, 3, v{LN}")
    if L == 0:
        A(f"v_lshrrev_b32 v20, 4, v{LN}")
        A(f"v_xor_b32 v20, v20, v{LN}")
        A("v_and_b32 v20, 7, v20")
        A("v_lshlrev_b32 v20, 4, v20")
        A(f"v_lshl_add_u32 v{VX}, v21, 11, v20")
        A(f"v_xor_b32 v{VX+1}, 64, v{VX}")
        A(f"v_add_u32 v{VX+1}, {16384-1024}, v{VX+1}")
        A(f"v_add_u32 v{VX+2}, {2*(16384-1024)}, v{VX}")
        A(f"v_add_u32 v{VX+3}, {2*(16384-1024)}, v{VX+1}")
        A(f"s_lshl_b32 s{sSX}, s{sT}, 16")
        A(f"s_lshl_b32 s{sSW}, s{sHG}, 7")
        A(f"s_lshl_b32 s{sMX}, s{sW4}, 12")
        A(f"s_mul_i32 s{sMW}, s{sW4}, 6144")
        A("v_and_b32 v20, 4, v21")
        A("v_add_u32 v20, v20, v21")
        A("v_mul_u32_u24 v20, 6144, v20")
    else:
        A(f"s_lshl_b32 s{sSX}, s{sRB}, 18")
        A(f"s_add_u32 s{sSX}, s{sSX}, s{sMX}")
        if not XFO:
            A(f"s_add_u32 s{sSX}, s{sSX}, {hex(XFB)}")
        A("v_mul_u32_u24 v20, 6144, v21")
    A("v_and_b32 v21, 6, v21")
    A(f"v_xor_b32 v21, v21, v{LN}")
    A("v_and_b32 v21, 7, v21")
    A("v_lshl_add_u32 v20, v21, 4, v20")
    A(f"s_mul_i32 s32, s{sW4}, 3")
    for m in range(3):
        A("s_bfe_u32 s33, s32, 0x10001")
        A(f"s_mul_i32 s33, s33, {32*6144}")
        A("s_and_b32 s34, s32, 1")
        A(f"s_mul_i32 s34, s34, {(4 if L == 0 else 8)*6144}")
        A("s_add_u32 s33, s33, s34")
        A("s_lshr_b32 s34, s32, 2")
        A("s_lshl_b32 s34, s34, 11")
        A("s_add_u32 s33, s33, s34")
        if m == 1:
            A("s_sub_u32 s33, s33, 2048")
        A(f"v_add_u32 v{VW+2*m}, s33, v20")
        A(f"v_add_u32 v{VW+2*m+1}, {16*6144-1024}, v{VW+2*m}")
        if m < 2:
            A("s_add_u32 s32, s32, 1")


def kreg(st):
    return [f"s_add_u32 s{sD0}, s{(sKa, sKb)[st & 1]}, {st}", f"s_and_b32 s{sD0}, s{sD0}, 15"]


def st_x(L, st, tag=None):
    gs = []
    for q in range(4):
        g = []
        if q == 0:
            g += kreg(st) + [f"s_lshl_b32 s{sD1}, s{sD0}, {7 if L == 0 else 14}", f"s_add_u32 s{sD1}, s{sD1}, s{sSX}",
                             f"s_add_u32 m0, s{sMX}, {L_X - XSL*(st % 3)}"]
        if L == 0:
            g += [f"buffer_load_dwordx4 v{VX+q}, s[{XS}:{XS+3}], s{sD1} offen offset:{q*1024} lds ;@{tag or 'st%d' % st}"]
        else:
            g += [f"buffer_load_dwordx4 v{L16}, {XFR}, s{sD1} offen offset:{q*1024} sc1 lds ;@{tag or 'st%d' % st}"]
        gs.append(g)
    return gs


def st_w(st, tag=None):
    gs = []
    for i in range(6):
        g = []
        if i == 0:
            g += kreg(st) + [f"s_mul_i32 s{sD0}, s{sD0}, {64*6144}", f"s_add_u32 s{sD0}, s{sD0}, s{sSW}"]
        if i & 3 == 0:
            g += [f"s_add_u32 m0, s{sMW}, {L_W + WSL*(st % 3) + 1024*i}"]
        g += [f"buffer_load_dwordx4 v{VW+i}, s[{WS_}:{WS_+3}], s{sD0} offen offset:{(i&3)*1024} lds ;@{tag or 'st%d' % st}"]
        gs.append(g)
    return gs


def q_loop(L, jobs, extra, force, lead, pre={}, post=[], first={}, dlead=2):
    for it in range(16):
        tags = ([f"st{it+1}"] if it < 15 else []) + force.get(it, [])
        if tags:
            W(",".join(tags), 0)
        else:
            A("s_waitcnt lgkmcnt(0)")
        pq = opt("pq", ())
        fine = pq and pq[0] <= it < pq[1]
        mq = markq if fine or not pq else lambda x: None
        mq(f"w{it}")
        A("s_barrier")
        mq(f"b{it}")
        for j in first.get(it, []):
            j()
        g = pre.get(it, []) + (st_x(L, it + 3) + st_w(it + 3) if it <= 12 else []) + extra.get(it, [])
        weave(g, lambda: [j() for j in [lambda: fine and mq(f"d{it}")] + jobs.get(it, [])], lead.get(it, dlead), it in post)
        if fine:
            mq(f"j{it}")


def isred(body, k=1):
    if k > 1:
        for x in pieces(body, k):
            isred(x)
        return
    l = newlab("sk")
    A("s_cmp_lt_i32 s89, 0")
    A(f"s_cbranch_scc1 {l}")
    cond("red", body)
    A.label(l)


def l_layer0():
    A.label("l_start")
    A.lines.append("@reset")
    l_setup(0)
    ptr_fin()
    g = st_x(0, 0) + st_w(0) + st_x(0, 1) + st_w(1) + st_x(0, 2) + st_w(2)
    N0, N1 = opt("n0", 8), opt("n1", 17)
    emit(g[:N0])
    masks()
    wo_voff(VO)
    ffn_addr()
    A.lines += ffn_srd(0, TS2) + ffn_srd(2, TS)
    A(f"s_mov_b32 s{sIDX}, -1")
    A(f"s_mov_b32 s{sPATCH}, 0")
    A(f"s_sub_u32 s30, s{sHG}, s{sRB}")
    A(f"s_add_u32 s30, s30, {(COLF - ROWF) // 128 - 1}")
    A(f"v_and_b32 v15, 16, v{LN}")
    A("v_mul_u32_u24 v15, s30, v15")
    A(f"v_and_b32 v20, 31, v{LN}")
    A("v_add_lshl_u32 v15, v15, v20, 3")
    A(f"s_lshl_b32 s30, s{sRB}, 7")
    A(f"s_add_u32 s30, s30, {hex(ROWF)}")
    A("v_add_u32 v15, s30, v15")
    emit(g[N0:N1])
    W("st0", 0)
    A(f"s_add_u32 s{sNON}, s{sNON}, {hex(EPINC)}")
    A("s_barrier")
    emit(g[N1:])
    S, E, Z = 64, 52, 32

    def clears():
        for i in range(4):
            A(f"v_mov_b32 v{16+i}, -1")
        A(f"s_lshr_b32 s30, s{sW4}, 1")
        A(f"s_mul_i32 s30, s30, {LSTR}")
        A(f"s_and_b32 s31, s{sW4}, 1")
        A("s_lshl_b32 s32, s31, 20")
        A(f"s_lshl_b32 s33, s{sCU}, 10")
        A("s_add_u32 s32, s32, s33")
        A("s_add_u32 s32, s32, s30")
        A(f"s_add_u32 s32, s32, {hex(AR)}")
        for i in range(3):
            A(f"buffer_store_dwordx4 v[16:19], v{L16}, {WSR}, s32 offen sc1 ;@pub")
            A(f"s_add_u32 s32, s32, {256*KB}")
        A(f"s_lshl_b32 s33, s{sCU}, 7")
        A("s_add_u32 s33, s33, s30")
        A(f"s_add_u32 s33, s33, {hex(SM)}")
        A("s_cmp_eq_u32 s31, 0")
        A("s_cselect_b32 s32, s32, s33")
        A("s_cselect_b64 exec, -1, 0xff")
        A(f"buffer_store_dwordx4 v[16:19], v{L16}, {WSR}, s32 offen sc1 ;@pub")
        A("s_mov_b64 exec, -1")

    def part(st):
        A(f"v_and_b32 v28, 31, v{LN}")
        A("v_bfe_u32 v29, v28, 1, 3")
        A(f"v_lshrrev_b32 v30, 5, v{LN}")
        A("v_xor_b32 v29, v29, v30")
        A("v_lshlrev_b32 v29, 4, v29")
        A("v_lshl_add_u32 v28, v28, 7, v29")
        A(f"s_add_u32 s30, s{sMX}, {L_X - XSL*(st % 3)}")
        A("v_add_u32 v28, s30, v28")
        for ks in range(1, 4):
            A(f"v_xor_b32 v{28+ks}, {32*ks}, v28")
        for ks in range(4):
            A(f"ds_read_b128 {v(32+4*ks,4)}, v{28+ks}")
        wch_reads(st)

    def part2():
        cs = cut(lambda: tagged("pub", lambda: wch_reduce(CUB0, None)))
        for i in range(4):
            A(f"v_mov_b32 v{48+i}, 0")
        cs[0]()
        for p in range(16):
            A(f"v_dot2c_f32_bf16 v{48+2*(p&1)}, {ONES}, v{32+p}")
            A(f"v_dot2c_f32_bf16 v{49+2*(p&1)}, v{32+p}, v{32+p}")
        A.lines.append("@cut")
        A(f"s_lshl_b32 s30, s{sT}, 12")
        A(f"s_lshl_b32 s31, s{sHG}, 8")
        A("s_add_u32 s30, s30, s31")
        A(f"s_add_u32 s30, s30, {hex(STAT0)}")
        A(f"v_lshlrev_b32 v28, 3, v{LN}")
        A("v_pk_add_f32 v[48:49], v[48:49], v[50:51]")
        A("v_mov_b32 v50, v48")
        A("v_mov_b32 v51, v49")
        A("v_permlane32_swap_b32 v48, v50")
        A("v_permlane32_swap_b32 v49, v51")
        A("v_pk_add_f32 v[48:49], v[48:49], v[50:51]")
        A("s_mov_b32 exec_hi, 0")
        A(f"buffer_store_dwordx2 v[48:49], v28, {WSR}, s30 offen sc1 ;@pub")
        A("s_mov_b64 exec, -1")
        cs[1]()

    def dbgload():
        A(f"buffer_load_dwordx2 v[16:17], v15, {WSR}, 0 offen sc1")

    def arrived():
        poll(dbgload, lambda: A(f"v_cmp_ne_u32 vcc, s{sNON}, v16"), "arr")
        mark("arr")
        A("s_getreg_b32 s30, hwreg(HW_REG_XCC_ID, 0, 4)")
        A("v_cmp_ne_u32 vcc, s30, v17")
        A("s_and_b32 s30, vcc_lo, 0xffff")
        A(f"s_cselect_b32 s{sLOC}, 0, 1")
        idx_write()

    def s0loads():
        A(f"s_lshl_b32 s30, s{sT}, 12")
        A(f"s_add_u32 s30, s30, {hex(STAT0)}")
        for i in range(4):
            A(f"buffer_load_dwordx4 {v(S+4*i,4)}, v{L16}, {WSR}, s30 offen offset:{i*1024} sc1 ;@s0")
        tagged("s0", lambda: cub_loads(Z, CUB0))

    def tables():
        W("s0")
        for i in range(1, 4):
            for c in range(0, 4, 2):
                A(f"v_pk_add_f32 {v(S+c,2)}, {v(S+c,2)}, {v(S+4*i+c,2)}")
        A(f"v_permlane32_swap_b32 v{S}, v{S+2}")
        A(f"v_permlane32_swap_b32 v{S+1}, v{S+3}")
        A(f"v_pk_add_f32 {v(S,2)}, {v(S,2)}, {v(S+2,2)}")
        stat_core(S, E, 48, 2, 1, 16)
        cub_sum(Z)
        A(f"v_mov_b32 v{CSUM}, v{Z}")
        tab_write(f"v{E+3}", f"v{E+2}", "1.0", "0", 48, True)
    SP, CL, AR_, AP = opt("sp", 1), opt("cl", 0), AR_IT, opt("ap", 10)
    jobs, extra = {}, {}
    S0, TB0 = opt("s0", 13), opt("tb0", 14)
    p2 = cut(plain(part2))
    for it, j in ((SP - 1, lambda: part(SP)), (CL, clears), (SP, p2[0]), (opt("sp2", SP + 1), p2[1]), (opt("cp0", 9), lambda: code_pf(1, 154)),
                  (AP, lambda: tagged("arr", dbgload)), (AP + 1, arrived), (S0, s0loads), (TB0, plain(tables))):
        jobs.setdefault(it, []).append(j)
    ff = ffn_groups(0, TS2) + ffn_groups(1, XS) + ffn_groups(2, TS)
    assert min(FFS[8:16]) >= 14 and all(x <= 16 for x in WO0)
    extra[13] = [ffn_srd(1, XS)]
    for k, gr in [(FFS[j], ff[j]) for j in list(range(16, 24)) + list(range(16))] + list(zip(WO0, wo_groups(range(1, 10), VO, "wo"))):
        (extra if k < 16 else LATE).setdefault(k, []).append(gr)
    q_loop(0, jobs, extra, {AR_: ["pub"]}, opt("lead0", {CL: 2, AP: 0, AP + 1: 10, S0: 1 if S0 == 13 else 10, TB0: 0}), post=opt("post0", [S0, TB0]))


ZZ, ZX, ZT = 56, 72, 80
PMID = opt("pmid", 1)


def zloads():
    cub_loads(ZZ, CUB + LSTR)
    A(f"s_mov_b32 s32, {hex(X2R)}")
    for i in range(2):
        A(f"buffer_load_dwordx4 {v(ZX+4*i,4)}, v{L16}, {WSR}, s32 offen offset:{1024*i} sc1")


def halo_flag():
    A(f"buffer_load_dword v49, v48, {WSR}, s30 offen sc1")


def halo_poll():
    poll(halo_flag, lambda: A(f"v_cmp_ne_u32 vcc, s{sNON}, v49"))


def halo_dma():
    mark("kv_ok")
    A("s_mov_b32 s36, -1")
    A(f"s_lshl_b32 s30, s{sW4}, 13")
    for hd in range(2):
        for tt in range(2):
            A(f"s_add_u32 m0, s30, {L_KV + hd*KVH + tt*4096}")
            A(f"s_add_u32 s31, s35, {hd*262144 + tt*4096}")
            for p in range(4):
                A(f"buffer_load_dwordx4 v{L16}, {WSR}, s31 offen offset:{p*1024} {opt('hb', 'sc1').replace('no', '')} lds")


def l_patch():
    A.label("l_patch")
    a, b, t = ZT, ZT + 1, ZT + 2
    zchk = lambda: sent_check(range(ZZ, ZZ + 24), t)

    def chk():
        A(f"v_cmp_ne_u32 vcc, s{sNON}, v49")
        A("s_ashr_i32 s34, s36, 31")
        A("s_or_b32 s34, s34, vcc_lo")
        zchk()
        A("s_cbranch_vccz l_zok")
        A("s_cmp_lg_u32 s34, 0")
        A("s_cselect_b64 vcc, -1, 0")
    poll(lambda: (zloads(), halo_flag()), chk)
    A("s_cmp_lg_u32 s34, 0")
    A("s_cbranch_scc1 l_zok")
    zloads()
    halo_dma()
    A("s_mov_b32 s34, -1")
    poll(zloads, zchk, 16)
    A.label("l_zok")
    if PMID:
        skip_if("s_cmp_lg_u32 s34, 0", halo_dma)
    A(f"v_mov_b32 v{a}, 0")
    A(f"v_mov_b32 v{b}, 0")
    for p in range(8):
        A(f"v_dot2c_f32_bf16 v{a}, {ONES}, v{ZX+p}")
        A(f"v_dot2c_f32_bf16 v{b}, v{ZX+p}, v{ZX+p}")
    cub_sum(ZZ)
    x, y = cap(lambda: wave_red(a, t)), cap(lambda: wave_red(b, t + 1))
    for i, j in zip(x, y):
        A.lines += [i, j]
    A(f"v_mul_f32 v{a}, {fl(1/1024)}, v{a}")
    A(f"v_mul_f32 v{b}, {fl(1/1024)}, v{b}")
    A(f"v_fma_f32 v{b}, -v{a}, v{a}, v{b}")
    A(f"v_max_f32 v{b}, 0, v{b}")
    A(f"v_add_f32 v{b}, {fl(EPS)}, v{b}")
    A(f"v_rsq_f32 v{b}, v{b}")
    A(f"v_fma_f32 v{ZZ}, -v{a}, v{CSUM}, v{ZZ}")
    A(f"v_mul_f32 v{b}, s37, v{b}")
    A(f"v_mul_f32 v{ZZ}, v{ZZ}, v{b}")
    A(f"v_cvt_pk_bf16_f32 v1, v{ZZ}, v{ZZ}")
    mark("f_patch")
    if PMID:
        A(f"s_cmp_lg_u32 s{sPATCH}, 2")
        A("s_cbranch_scc1 l_pmid")
        patch_write()
    else:
        skip_if(f"s_cmp_lg_u32 s{sPATCH}, 2", patch_write)
        skip_if("s_cmp_lg_u32 s34, 0", halo_dma)
    A("s_branch l_patched")


def patch_write():
    A("s_cmp_lg_u32 s38, 0")
    A("s_barrier")
    A("s_cselect_b64 exec, -1, 0")
    A("ds_write_b16 v0, v1")
    A("s_mov_b64 exec, -1")
    A("s_waitcnt lgkmcnt(0)")
    A("s_barrier")


def l_att():
    A.label("l_att")
    A.lines.append("@reset")
    emit([g for j, g in zip(WO1, wo_groups([10, 11], VO, "wo")) if j == 16])
    late(16)
    att_setup(1)
    A(f"s_lshr_b32 s36, s{sW4}, 1")
    A(f"s_add_u32 s36, s36, s{sRB}")
    A("s_sub_u32 s36, s36, 2")

    A(f"s_and_b32 s34, s{sW4}, 1")
    A(f"s_lshl_b32 s35, s{sHG}, 7")
    A("s_lshl_b32 s30, s36, 2")
    A("s_add_u32 s35, s35, s30")
    A("s_lshl_b32 s30, s34, 1")
    A("s_add_u32 s35, s35, s30")
    A("s_lshl_b32 s35, s35, 12")
    A(f"s_add_u32 s35, s35, s{sL}")
    A(f"s_lshl_b32 s30, s{sHG}, 8")
    A("s_lshl_b32 s31, s36, 4")
    A("s_add_u32 s30, s30, s31")
    A("s_lshl_b32 s31, s34, 3")
    A("s_add_u32 s30, s30, s31")
    A(f"s_add_u32 s30, s30, s{sL}")
    A(f"s_add_u32 s30, s30, {hex(KVF)}")
    A(f"v_and_b32 v48, 4, v{LN}")
    mark("x0_wait")
    skip_if(f"s_cmp_eq_u32 s{sPATCH}, 2", lambda: A("s_barrier"))
    A(f"s_cmp_gt_u32 s{sPATCH}, {PMID}")
    A("s_cbranch_scc1 l_patch")
    A.label("l_patched")
    att_qread()
    mark("a_go")

    def mid():
        mark("a_end")
        if PMID:
            A(f"s_cmp_eq_u32 s{sPATCH}, 1")
            A("s_cbranch_scc1 l_patch")
            A.label("l_pmid")
        skip_if("s_cmp_lt_i32 s36, 0", lambda: (halo_poll(), halo_dma()))
        A("s_waitcnt vmcnt(8)")
        mark("x1_wait")
        skip_if(f"s_cmp_eq_u32 s{sPATCH}, 1", lambda: A("s_barrier"))
        A("s_waitcnt vmcnt(0)")
        skip_if(f"s_cmp_lg_u32 s{sPATCH}, 1", patch_write)
        late(17)
        A("s_barrier")
        mark("att_go")

    def hook(k):
        if k == XLA and XE2 < 8:
            A("s_barrier")
        late(18 + k)
    attention(1, lambda: late(26), mid, hook)
    if XLA == 8 and XE2 < 8:
        A("s_barrier")
    flag_store("s31", True)
    mark("o_fl")
    late(40)
    wo_voff(VO)
    ffn_xaddr()
    A(f"s_mov_b32 s{sCI}, s{sL}")

    def nxt():
        if 40 in LATE:
            A("s_waitcnt vmcnt(0)")
        code_pf(2, 19)
        if PF:
            pf_setup(18, 35)
            for k in range(PFD):
                A.lines += pf_load(18, 19, k - 2, 35)
        ffn_perm()
        l_setup(1)
        A(f"s_sub_u32 s30, s{sKb}, 1")
        A(f"s_sub_u32 s{sKb}, s{sKa}, 3")
        A(f"s_mov_b32 s{sKa}, s30")
        xf_off(116)
        A(f"v_and_b32 v16, 15, v{LN}")
        A("v_lshlrev_b32 v16, 9, v16")
        srd_load(TS, 64, 4 * MB)
    skip_if(f"s_cmp_lg_u32 s{sL}, 0", nxt)
    A("s_barrier")
    emit(wo_groups(range(28, 32), VO, "wo"))
    A("s_waitcnt vmcnt(0)")

    def wbk():
        A(f"s_lshl_b32 s30, s{sHG}, 2")
        A(f"s_add_u32 s30, s30, s{sW4}")
        A(f"s_add_u32 s30, s30, s{sL}")
        skip_if(f"s_cmp_lg_u32 s30, {LSTR+4*WBH+1}", lambda: A("buffer_wbl2 sc1"))
    if WBK & 8:
        wbk()
    A("s_barrier")
    if WBK & 1:
        wbk()
    A(f"s_cmp_lg_u32 s{sL}, 0")
    A("s_cbranch_scc1 l_tail")


def readsel(T, lane):
    for r_, i in ((sR, 0), (sIDX, 1), (sMEAN, 2), (sRSTD, 3)):
        A(f"v_readlane_b32 s{r_}, v{T+i}, {lane}")
    A(f"s_and_b32 s{sIDX}, s{sIDX}, 2047")


def l_layer1():
    S, E, TB, PR = 64, 52, 16, 32
    GATE = opt("gate", 1)
    A(f"s_mov_b32 s{sL}, {LSTR}")
    A("s_mov_b32 s36, 0")

    def gate(st):
        A.lines += kreg(st)

        def chk():
            A("v_cmp_ne_u32 vcc, -1, v17")
            A("s_mov_b32 s36, vcc_lo")
            if GATE:
                A(f"s_bitcmp0_b32 s36, s{sD0}")
            else:
                A("s_cmp_lg_u32 s36, -1")
            A("s_cselect_b64 vcc, -1, 0")

        def spin():
            A(f"s_lshl_b32 s30, s{sT}, 13")
            A(f"s_add_u32 s30, s30, {hex(STAT)}")
            poll(lambda: A(f"buffer_load_dword v17, v16, {WSR}, s30 offen sc1"), chk)
        skip_if(f"s_bitcmp1_b32 s36, s{sD0}", spin)
    SC = dict(stL=-1, st1=-1, st2=-1, st3=1, tabL=3, arg=4, gu1=5, gu2=6, dn1=7, dn2=7, redL=10, red1=11, red2=11, x2L=14, wch=13, z=15, pad=14)
    SC.update(opt("sc", {}))
    EARLY = SC["st1"] < 0
    emit(st_w(0) + st_w(1))
    prof_next()
    if EARLY:
        A.lines += kreg(1)
        A(f"s_lshl_b32 s37, 1, s{sD0}")
        A(f"s_lshl_b32 s38, 1, s{sCG}")
        A("s_or_b32 s38, s38, s37")
        A(f"s_lshl_b32 s30, s{sT}, 13")
        A(f"s_add_u32 s30, s30, {hex(STAT)}")

        def chk():
            A("v_cmp_ne_u32 vcc, -1, v17")
            A("s_and_b32 s36, vcc_lo, s38")
            A("s_cselect_b64 vcc, 0, -1")
        poll(lambda: A(f"buffer_load_dword v17, v16, {WSR}, s30 offen sc1"), chk)
        mark("x_ok")
        A("s_and_b32 s36, s36, s37")
        skip_if("s_cmp_eq_u32 s36, 0", lambda: emit(st_x(1, 1)))
    elif GATE:
        gate(1)
        mark("x_ok")
        emit(st_x(1, 1))
    if not EARLY:
        W("st0")
    A("s_barrier")
    if EARLY:
        tagged("stat", stat_loads(S, STAT))
    emit(st_w(2))
    for ks in range(4):
        A(f"ds_read_b128 {v(PR+4*ks,4)}, v117 offset:{ks*512}")
    if not GATE:
        gate(1)
        mark("x_ok")
        emit(st_x(1, 1))
    stpoll = lambda: poll(stat_loads(S, STAT), lambda: sent_check(range(S, S + 32), 48, SST), "stat")

    def st1():
        stpoll()
        stat_core(S, E, 48)

    def st2():
        A("s_waitcnt lgkmcnt(0)")
        cand_publish(S, E, 48, PR, 0)
        mark("cand")
    if EARLY:
        stpoll()
        mark("st_ok")
        skip_if("s_cmp_lg_u32 s36, 0", lambda: emit(st_x(1, 1)))
        weave(st_x(1, 2), lambda: (plain(lambda: stat_core(S, E, 48))(), SC["st2"] < 0 and st2()), opt("x2l", 1))
    else:
        if SC["stL"] < 0:
            tagged("stat", stat_loads(S, STAT))
        gate(2)
        emit(st_x(1, 2))

    def st3():
        A(f"v_add_f32 v56, 1.0, v{E+3}")
        A(f"v_mul_f32 v57, v{E+2}, v{E+3}")
        A("v_mul_f32 v58, v56, v56")
        A("v_sub_f32 v57, 0, v57")
        A(f"v_mul_f32 v58, v58, v{S+1}")
        A(f"v_add_f32 v58, {fl(EPS)}, v58")
        A("v_rsq_f32 v58, v58")
        A("v_mul_f32 v58, v58, v56")
        tab_write("v58", f"v{E+2}", "v56", "v57", 48)

    def arg():
        argmax_lane(TB, "tab")
        readsel(TB, "s32")
        tagged("x", xloads)
        mark("f_arg")
        idx_write()
        patch_flag()

    def gateup():
        poll(xloads, lambda: sent_check(range(XG, XG + 4), 30), "x")
        isred(red_pre)
        ffn_gateup()

    def down():
        ffn_down()
        mark("f_down")

    def red():
        poll(red_loads, red_chk, "red")
        red_sum()

    def redst():
        A(f"s_mov_b32 s32, {hex(X2R)}")
        A("s_lshl_b32 s33, s89, 4")
        A(f"v_or_b32 v88, s33, v{L16}")
        A(f"s_mov_b64 exec, {(1 << RQ) - 1}")
        A(f"buffer_store_dwordx4 {v(RS,4)}, v88, {WSR}, s32 offen sc1")
        A("s_mov_b64 exec, -1")
        isred(lambda: mark("f_red")) if PROF else None
    SZ = SC["wch"] + 1

    def x2loads():
        A(f"s_add_u32 s35, s{(sKa, sKb)[SZ & 1]}, {SZ}")
        A("s_and_b32 s35, s35, 15")
        A("s_lshl_b32 s35, s35, 7")
        A(f"s_add_u32 s35, s35, {hex(X2R)}")
        A(f"v_and_b32 v19, 32, v{LN}")
        A(f"v_bfe_u32 v18, v{LN}, 4, 1")
        A("v_lshl_add_u32 v19, v18, 3, v19")
        for kk in range(4):
            A(f"buffer_load_dwordx2 {v(XCH+2*kk,2)}, v19, {WSR}, s35 offen offset:{64*(kk>>1)+16*(kk&1)} sc1")

    def z():
        poll(x2loads, lambda: sent_check(range(XCH, XCH + 8), 30), "x2")
        wch_reduce(CUB + LSTR, XCH)
        mark("f_z")

    def paddr():
        A(f"v_and_b32 v20, 7, v{LN}")
        A(f"v_lshrrev_b32 v21, 4, v{LN}")
        A("v_lshl_add_u32 v21, v20, 2, v21")
        A(f"s_and_b32 s34, s{sIDX}, 31")
        A("s_and_b32 s32, s34, 7")
        A("s_and_b32 s33, s34, 8")
        A("s_lshl_b32 s33, s33, 1")
        A("s_add_u32 s32, s32, s33")
        A("s_lshr_b32 s33, s34, 4")
        A("s_lshl_b32 s33, s33, 3")
        A("s_add_u32 s32, s32, s33")
        A(f"s_cmp_eq_u32 s{sW4}, 1")
        A("s_cselect_b32 s34, s32, s34")
        A("v_mov_b32 v20, s34")
        A(f"s_cmp_ge_u32 s{sW4}, 2")
        A("s_cselect_b64 vcc, -1, 0")
        A("s_cselect_b32 s32, 2048, 0")
        A("v_cndmask_b32 v30, v20, v21, vcc")
        A("v_cndmask_b32 v31, v21, v20, vcc")
        A("v_lshlrev_b32 v0, 4, v30")
        A("v_bfe_u32 v20, v31, 2, 2")
        A("v_lshl_add_u32 v0, v20, 9, v0")
        A("v_lshrrev_b32 v20, 4, v31")
        A("v_lshl_add_u32 v0, v20, 3, v0")
        A("v_and_b32 v20, 3, v31")
        A("v_lshl_add_u32 v0, v20, 1, v0")
        A("s_lshl_b32 s33, s39, 12")
        A("s_add_u32 s33, s33, s32")
        A(f"s_add_u32 s33, s33, {L_KV}")
        A("s_lshl_b32 s34, s39, 11")
        A(f"s_add_u32 s34, s34, {L_Q - 8*2048}")
        A("s_cmp_ge_u32 s39, 8")
        A("s_cselect_b32 s38, 1, 0")
        A("s_movk_i32 s32, 8192")
        A(f"s_cmp_eq_u32 s{sW4}, 0")
        A("s_cselect_b32 s33, s34, s33")
        A(f"s_cselect_b32 s32, s32, {KVH}")
        A("s_cselect_b32 s38, s38, 1")
        A(f"s_cselect_b32 s37, {fl(QSCALE)}, 1.0")
        A(f"v_bfe_u32 v20, v{LN}, 3, 1")
        A("v_mul_u32_u24 v20, s32, v20")
        A("v_add3_u32 v0, v0, v20, s33")

    pat = lambda f: (lambda: skip_if(f"s_cmp_eq_u32 s{sPATCH}, 0", f, "pat"))
    gu, dn, rd = cut(gateup), cut(plain(down)), pieces(plain(red), [opt("rdf", 0.5)])
    jobs, first = {}, {}
    for k, j in (("stL", lambda: tagged("stat", stat_loads(S, STAT))), ("tabL", lambda: tagged("tab", table_loads(TB))),
                 ("redL", lambda: isred(lambda: tagged("red", red_loads))), ("x2L", lambda: tagged("x2", x2loads))):
        first.setdefault(SC[k], []).append(j)
    for it in range(SC["st1"] + 1):
        first.setdefault(it, []).append(lambda it=it: gate(it + 3))
    for k, j in (("st1", plain(st1)), ("st2", st2), ("st3", st3), ("arg", arg), ("gu1", gu[0]), ("gu2", gu[1]), ("dn1", dn[0]), ("dn2", dn[1]),
                 ("red1", lambda: isred(rd[0], 4)), ("red2", lambda: (isred(rd[1], 4), redst())), ("wch", lambda: wch_reads(SZ)), ("pad", pat(paddr)), ("z", z)):
        jobs.setdefault(SC[k], []).append(j)
    jobs.setdefault(13, []).append(lambda: code_pf(3, 154))
    assert SC["st3"] <= 14 and SC["arg"] <= 14 and SC["gu2"] < SC["dn1"] and SC["wch"] < SC["z"] and SC["st1"] < SC["tabL"]
    assert SC["st3"] < SC["redL"] and SC["dn2"] < SC["redL"] and SC["dn2"] <= SC["pad"] and SC["arg"] < SC["x2L"] and SC["dn2"] <= 13
    q_loop(1, jobs, {}, {}, opt("lead", {}), first=first, dlead=opt("dlead", 2))
    A("s_branch l_att")
    l_patch()
    A.label("l_tail")
    A.lines.append("@reset")
    A("v_mov_b32 v20, 0")

    def epoch():
        A(f"s_mov_b32 s34, {hex(EPOCH)}")
        flag_store("s34")
    A(f"s_or_b32 s34, s{sCU}, s{sW4}")
    skip_if("s_cmp_lg_u32 s34, 0", epoch)
    A("s_barrier")
    A(f"ds_read_b128 {v(TB,4)}, v20 offset:{T_IDX}")
    A("s_waitcnt lgkmcnt(0)")
    readsel(TB, "0")
    mark("t_arg")
    poll(xloads, lambda: sent_check(range(XG, XG + 4), 30))
    mark("t_x")
    A(f"s_cmp_ge_u32 s{sF}, 224")
    A("s_cbranch_scc1 l_tred")
    ffn_gateup()
    A("s_waitcnt lgkmcnt(0)")
    A("s_barrier")
    ffn_down()
    mark("f_down")
    A("s_branch k_end")
    A.label("l_tred")
    A("s_cmp_lt_i32 s89, 0")
    A("s_cbranch_scc1 k_end")
    red_pre()
    A(f"s_lshl_b32 s34, s{sIDX}, 11")
    A("s_lshl_b32 s33, s89, 4")
    A("s_add_u32 s34, s34, s33")
    poll(red_loads, red_chk)
    mark("t_py")
    red_sum()
    A(f"s_mov_b64 exec, {(1 << RQ) - 1}")
    A(f"buffer_store_dwordx4 {v(RS,4)}, v{L16}, s[{TS}:{TS+3}], s34 offen sc1")
    A("s_mov_b64 exec, -1")


def main():
    out = [x for x in ARGS if x.endswith(".s")]
    out = out[0] if out else os.path.join(os.path.dirname(os.path.abspath(__file__)), NAME + ".s")
    K = NAME + "_kernel"
    A(f".globl {K}")
    A(".p2align 8")
    A(f".type {K},@function")
    A.label(K)
    cap(ffn_perm)
    prologue()
    if opt("ub", ""):
        return ubench(out, K)
    e_init()
    e_qphase()
    e_att()
    e_wo()
    l_layer0()
    l_att()
    l_layer1()
    finish(out, K, lambda: (att_exact(0), att_exact(1)))


def ubench(out, K):
    def ubmid():
        mark("a_end")
        if opt("ubb", 1):
            A("s_barrier")
        mark("b_go")
    for team in range(2):
        if team:
            A.label("l_start")
        ptr_fin()
        masks()
        A(f"s_mov_b32 s{sLOC}, 1")
        A(f"s_mov_b32 s{sPATCH}, 0")
        for i in range(4):
            A(f"v_mov_b32 v{i}, 0x3c003c00")
        A(f"s_mul_i32 s30, s{sW}, 20480")
        A(f"v_add_u32 v4, s30, v{L16}")
        for i in range(20):
            A(f"ds_write_b128 v4, v[0:3] offset:{i*1024}")
        A(f"s_setprio {opt('ubp', [1, 0])[team]}")
        prof_next()
        for rep in range(2):
            att_setup(team)
            A("s_waitcnt vmcnt(0) lgkmcnt(0)")
            A("s_barrier")
            if opt("ubo", 3) >> team & 1:
                if team:
                    for i in range(opt("ubd", 0)):
                        A("s_sleep 4")
                mark("att_go")
                att_qread()
                attention(team, lambda: None, ubmid, lambda k: None)
        A("s_branch k_end")
    A.label("att_exact0")
    A.label("att_exact1")
    finish(out, K)


def finish(out, K, cold=lambda: None):
    A.label("k_end")
    if PAD:
        skip_if(f"s_cmp_lt_u32 s{sW}, 4", lambda: padat("end"))
    if PROF:
        A("s_waitcnt vmcnt(0)")
        mark("end")
        A(f"s_lshl_b32 s30, s{sCU}, 3")
        A(f"s_add_u32 s30, s30, s{sW}")
        A("s_lshl_b32 s30, s30, 9")
        A(f"s_add_u32 s30, s30, {hex(PROFOFF)}")
        A(f"v_lshlrev_b32 v0, 2, v{LN}")
        A(f"buffer_store_dword v{PRF2}, v0, {WSR}, s30 offen")
        A(f"buffer_store_dword v{PRF}, v0, {WSR}, s30 offen offset:256")
    A.label("k_exit")
    A("s_endpgm")
    cold()
    assert len(MARKS) <= (64 if "-profq" in ARGS else 32), len(MARKS)
    A.lines = resolve(A.lines)
    A.hazard_pass(verbose="-v" in ARGS)
    if opt("aln", 0):
        A.lines = align_pass(A.lines, opt("alw", 1.5), anti=opt("aln", 0) < 0)
    txt = "; @launch grid=(256,1,1) block=(512,1,1) lds=163840\n"
    txt += "; marks: " + " ".join(MARKS) + "\n" if PROF else ""
    txt += '.amdgcn_target "amdgcn-amd-amdhsa--gfx950"\n.text\n' + A.text() + '.section .rodata,"a"\n.p2align 6\n'
    txt += f""".amdhsa_kernel {K}
  .amdhsa_next_free_vgpr 256
  .amdhsa_next_free_sgpr 102
  .amdhsa_accum_offset 256
  .amdhsa_group_segment_fixed_size 0
  .amdhsa_kernarg_size 88
  .amdhsa_user_sgpr_count 2
  .amdhsa_user_sgpr_kernarg_segment_ptr 1
  .amdhsa_system_sgpr_workgroup_id_x 1
.end_amdhsa_kernel
"""
    open(out, "w").write(txt)


main()
```

```python
import sys, os, struct, math, re
sys.path.insert(0, os.path.join(os.path.dirname(os.path.abspath(__file__)), "tools"))
from asmlib import *

NAME = "interleave_layers__sliding_block__moe_arch_mod__prompt"
KB, MB = 1 << 10, 1 << 20
ARGS = sys.argv[1:]


def opt(name, default):
    for x in ARGS:
        if x.startswith(name + "="):
            t = x.split("=", 1)[1]
            return eval(t) if isinstance(default, (list, tuple, dict)) else type(default)(t)
    return default


PROF = "-prof" in ARGS
USELOC = opt("loc", 1)
OSH, XFO = opt("osh", 1), opt("xfo", 0)
LSTR = 16 * MB
KVB, OFB, AR = 0, 8 * MB, 12 * MB
STAT, PY, CAND, CUB, SM = AR, AR + 512 * KB, AR + 1408 * KB, AR + 1536 * KB, AR + 1792 * KB
TABLE, X2R, KVF, OFL = SM, SM + 16 * KB, SM + 64 * KB, SM + 72 * KB
KVS = opt("kvs", 3)
if KVS:
    KVF = AR + 2 * MB
EPOCH, ROWF, COLF = SM + 96 * KB, SM + 100 * KB, SM + 104 * KB
EPINC = 0x9E3779B9
XFB = 32 * MB
STAT0, CUB0 = 36 * MB, 37 * MB
PROFOFF = 100 * MB
EPS = 1e-5
QSCALE = (32 ** -0.5) * math.log2(math.e)
ONES = "0x3f803f80"
T_A, T_M, T_CS, T_C, T_D, T_IDX, T_INB = 0, 512, 1024, 2048, 2560, 3072, 3328
L_W, WSL, L_X, XSL = 40960, 24576, 147456, 16384
L_Q, L_KV, KVH = 49152, 65536, 49152
sW, sRB, sHG, sL, sLIM, sW4, sF = 3, 24, 25, 26, 27, 28, 29
MS = 40
sCU, sIDX, sR, sMEAN, sRSTD, sLOC, sCNT, sCI = 72, 73, 74, 75, 76, 77, 78, 79
XS, WOS, TS, WS_, WSP = 4, 8, 12, 16, 20
TS2 = 80
sSX, sSW, sMX, sMW, sNON, sAC = 84, 85, 86, 87, 88, 89
sKa, sKb, sD0, sD1, sCG, sT, sPATCH, sMO = 94, 95, 96, 97, 98, 99, 100, 101
LN, L16, PRF2, PRF = 252, 253, 254, 255
P, WR, CC, DD, WSUM, EVO = 208, 224, 240, 241, 242, 243
GW, UW, DW, SPARE = 156, 188, 220, 155
CSUM = 2


def fl(x):
    return "0x%08x" % struct.unpack("<I", struct.pack("<f", x))[0]


A = Asm()
_lab = [0]
WSR = f"s[{WSP}:{WSP+3}]"
XFR = f"s[{TS}:{TS+3}]" if XFO else WSR


def newlab(p):
    _lab[0] += 1
    return f"{p}_{_lab[0]}"


def srd_fin(d, nbytes):
    A(f"s_mov_b32 s{d+2}, {hex(nbytes)}")
    A(f"s_mov_b32 s{d+3}, 0x20000")


def srd_load(d, karg, nbytes):
    A(f"s_load_dwordx2 s[{d}:{d+1}], s[0:1], {karg}")
    srd_fin(d, nbytes)
    A("s_waitcnt lgkmcnt(0)")


def cap(fn):
    keep = A.lines
    A.lines = []
    fn()
    out = A.lines
    A.lines = keep
    return out


def tagged(tag, fn):
    for ln in cap(fn):
        if ln.startswith("buffer_") and ";@" not in ln:
            ln += f" ;@{tag}"
        A.lines.append(ln)


def plain(fn):
    def f():
        for ln in cap(fn):
            m = re.fullmatch(r"v_pk_add_f32 v\[(\d+):\d+\], v\[(\d+):\d+\], v\[(\d+):\d+\]", ln)
            if m and opt("plain", 1):
                d, a_, b_ = map(int, m.groups())
                A.lines += [f"v_add_f32 v{d+i}, v{a_+i}, v{b_+i}" for i in range(2)]
            else:
                A.lines.append(ln)
    return f


def cut(fn):
    body = cap(fn)
    c = [-1] + [i for i, x in enumerate(body) if x == "@cut"] + [len(body)]
    return [(lambda a=a, b=b: A.lines.extend(body[a+1:b])) for a, b in zip(c, c[1:])]


def W(tags, lgkm=None):
    A.lines.append(f"@wait {tags} {'' if lgkm is None else lgkm}")


def cond(key, fn):
    A.lines.append(f"@cond {key}")
    fn()
    A.lines.append("@endcond")


def resolve(lines):
    out, issued, stack = [], [], []
    for ln in lines:
        if ln.startswith("@cond"):
            stack.append(ln.split()[1])
        elif ln == "@endcond":
            stack.pop()
        elif ln == "@cut":
            pass
        elif ln == "@reset":
            issued = []
        elif ln.startswith("@wait"):
            p = ln.split()
            tags = p[1].split(",")
            idx = [i for i, (t, c) in enumerate(issued) if t in tags]
            assert idx, f"wait for unknown tag {tags}"
            n = sum(1 for (t, c) in issued[idx[-1]+1:] if all(k in stack for k in c))
            out.append(f"s_waitcnt vmcnt({min(n, 63)})" + (f" lgkmcnt({p[2]})" if len(p) > 2 else ""))
        else:
            if ln.startswith("buffer_"):
                issued.append((ln.split(";@")[1] if ";@" in ln else None, tuple(stack)))
                ln = ln.split(";@")[0].strip()
            out.append(ln)
    return out


SCCW = ("s_add_", "s_sub_", "s_cmp", "s_and_", "s_or_", "s_xor_", "s_lshl", "s_lshr", "s_min", "s_max", "s_not", "s_bfe", "s_bitcmp")
SCCR = ("s_cselect", "s_cbranch_scc", "s_addc", "s_subb")


def safe_points(body):
    n = len(body)
    safe = [True] * (n + 1)
    pos = {ln[:-1]: i for i, ln in enumerate(body) if ln.endswith(":")}
    ex, depth, lastw = True, 0, -1
    for i, ln in enumerate(body):
        if ln.startswith(("s_cbranch", "s_branch")):
            j = pos[ln.split()[1]]
            for k in range(min(i, j) + 1, max(i, j) + 1):
                safe[k] = False
        if ln.startswith(SCCR):
            for k in range(lastw + 1, i + 1):
                safe[k] = False
        if ln.startswith(SCCW):
            lastw = i
        if re.match(r"s_\w+ exec", ln) or "saveexec" in ln:
            ex = ln == "s_mov_b64 exec, -1"
        if ln.startswith("@cond"):
            depth += 1
        if ln == "@endcond":
            depth -= 1
        if not ex or depth or ln.startswith("s_getpc"):
            safe[i + 1] = False
    return safe


def pieces(fn, k):
    body = cap(fn)
    safe = safe_points(body)
    fr = [(i + 1) / k for i in range(k - 1)] if isinstance(k, int) else k
    cuts = [0]
    for f in fr:
        c = max(int(f * len(body)), cuts[-1])
        while not safe[c]:
            c += 1
        cuts.append(c)
    cuts.append(len(body))
    return [(lambda a=a, b=b: A.lines.extend(body[a:b])) for a, b in zip(cuts, cuts[1:])]


def weave(groups, fn, lead=1, post=False):
    body = cap(fn)
    n = len(body)
    safe = safe_points(body)
    groups = list(groups)
    for g in groups[:lead]:
        A.lines += g
    groups = groups[lead:]
    k = 0
    lim = n
    if opt("wlim", 1):
        lim = min([i for i, x in enumerate(body) if x.startswith(("v_dot2", "buffer_store"))] + [n])
        while not safe[lim]:
            lim -= 1
    for i in range(n + 1):
        while k < len(groups) and not post and safe[i] and i >= (k + 1) * lim / (len(groups) + (lim == n)):
            A.lines += groups[k]
            k += 1
        if i < n:
            A.lines.append(body[i])
    for g in groups[k:]:
        A.lines += g


MARKS = {}


def markx(name):
    if name in opt("mx", "").split(","):
        mark(name)


def mark(name):
    if name in opt("nm", "").split(","):
        return
    if name not in MARKS:
        MARKS[name] = len(MARKS)
    if PROF:
        A("s_memrealtime s[90:91]")
        if "-profq" not in ARGS:
            A("s_memtime s[92:93]")
        A("s_waitcnt lgkmcnt(0)")
        A(f"v_writelane_b32 v{PRF}, s90, {MARKS[name]}")
        if "-profq" not in ARGS:
            A(f"v_writelane_b32 v{PRF}, s92, {MARKS[name]+32}")


PAD = opt("pad", {})


def padat(name, L=None):
    if name not in PAD:
        return
    l, e = newlab("pad"), newlab("pad")
    if L is not None:
        A(f"s_cmp_lg_u32 s{sL}, {L*LSTR}")
        A(f"s_cbranch_scc1 {e}")
    A.label(l)
    A("s_memrealtime s[92:93]")
    A("s_waitcnt lgkmcnt(0)")
    A("s_sub_u32 s92, s92, s90")
    A(f"s_cmp_lt_u32 s92, {PAD[name]}")
    A(f"s_cbranch_scc1 {l}")
    A.label(e)


def markq(name):
    if "-profq" in ARGS:
        mark(name)


def prof_next():
    if PROF:
        A(f"v_mov_b32 v{PRF2}, v{PRF}")
        A(f"v_mov_b32 v{PRF}, 0")


def MF(d, a_, b_, c=None):
    cc = v(d, 16) if c is None else (c if isinstance(c, str) else v(c, 16))
    return f"v_mfma_f32_32x32x16_bf16 {v(d,16)}, {v(a_,4)}, {v(b_,4)}, {cc}"


def MF16(d, a_, b_):
    return f"v_mfma_f32_16x16x32_bf16 {v(d,4)}, {v(a_,4)}, {v(b_,4)}, {v(d,4)}"


DPPF = "row_mask:0xf bank_mask:0xf"


def wave_red(r, t, op="add", n=64):
    for sh in ("quad_perm:[1,0,3,2]", "quad_perm:[2,3,0,1]", "row_half_mirror", "row_mirror"):
        A(f"v_{op}_f32_dpp v{r}, v{r}, v{r} {sh} {DPPF}")
    A(f"v_mov_b32 v{t}, v{r}")
    A(f"v_permlane16_swap_b32 v{r}, v{t}")
    A(f"v_{op}_f32 v{r}, v{r}, v{t}")
    if n == 64:
        A(f"v_mov_b32 v{t}, v{r}")
        A(f"v_permlane32_swap_b32 v{r}, v{t}")
        A(f"v_{op}_f32 v{r}, v{r}, v{t}")


def tred4(r):
    A(f"v_permlane32_swap_b32 v{r}, v{r+2}")
    A(f"v_permlane32_swap_b32 v{r+1}, v{r+3}")
    A(f"v_add_f32 v{r}, v{r}, v{r+2}")
    A(f"v_add_f32 v{r+1}, v{r+1}, v{r+3}")
    A(f"v_permlane16_swap_b32 v{r}, v{r+1}")
    A(f"v_add_f32 v{r}, v{r}, v{r+1}")


SST = opt("sst", 4)


def sent_check(regs, t, step=1):
    regs = list(regs)[::step]
    if len(regs) == 1:
        A(f"v_cmp_eq_u32 vcc, -1, v{regs[0]}")
        return
    if len(regs) == 2:
        A(f"v_max_u32 v{t}, v{regs[0]}, v{regs[1]}")
        rest = []
    else:
        A(f"v_max3_u32 v{t}, v{regs[0]}, v{regs[1]}, v{regs[2]}")
        rest = regs[3:]
    while rest:
        if len(rest) >= 2:
            A(f"v_max3_u32 v{t}, v{t}, v{rest[0]}, v{rest[1]}")
            rest = rest[2:]
        else:
            A(f"v_max_u32 v{t}, v{t}, v{rest[0]}")
            rest = rest[1:]
    A(f"v_cmp_eq_u32 vcc, -1, v{t}")


def poll(loads, check, issued=None):
    top, chk, done = newlab("pl"), newlab("pc"), newlab("pd")
    A(f"s_mov_b32 s{sCNT}, s{sLIM}")
    if issued is not None:
        if isinstance(issued, int):
            A(f"s_waitcnt vmcnt({issued})")
        else:
            W(issued)
        A(f"s_branch {chk}")
    A.label(top)
    cond(top, lambda: A.lines.extend(x.split(";@")[0].strip() for x in cap(loads)))
    A("s_waitcnt vmcnt(0)")
    A.label(chk)
    check()
    A(f"s_cbranch_vccz {done}")
    A(f"s_sub_u32 s{sCNT}, s{sCNT}, 1")
    A(f"s_cmp_lg_u32 s{sCNT}, 0")
    A(f"s_cbranch_scc1 {top}")
    A(f"s_mov_b32 s{sLIM}, 1")
    A.label(done)


def lspin(reads, check, nap=0):
    top, done = newlab("ll"), newlab("ld")
    A(f"s_lshl_b32 s{sCNT}, s{sLIM}, 4")
    A.label(top)
    reads()
    A("s_waitcnt lgkmcnt(0)")
    check()
    A(f"s_cbranch_scc1 {done}")
    if nap:
        A(f"s_sleep {nap}")
    A(f"s_sub_u32 s{sCNT}, s{sCNT}, 1")
    A(f"s_cmp_lg_u32 s{sCNT}, 0")
    A(f"s_cbranch_scc1 {top}")
    A.label(done)


def skip_if(cmp, body, key=None):
    l = newlab("sk")
    A(cmp)
    A(f"s_cbranch_scc1 {l}")
    cond(key or l, body)
    A.label(l)


def st_loc(fn):
    if not USELOC:
        fn("sc1")
        return
    a_, b_ = newlab("lc"), newlab("lc")
    A(f"s_cmp_lg_u32 s{sLOC}, 0")
    A(f"s_cbranch_scc1 {a_}")
    cond(a_, lambda: fn("sc1"))
    A(f"s_branch {b_}")
    A.label(a_)
    fn("")
    A.label(b_)


def flag_store(so, loc=False):
    A(f"v_mov_b32 v154, s{sNON}")
    A("s_mov_b64 exec, 1")
    A("s_waitcnt vmcnt(0)")
    f = lambda bits: A(f"buffer_store_dword v154, v{L16}, {WSR}, {so} offen {bits}")
    if loc:
        st_loc(f)
    else:
        f("sc1")
    A("s_mov_b64 exec, -1")


def masks():
    for reg in range(16):
        G, r = reg >> 2, reg & 3
        key = 16 * (G & 1) + 8 * (G >> 1) + r
        A(f"s_mov_b32 s{MS+2*reg}, {hex((0xFFFFFFFF << key) & 0xFFFFFFFF)}")
        A(f"s_mov_b32 s{MS+2*reg+1}, {hex((0xFFFFFFFF << (key+4)) & 0xFFFFFFFF)}")


def prologue():
    A("s_cmp_ge_u32 s2, 256")
    A("s_cbranch_scc1 k_exit")
    A(f"s_load_dwordx4 s[{XS}:{XS+3}], s[0:1], 0")
    A(f"s_load_dwordx2 s[{WOS}:{WOS+1}], s[0:1], 16")
    A(f"s_load_dwordx2 s[{WSP}:{WSP+1}], s[0:1], 80")
    A(f"s_load_dwordx2 s[{TS2}:{TS2+1}], s[0:1], 32")
    A("v_lshrrev_b32 v1, 6, v0")
    A(f"v_and_b32 v{LN}, 63, v0")
    A(f"v_readfirstlane_b32 s{sW}, v1")
    A(f"v_lshlrev_b32 v{L16}, 4, v{LN}")
    A("s_and_b32 s30, s2, 7")
    A("s_lshr_b32 s31, s2, 3")
    A("s_and_b32 s32, s31, 1")
    A(f"s_lshl_b32 s33, s30, 1")
    A(f"s_add_u32 s{sRB}, s33, s32")
    A(f"s_lshr_b32 s{sHG}, s31, 1")
    A(f"s_add_u32 s33, s33, s{sHG}")
    A(f"s_add_u32 s{sKa}, s33, s32")
    A(f"s_sub_u32 s{sKb}, s33, s32")
    A(f"s_add_u32 s{sCG}, s{sKb}, 15")
    A(f"s_and_b32 s{sCG}, s{sCG}, 15")
    A(f"s_mul_i32 s{sF}, s30, 28")
    A(f"s_lshl_b32 s32, s30, 2")
    A(f"s_add_u32 s32, s32, {224-28}")
    A("s_cmp_lt_u32 s31, 28")
    A(f"s_cselect_b32 s{sF}, s{sF}, s32")
    A(f"s_add_u32 s{sF}, s{sF}, s31")
    A(f"s_lshl_b32 s{sCU}, s{sRB}, 4")
    A(f"s_add_u32 s{sCU}, s{sCU}, s{sHG}")
    A(f"s_mov_b32 s{sL}, 0")
    A(f"s_mov_b32 s{sLIM}, 20000")
    A(f"s_and_b32 s{sW4}, s{sW}, 3")
    A(f"s_lshl_b32 s{sT}, s{sRB}, 2")
    A(f"s_add_u32 s{sT}, s{sT}, s{sW4}")
    A(f"s_lshl_b32 s{sMO}, s{sW4}, 10")
    srd_fin(WS_, 6 * MB)
    srd_fin(WOS, 2 * MB)
    srd_fin(WSP, 128 * MB)
    srd_fin(TS2, 2048)
    if PROF:
        A(f"v_mov_b32 v{PRF}, 0")
        A(f"v_mov_b32 v{PRF2}, 0")
    mark("start")
    if PAD:
        A("s_memrealtime s[90:91]")
    A(f"s_cmp_ge_u32 s{sW}, 4")
    A("s_cbranch_scc1 l_start")


CPF = opt("cpf", 15)
WBK, WBH = opt("wb", 0), opt("wbh", 3)


def code_pf(bit, va, red=1):
    if not CPF >> bit & 1:
        return
    l = newlab("pc")
    n = 128 // red
    A("s_getpc_b64 s[32:33]")
    A.label(l)
    A(f"s_sub_u32 s32, s32, {l}-{NAME}_kernel")
    A("s_subb_u32 s33, s33, 0")
    A("s_lshr_b32 s34, s2, 3")
    A("s_lshl_b32 s34, s34, 2")
    A(f"s_add_u32 s34, s34, s{sW4}")
    A(f"s_and_b32 s34, s34, {n-1}")
    A("s_lshl_b32 s34, s34, 7")
    A(f"v_lshl_add_u32 v{va}, v{LN}, {7 + n.bit_length() - 1}, s34")
    A(f"s_mov_b32 s34, k_exit-{NAME}_kernel")
    A("s_mov_b32 s35, 0x20000")
    A(f"buffer_load_dword v{va}, v{va}, s[32:35], 0 offen")


def ptr_fin():
    A("s_waitcnt lgkmcnt(0)")
    A(f"s_mov_b32 s{sNON}, {hex(EPOCH)}")
    A(f"s_load_dword s{sNON}, s[{WSP}:{WSP+1}], s{sNON}")
    A(f"s_mov_b64 s[{WS_}:{WS_+1}], s[{XS+2}:{XS+3}]")
    srd_fin(XS, 4 * MB)


def wo_voff(dst):
    A(f"v_bfe_u32 v20, v{LN}, 3, 2")
    A(f"v_lshrrev_b32 v21, 5, v{LN}")
    A("v_lshl_add_u32 v20, v21, 3, v20")
    A(f"s_lshr_b32 s32, s{sW4}, 1")
    A("s_lshl_b32 s32, s32, 4")
    A(f"s_and_b32 s33, s{sW4}, 1")
    A("s_lshl_b32 s33, s33, 2")
    A("s_add_u32 s32, s32, s33")
    A("v_add_u32 v20, s32, v20")
    A("v_lshlrev_b32 v20, 11, v20")
    A(f"v_lshrrev_b32 v21, 2, v{LN}")
    A("v_and_b32 v21, 4, v21")
    A(f"v_xor_b32 v21, v21, v{LN}")
    A("v_and_b32 v21, 7, v21")
    A("v_lshl_add_u32 v20, v21, 4, v20")
    A(f"s_lshl_b32 s32, s{sCG}, 7")
    A(f"v_add_u32 v{dst}, s32, v20")


ROT = opt("rot", 1)


def wo_groups(slots, vo, tag):
    gs = []
    for j in slots:
        g = []
        if ROT:
            g += [f"s_add_u32 s{sD0}, s{sHG}, {j & 15}", f"s_and_b32 s{sD0}, s{sD0}, 15", f"s_lshl_b32 s{sD0}, s{sD0}, 17"]
            if j >= 16:
                g += [f"s_add_u32 s{sD0}, s{sD0}, 65536"]
        else:
            g += [f"s_mov_b32 s{sD0}, {(2*(j & 15) + (j >> 4))*65536}"]
        g += [f"s_add_u32 m0, s{sMO}, {4096*j}",
              f"buffer_load_dwordx4 v{vo}, s[{WOS}:{WOS+3}], s{sD0} offen lds ;@{tag}"]
        gs.append(g)
    return gs


def emit(groups):
    for g in groups:
        A.lines += g


FR = [96, 136]
XB, WB, XC, WC = 176, 178, 180, 182
KOF, VOF, KLD, VLD, QLD, TA = 244, 245, 246, 247, 248, 184
RA = 192
AR_IT = opt("ar", 4)


PF, PFD = opt("pf", 1), opt("pfd", 6)
PFA, PFT, sPB, sPK = 190, 191, 84, 85


def pf_setup(va, sPB=sPB):
    A(f"s_lshr_b32 s30, s{WS_}, 7")
    A("s_sub_u32 s30, 3, s30")
    A("s_and_b32 s30, s30, 7")
    A(f"s_and_b32 s31, s{sRB}, 1")
    A("s_lshl_b32 s31, s31, 3")
    A("s_add_u32 s30, s30, s31")
    A(f"s_and_b32 s31, s{sRB}, 14")
    A(f"s_add_u32 s{sPB}, s31, s30")
    A(f"s_lshl_b32 s31, s{sHG}, 2")
    A(f"s_add_u32 s31, s31, s{sW4}")
    A("s_mul_i32 s31, s31, 6144")
    A("s_lshl_b32 s30, s30, 7")
    A("s_add_u32 s30, s30, s31")
    A(f"v_min_u32 v{va}, 2, v{LN}")
    A(f"v_lshl_add_u32 v{va}, v{va}, 11, s30")


def pf_load(va, vt, k, sPB=sPB):
    return [f"s_add_u32 s30, s{sPB}, {k & 15}", "s_and_b32 s30, s30, 15", f"s_mul_i32 s30, s30, {64*6144}",
            f"buffer_load_dword v{vt}, v{va}, s[{WS_}:{WS_+3}], s30 offen"]


FPF = opt("fpf", [7] * 4)
FPM = opt("fpm", [0])
FPR, FPN, FPA, sFM = opt("fpr", 8), opt("fpn", 1), 196, 86


def fpf_setup():
    A("s_lshr_b32 s30, s2, 3")
    A("s_lshl_b32 s30, s30, 2")
    A(f"s_add_u32 s30, s30, s{sW}")
    A("s_and_b32 s31, s2, 7")
    nm = len(FPM)
    mg = -(-65536 // (7 * nm))
    assert all(mg * l >> 16 == l // (7 * nm) for l in range(64)) and 7 * nm * FPR <= 64
    A(f"v_mul_u32_u24 v4, {mg}, v{LN}")
    A("v_lshrrev_b32 v4, 16, v4")
    A(f"v_mul_u32_u24 v5, {7*nm}, v4")
    A(f"v_sub_u32 v5, v{LN}, v5")
    A(f"v_min_u32 v4, {FPR-1}, v4")
    A("v_lshl_add_u32 v4, v4, 7, s30")
    A("v_mul_u32_u24 v6, 37, v5")
    A("v_lshrrev_b32 v6, 8, v6")
    A("v_mul_u32_u24 v7, 7, v6")
    A("v_sub_u32 v5, v5, v7")
    A(f"v_mad_u32_u24 v6, v6, {FPM[1]-FPM[0] if nm > 1 else 0}, {FPM[0]}")
    A("v_cmp_eq_u32 vcc, 2, v6")
    A("v_mov_b32 v7, 7168")
    A("v_mov_b32 v8, 896")
    A("v_cndmask_b32 v7, v7, v8, vcc")
    A("v_mul_u32_u24 v4, v4, v7")
    A(f"v_mul_u32_u24 v{FPA+2}, {128*FPR}, v7")
    A("v_lshl_add_u32 v4, v5, 7, v4")
    A(f"v_mov_b32 v7, {896*1024}")
    A("v_cndmask_b32 v7, v8, v7, vcc")
    A("v_mad_u32_u24 v4, v7, s31, v4")
    for i in range(2):
        A(f"v_mov_b32 v{FPA+i}, s{36+i}")
        A(f"v_mov_b32 v7, s{74+i}")
        A(f"v_cndmask_b32 v{FPA+i}, v{FPA+i}, v7, vcc")
    A("v_cmp_eq_u32 vcc, 1, v6")
    for i in range(2):
        A(f"v_mov_b32 v7, s{38+i}")
        A(f"v_cndmask_b32 v{FPA+i}, v{FPA+i}, v7, vcc")
    A(f"v_add_co_u32 v{FPA}, vcc, v{FPA}, v4")
    A(f"v_addc_co_u32 v{FPA+1}, vcc, 0, v{FPA+1}, vcc")
    st = opt("fps", 1)
    mk = [sum(1 << (15 - f - st * i) for i in range(opt('fpe', 8 // FPR // FPN))) for f in FPF]
    fo = opt("fpo", 6)
    assert all(m & ((1 << fo) - 1) == 0 for m in mk)
    A(f"s_mov_b32 s30, {hex(mk[0] | mk[1] << 16)}")
    A(f"s_mov_b32 s31, {hex(mk[2] | mk[3] << 16)}")
    A(f"s_lshl_b32 s{sFM}, s{sW}, 4")
    A(f"s_lshr_b64 s[30:31], s[30:31], s{sFM}")
    A(f"s_and_b32 s{sFM}, s30, 0xffff")
    if fo > 1:
        A(f"s_mul_i32 s30, s{sHG}, {fo}")
        A("s_lshr_b32 s30, s30, 4")
        A(f"s_lshr_b32 s{sFM}, s{sFM}, s30")


def fpf_step():
    A.label("e_fpf")
    A(f"s_bitset0_b32 s{sFM}, s36")
    A(f"s_bfm_b64 exec, {7*len(FPM)*FPR}, 0")
    for i in range(FPN):
        A(f"global_load_dword v{PFT}, {v(FPA,2)}, off {opt('fpb', '')}")
        A(f"v_add_co_u32 v{FPA}, vcc, v{FPA}, v{FPA+2}")
        A(f"v_addc_co_u32 v{FPA+1}, vcc, 0, v{FPA+1}, vcc")
    A("s_mov_b64 exec, -1")
    FTL = opt("ftl", 0)
    if FTL:
        A(f"v_lshl_add_u32 v{FPA+2}, s{sW}, 6, v{LN}")
        A(f"v_mul_u32_u24 v{FPA+2}, 28672, v{FPA+2}")
        if FTL & 8:
            A("s_mov_b64 exec, 0x01010101")
            A("s_mov_b32 exec_hi, 0x01010101")
        if FTL & 2:
            A(f"global_load_dword v{PFT}, v{FPA+2}, s[38:39]")
        if FTL & 4:
            A(f"global_load_dword v{PFT}, v{FPA+2}, s[74:75]")
        A("s_mov_b64 exec, -1")
    A("s_branch e_fpf_ret")


def e_init():
    code_pf(0, PFT, opt("cpr", 2))
    if FPF:
        A("s_load_dwordx4 s[36:39], s[0:1], 40")
        A("s_load_dwordx2 s[74:75], s[0:1], 56")
    ptr_fin()
    if FPF:
        fpf_setup()
    A(f"s_load_dwordx2 s[{TS}:{TS+1}], s[0:1], 64")
    srd_fin(TS, 4 * MB)
    TCH = opt("tch", 0)
    if TCH:
        A(f"s_lshl_b32 s30, s{sHG}, 19")
        A(f"s_lshl_b32 s31, s{sRB}, 18")
        tl = [("s30", KVB), ("s31", OFB), ("s31", XFB), ("s30", KVB + LSTR)]
        for i, (r_, b_) in enumerate(tl):
            if TCH >> i & 1:
                A(f"s_add_u32 s32, {r_}, {hex(b_)}")
                if TCH & 256:
                    A(f"buffer_load_dword v{PFT}, off, {WSR}, s32")
                else:
                    A(f"s_load_dword s{sD0}, s[{WSP}:{WSP+1}], s32")
    if PF:
        pf_setup(PFA)
        for k in opt("pf0", [0, 1]):
            A.lines += pf_load(PFA, PFT, k)
    A(f"v_lshrrev_b32 v5, 5, v{LN}")
    A("v_lshlrev_b32 v6, 3, v5")
    A(f"s_lshl_b32 s33, s{sCG}, 7")
    for g in range(8):
        A(f"buffer_load_dwordx2 {v(WR+2*g,2)}, v6, s[{TS2}:{TS2+3}], s33 offen offset:{16*g}")
    masks()
    wo_voff(EVO)
    A(f"s_and_b32 s34, s{sW}, 1")
    A(f"s_lshr_b32 s35, s{sW}, 1")
    A(f"v_and_b32 v4, 15, v{LN}")
    A(f"v_lshrrev_b32 v7, 4, v{LN}")
    A("v_lshrrev_b32 v6, 1, v4")
    A("v_xor_b32 v6, v6, v7")
    A("v_lshlrev_b32 v6, 4, v6")
    A("v_lshl_add_u32 v6, v4, 7, v6")
    A("s_lshl_b32 s30, s34, 13")
    A(f"v_add_u32 v{XB}, s30, v6")
    A(f"v_xor_b32 v{XB+1}, 64, v{XB}")
    A("s_lshl_b32 s30, s35, 1")
    wtr_addr(WB, "s30", L_W)
    A(f"v_xor_b32 v{WB+1}, 32, v{WB}")
    A(f"v_and_b32 v8, 31, v{LN}")
    A("v_bfe_u32 v6, v8, 1, 3")
    A("v_xor_b32 v6, v6, v5")
    A("v_lshlrev_b32 v6, 4, v6")
    A("v_lshl_add_u32 v6, v8, 7, v6")
    A(f"s_lshl_b32 s30, s{sW}, 12")
    A(f"s_add_u32 s30, s30, {L_X}")
    A(f"v_add_u32 v{RA}, s30, v6")
    for ks in range(1, 4):
        A(f"v_xor_b32 v{RA+ks}, {32*ks}, v{RA}")
    A("s_lshl_b32 s30, s34, 8")
    A(f"v_lshl_add_u32 v{TA}, v4, 2, s30")
    A(f"v_lshl_add_u32 v{TA+1}, v7, 4, s30")
    A("s_lshl_b32 s30, s35, 7")
    A(f"v_lshl_add_u32 v{TA+2}, v7, 4, s30")
    A(f"s_add_u32 s30, s30, {T_CS+512}")
    A(f"v_lshl_add_u32 v{TA+3}, v4, 2, s30")
    A(f"s_lshl_b32 s30, s{sW}, 7")
    A(f"s_add_u32 s30, s30, {T_C}")
    A(f"v_lshl_add_u32 v{TA+4}, v8, 2, s30")
    A(f"v_mov_b32 v{TA+5}, 0")
    A("v_lshlrev_b32 v6, 9, v7")
    A(f"v_lshl_add_u32 v{VOF}, v4, 4, v6")
    A("v_and_b32 v9, 8, v4")
    A(f"v_lshl_add_u32 v{KOF}, v9, 4, v{VOF}")
    A(f"s_mul_i32 s30, s35, {KVH}")
    A("s_lshl_b32 s31, s34, 13")
    A("s_add_u32 s30, s30, s31")
    A(f"s_add_u32 s30, s30, {L_KV+8*4096}")
    A(f"v_add_u32 v{KLD}, s30, v{KOF}")
    A(f"v_add_u32 v{VLD}, s30, v{VOF}")
    A(f"s_lshl_b32 s30, s{sW}, 12")
    A(f"s_add_u32 s30, s30, {L_Q}")
    A(f"v_add_u32 v{QLD}, s30, v{VOF}")
    A("s_getreg_b32 s30, hwreg(HW_REG_XCC_ID, 0, 4)")
    A("v_mov_b32 v251, s30")
    A(f"s_lshl_b32 s30, s{sHG}, 4")
    A(f"s_add_u32 s30, s30, s{sRB}")
    A(f"s_sub_u32 s30, s30, s{sCU}")
    A(f"s_add_u32 s30, s30, {(COLF - ROWF) // 8}")
    A(f"v_mul_u32_u24 v249, s30, v{LN}")
    A(f"v_add_u32 v249, s{sCU}, v249")
    A("v_lshlrev_b32 v249, 3, v249")
    A(f"s_cmp_eq_u32 s{sW}, 0")
    A(f"s_cselect_b32 s{sAC}, {14 - AR_IT}, -1")
    A(f"v_mov_b32 v{WSUM}, 0")
    for i in range(96):
        A(f"v_mov_b32 v{i}, 0")
    A("s_waitcnt vmcnt(0) lgkmcnt(0)")
    A(f"s_add_u32 s{sNON}, s{sNON}, {hex(EPINC)}")
    A(f"v_mov_b32 v250, s{sNON}")
    for p in range(16):
        A(f"v_dot2c_f32_bf16 v{WSUM}, {ONES}, v{WR+p}")
    if PF:
        for k in opt("pf1", [2, 3, 4, 5]):
            A.lines += pf_load(PFA, PFT, k)
    A("s_setprio 1")


def wtr_addr(dst, ct, base):
    A(f"v_lshrrev_b32 v20, 2, v{LN}")
    A("v_bfe_u32 v21, v20, 1, 2")
    if ct is not None:
        A(f"v_xor_b32 v21, {ct}, v21")
    A("v_lshlrev_b32 v20, 7, v20")
    A("v_lshl_add_u32 v20, v21, 5, v20")
    A(f"v_and_b32 v21, 3, v{LN}")
    A("v_lshl_add_u32 v20, v21, 3, v20")
    A(f"v_add_u32 v{dst}, {base}, v20")


def accq(c, t):
    return 64 + (c & 1) * 16 + t * 4 if c >= 4 else (c >> 1) * 32 + t * 8 + (c & 1) * 4


def e_qphase():
    A.label("e_q")
    A.lines.append("@reset")
    A("s_mov_b32 s31, 0")
    A(f"s_mov_b32 s32, {L_X}")
    A("s_mov_b32 s36, 15")
    for i in range(2):
        A(f"v_add_u32 v{XC+i}, s32, v{XB+i}")
        A(f"v_mov_b32 v{WC+i}, v{WB+i}")

    def rd(fs, kk):
        f = FR[fs]
        x = [f"ds_read_b128 {v(f+4*t,4)}, v{XC+kk} offset:{t*2048}" for t in range(4)]
        w = [f"ds_read_b64_tr_b16 {v(f+16+8*seg+4*u+2*j,2)}, v{WC+u} offset:{seg*8192+kk*4096+j*2048}"
             for seg in range(3) for u in range(2) for j in range(2)]
        return [x[0], w[0], w[1], x[1], x[2], x[3]] + w[2:]

    def mf(fs, cs=range(6), snake=True):
        f = FR[fs]
        m = []
        for c in cs:
            for t in range(4):
                if snake and c & 1:
                    t = 3 - t
                a_, b_ = f + 16 + 4 * c, f + 4 * t
                if c >= 4:
                    a_, b_ = b_, a_
                m.append(MF16(accq(c, t), a_, b_))
        return m

    mark("q_wait")
    padat("q0", 0)
    padat("q1", 1)
    A("s_barrier")
    mark("q_go")
    for x in rd(0, 0):
        A(x)
    adv = [[f"s_cmp_eq_u32 s36, s{sAC}", "s_cbranch_scc1 e_arr", "e_arr_ret:"],
           [f"s_add_u32 s31, s31, {WSL}", f"s_sub_u32 s32, s32, {XSL}"],
           [f"s_cmp_ge_u32 s31, {3*WSL}", "s_cselect_b32 s31, 0, s31", f"s_cselect_b32 s32, {L_X}, s32"],
           [f"v_add_u32 v{WC}, s31, v{WB}", f"v_add_u32 v{XC}, s32, v{XB}"],
           [f"v_add_u32 v{WC+1}, s31, v{WB+1}", f"v_add_u32 v{XC+1}, s32, v{XB+1}"],
           ["s_sub_u32 s36, s36, 1", "s_cmp_eq_u32 s36, 0"]]
    if PF:
        A(f"s_add_u32 s{sPK}, s{sPB}, {PFD - 1}")
        adv[5:5] = [[f"s_add_u32 s{sPK}, s{sPK}, 1", f"s_and_b32 s30, s{sPK}, 15"],
                    [f"s_mul_i32 s30, s30, {64*6144}", f"s_cmp_ge_u32 s36, {PFD}"],
                    ["s_cselect_b64 exec, 7, 0", f"buffer_load_dword v{PFT}, v{PFA}, s[{WS_}:{WS_+3}], s30 offen", "s_mov_b64 exec, -1"]]
    if FPF:
        fp = opt("fpp", len(adv) - 1)
        adv[fp:fp] = [[f"s_bitcmp1_b32 s{sFM}, s36", "s_cbranch_scc1 e_fpf", "e_fpf_ret:"]]
    A.label("e_loop")
    for ks in range(2):
        m, r = mf(ks), rd(ks ^ 1, ks ^ 1)
        A("s_waitcnt lgkmcnt(0)")
        A(m[0])
        if ks == 1:
            A("s_barrier")
        for i in range(1, 24):
            if i <= 16:
                A(r[i-1])
            elif 7 * ks + i - 17 < len(adv):
                A.lines += adv[7*ks+i-17]
            A(m[i])
    A("s_cbranch_scc0 e_loop")
    m, r = mf(0), rd(1, 1)
    A("s_waitcnt lgkmcnt(0)")
    sal = [[f"s_and_b32 s34, s{sW}, 1", f"s_lshr_b32 s35, s{sW}, 1", f"s_lshl_b32 s30, s{sHG}, 1"],
           ["s_add_u32 s30, s30, s35", "s_lshl_b32 s30, s30, 6", f"s_lshl_b32 s31, s{sRB}, 2"],
           ["s_add_u32 s30, s30, s31", "s_lshl_b32 s31, s34, 1", "s_add_u32 s30, s30, s31"],
           ["s_lshl_b32 s32, s30, 12", f"s_add_u32 s32, s32, s{sL}", "s_add_u32 s33, s32, 4096"]]
    for i in range(24):
        if 1 <= i <= 16:
            A(r[i-1])
        if i == 17:
            A(f"s_cmp_lg_u32 s{sL}, 0")
            A("s_cbranch_scc1 e_nores")
            for ks in range(4):
                A(f"ds_read_b128 {v(P+4*ks,4)}, v{RA+ks}")
            A.label("e_nores")
        if 18 <= i < 22:
            A.lines += sal[i-18]
        A(m[i])
    AV, MV, CSK, CSQ, AK, MK, CSV, IDX = 96, 112, 128, 196, 192, 204, 190, 250
    tab = [f"ds_read2_b32 {v(MK,2)}, v{TA} offset0:128 offset1:144",
           f"ds_read_b128 {v(CSK,4)}, v{TA+2} offset:{T_CS+256}",
           f"ds_read_b128 {v(CSK+4,4)}, v{TA+2} offset:{T_CS+256+64}",
           f"ds_read2_b32 {v(AK,2)}, v{TA} offset0:0 offset1:16",
           f"ds_read2_b32 {v(MK+2,2)}, v{TA} offset0:160 offset1:176",
           f"ds_read2_b32 {v(AK+2,2)}, v{TA} offset0:32 offset1:48",
           f"ds_read2_b32 {v(CSV,2)}, v{TA+3} offset0:0 offset1:16"]
    for t in range(4):
        tab += [f"ds_read_b128 {v(MV+4*t,4)}, v{TA+1} offset:{T_M+64*t}", f"ds_read_b128 {v(AV+4*t,4)}, v{TA+1} offset:{T_A+64*t}"]
    tab += [f"ds_read_b128 {v(CSQ,4)}, v{TA+2} offset:{T_CS}", f"ds_read_b128 {v(CSQ+4,4)}, v{TA+2} offset:{T_CS+64}",
            f"ds_read2_b32 {v(CC,2)}, v{TA+4} offset0:0 offset1:128", f"ds_read_b64 {v(IDX,2)}, v{TA+5} offset:{T_IDX}"]
    so = ["s32", "s33"]

    def sel(hi):
        return ("op_sel:[0,1,0] op_sel_hi:[1,1,1]", "op_sel:[0,1] op_sel_hi:[1,1]") if hi else ("op_sel_hi:[1,0,1]", "op_sel_hi:[1,0]")

    def qk(seg, t, pk=True):
        acc, cs = 32 * seg + 8 * t, (CSQ, CSK)[seg]
        s3, s2 = sel(t & 1)
        if not pk:
            return ([f"v_fma_f32 v{acc+p}, v{cs+p}, -v{MK+t}, v{acc+p}" for p in range(8)] +
                    [f"v_mul_f32 v{acc+p}, v{acc+p}, v{AK+t}" for p in range(8)] +
                    [f"v_cvt_pk_bf16_f32 v{acc+p}, v{acc+2*p}, v{acc+2*p+1}" for p in range(4)])
        o = [f"v_pk_fma_f32 {v(acc+2*p,2)}, {v(cs+2*p,2)}, {v(MK+(t&2),2)}, {v(acc+2*p,2)} {s3} neg_lo:[0,1,0] neg_hi:[0,1,0]" for p in range(4)]
        o += [f"v_pk_mul_f32 {v(acc+2*p,2)}, {v(acc+2*p,2)}, {v(AK+(t&2),2)} {s2}" for p in range(4)]
        o += [f"v_cvt_pk_bf16_f32 v{acc+p}, v{acc+2*p}, v{acc+2*p+1}" for p in range(4)]
        return o
    kep = []
    for t in range(4):
        kep += qk(1, t, opt("kpk", 0) or t >= 2) + [f"buffer_store_dwordx4 {v(32+8*t,4)}, v{KOF}, {WSR}, {so[t>>1]} offen offset:{(t&1)*128} sc1"]
    m = mf(1, [2, 3, 4, 5, 0, 1], False)
    A("s_waitcnt vmcnt(0) lgkmcnt(0)")
    A(m[0])
    A("s_barrier")
    for i in range(1, 24):
        A.lines += tab[2*(i-1):2*i]
        if i == 11:
            A("s_waitcnt lgkmcnt(13)")
        if i >= 11:
            A.lines += kep[3*(i-11):3*(i-10)]
            if opt("kpk", 0) > 1:
                A(f"s_nop {opt('kpk', 0)-2}")
        A(m[i])
    A.lines += kep[39:]
    mark("q_end")
    A("s_waitcnt lgkmcnt(0)")
    for T in range(2):
        for c in range(2):
            acc = 64 + 16 * c + 8 * T
            s3, _ = sel(c)
            for p in range(4):
                A(f"v_pk_fma_f32 {v(acc+2*p,2)}, {v(MV+8*T+2*p,2)}, {v(CSV,2)}, {v(acc+2*p,2)} {s3} neg_lo:[0,1,0] neg_hi:[0,1,0]")
            for p in range(4):
                A(f"v_pk_mul_f32 {v(acc+2*p,2)}, {v(acc+2*p,2)}, {v(AV+8*T+2*p,2)}")
            for p in range(4):
                A(f"v_cvt_pk_bf16_f32 v{acc+p}, v{acc+2*p}, v{acc+2*p+1}")
            A(f"buffer_store_dwordx4 {v(acc,4)}, v{VOF}, {WSR}, {so[T]} offen offset:{2048+c*256} sc1")
    mark("kv_st")
    for t in range(4):
        A(f"ds_write_b128 v{KLD}, {v(32+8*t,4)} offset:{(t>>1)*4096+(t&1)*128}")
        A(f"v_mul_f32 v{AK+t}, {fl(QSCALE)}, v{AK+t}")
    for t in range(4):
        A.lines += qk(0, t)
        A(f"ds_write_b128 v{VLD}, {v(64+16*(t&1)+8*(t>>1),4)} offset:{(t>>1)*4096+2048+(t&1)*256}")
        A(f"ds_write_b128 v{QLD}, {v(8*t,4)} offset:{(t>>1)*2048+(t&1)*256}")
    A(f"s_lshl_b32 s30, s{sHG}, 8")
    A(f"s_lshl_b32 s31, s{sRB}, 4")
    A("s_add_u32 s30, s30, s31")
    A("s_lshl_b32 s31, s34, 3")
    A("s_add_u32 s30, s30, s31")
    A("s_lshl_b32 s31, s35, 2")
    A("s_add_u32 s30, s30, s31")
    if KVS:
        A(f"s_lshl_b32 s30, s30, {KVS}")
    A(f"s_add_u32 s30, s30, s{sL}")
    A(f"s_add_u32 s30, s30, {hex(KVF)}")
    A(f"v_readfirstlane_b32 s{sIDX}, v{IDX}")
    A(f"v_readfirstlane_b32 s{sLOC}, v{IDX+1}")
    patch_flag()

    def unswz():
        for ks in range(4):
            A(f"v_permlane32_swap_b32 v{P+4*ks}, v{P+4*ks+2}")
            A(f"v_permlane32_swap_b32 v{P+4*ks+1}, v{P+4*ks+3}")
    skip_if(f"s_cmp_lg_u32 s{sL}, 0", unswz)


def patch_flag():
    A(f"s_lshr_b32 s39, s{sIDX}, 5")
    A(f"s_lshl_b32 s34, s{sRB}, 2")
    A("s_sub_u32 s39, s39, s34")
    A("s_add_u32 s39, s39, 8")
    A("s_lshr_b32 s34, s39, 3")
    A("s_add_u32 s34, s34, 1")
    A("s_cmp_lt_u32 s39, 12")
    A(f"s_cselect_b32 s{sPATCH}, s34, 0")


Q, PM, AD, MX, SU0, SU1, CB, SM_, O, TM = 4, 12, 20, 21, 22, 23, 24, 40, 88, 152
SA, KF, VF, PP = [56, 72], [104, 112], [120, 128], [136, 144]


SEL, SUM, AD0, AD1 = 40, 44, 22, 23
sN, sPH, sTA = 74, 75, 76
MIR = opt("mir", 1)


def att_masks():
    A("v_mov_b32 v20, 0xffff")
    A("v_mov_b32 v21, 0xffff0000")
    for p in range(8):
        A(f"v_cndmask_b32 v22, 0, v20, {s(MS+4*p,2)}")
        A(f"v_cndmask_b32 v23, 0, v21, {s(MS+4*p+2,2)}")
        A(f"v_or_b32 v{PM+p}, v22, v23")


def att_base(team):
    A(f"s_and_b32 s34, s{sTA}, 3")
    A("s_lshl_b32 s33, s34, 12")
    A(f"s_add_u32 s33, s33, {L_KV+team*KVH}")
    A(f"v_add_u32 v{AD}, s33, v{L16}")


def att_setup(team):
    att_masks()
    A(f"s_xor_b32 s{sTA}, s{sT}, {3 if team and MIR else 0}")
    att_base(team)
    A(f"v_add_u32 v{AD0}, {8*4096}, v{AD}")
    A(f"v_add_u32 v{AD1}, {L_KV+team*KVH+7*4096}, v{L16}")
    A(f"s_add_u32 s{sN}, s34, 1")
    A(f"s_mov_b32 s{sPH}, 0")
    A("s_lshl_b32 s34, s34, 11")
    A(f"s_add_u32 s34, s34, {L_Q+team*8192}")
    A(f"v_add_u32 v3, s34, v{L16}")
    A(f"v_mov_b32 v{MX}, {fl(-1e30)}")
    for i in range(16):
        A(f"v_cndmask_b32 v{CB+i}, v{MX}, 0, {s(MS+2*i,2)}")
    A(f"v_lshrrev_b32 v{SEL}, 2, v{LN}")
    A(f"v_xor_b32 v{SEL}, v{SEL}, v{LN}")
    A(f"v_bfe_u32 v{SEL}, v{SEL}, 2, 1")
    A(f"v_add_u32 v{SEL}, -1, v{SEL}")
    A(f"v_and_b32 v{SEL}, {ONES}, v{SEL}")
    for i in range(1, 4):
        A(f"v_mov_b32 v{SEL+i}, v{SEL}")
    for i in range(4):
        A(f"v_mov_b32 v{SUM+i}, 0")
    for i in range(16):
        A(f"v_mov_b32 v{O+i}, 0")


def attention(team, pre, mid, hook, nh=8):
    n = f"a{team}{newlab('')}"
    KA, KB_, K0, VA, VB, PA, PB = KF[0], KF[0] + 4, KF[1], VF[0], [VF[0] + 4, VF[1]], PP[0], PP[0] + 4

    def rd(r, j, o):
        A(f"ds_read_b128 {v(r,4)}, v{AD1 if j else AD0} offset:{j*4096+o}")
    rd(K0, 0, 0)
    rd(K0 + 4, 0, 1024)
    A("s_waitcnt lgkmcnt(0)")
    A(MF(SA[0], K0, Q, CB))
    A(MF(SA[0], K0 + 4, Q + 4))
    rd(KA, 1, 0)
    rd(VB[0], 0, 3072)
    rd(KB_, 1, 1024)
    rd(VA, 0, 2048)
    pre()
    A(f"v_max3_f32 v{MX}, v{SA[0]}, v{SA[0]+1}, v{SA[0]+2}")
    A(f"v_max3_f32 v{TM}, v{SA[0]+3}, v{SA[0]+4}, v{SA[0]+5}")
    for p in range(3, 8):
        r = (TM, MX)[p & 1]
        A(f"v_max3_f32 v{r}, v{r}, v{SA[0]+2*p}, v{SA[0]+2*p+1}")
    A(f"v_max_f32 v{MX}, v{MX}, v{TM}")
    A(f"v_mov_b32 v{TM}, v{MX}")
    A(f"v_permlane32_swap_b32 v{MX}, v{TM}")
    A(f"v_max_f32 v{MX}, v{MX}, v{TM}")
    for i in range(16):
        A(f"v_sub_f32 v{CB+i}, 0, v{MX}")
    A(f"s_branch {n}_go")
    A.label(f"{n}_mid")
    A(f"s_cmp_ge_u32 s{sTA}, 8")
    A("s_cselect_b32 s33, 0, -1")
    for p in range(8):
        A(f"v_not_b32 v{PM+p}, v{PM+p}")
        A(f"v_or_b32 v{PM+p}, s33, v{PM+p}")
    A(f"s_and_b32 s32, s{sTA}, 3")
    A(f"s_cmp_ge_u32 s{sTA}, 8")
    A("s_cselect_b32 s32, s32, 4")
    A(f"s_sub_u32 s{sN}, 8, s32")
    A("s_lshl_b32 s32, s32, 12")
    A(f"s_add_u32 s32, s32, {L_KV+team*KVH}")
    A(f"v_add_u32 v{AD0}, s32, v{L16}")
    A(f"v_add_u32 v{AD1}, s32, v{L16}")
    A(f"s_cmp_eq_u32 s{sL}, 0")
    A(f"s_cselect_b32 s{sPH}, 2, 1")
    mid()
    A(f"s_cmp_lt_u32 s{sTA}, 4")
    A(f"s_cbranch_scc1 {n}_none")
    rd(K0, 0, 0)
    rd(K0 + 4, 0, 1024)
    rd(KA, 1, 0)
    rd(VB[0], 0, 3072)
    rd(KB_, 1, 1024)
    rd(VA, 0, 2048)
    A("s_waitcnt lgkmcnt(4)")
    A.label(f"{n}_go")
    A(MF(SA[0], K0, Q, CB))
    A(MF(SA[0], K0 + 4, Q + 4))

    def hk(k):
        body = cap(lambda: hook(k))
        if body:
            skip_if(f"s_cmp_eq_u32 s{sPH}, 0", lambda: A.lines.extend(body), "hk")

    def body(j, last):
        b = j & 1
        S, N = SA[b], SA[b ^ 1]
        E = lambda a_, z: [A(f"v_exp_f32 v{S+i}, v{S+i}") for i in range(a_, z)]

        def C(a_, z):
            for p in range(a_, z):
                A(f"v_cvt_pk_bf16_f32 v{PA+p}, v{S+2*p}, v{S+2*p+1}")
            if j == 0 and not last and z & 3 == 0:
                for p in range(z - 4, z):
                    A(f"v_and_b32 v{PA+p}, v{PA+p}, v{PM+p}")
        jk = j + 2 if j < 6 else j
        nl, nf = not last, j or last
        op = {"qa": lambda: nl and (A("s_waitcnt lgkmcnt(3)"), A(MF(N, KA, Q, CB))), "ka": lambda: nl and rd(KA, jk, 0),
              "pb": lambda: nf and A(MF(O, VB[b ^ 1], PB)), "vb": lambda: nl and rd(VB[b ^ 1], j + 1, 3072),
              "qb": lambda: nl and (A("s_waitcnt lgkmcnt(2)"), A(MF(N, KB_, Q + 4))), "kb": lambda: nl and rd(KB_, jk, 1024),
              "sb": lambda: nf and A(MF16(SUM, SEL, PB)), "sa": lambda: A(MF16(SUM, SEL, PA)),
              "pa": lambda: (last and A("s_waitcnt lgkmcnt(0)"), A(MF(O, VA, PA))), "va": lambda: nl and rd(VA, j + 1, 2048),
              "h0": lambda: (last or j < 3) and hk(6 if last else 2 * j), "h1": lambda: (last or j < 3) and hk(7 if last else 2 * j + 1)}
        ne = nc = 0
        for x in opt("ao", "qa,ka,e3,pb,vb,e3,qb,kb,e2,c2,sb,c2,e2,pa,va,h0,e4,sa,e2,c4,h1").split(","):
            if x in op:
                op[x]()
            elif x[0] == "e":
                E(ne, ne + int(x[1:]))
                ne += int(x[1:])
            else:
                C(nc, nc + int(x[1:]))
                nc += int(x[1:])
        assert ne == 16 and nc == 8
    for j in range(7):
        if j:
            A(f"s_cmp_eq_u32 s{sN}, {j+1}")
            A(f"s_cbranch_scc1 {n}_t{j&1}")
        body(j, False)
        if j == 0:
            A(f"s_cmp_eq_u32 s{sN}, 1")
            A(f"s_cbranch_scc1 {n}_e0")
    for b in (1, 0):
        A.label(f"{n}_t{b}")
        body(b, True)
        A.label(f"{n}_e{b}")
        A(f"s_cmp_eq_u32 s{sPH}, 0")
        A(MF16(SUM, SEL, PB))
        A(MF(O, VB[b], PB))
        A(f"s_cbranch_scc1 {n}_mid")
        A(f"s_branch {n}_fin")
    A.label(f"{n}_none")
    cond("hk", lambda: [hook(k) for k in range(8)])
    A.label(f"{n}_fin")
    att_addr(team)
    A(f"v_cmp_nlt_f32 vcc, {fl(2.0**60)}, v{SUM}") if opt("fexact", 0) else A(f"v_cmp_ngt_f32 vcc, {fl(2.0**60)}, v{SUM}")
    A(f"v_rcp_f32 v{SU0}, v{SUM}")
    A(f"s_cbranch_vccnz att_exact{team}")
    A.label(f"att_ret{team}" + (n if opt("ub", "") else ""))
    att_store()


def att_qread():
    A(f"ds_read_b128 {v(Q,4)}, v3")
    A(f"ds_read_b128 {v(Q+4,4)}, v3 offset:1024")


def att_exact(team):
    A.label(f"att_exact{team}")
    A("s_waitcnt lgkmcnt(0)")
    att_masks()
    att_base(team)
    for i in range(16):
        A(f"v_mov_b32 v{CB+i}, 0")

    def rdK(buf, d):
        A(f"ds_read_b128 {v(KF[buf],4)}, v{AD} offset:{(8-d)*4096}")
        A(f"ds_read_b128 {v(KF[buf]+4,4)}, v{AD} offset:{(8-d)*4096+1024}")

    def rdV(buf, d):
        A(f"ds_read_b128 {v(VF[buf],4)}, v{AD} offset:{(8-d)*4096+2048}")
        A(f"ds_read_b128 {v(VF[buf]+4,4)}, v{AD} offset:{(8-d)*4096+3072}")

    def neg_switch(d):
        l = newlab("ng")
        A(f"s_cmp_eq_u32 s{sTA}, {d-1}")
        A(f"s_cbranch_scc0 {l}")
        for i in range(16):
            A(f"v_mov_b32 v{CB+i}, {fl(-1e30)}")
        A.label(l)

    def smf(dst, buf, c):
        A(MF(dst, KF[buf], Q, c))
        A(MF(dst, KF[buf] + 4, Q + 4))

    def maxes(src, first):
        for p in range(8):
            if first and p == 0:
                A(f"v_max_f32 v{MX}, v{src}, v{src+1}")
            else:
                A(f"v_max3_f32 v{MX}, v{MX}, v{src+2*p}, v{src+2*p+1}")
    rdK(0, 0)
    rdK(1, 1)
    A("s_waitcnt lgkmcnt(2)")
    smf(SM_, 0, "0")
    for d in range(1, 9):
        b = d & 1
        if d < 8:
            rdK(b ^ 1, d + 1)
        neg_switch(d)
        A(f"s_waitcnt lgkmcnt({2 if d < 8 else 0})")
        smf(SA[b], b, CB)
        if d >= 2:
            maxes(SA[b ^ 1], d == 2)
    rdK(1, 1)
    rdV(0, 0)
    rdV(1, 8)
    for i in range(16):
        A(f"v_cndmask_b32 v{SM_+i}, v{SA[0]+i}, v{SM_+i}, {s(MS+2*i,2)}")
    maxes(SM_, False)
    A(f"v_mov_b32 v{TM}, v{MX}")
    A(f"v_permlane32_swap_b32 v{MX}, v{TM}")
    A(f"v_max_f32 v{MX}, v{MX}, v{TM}")
    for i in range(16):
        A(f"v_sub_f32 v{CB+i}, 0, v{MX}")
    neg_switch(1)
    A("s_waitcnt lgkmcnt(4)")
    smf(SA[1], 1, CB)
    rdK(0, 2)
    for i in range(16):
        A(f"v_sub_f32 v{SM_+i}, v{SM_+i}, v{MX}")
    for i in range(16):
        A(f"v_exp_f32 v{SM_+i}, v{SM_+i}")
    A(f"v_add_f32 v{SU0}, v{SM_}, v{SM_+1}")
    A(f"v_add_f32 v{SU1}, v{SM_+2}, v{SM_+3}")
    for i in range(4, 16):
        A(f"v_add_f32 v{SU0+(i&1)}, v{SU0+(i&1)}, v{SM_+i}")
    for p in range(8):
        A(f"v_cvt_pk_bf16_f32 v{PP[1]+p}, v{SM_+2*p}, v{SM_+2*p+1}")
    for p in range(8):
        A(f"v_and_b32 v{PP[0]+p}, v{PP[1]+p}, v{PM+p}")
    for p in range(8):
        A(f"v_xor_b32 v{PP[1]+p}, v{PP[1]+p}, v{PP[0]+p}")
    A("s_waitcnt lgkmcnt(2)")
    A(MF(O, VF[0], PP[0], "0"))
    A(MF(O, VF[0] + 4, PP[0] + 4))
    A(MF(O, VF[1], PP[1]))
    A(MF(O, VF[1] + 4, PP[1] + 4))
    for d in range(1, 8):
        b = d & 1
        rdV(b, d)
        if d < 7:
            neg_switch(d + 1)
            A("s_waitcnt lgkmcnt(2)")
            smf(SA[b ^ 1], b ^ 1, CB)
            if d < 6:
                rdK(b, d + 2)
        src = SA[b]
        for i in range(16):
            A(f"v_exp_f32 v{src+i}, v{src+i}")
        for i in range(16):
            A(f"v_add_f32 v{SU0+(i&1)}, v{SU0+(i&1)}, v{src+i}")
        for p in range(8):
            A(f"v_cvt_pk_bf16_f32 v{PP[b]+p}, v{src+2*p}, v{src+2*p+1}")
        A(f"s_waitcnt lgkmcnt({2 if d < 6 else 0})")
        A(MF(O, VF[b], PP[b]))
        A(MF(O, VF[b] + 4, PP[b] + 4))
    A(f"v_add_f32 v{SU0}, v{SU0}, v{SU1}")
    A(f"v_mov_b32 v{TM}, v{SU0}")
    A(f"v_permlane32_swap_b32 v{SU0}, v{TM}")
    A(f"v_add_f32 v{SU0}, v{SU0}, v{TM}")
    A(f"v_rcp_f32 v{SU0}, v{SU0}")
    A(f"s_lshl_b32 s33, s{sHG}, 11")
    A("s_add_u32 s33, s33, s36")
    A(f"s_branch att_ret{team}")


def att_addr(team):
    A(f"s_lshl_b32 s36, s{sTA}, 16")
    if not OSH:
        A(f"s_add_u32 s36, s36, s{sL}")
    A(f"s_add_u32 s36, s36, {hex(OFB + team*32768)}")
    A(f"s_lshl_b32 s33, s{sHG}, 11")
    A("s_add_u32 s33, s33, s36")
    A(f"s_lshl_b32 s30, s{sRB}, 9")
    A(f"s_and_b32 s31, s{sTA}, 3")
    A("s_lshl_b32 s31, s31, 6")
    A("s_add_u32 s30, s30, s31")
    A(f"s_add_u32 s30, s30, s{sL}")
    A(f"s_add_u32 s30, s30, {hex(OFL + team*256)}")
    A(f"s_lshl_b32 s31, s{sHG}, 2")
    A("s_add_u32 s31, s31, s30")


def att_store():
    for p in range(8):
        A(f"v_pk_mul_f32 {v(O+2*p,2)}, {v(O+2*p,2)}, {v(SU0,2)} op_sel_hi:[1,0]")
    for p in range(8):
        A(f"v_cvt_pk_bf16_f32 v{O+p}, v{O+2*p}, v{O+2*p+1}")

    def st(bits):
        A(f"buffer_store_dwordx4 {v(O,4)}, v{L16}, {WSR}, s33 offen {bits}")
        A(f"buffer_store_dwordx4 {v(O+4,4)}, v{L16}, {WSR}, s33 offen offset:1024 {bits}")
    st_loc(st)
    mark("att_end")


WO0, WO1 = opt("wo0", [13] * 3 + [16] * 6), opt("wo1", [16, 16])


XE2, XLA = opt("xe2", 1), opt("xla", 5)


EH = opt("eh", 3)
XREP = opt("xrep", 8)


def x2base(d, add=None):
    A(f"s_lshr_b32 vcc_lo, s{sRB}, {(16//XREP).bit_length()-1}")
    A("s_lshl_b32 vcc_lo, vcc_lo, 11")
    if add is not None:
        A(f"s_add_u32 vcc_lo, vcc_lo, s{add}")
    A(f"s_add_u32 s{d}, vcc_lo, {hex(X2R)}")


def e_att():
    att_setup(0)
    padat("a0", 0)
    padat("a1", 1)

    def kvfl():
        if EH == 3:
            A(f"s_and_b32 s32, s{sW4}, 1")
            A(f"s_lshr_b32 s33, s{sW4}, 1")
            A(f"s_add_u32 s36, s32, s{sRB}")
            A("s_sub_u32 s36, s36, 2")
            A(f"s_lshl_b32 s37, s{sHG}, 4")
            A("s_add_u32 s37, s37, s36")
            A("s_lshl_b32 s37, s37, 2")
            A("s_add_u32 s37, s37, s33")
            A(f"s_lshl_b32 s37, s37, {2+KVS}")
            A(f"s_add_u32 s37, s37, s{sL}")
            A(f"s_add_u32 s37, s37, {hex(KVF)}")
            A(f"s_lshl_b32 s38, s{sHG}, 1")
            A("s_add_u32 s38, s38, s33")
            A("s_lshl_b32 s38, s38, 4")
            A("s_add_u32 s38, s38, s36")
            A("s_lshl_b32 s38, s38, 14")
            A(f"s_add_u32 s38, s38, s{sL}")
            A(f"s_mul_i32 s33, s33, {KVH}")
            A("s_lshl_b32 s32, s32, 14")
            A("s_add_u32 s39, s32, s33")
            A(f"v_and_b32 v48, 8, v{LN}")
            if KVS:
                A(f"v_lshlrev_b32 v48, {KVS}, v48")
        flag_store("s30")
        mark("kv_fl")

    def halo():
        poll(lambda: A(f"buffer_load_dword v49, v48, {WSR}, s37 offen sc1"), lambda: A(f"v_cmp_ne_u32 vcc, s{sNON}, v49"))
        mark("kv_ok")
        A("s_mov_b32 s36, -1")
        for tt in range(4):
            A(f"s_add_u32 m0, s39, {L_KV + tt*4096}")
            A(f"s_add_u32 s32, s38, {tt*4096}")
            for p in range(4):
                A(f"buffer_load_dwordx4 v{L16}, {WSR}, s32 offen offset:{p*1024} sc1 lds")
    skip_if(f"s_cmp_lg_u32 s{sPATCH}, 2", lambda: (kvfl(), EH == 3 and opt("ehp", 1) and skip_if("s_cmp_lt_i32 s36, 0", halo)))
    A("s_waitcnt lgkmcnt(0)")
    mark("x0_wait")
    A("s_barrier")

    def fix():
        A(f"s_lshr_b32 s34, s{sIDX}, 5")

        def row():
            A(f"s_lshl_b32 s34, s{sCG}, 7")
            x2base(34, 34)
            A(f"s_and_b32 s32, s{sIDX}, 31")
            A(f"v_and_b32 v0, 31, v{LN}")
            A("v_cmp_eq_u32 vcc, s32, v0")
            A(f"v_lshrrev_b32 v0, 5, v{LN}")
            A("v_lshlrev_b32 v0, 3, v0")
            A("s_mov_b64 exec, vcc")
            for ks in range(8):
                A(f"buffer_load_dwordx2 {v(P+2*ks,2)}, v0, {WSR}, s34 offen offset:{16*ks} sc1")
            A(f"v_mov_b32 v{CC}, 1.0")
            A(f"v_mov_b32 v{DD}, 0")
            A("s_mov_b64 exec, -1")
        skip_if(f"s_cmp_lg_u32 s34, s{sT}", row)
        A("s_barrier")
    skip_if(f"s_cmp_lg_u32 s{sPATCH}, 2", fix)
    mark("a_go")
    att_qread()
    al = wo_groups([0, 12, 13, 14, 15], EVO, "woa")
    AL = opt("al", [0, 1, 2, 3, 4])

    def mid():
        mark("a_end")
        if EH == 3:
            skip_if("s_cmp_lt_i32 s36, 0", halo)
            A(f"s_cmp_eq_u32 s{sPATCH}, 1")
            A(f"s_cselect_b32 s32, 0, s{sW4}")
            skip_if("s_cmp_ge_u32 s32, 2", lambda: A("s_waitcnt vmcnt(0)"))
            mark("x1_wait")
        A("s_barrier")
        skip_if(f"s_cmp_lg_u32 s{sPATCH}, 1", lambda: A("s_barrier"))
        mark("att_go")

    def hook(k):
        if k == XE2:
            if EH == 3:
                A(f"s_waitcnt vmcnt({sum(j < k for j in AL)})")
            A("s_barrier")
        emit([g for j, g in zip(AL, al) if j == k])
    attention(0, lambda: skip_if(f"s_cmp_eq_u32 s{sPATCH}, 2", kvfl), mid, hook)


TREP, TW = opt("trep", 8), opt("tw", 32)
assert TREP * TW <= 256


def table_loads(T):
    def f():
        A(f"s_add_u32 s32, s{sCI}, {hex(TABLE)}")
        if TREP > 1:
            if opt("trd", 0):
                A(f"s_and_b32 vcc_lo, s{sHG}, {TREP-1}")
            else:
                A(f"s_lshr_b32 vcc_lo, s{sRB}, {(16//TREP).bit_length()-1}")
            A(f"s_mul_i32 vcc_lo, vcc_lo, {64*TW}")
            A("s_add_u32 s32, s32, vcc_lo")
        if TW == 32:
            A(f"v_lshlrev_b32 v{T+4}, 1, v{L16}")
        A(f"buffer_load_dwordx4 {v(T,4)}, v{T+4 if TW == 32 else L16}, {WSR}, s32 offen sc1")
    return f


def argmax_lane(T, issued=None):
    poll(table_loads(T), lambda: sent_check(range(T, T + 4), T + 4), issued)
    A(f"v_mov_b32 v{T+4}, v{T}")
    wave_red(T + 4, T + 5, "max")
    A(f"v_cmp_eq_f32 vcc, v{T+4}, v{T}")
    A("s_ff1_i32_b64 s32, vcc")
    A("s_and_b32 s32, s32, 63")


SPEC = opt("spec", 0)
T_C1, T_FN = 1024, 1040


def arg_first(T, z):
    A(f"s_lshr_b32 s34, s{sIDX}, 7")
    A("s_lshl_b32 s34, s34, 2")
    A(f"s_bfm_b64 s[36:37], {4*SPEC}, s34")

    def chk():
        sent_check(range(T, T + 4), T + 4)
        A("s_andn2_b64 vcc, vcc, s[36:37]")
    poll(table_loads(T), chk)
    A(f"v_mov_b32 v{T+5}, 0xff800000")
    A(f"v_cndmask_b32 v{T+4}, v{T}, v{T+5}, s[36:37]")
    wave_red(T + 4, T + 5, "max")
    A(f"v_cmp_eq_f32 vcc, v{T+4}, v{T}")
    A("s_andn2_b64 vcc, vcc, s[36:37]")
    A("s_ff1_i32_b64 s32, vcc")
    sel_write(T, z, T_C1)


def sel_write(T, z, off):
    A("s_lshl_b64 exec, 1, s32")
    A(f"v_and_b32 v{T+1}, 0x7ff, v{T+1}")
    A(f"ds_write_b128 v{z}, {v(T,4)} offset:{off}")
    A("s_mov_b64 exec, -1")


def stat_loads(S, base):
    def f():
        A(f"s_lshl_b32 s30, s{sT}, 13")
        A(f"s_add_u32 s30, s30, {hex(base)}")
        A("s_add_u32 s31, s30, 4096")
        for i in range(8):
            A(f"buffer_load_dwordx4 {v(S+4*i,4)}, v{L16}, {WSR}, s{30+(i>>2)} offen offset:{(i&3)*1024} sc1")
    return f


def stat_core(S, E, t, nc=4, n=8, sw=32):
    for i in range(1, n):
        for c in range(0, nc, 2):
            A(f"v_pk_add_f32 {v(S+c,2)}, {v(S+c,2)}, {v(S+4*i+c,2)}")
    for i in range(nc):
        A(f"v_mov_b32 v{t+i}, v{S+i}")
    for i in range(nc):
        A(f"v_permlane{sw}_swap_b32 v{S+i}, v{t+i}")
    for i in range(nc):
        A(f"v_add_f32 v{S+i}, v{S+i}, v{t+i}")
    A(f"v_mul_f32 v{E+2}, {fl(1/1024)}, v{S}")
    A(f"v_mul_f32 v{S+1}, {fl(1/1024)}, v{S+1}")
    A(f"v_fma_f32 v{S+1}, -v{E+2}, v{E+2}, v{S+1}")
    A(f"v_max_f32 v{S+1}, 0, v{S+1}")
    A(f"v_add_f32 v{E+3}, {fl(EPS)}, v{S+1}")
    A(f"v_rsq_f32 v{E+3}, v{E+3}")


def cand_publish(S, E, t, PR, lay):
    A(f"v_fma_f32 v{E}, -v{E+2}, v{S+3}, v{S+2}")
    A(f"v_and_b32 v{E+1}, 31, v{LN}")
    A(f"v_mul_f32 v{E}, v{E}, v{E+3}")
    A(f"s_lshl_b32 s32, s{sT}, 5")
    A(f"v_add_u32 v{E+1}, s32, v{E+1}")
    A(f"v_mov_b32 v{t}, v{E}")
    wave_red(t, t + 1, "max", 32)
    A(f"v_cmp_eq_f32 vcc, v{t}, v{E}")
    A(f"v_lshrrev_b32 v{t+2}, 5, v{LN}")
    A(f"v_lshlrev_b32 v{t+2}, 4, v{t+2}")
    if TW == 16:
        A(f"s_lshr_b32 s34, s{sHG}, {TREP.bit_length()-1}")
        A(f"v_add_lshl_u32 v{t+3}, v{t+2}, s34, 27")
    else:
        A(f"s_lshr_b32 s34, s{sHG}, {TREP.bit_length()-1}")
        A(f"v_lshl_add_u32 v{t+3}, s34, 28, v{t+2}")
    A(f"s_lshl_b32 s32, s{sT}, 11")
    A(f"s_lshl_b32 s33, s{sCG}, 7")
    A("s_add_u32 s32, s32, s33")
    A(f"s_add_u32 s32, s32, {hex(CAND + lay)}")
    A(f"s_and_b32 s34, s{sHG}, {TREP-1}")
    A("s_lshl_b32 s34, s34, 6")
    A(f"s_add_u32 s34, s34, s{sT}")
    A(f"s_mul_i32 s34, s34, {TW}")
    A(f"s_add_u32 s34, s34, {hex(TABLE + lay)}")
    A("s_ff1_i32_b32 s35, vcc_lo")
    A("s_lshl_b32 s35, 1, s35")
    A("s_mov_b32 exec_lo, s35")
    A("s_mov_b32 exec_hi, s35")
    A(f"buffer_store_dwordx4 {v(E,4)}, v{t+3}, {WSR}, s34 offen sc1")
    for ks in range(4):
        A(f"buffer_store_dwordx4 {v(PR+4*ks,4)}, v{t+2}, {WSR}, s32 offen offset:{ks*32} sc1")
    A("s_mov_b64 exec, -1")


def xf_off(dst):
    A(f"v_bfe_u32 v{dst}, v{LN}, 4, 1")
    A(f"v_lshlrev_b32 v{dst}, 11, v{dst}")
    A(f"v_lshrrev_b32 v{dst+1}, 5, v{LN}")
    A(f"v_lshl_add_u32 v{dst}, v{dst+1}, 8, v{dst}")
    A(f"v_and_b32 v{dst+1}, 15, v{LN}")
    A(f"v_lshl_add_u32 v{dst}, v{dst+1}, 4, v{dst}")
    A(f"s_lshl_b32 s34, s{sW4}, 12")
    A(f"s_add_u32 s34, s34, {L_X}")
    A(f"v_add_u32 v{dst+1}, s34, v{dst}")


def e_wo():
    D = opt("wod", 8)
    WA, FA, FL, XO, OB = 56, 60, 61, 100, 104
    WF = [32, 40, 48]
    assert OB + 4 * (D + 1) <= 154
    A(f"v_bfe_u32 v33, v{LN}, 2, 2")
    A(f"v_lshrrev_b32 v32, 5, v{LN}")
    A("v_lshl_add_u32 v34, v32, 3, v33")
    A("v_lshlrev_b32 v34, 7, v34")
    A("v_lshrrev_b32 v33, 1, v33")
    A("v_lshl_add_u32 v34, v33, 6, v34")
    A(f"v_bfe_u32 v33, v{LN}, 4, 1")
    A("v_lshl_add_u32 v34, v33, 5, v34")
    A(f"v_and_b32 v33, 3, v{LN}")
    A(f"v_lshl_add_u32 v{WA}, v33, 3, v34")
    A(f"v_xor_b32 v{WA+1}, 64, v{WA}")
    A(f"v_add_u32 v{WA+2}, 0x10000, v{WA}")
    A(f"v_add_u32 v{WA+3}, 0x10000, v{WA+1}")
    A(f"v_and_b32 v{FA}, 15, v{LN}")
    A(f"v_lshlrev_b32 v{FA}, 2, v{FA}")
    A("s_waitcnt vmcnt(2)")
    XAF = opt("xaf", 1)
    if XAF:
        A(f"s_and_b32 s35, s{sT}, {3 if XAF == 1 else 0}")
        skip_if("s_cmp_lg_u32 s35, 0", lambda: A("s_barrier"))
    for p in range(16):
        A(f"v_lshlrev_b32 v{2*p}, 16, v{P+p}")
        A(f"v_and_b32 v{2*p+1}, 0xffff0000, v{P+p}")
    for p in range(16):
        A(f"v_pk_fma_f32 {v(2*p,2)}, {v(2*p,2)}, {v(CC,2)}, {v(CC,2)} op_sel:[0,0,1] op_sel_hi:[1,0,1]")
    flag_store("s31", True)
    mark("o_fl")
    if XAF:
        skip_if("s_cmp_eq_u32 s35, 0", lambda: A("s_barrier"))
    else:
        A("s_barrier")
    mark("xa")
    emit(wo_groups(range(16, 28), EVO, "wob"))
    xf_off(XO)
    A(f"s_lshl_b32 s37, s{sHG}, 11" if ROT else "s_mov_b32 s37, 0")

    def rd(i):
        f = WF[i % 3]
        return [f"ds_read_b64_tr_b16 {v(f+4*u+2*j,2)}, v{WA+u+2*(i>>5)} offset:{(i&31)*2048+j*512}" for u in range(2) for j in range(2)]

    def ld(i):
        if i == 32:
            A("s_add_u32 s36, s36, 32768")
        if i & 1 == 0:
            A("s_add_u32 s38, s36, s37")
        else:
            A("s_add_u32 s37, s37, 2048")
            A("s_and_b32 s37, s37, 0x7800")
        A(f"buffer_load_dwordx4 {v(OB+4*(i%(D+1)),4)}, v{L16}, {WSR}, s38 offen offset:{(i&1)*1024} sc1 ;@o{i}")

    def fload(off):
        return lambda: A(f"buffer_load_dword v{FL}, v{FA}, {WSR}, s30 offen offset:{off} sc1")
    A.lines += rd(0) + rd(1)
    poll(fload(0), lambda: A(f"v_cmp_ne_u32 vcc, s{sNON}, v{FL}"))
    mark("o_ok0")
    for i in range(D):
        ld(i)
    FB = opt("wofb", 4)
    for i in range(64):
        f, ob = WF[i % 3], OB + 4 * (i % (D + 1))
        r = rd(i + 2) if i + 2 < 64 else []
        if i in (30, 54):
            A("s_barrier")
        W(f"o{i}", 4 if i < 63 else 0)
        A(MF(0, f, ob))
        if i + D == 32 - FB:
            tagged("fb", fload(256))
        if i + D == 32:
            poll(fload(256), lambda: A(f"v_cmp_ne_u32 vcc, s{sNON}, v{FL}"), "fb")
            mark("o_ok1")
        if i + D < 64:
            ld(i + D)
        A.lines += r[:2]
        A(MF(16, f + 4, ob))
        A.lines += r[2:]
    mark("wo_end")
    G = 96
    A(f"s_lshl_b32 s35, s{sRB}, 4")
    A(f"s_add_u32 s35, s35, s{sCG}")
    A("s_lshl_b32 s35, s35, 14")
    A(f"s_lshl_b32 s34, s{sW}, 12")
    A("s_add_u32 s35, s35, s34")
    if not XFO:
        A(f"s_add_u32 s35, s35, {hex(XFB)}")
    A(f"s_lshl_b32 s30, s{sT}, 13")
    A(f"s_add_u32 s30, s30, s{sL}")
    A(f"s_add_u32 s30, s30, {hex(STAT)}")
    A(f"s_lshl_b32 s31, s{sCG}, 9")
    A("s_add_u32 s31, s31, s30")
    for i in range(3):
        A(f"v_mov_b32 v{G+i}, 0")
    A(f"v_mov_b32 v{G+3}, v{WSUM}")
    for p in range(16):
        A(f"v_cvt_pk_bf16_f32 v{P+p}, v{2*p}, v{2*p+1}")

    def xfst():
        st_loc(lambda bits: [A(f"buffer_store_dwordx4 {v(P+4*ks,4)}, v{XO}, {XFR}, s35 offen offset:{ks*512} {opt('xbits', '') or bits}") for ks in range(4)])
        for ks in range(4):
            A(f"ds_write_b128 v{XO+1}, {v(P+4*ks,4)} offset:{ks*512}")
    skip_if(f"s_cmp_lg_u32 s{sL}, 0", xfst)
    for p in range(16):
        A(f"v_dot2c_f32_bf16 v{G}, {ONES}, v{P+p}")
        A(f"v_dot2c_f32_bf16 v{G+1}, v{P+p}, v{P+p}")
        A(f"v_dot2c_f32_bf16 v{G+2}, v{WR+p}, v{P+p}")
    for i in range(4):
        A(f"v_mov_b32 v{48+i}, v{G+i}")
    for i in range(4):
        A(f"v_permlane32_swap_b32 v{G+i}, v{48+i}")
    for i in range(4):
        A(f"v_add_f32 v{G+i}, v{G+i}, v{48+i}")
    A("s_mov_b32 exec_hi, 0")
    A("s_waitcnt vmcnt(0)")
    st_loc(lambda bits: A(f"buffer_store_dwordx4 {v(G,4)}, v{L16}, {WSR}, s31 offen {bits}"))
    A("s_mov_b64 exec, -1")
    mark("st_pub")
    A(f"s_cmp_lg_u32 s{sL}, 0")
    A("s_cbranch_scc1 e_final")
    A(f"s_mov_b32 s{sL}, {LSTR}")
    A(f"s_and_b32 s30, s{sW}, 1")
    A("s_lshl_b32 s30, s30, 13")
    A(f"v_add_u32 v{XB}, s30, v{L16}")
    A(f"v_add_u32 v{XB+1}, 1024, v{XB}")
    if PF:
        pf_setup(PFA)
        A(f"s_add_u32 s{sPB}, s{sPB}, 14")
    for i in range(96):
        A(f"v_mov_b32 v{i}, 0")
    if WBK & 2:
        A(f"s_lshl_b32 s30, s{sHG}, 2")
        A(f"s_add_u32 s30, s30, s{sW}")
        A(f"s_cmp_eq_u32 s30, {4*WBH+1}")
        A(f"s_cselect_b32 s{sAC}, {14 - opt('wbi', 8)}, -1")
    prof_next()
    A("s_waitcnt lgkmcnt(0)")
    A("s_branch e_q")
    if FPF:
        fpf_step()
    A.label("e_arr")
    if WBK & 2:
        A(f"s_cmp_eq_u32 s{sL}, 0")
        A("s_cbranch_scc1 e_arr0")
        A("buffer_wbl2 sc1")
        A("s_branch e_arr_ret")
        A.label("e_arr0")
    A("s_mov_b64 exec, 3")
    A(f"s_mov_b32 s{sAC}, {hex(ROWF)}")
    A(f"buffer_store_dwordx2 v[250:251], v249, {WSR}, s{sAC} offen sc1")
    A("s_mov_b64 exec, -1")
    A("s_branch e_arr_ret")
    A.label("e_final")
    S, E = 64, 52
    poll(stat_loads(S, STAT + LSTR), lambda: sent_check(range(S, S + 32), 48, SST))
    mark("st_ok")
    stat_core(S, E, 48)
    cand_publish(S, E, 48, P, LSTR)
    EST = opt("est", 1)
    A("s_mov_b32 s38, s35")
    A("s_mov_b32 s39, s35")
    mark("cand")
    A(f"v_add_f32 v{CC}, 1.0, v{E+3}")
    A(f"v_mul_f32 v{DD}, v{E+2}, v{E+3}")
    A(f"v_sub_f32 v{DD}, 0, v{DD}")
    for p in range(16):
        A(f"v_pk_fma_f32 {v(2*p,2)}, {v(2*p,2)}, {v(CC,2)}, {v(CC,2)} op_sel:[0,0,1] op_sel_hi:[1,0,1]")
    for p in range(16):
        A(f"v_cvt_pk_bf16_f32 v{64+p}, v{2*p}, v{2*p+1}")
    for ks in range(4):
        A(f"v_permlane32_swap_b32 v{64+4*ks}, v{64+4*ks+2}")
        A(f"v_permlane32_swap_b32 v{64+4*ks+1}, v{64+4*ks+3}")
    A(f"v_lshl_add_u32 v50, v{E+1}, 11, v50")
    A(f"s_mov_b32 s{sCI}, s{sL}")

    def ost(bits):
        for ks in range(4):
            A(f"buffer_store_dwordx4 {v(64+4*ks,4)}, v50, s[{TS}:{TS+3}], s33 offen offset:{ks*32} {bits}")
        A("s_mov_b64 exec, -1")
    if EST:
        A("s_not_b64 exec, s[38:39]")
        ost(opt('ebits', '').replace("+", " "))

    def arg():
        argmax_lane(0)
        A("s_lshl_b64 exec, 1, s32")
        A(f"ds_write_b128 v{TA+5}, v[0:3] offset:{T_IDX}")
        A("s_mov_b64 exec, -1")

    def arg2():
        arg_first(0, TA + 5)
        argmax_lane(0, 0)
        sel_write(0, TA + 5, T_FN)
    if SPEC:
        A("s_setprio 0")
        skip_if(f"s_cmp_lg_u32 s{sW}, 0", arg2)
        lspin(lambda: A(f"ds_read_b32 v0, v{TA+5} offset:{T_FN+4}"),
              lambda: (A("v_readfirstlane_b32 s35, v0"), A("s_cmp_ge_i32 s35, 0")), opt("enap", 1))
        mark("t_arg")
    else:
        skip_if(f"s_cmp_lg_u32 s{sW}, 0", arg)
        A("s_waitcnt lgkmcnt(0)")
        A("s_barrier")
        A(f"ds_read_b32 v0, v{TA+5} offset:{T_IDX+4}")
        A("s_waitcnt lgkmcnt(0)")
        A("v_and_b32 v0, 0x7ff, v0")
    A(f"v_cmp_ne_u32 vcc, v0, v{E+1}")
    A("s_and_b64 exec, vcc, s[38:39]" if EST else "s_mov_b64 exec, vcc")
    if EST:
        A("s_cbranch_execz k_end")
    ost(opt('obits', '').replace("+", " "))
    if WBK & 4:
        A(f"s_lshl_b32 s30, s{sHG}, 2")
        A(f"s_add_u32 s30, s30, s{sW}")
        A(f"s_and_b32 s30, s30, {opt('wbm', 63)}")
        A(f"s_cmp_lg_u32 s30, {(4*WBH+1) & opt('wbm', 63)}")
        A("s_cbranch_scc1 k_end")
        A("s_waitcnt vmcnt(0)")
        A("buffer_wbl2 sc1")
    A("s_branch k_end")


STAG = opt("stag", 1)
FV = [155, 155, 153]


def ffn_addr():
    A(f"v_lshrrev_b32 v20, 2, v{LN}")
    A("v_lshlrev_b32 v20, 2, v20")
    A(f"v_bfe_u32 v21, v{LN}, 1, 1")
    A("v_add_u32 v20, v20, v21")
    A(f"v_mul_u32_u24 v20, {4*7168}, v20")
    A(f"v_and_b32 v21, 1, v{LN}")
    A("v_lshl_add_u32 v20, v21, 4, v20")
    A(f"s_mul_i32 s30, s{sW4}, {256*7168}")
    A(f"s_lshl_b32 s31, s{sF}, 5")
    A("s_add_u32 s30, s30, s31")
    A(f"v_add_u32 v{FV[0]}, s30, v20")
    A("v_lshlrev_b32 v21, 14, v21")
    A(f"v_lshrrev_b32 v20, 1, v{LN}")
    A("v_lshl_add_u32 v20, v20, 4, v21")
    A(f"s_lshl_b32 s30, s{sW4}, 9")
    A(f"s_lshl_b32 s31, s{sF}, 15")
    A("s_add_u32 s30, s30, s31")
    A(f"v_add_u32 v{FV[2]}, s30, v20")


def ffn_srd(which, sd):
    karg, nb = [(40, 1024 * 7168), (48, 1024 * 7168), (56, 3584 * 2048)][which]
    if opt("noffn", 0) >> which & 1:
        nb = 0
    return [f"s_load_dwordx2 s[{sd}:{sd+1}], s[0:1], {karg}", f"s_cmp_lt_u32 s{sF}, 224",
            f"s_cselect_b32 s{sd+2}, {hex(nb)}, 0", f"s_mov_b32 s{sd+3}, 0x20000"]


def ffn_groups(which, sd):
    base = [GW, UW, DW][which]
    gs = []
    for j in range(8):
        g = []
        if which == 2:
            g += [f"s_mov_b32 s{sD0}, {j*2048}"]
        elif STAG:
            g += [f"s_xor_b32 s{sD0}, s{sF}, {j >> 1}", f"s_and_b32 s{sD1}, s{sD0}, 2", f"s_and_b32 s{sD0}, s{sD0}, 3",
                  f"s_mul_i32 s{sD1}, s{sD1}, {2*7168}", f"s_mul_i32 s{sD0}, s{sD0}, {2*7168}", f"s_add_u32 s{sD0}, s{sD0}, s{sD1}"]
            if j & 1:
                g += [f"s_add_u32 s{sD0}, s{sD0}, 7168"]
        else:
            g += [f"s_mov_b32 s{sD0}, {((j & 3) + 8*(j >> 2))*7168}"]
        g += [f"buffer_load_dwordx4 {v(base+4*j,4)}, v{FV[which]}, s[{sd}:{sd+3}], s{sD0} offen {opt('fbits', '')} ;@ffw"]
        gs.append(g)
    return gs


FFS = opt("ffs", [26] * 3 + [17] * 5 + [18, 18, 19, 19, 20, 21, 22, 23] + [40] * 8)
LATE = {}


def late(k):
    if k in LATE:
        skip_if(f"s_cmp_lg_u32 s{sL}, 0", lambda: emit(LATE[k]))


WMAP = {}


DLATE = max(FFS[16:]) > 40


def ffn_perm(ms=(0, 1, 2)):
    A("s_mov_b32 s30, 0x05040100")
    A("s_mov_b32 s31, 0x07060302")
    free = SPARE
    for m, base in enumerate((GW, UW, DW)):
        for p in range(4):
            for c in range(4):
                a_, b_ = base + 8 * p + c, base + 8 * p + 4 + c
                if m in ms:
                    A(f"v_perm_b32 v{free}, v{b_}, v{a_}, s30")
                    A(f"v_perm_b32 v{b_}, v{b_}, v{a_}, s31")
                WMAP[(m, p, 2 * c)] = free
                WMAP[(m, p, 2 * c + 1)] = b_
                free = a_


XG = 24
RQ = opt("rq", 2)


def ffn_xaddr():
    A(f"s_lshl_b32 s32, s{sW4}, 9")
    A(f"s_sub_u32 s34, s{sF}, 224")
    A("s_lshl_b32 s34, s34, 2")
    A(f"s_mul_i32 s35, s{sW4}, {RQ}")
    A("s_and_b32 s33, s35, 3")
    A("s_add_u32 s34, s34, s33")
    A("s_cmp_lt_u32 s35, 4")
    A("s_cselect_b32 s89, s34, -1")
    A(f"v_and_b32 v23, {RQ-1}, v{LN}")
    A("v_add_u32 v23, s34, v23")
    A(f"v_lshrrev_b32 v22, 5, v{LN}")
    A("v_and_or_b32 v23, v23, -2, v22")
    A(f"v_lshrrev_b32 v22, 1, v{LN}")
    A(f"s_cmp_lt_u32 s{sF}, 224")
    A("s_cselect_b32 s32, s32, 0")
    A("s_cselect_b64 vcc, -1, 0")
    A("v_cndmask_b32 v22, v23, v22, vcc")
    A("v_lshl_add_u32 v22, v22, 4, s32")


def xloads():
    A(f"s_lshr_b32 s33, s{sIDX}, 5")
    A("s_lshl_b32 s33, s33, 11")
    A(f"s_add_u32 s33, s33, s{sCI}")
    A(f"s_add_u32 s33, s33, {hex(CAND)}")
    A(f"buffer_load_dwordx4 {v(XG,4)}, v22, {WSR}, s33 offen sc1")


def isffn(body):
    skip_if(f"s_cmp_ge_u32 s{sF}, 224", body) if opt("skf", 1) else body()


def ffn_gateup(slot=None):
    AC = 32
    A(f"v_mov_b32 v28, s{sRSTD}")
    A(f"v_mul_f32 v29, s{sMEAN}, v28")
    for p in range(4):
        A(f"v_lshlrev_b32 v30, 16, v{XG+p}")
        A(f"v_and_b32 v31, 0xffff0000, v{XG+p}")
        A("v_fma_f32 v30, v30, v28, -v29")
        A("v_fma_f32 v31, v31, v28, -v29")
        A(f"v_cvt_pk_bf16_f32 v{XG+p}, v30, v31")
    if STAG:
        for b in range(2):
            skip_if(f"s_bitcmp0_b32 s{sF}, {b}",
                    lambda: [A(f"v_swap_b32 v{XG+p}, v{XG+(p ^ (1 << b))}") for p in range(4) if not p >> b & 1])
    isffn(lambda: [A(f"v_dot2_f32_bf16 v{AC+8*m+c}, v{WMAP[(m,p,c)]}, v{XG+p}, {'0' if p == 0 else 'v%d' % (AC+8*m+c)}")
                   for p in range(4) for m in range(2) for c in range(8)])
    A.lines.append("@cut")
    A(f"v_lshrrev_b32 v31, 5, v{LN}")
    A("v_lshlrev_b32 v30, 6, v31")
    for c in range(8):
        A(f"v_permlane32_swap_b32 v{AC+c}, v{AC+8+c}")
    for c in range(8):
        A(f"v_add_f32 v{AC+c}, v{AC+c}, v{AC+8+c}")
    A(f"v_and_b32 v31, 1, v{LN}")
    A("v_lshl_add_u32 v30, v31, 5, v30")
    for c in range(4):
        A(f"v_permlane16_swap_b32 v{AC+c}, v{AC+4+c}")
    for c in range(4):
        A(f"v_add_f32 v{AC+c}, v{AC+c}, v{AC+4+c}")
    A(f"v_and_b32 v31, 16, v{LN}")
    A(f"s_lshl_b32 s32, s{sW4}, 7")
    if slot:
        A(f"s_add_u32 s32, s32, {slot}")
    A("v_add3_u32 v30, v31, v30, s32")
    for sh in ("quad_perm:[2,3,0,1]", "row_ror:4", "row_ror:8"):
        for c in range(4):
            A(f"v_add_f32_dpp v{AC+c}, v{AC+c}, v{AC+c} {sh} {DPPF}")
    A("s_mov_b32 exec_lo, 0x00030003")
    A("s_mov_b32 exec_hi, 0x00030003")
    A(f"ds_write_b128 v30, {v(AC,4)} offset:{0 if slot else T_INB}")
    A("s_mov_b64 exec, -1")


def ffn_down(slot=None, off=None, wait=None):
    A(f"v_and_b32 v30, 1, v{LN}")
    A(f"v_bfe_u32 v31, v{LN}, 1, 3")
    A("v_lshl_add_u32 v30, v30, 3, v31")
    ra = 21 if slot else 30
    if slot:
        A(f"v_lshl_add_u32 v21, v30, 2, {slot}")
    else:
        A("v_lshlrev_b32 v30, 2, v30")
        A(f"v_add_u32 v30, {T_INB}, v30")
    reads = lambda: [A(f"ds_read2_b32 {v(32+2*i,2)}, v{ra} offset0:{32*i} offset1:{32*i+16}") for i in range(4)]
    if not slot:
        reads()
    A(f"v_lshrrev_b32 v30, {RQ.bit_length()}, v{LN}")
    A(f"v_mul_u32_u24 v30, {224*16*RQ}, v30")
    if RQ > 1:
        A(f"v_and_b32 v31, {2*RQ-2}, v{LN}")
        A("v_lshl_add_u32 v30, v31, 3, v30")
    A(f"s_add_u32 s32, s{sF}, 32")
    A("s_lshr_b32 s32, s32, 8")
    A("v_lshl_add_u32 v30, s32, 31, v30")
    A(f"s_mul_i32 s32, s{sW4}, {32*224*16}")
    A(f"s_mul_i32 s33, s{sF}, {16*RQ}")
    A("s_add_u32 s32, s32, s33")
    A(f"s_add_u32 s32, s32, {off or 's%d' % sCI}")
    A(f"s_add_u32 s32, s32, {hex(PY)}")
    wait(reads) if slot else A("s_waitcnt lgkmcnt(0)")
    A("v_pk_add_f32 v[32:33], v[32:33], v[34:35]")
    A("v_pk_add_f32 v[36:37], v[36:37], v[38:39]")
    A("v_pk_add_f32 v[32:33], v[32:33], v[36:37]")
    A(f"v_mul_f32 v34, {fl(-math.log2(math.e))}, v32")
    A("v_exp_f32 v34, v34")
    A("v_mul_f32 v32, v32, v33")
    A("v_add_f32 v34, 1.0, v34")
    A("v_rcp_f32 v34, v34")
    A("v_mul_f32 v32, v32, v34")
    A(f"v_mov_b32_dpp v33, v32 quad_perm:[2,3,2,3] {DPPF}")
    A("v_cvt_pk_bf16_f32 v32, v32, v33")
    for p in range(4):
        A(f"ds_swizzle_b32 v{36+p}, v32 offset:{hex(1 | (4*p) << 5)}")
    A("s_waitcnt lgkmcnt(0)")
    AC = 40
    isffn(lambda: [A(f"v_dot2_f32_bf16 v{AC+c}, v{WMAP[(2,p,c)]}, v{36+p}, {'0' if p == 0 else 'v%d' % (AC+c)}")
                   for p in range(4) for c in range(8)])
    A.lines.append("@cut")
    for c in range(8):
        A(f"v_add_f32_dpp v{AC+c}, v{AC+c}, v{AC+c} quad_perm:[1,0,3,2] {DPPF}")
    A("s_mov_b32 exec_lo, 0x55555555")
    A("s_mov_b32 exec_hi, 0x55555555")
    for c in range(4):
        A(f"v_cvt_pk_bf16_f32 v{AC+c}, v{AC+2*c}, v{AC+2*c+1}")
    A(f"buffer_store_dwordx4 {v(AC,4)}, v30, {WSR}, s32 offen sc1")
    A("s_mov_b64 exec, -1")


NR = -(-7 * RQ // 2)
RP, RS = 88 - 4 * NR, 24


def red_loads(off=None):
    A(f"s_mul_i32 s32, s89, {224*16}")
    A(f"s_add_u32 s32, s32, {off or 's%d' % sCI}")
    A(f"s_add_u32 s32, s32, {hex(PY)}")
    for i in range(NR):
        if RQ == 1 and i == 3:
            A("s_mov_b32 exec_hi, 0")
        A(f"buffer_load_dwordx4 {v(RP+4*i,4)}, v{L16}, {WSR}, s32 offen offset:{(i&3)*1024} sc1")
        if i & 3 == 3 and RQ > 1:
            A("s_add_u32 s32, s32, 4096")
    if RQ == 1:
        A("s_mov_b64 exec, -1")


def red_chk():
    sent_check(range(RP, RP + 4 * NR), 30, SST)


def red_pre():
    A(f"v_and_b32 v30, 16, v{LN}")
    A("v_cmp_eq_u32 vcc, 16, v30")
    A(f"v_mov_b32 v28, s{sRSTD}")
    A(f"v_mul_f32 v29, s{sMEAN}, v28")
    A("v_add_f32 v28, 1.0, v28")
    A(f"v_cndmask_b32 v30, v{XG}, v{XG+1}, vcc")
    A(f"v_cndmask_b32 v31, v{XG+2}, v{XG+3}, vcc")
    if RQ == 1:
        A("s_bitcmp1_b32 s89, 0")
        A("s_cselect_b64 vcc, -1, 0")
    else:
        A("s_mov_b32 vcc_lo, 0xaaaaaaaa")
        A("s_mov_b32 vcc_hi, 0xaaaaaaaa")
    A(f"v_mov_b32 v96, {fl(-math.log2(math.e))}")
    A(f"v_mul_f32 v96, s{sR}, v96")
    A("v_exp_f32 v96, v96")
    A("v_cndmask_b32 v30, v30, v31, vcc")
    A("v_lshlrev_b32 v92, 16, v30")
    A("v_and_b32 v93, 0xffff0000, v30")
    for c in range(2):
        A(f"v_fma_f32 v{92+c}, v{92+c}, v28, -v29")
    A("v_add_f32 v96, 1.0, v96")
    A("v_rcp_f32 v96, v96")
    for c in range(4 * (RQ == 1)):
        A(f"v_mov_b32 v{RP+12+c}, 0")


def red_sum():
    R, T = RS, 88
    for d in range(4):
        A(f"v_lshlrev_b32 v{R+2*d}, 16, v{RP+d}")
        A(f"v_and_b32 v{R+2*d+1}, 0xffff0000, v{RP+d}")
    for i in range(1, NR):
        for d in range(0, 4, 2):
            for e in range(2):
                A(f"v_lshlrev_b32 v{T+2*e}, 16, v{RP+4*i+d+e}")
                A(f"v_and_b32 v{T+2*e+1}, 0xffff0000, v{RP+4*i+d+e}")
            for e in range(2):
                A(f"v_pk_add_f32 {v(R+2*d+2*e,2)}, {v(R+2*d+2*e,2)}, {v(T+2*e,2)}")
    for n, sw in ((4, 32), (2, 16)):
        for c in range(n):
            A(f"v_permlane{sw}_swap_b32 v{R+c}, v{R+n+c}")
        for c in range(n):
            A(f"v_add_f32 v{R+c}, v{R+c}, v{R+n+c}")
    for sh in ("quad_perm:[1,0,3,2]", "quad_perm:[2,3,0,1]", "row_ror:4", "row_ror:8")[RQ >> 1:]:
        for c in range(2):
            A(f"v_add_f32_dpp v{R+c}, v{R+c}, v{R+c} {sh} {DPPF}")
    for c in range(2):
        A(f"v_fma_f32 v{R+4+c}, v{R+c}, v96, v{92+c}")
    for c in range(4):
        A(f"v_cvt_pk_bf16_f32 v{R+c}, v{R+4}, v{R+5}")
    A(f"v_permlane16_swap_b32 v{R}, v{R+1}")
    A(f"v_permlane16_swap_b32 v{R+2}, v{R+3}")
    A(f"v_permlane32_swap_b32 v{R}, v{R+2}")
    A(f"v_permlane32_swap_b32 v{R+1}, v{R+3}")


WCH, XCH, WAC = 100, 132, 140


def wch_reads(st):
    A(f"s_min_u32 s30, s{sW4}, 2")
    A("s_lshl_b32 s30, s30, 13")
    A(f"s_add_u32 s30, s30, {L_W + (st % 3)*WSL}")
    wtr_addr(144, None, "s30")
    for ct in range(1, 4):
        A(f"v_xor_b32 v{144+ct}, {32*ct}, v144")
    for ct in range(4):
        for q in range(4):
            A(f"ds_read_b64_tr_b16 {v(WCH+8*ct+2*q,2)}, v{144+ct} offset:{q*2048}")


def cub_base(base):
    A(f"s_min_u32 s32, s{sW4}, 2")
    A("s_lshl_b32 s32, s32, 12")
    A(f"s_lshl_b32 s33, s{sHG}, 14")
    A("s_add_u32 s32, s32, s33")
    A(f"s_add_u32 s32, s32, {hex(base)}")


def wch_reduce(base, x):
    for ct in range(4):
        A(f"v_mov_b32 v{WAC+ct}, 0")
    for q in range(8):
        for ct in range(4):
            A(f"v_dot2c_f32_bf16 v{WAC+ct}, {ONES if x is None else 'v%d' % (x+q)}, v{WCH+8*ct+q}")
    A.lines.append("@cut")
    cub_base(base)
    A(f"s_lshl_b32 s33, s{sRB}, 8")
    A("s_add_u32 s32, s32, s33")
    A(f"v_lshlrev_b32 v20, 2, v{LN}")
    tred4(WAC)
    A(f"buffer_store_dword v{WAC}, v20, {WSR}, s32 offen sc1")


def cub_loads(Z, base):
    cub_base(base)
    for i in range(4):
        A(f"buffer_load_dwordx4 {v(Z+4*i,4)}, v{L16}, {WSR}, s32 offen offset:{i*1024} sc1")


def cub_sum(Z):
    for i in range(1, 4):
        for c in range(0, 4, 2):
            A(f"v_pk_add_f32 {v(Z+c,2)}, {v(Z+c,2)}, {v(Z+4*i+c,2)}")
    tred4(Z)


def tab_write(a_, m_, c_, d_, t, alt=False):
    if alt:
        A(f"v_and_b32 v{t}, 15, v{LN}")
        A(f"v_lshrrev_b32 v{t+1}, 5, v{LN}")
        A(f"v_lshl_add_u32 v{t}, v{t}, 1, v{t+1}")
        A(f"v_bfe_u32 v{t+1}, v{LN}, 4, 1")
    else:
        A(f"v_and_b32 v{t}, 31, v{LN}")
        A(f"v_lshrrev_b32 v{t+1}, 5, v{LN}")
    A(f"v_cmp_eq_u32 vcc, 0, v{t+1}")
    A(f"v_lshlrev_b32 v{t+1}, 9, v{t+1}")
    A(f"v_lshl_add_u32 v{t}, v{t}, 2, v{t+1}")
    A(f"s_lshl_b32 s32, s{sW4}, 7")
    A(f"v_add_u32 v{t}, s32, v{t}")
    A(f"v_cndmask_b32 v{t+1}, {m_}, {a_}, vcc")
    A(f"v_cndmask_b32 v{t+2}, {d_}, {c_}, vcc")
    A(f"ds_write_b32 v{t}, v{t+1} offset:{T_A}")
    A(f"ds_write_b32 v{t}, v{t+2} offset:{T_C}")
    A(f"v_and_b32 v{t}, 15, v{LN}")
    A(f"v_lshrrev_b32 v{t+3}, 4, v{LN}")
    A(f"v_lshl_add_u32 v{t}, v{t}, 2, v{t+3}")
    A(f"s_min_u32 s32, s{sW4}, 2")
    A("s_lshl_b32 s32, s32, 8")
    A(f"v_lshl_add_u32 v{t}, v{t}, 2, s32")
    A(f"ds_write_b32 v{t}, v{CSUM} offset:{T_CS}")


def idx_write():
    A(f"v_mov_b32 v20, s{sIDX}")
    A(f"v_mov_b32 v21, s{sLOC}")
    A("v_mov_b32 v19, 0")
    A(f"ds_write_b64 v19, v[20:21] offset:{T_IDX}")


VX, VW, VO = 4, 8, 14


def l_setup(L):
    A(f"v_lshrrev_b32 v21, 3, v{LN}")
    if L == 0:
        A(f"v_lshrrev_b32 v20, 4, v{LN}")
        A(f"v_xor_b32 v20, v20, v{LN}")
        A("v_and_b32 v20, 7, v20")
        A("v_lshlrev_b32 v20, 4, v20")
        A(f"v_lshl_add_u32 v{VX}, v21, 11, v20")
        A(f"v_xor_b32 v{VX+1}, 64, v{VX}")
        A(f"v_add_u32 v{VX+1}, {16384-1024}, v{VX+1}")
        A(f"v_add_u32 v{VX+2}, {2*(16384-1024)}, v{VX}")
        A(f"v_add_u32 v{VX+3}, {2*(16384-1024)}, v{VX+1}")
        A(f"s_lshl_b32 s{sSX}, s{sT}, 16")
        A(f"s_lshl_b32 s{sSW}, s{sHG}, 7")
        A(f"s_lshl_b32 s{sMX}, s{sW4}, 12")
        A(f"s_mul_i32 s{sMW}, s{sW4}, 6144")
        A("v_and_b32 v20, 4, v21")
        A("v_add_u32 v20, v20, v21")
        A("v_mul_u32_u24 v20, 6144, v20")
    else:
        A(f"s_lshl_b32 s{sSX}, s{sRB}, 18")
        A(f"s_add_u32 s{sSX}, s{sSX}, s{sMX}")
        if not XFO:
            A(f"s_add_u32 s{sSX}, s{sSX}, {hex(XFB)}")
        A("v_mul_u32_u24 v20, 6144, v21")
    A("v_and_b32 v21, 6, v21")
    A(f"v_xor_b32 v21, v21, v{LN}")
    A("v_and_b32 v21, 7, v21")
    A("v_lshl_add_u32 v20, v21, 4, v20")
    A(f"s_mul_i32 s32, s{sW4}, 3")
    for m in range(3):
        A("s_bfe_u32 s33, s32, 0x10001")
        A(f"s_mul_i32 s33, s33, {32*6144}")
        A("s_and_b32 s34, s32, 1")
        A(f"s_mul_i32 s34, s34, {(4 if L == 0 else 8)*6144}")
        A("s_add_u32 s33, s33, s34")
        A("s_lshr_b32 s34, s32, 2")
        A("s_lshl_b32 s34, s34, 11")
        A("s_add_u32 s33, s33, s34")
        if m == 1:
            A("s_sub_u32 s33, s33, 2048")
        A(f"v_add_u32 v{VW+2*m}, s33, v20")
        A(f"v_add_u32 v{VW+2*m+1}, {16*6144-1024}, v{VW+2*m}")
        if m < 2:
            A("s_add_u32 s32, s32, 1")


def kreg(st):
    return [f"s_add_u32 s{sD0}, s{(sKa, sKb)[st & 1]}, {st}", f"s_and_b32 s{sD0}, s{sD0}, 15"]


def st_x(L, st, tag=None):
    gs = []
    for q in range(4):
        g = []
        if q == 0:
            g += kreg(st) + [f"s_lshl_b32 s{sD1}, s{sD0}, {7 if L == 0 else 14}", f"s_add_u32 s{sD1}, s{sD1}, s{sSX}",
                             f"s_add_u32 m0, s{sMX}, {L_X - XSL*(st % 3)}"]
        if L == 0:
            g += [f"buffer_load_dwordx4 v{VX+q}, s[{XS}:{XS+3}], s{sD1} offen offset:{q*1024} lds ;@{tag or 'st%d' % st}"]
        else:
            g += [f"buffer_load_dwordx4 v{L16}, {XFR}, s{sD1} offen offset:{q*1024} sc1 lds ;@{tag or 'st%d' % st}"]
        gs.append(g)
    return gs


def st_w(st, tag=None):
    gs = []
    for i in range(6):
        g = []
        if i == 0:
            g += kreg(st) + [f"s_mul_i32 s{sD0}, s{sD0}, {64*6144}", f"s_add_u32 s{sD0}, s{sD0}, s{sSW}"]
        if i & 3 == 0:
            g += [f"s_add_u32 m0, s{sMW}, {L_W + WSL*(st % 3) + 1024*i}"]
        g += [f"buffer_load_dwordx4 v{VW+i}, s[{WS_}:{WS_+3}], s{sD0} offen offset:{(i&3)*1024} lds ;@{tag or 'st%d' % st}"]
        gs.append(g)
    return gs


def q_loop(L, jobs, extra, force, lead, pre={}, post=[], first={}, dlead=2):
    for it in range(16):
        tags = ([f"st{it+1}"] if it < 15 else []) + force.get(it, [])
        if tags:
            W(",".join(tags), 0)
        else:
            A("s_waitcnt lgkmcnt(0)")
        pq = opt("pq", ())
        fine = pq and pq[0] <= it < pq[1]
        mq = markq if fine or not pq else lambda x: None
        mq(f"w{it}")
        A("s_barrier")
        mq(f"b{it}")
        for j in first.get(it, []):
            j()
        g = pre.get(it, []) + (st_x(L, it + 3) + st_w(it + 3) if it <= 12 else []) + extra.get(it, [])
        weave(g, lambda: [j() for j in [lambda: fine and mq(f"d{it}")] + jobs.get(it, [])], lead.get(it, dlead), it in post)
        if fine:
            mq(f"j{it}")


def isred(body, k=1):
    if k > 1:
        for x in pieces(body, k):
            isred(x)
        return
    l = newlab("sk")
    A("s_cmp_lt_i32 s89, 0")
    A(f"s_cbranch_scc1 {l}")
    cond("red", body)
    A.label(l)


def l_layer0():
    A.label("l_start")
    A.lines.append("@reset")
    l_setup(0)
    ptr_fin()
    g = st_x(0, 0) + st_w(0) + st_x(0, 1) + st_w(1) + st_x(0, 2) + st_w(2)
    N0, N1 = opt("n0", 8), opt("n1", 17)
    emit(g[:N0])
    masks()
    wo_voff(VO)
    ffn_addr()
    A.lines += ffn_srd(0, TS2) + ffn_srd(2, TS)
    A(f"s_mov_b32 s{sIDX}, -1")
    A(f"s_mov_b32 s{sPATCH}, 0")
    A(f"s_sub_u32 s30, s{sHG}, s{sRB}")
    A(f"s_add_u32 s30, s30, {(COLF - ROWF) // 128 - 1}")
    A(f"v_and_b32 v15, 16, v{LN}")
    A("v_mul_u32_u24 v15, s30, v15")
    A(f"v_and_b32 v20, 31, v{LN}")
    A("v_add_lshl_u32 v15, v15, v20, 3")
    A(f"s_lshl_b32 s30, s{sRB}, 7")
    A(f"s_add_u32 s30, s30, {hex(ROWF)}")
    A("v_add_u32 v15, s30, v15")
    emit(g[N0:N1])
    W("st0", 0)
    A(f"s_add_u32 s{sNON}, s{sNON}, {hex(EPINC)}")
    A("s_barrier")
    emit(g[N1:])
    S, E, Z = 64, 52, 32

    def clears():
        for i in range(4):
            A(f"v_mov_b32 v{16+i}, -1")
        A(f"s_lshr_b32 s30, s{sW4}, 1")
        A(f"s_mul_i32 s30, s30, {LSTR}")
        A(f"s_and_b32 s31, s{sW4}, 1")
        A("s_lshl_b32 s32, s31, 20")
        A(f"s_lshl_b32 s33, s{sCU}, 10")
        A("s_add_u32 s32, s32, s33")
        A("s_add_u32 s32, s32, s30")
        A(f"s_add_u32 s32, s32, {hex(AR)}")
        for i in range(3):
            A(f"buffer_store_dwordx4 v[16:19], v{L16}, {WSR}, s32 offen sc1 ;@pub")
            A(f"s_add_u32 s32, s32, {256*KB}")
        A(f"s_lshl_b32 s33, s{sCU}, 7")
        A("s_add_u32 s33, s33, s30")
        A(f"s_add_u32 s33, s33, {hex(SM)}")
        A("s_cmp_eq_u32 s31, 0")
        A("s_cselect_b32 s32, s32, s33")
        A("s_cselect_b64 exec, -1, 0xff")
        A(f"buffer_store_dwordx4 v[16:19], v{L16}, {WSR}, s32 offen sc1 ;@pub")
        A("s_mov_b64 exec, -1")

    def part(st):
        A(f"v_and_b32 v28, 31, v{LN}")
        A("v_bfe_u32 v29, v28, 1, 3")
        A(f"v_lshrrev_b32 v30, 5, v{LN}")
        A("v_xor_b32 v29, v29, v30")
        A("v_lshlrev_b32 v29, 4, v29")
        A("v_lshl_add_u32 v28, v28, 7, v29")
        A(f"s_add_u32 s30, s{sMX}, {L_X - XSL*(st % 3)}")
        A("v_add_u32 v28, s30, v28")
        for ks in range(1, 4):
            A(f"v_xor_b32 v{28+ks}, {32*ks}, v28")
        for ks in range(4):
            A(f"ds_read_b128 {v(32+4*ks,4)}, v{28+ks}")
        wch_reads(st)

    def part2():
        cs = cut(lambda: tagged("pub", lambda: wch_reduce(CUB0, None)))
        for i in range(4):
            A(f"v_mov_b32 v{48+i}, 0")
        cs[0]()
        for p in range(16):
            A(f"v_dot2c_f32_bf16 v{48+2*(p&1)}, {ONES}, v{32+p}")
            A(f"v_dot2c_f32_bf16 v{49+2*(p&1)}, v{32+p}, v{32+p}")
        A.lines.append("@cut")
        A(f"s_lshl_b32 s30, s{sT}, 12")
        A(f"s_lshl_b32 s31, s{sHG}, 8")
        A("s_add_u32 s30, s30, s31")
        A(f"s_add_u32 s30, s30, {hex(STAT0)}")
        A(f"v_lshlrev_b32 v28, 3, v{LN}")
        A("v_pk_add_f32 v[48:49], v[48:49], v[50:51]")
        A("v_mov_b32 v50, v48")
        A("v_mov_b32 v51, v49")
        A("v_permlane32_swap_b32 v48, v50")
        A("v_permlane32_swap_b32 v49, v51")
        A("v_pk_add_f32 v[48:49], v[48:49], v[50:51]")
        A("s_mov_b32 exec_hi, 0")
        A(f"buffer_store_dwordx2 v[48:49], v28, {WSR}, s30 offen sc1 ;@pub")
        A("s_mov_b64 exec, -1")
        cs[1]()

    def dbgload():
        A(f"buffer_load_dwordx2 v[16:17], v15, {WSR}, 0 offen sc1")

    def arrived():
        poll(dbgload, lambda: A(f"v_cmp_ne_u32 vcc, s{sNON}, v16"), "arr")
        mark("arr")
        A("s_getreg_b32 s30, hwreg(HW_REG_XCC_ID, 0, 4)")
        A("v_cmp_ne_u32 vcc, s30, v17")
        A("s_and_b32 s30, vcc_lo, 0xffff")
        A(f"s_cselect_b32 s{sLOC}, 0, 1")
        idx_write()

    def s0loads():
        A(f"s_lshl_b32 s30, s{sT}, 12")
        A(f"s_add_u32 s30, s30, {hex(STAT0)}")
        for i in range(4):
            A(f"buffer_load_dwordx4 {v(S+4*i,4)}, v{L16}, {WSR}, s30 offen offset:{i*1024} sc1 ;@s0")
        tagged("s0", lambda: cub_loads(Z, CUB0))

    def tables():
        W("s0")
        for i in range(1, 4):
            for c in range(0, 4, 2):
                A(f"v_pk_add_f32 {v(S+c,2)}, {v(S+c,2)}, {v(S+4*i+c,2)}")
        A(f"v_permlane32_swap_b32 v{S}, v{S+2}")
        A(f"v_permlane32_swap_b32 v{S+1}, v{S+3}")
        A(f"v_pk_add_f32 {v(S,2)}, {v(S,2)}, {v(S+2,2)}")
        stat_core(S, E, 48, 2, 1, 16)
        cub_sum(Z)
        A(f"v_mov_b32 v{CSUM}, v{Z}")
        tab_write(f"v{E+3}", f"v{E+2}", "1.0", "0", 48, True)
    SP, CL, AR_, AP = opt("sp", 1), opt("cl", 0), AR_IT, opt("ap", 10)
    jobs, extra = {}, {}
    S0, TB0 = opt("s0", 13), opt("tb0", 14)
    p2 = cut(plain(part2))
    for it, j in ((SP - 1, lambda: part(SP)), (CL, clears), (SP, p2[0]), (opt("sp2", SP + 1), p2[1]), (opt("cp0", 9), lambda: code_pf(1, 154)),
                  (AP, lambda: tagged("arr", dbgload)), (AP + 1, arrived), (S0, s0loads), (TB0, plain(tables))):
        jobs.setdefault(it, []).append(j)
    ff = ffn_groups(0, TS2) + ffn_groups(1, XS) + ffn_groups(2, TS)
    assert min(FFS[8:16]) >= 14 and all(x <= 16 for x in WO0)
    extra[13] = [ffn_srd(1, XS)]
    for k, gr in [(FFS[j], ff[j]) for j in list(range(16, 24)) + list(range(16))] + list(zip(WO0, wo_groups(range(1, 10), VO, "wo"))):
        (extra if k < 16 else LATE).setdefault(k, []).append(gr)
    q_loop(0, jobs, extra, {AR_: ["pub"]}, opt("lead0", {CL: 2, AP: 0, AP + 1: 10, S0: 1 if S0 == 13 else 10, TB0: 0}), post=opt("post0", [S0, TB0]))


ZZ, ZX, ZT = 56, 72, 80
PMID = opt("pmid", 1)


ZSEP = opt("zsep", 1)


def zxloads():
    x2base(32)
    for i in range(2):
        A(f"buffer_load_dwordx4 {v(ZX+4*i,4)}, v{L16}, {WSR}, s32 offen offset:{1024*i} sc1")


def zloads():
    cub_loads(ZZ, CUB + LSTR)
    if not ZSEP:
        zxloads()


def halo_flag():
    A(f"buffer_load_dword v49, v48, {WSR}, s30 offen sc1")


def halo_poll():
    poll(halo_flag, lambda: A(f"v_cmp_ne_u32 vcc, s{sNON}, v49"))


def halo_dma():
    mark("kv_ok")
    A("s_mov_b32 s36, -1")
    A(f"s_lshl_b32 s30, s{sW4}, 13")
    for hd in range(2):
        for tt in range(2):
            A(f"s_add_u32 m0, s30, {L_KV + hd*KVH + tt*4096}")
            A(f"s_add_u32 s31, s35, {hd*262144 + tt*4096}")
            for p in range(4):
                A(f"buffer_load_dwordx4 v{L16}, {WSR}, s31 offen offset:{p*1024} {opt('hb', 'sc1').replace('no', '')} lds")


def l_patch():
    A.label("l_patch")
    a, b, t = ZT, ZT + 1, ZT + 2
    zchk = lambda: sent_check(range(ZZ, ZZ + (16 if ZSEP else 24)), t)

    def rowstat(mid):
        A(f"v_mov_b32 v{a}, 0")
        A(f"v_mov_b32 v{b}, 0")
        for p in range(8):
            A(f"v_dot2c_f32_bf16 v{a}, {ONES}, v{ZX+p}")
            A(f"v_dot2c_f32_bf16 v{b}, v{ZX+p}, v{ZX+p}")
        mid()
        x, y = cap(lambda: wave_red(a, t)), cap(lambda: wave_red(b, t + 1))
        for i, j in zip(x, y):
            A.lines += [i, j]
        A(f"v_mul_f32 v{a}, {fl(1/1024)}, v{a}")
        A(f"v_mul_f32 v{b}, {fl(1/1024)}, v{b}")
        A(f"v_fma_f32 v{b}, -v{a}, v{a}, v{b}")
        A(f"v_max_f32 v{b}, 0, v{b}")
        A(f"v_add_f32 v{b}, {fl(EPS)}, v{b}")
        A(f"v_rsq_f32 v{b}, v{b}")
    if ZSEP:
        zxloads()
        zloads()
        if EH != 3:
            halo_flag()
        markx("zi")
        poll(zxloads, lambda: sent_check(range(ZX, ZX + 8), t), 4 + (EH != 3))
        markx("zx")
        rowstat(lambda: None)
        markx("zs")

    def chk():
        A(f"v_cmp_ne_u32 vcc, s{sNON}, v49")
        A("s_ashr_i32 s34, s36, 31")
        A("s_or_b32 s34, s34, vcc_lo")
        markx("zr")
        zchk()
        A("s_cbranch_vccz l_zok")
        A("s_cmp_lg_u32 s34, 0")
        A("s_cselect_b64 vcc, -1, 0")
    if EH == 3:
        poll(zloads, zchk, 0)
    else:
        poll(lambda: (zloads(), halo_flag()), chk, 0 if ZSEP else None)
        A("s_cmp_lg_u32 s34, 0")
        A("s_cbranch_scc1 l_zok")
        zloads()
        halo_dma()
        A("s_mov_b32 s34, -1")
        poll(zloads, zchk, 16)
    A.label("l_zok")
    markx("zo")
    if WDEF == 1:
        wo1()
    if PMID and EH != 3:
        skip_if("s_cmp_lg_u32 s34, 0", halo_dma)
    cub_sum(ZZ) if ZSEP else rowstat(lambda: cub_sum(ZZ))
    A(f"v_fma_f32 v{ZZ}, -v{a}, v{CSUM}, v{ZZ}")
    A(f"v_mul_f32 v{b}, s37, v{b}")
    A(f"v_mul_f32 v{ZZ}, v{ZZ}, v{b}")
    A(f"v_cvt_pk_bf16_f32 v1, v{ZZ}, v{ZZ}")
    mark("f_patch")
    if PMID:
        A(f"s_cmp_lg_u32 s{sPATCH}, 2")
        A("s_cbranch_scc1 l_pmid")
        patch_write()
    else:
        skip_if(f"s_cmp_lg_u32 s{sPATCH}, 2", patch_write)
        if EH != 3:
            skip_if("s_cmp_lg_u32 s34, 0", halo_dma)
    if WDEF == 2:
        wo1()
    A("s_branch l_patched")


WDEF = opt("wdef", 0)


def wo1():
    emit([g for j, g in zip(WO1, wo_groups([10, 11], 50 if WDEF else VO, "wo")) if j == 16])


def patch_write():
    A("s_cmp_lg_u32 s38, 0")
    A("s_barrier")
    A("s_cselect_b64 exec, -1, 0")
    A("ds_write_b16 v0, v1")
    A("s_mov_b64 exec, -1")
    A("s_waitcnt lgkmcnt(0)")
    A("s_barrier")


def l_halo_addr():
    A(f"s_lshr_b32 s36, s{sW4}, 1")
    A(f"s_add_u32 s36, s36, s{sRB}")
    A("s_sub_u32 s36, s36, 2")

    A(f"s_and_b32 s34, s{sW4}, 1")
    A(f"s_lshl_b32 s35, s{sHG}, 7")
    A("s_lshl_b32 s30, s36, 2")
    A("s_add_u32 s35, s35, s30")
    A("s_lshl_b32 s30, s34, 1")
    A("s_add_u32 s35, s35, s30")
    A("s_lshl_b32 s35, s35, 12")
    A(f"s_add_u32 s35, s35, s{sL}")
    A(f"s_lshl_b32 s30, s{sHG}, 8")
    A("s_lshl_b32 s31, s36, 4")
    A("s_add_u32 s30, s30, s31")
    A("s_lshl_b32 s31, s34, 3")
    A("s_add_u32 s30, s30, s31")
    if KVS:
        A(f"s_lshl_b32 s30, s30, {KVS}")
    A(f"s_add_u32 s30, s30, s{sL}")
    A(f"s_add_u32 s30, s30, {hex(KVF)}")
    A(f"v_and_b32 v48, 4, v{LN}")
    if KVS:
        A(f"v_lshlrev_b32 v48, {KVS}, v48")


def l_att():
    A.label("l_att")
    A.lines.append("@reset")
    if WDEF:
        A(f"v_mov_b32 v50, v{VO}")
    skip_if(f"s_cmp_lg_u32 s{sPATCH}, 0", wo1) if WDEF else wo1()
    late(16)
    att_setup(1)
    if EH != 3:
        l_halo_addr()
    mark("x0_wait")
    skip_if(f"s_cmp_eq_u32 s{sPATCH}, 2", lambda: A("s_barrier"))
    A(f"s_cmp_gt_u32 s{sPATCH}, {PMID}")
    A("s_cbranch_scc1 l_patch")
    if EH == 2:
        A("s_branch l_nohalo")
    A.label("l_patched")
    if EH in (1, 2):
        skip_if("s_cmp_lt_i32 s36, 0", lambda: (halo_poll(), halo_dma()))
    A.label("l_nohalo")
    att_qread()
    mark("a_go")
    n26 = len(LATE.get(26, []) + LATE.get(27, [])) if EH & 1 else 0

    def wt(n):
        A(f"s_waitcnt vmcnt({n+n26})")
        if n26:
            skip_if(f"s_cmp_eq_u32 s{sL}, 0", lambda: A(f"s_waitcnt vmcnt({n})"))

    def mid():
        mark("a_end")
        if PMID:
            A(f"s_cmp_eq_u32 s{sPATCH}, 1")
            A("s_cbranch_scc1 l_patch")
            A.label("l_pmid")
        if EH & 1 == 0:
            skip_if("s_cmp_lt_i32 s36, 0", lambda: (halo_poll(), halo_dma()))
        late(27)
        if EH != 3:
            wt(8)
            mark("x1_wait")
        skip_if(f"s_cmp_eq_u32 s{sPATCH}, 1", lambda: A("s_barrier"))
        wt(0)
        skip_if(f"s_cmp_lg_u32 s{sPATCH}, 1", patch_write)
        late(17)
        A("s_barrier")
        mark("att_go")

    def hook(k):
        if k == XLA and XE2 < 8:
            A("s_barrier")
        late(18 + k)
    attention(1, lambda: late(26), mid, hook)
    if XLA == 8 and XE2 < 8:
        A("s_barrier")
    flag_store("s31", True)
    mark("o_fl")
    late(40)
    wo_voff(VO)
    ffn_xaddr()
    A(f"s_mov_b32 s{sCI}, s{sL}")

    def nxt():
        if 40 in LATE and (not DLATE or 40 in FFS[:16]):
            A("s_waitcnt vmcnt(0)")
        code_pf(2, 19)
        if PF:
            pf_setup(18, 35)
            for k in range(PFD):
                A.lines += pf_load(18, 19, k - 2, 35)
        ffn_perm((0, 1) if DLATE else (0, 1, 2))
        l_setup(1)
        A(f"s_sub_u32 s30, s{sKb}, 1")
        A(f"s_sub_u32 s{sKb}, s{sKa}, 3")
        A(f"s_mov_b32 s{sKa}, s30")
        xf_off(116)
        A(f"v_and_b32 v16, 15, v{LN}")
        A("v_lshlrev_b32 v16, 9, v16")
        assert not XFO
    skip_if(f"s_cmp_lg_u32 s{sL}, 0", nxt)
    A("s_barrier")
    emit(wo_groups(range(28, 32), VO, "wo"))
    if SPEC:
        for i in range(4):
            A(f"v_mov_b32 v{24+i}, -1")
        A(f"v_lshl_add_u32 v28, s{sW4}, 10, v{L16}")
        A("ds_write_b128 v28, v[24:27]")
    A("s_waitcnt vmcnt(0) lgkmcnt(0)")

    def wbk():
        A(f"s_lshl_b32 s30, s{sHG}, 2")
        A(f"s_add_u32 s30, s30, s{sW4}")
        A(f"s_add_u32 s30, s30, s{sL}")
        skip_if(f"s_cmp_lg_u32 s30, {LSTR+4*WBH+1}", lambda: A("buffer_wbl2 sc1"))
    if WBK & 8:
        wbk()
    A("s_barrier")
    if WBK & 1:
        wbk()
    A(f"s_cmp_lg_u32 s{sL}, 0")
    A("s_cbranch_scc1 l_tail")


def readsel(T, lane):
    for r_, i in ((sR, 0), (sIDX, 1), (sMEAN, 2), (sRSTD, 3)):
        A(f"v_readlane_b32 s{r_}, v{T+i}, {lane}")
    A(f"s_and_b32 s{sIDX}, s{sIDX}, 2047")


def l_layer1():
    S, E, TB, PR = 64, 52, 16, 32
    GATE = opt("gate", 1)
    A(f"s_mov_b32 s{sL}, {LSTR}")
    A("s_mov_b32 s36, 0")

    def gate(st):
        A.lines += kreg(st)

        def chk():
            A("v_cmp_ne_u32 vcc, -1, v17")
            A("s_mov_b32 s36, vcc_lo")
            if GATE:
                A(f"s_bitcmp0_b32 s36, s{sD0}")
            else:
                A("s_cmp_lg_u32 s36, -1")
            A("s_cselect_b64 vcc, -1, 0")

        def spin():
            A(f"s_lshl_b32 s30, s{sT}, 13")
            A(f"s_add_u32 s30, s30, {hex(STAT)}")
            poll(lambda: A(f"buffer_load_dword v17, v16, {WSR}, s30 offen sc1"), chk)
        skip_if(f"s_bitcmp1_b32 s36, s{sD0}", spin)
    SC = dict(stL=-1, st1=-1, st2=-1, st3=1, tabL=3, arg=4, gu1=5, gu2=6, dn1=7, dn2=7, redL=10, red1=11, red2=11, x2L=14, wch=13, z=15, pad=14, prm=2)
    SC.update(opt("sc", {}))
    EARLY = SC["st1"] < 0
    if opt("dnm", 0):
        mark("x4")
    emit(st_w(0) + st_w(1) + LATE.get(41, []))
    if opt("dnm", 0):
        mark("dn_i")
        W("st1")
        mark("w_l")
        A("s_waitcnt vmcnt(0)")
        mark("dn_l")
    prof_next()
    if EARLY:
        A.lines += kreg(1)
        A(f"s_lshl_b32 s37, 1, s{sD0}")
        A(f"s_lshl_b32 s38, 1, s{sCG}")
        A("s_or_b32 s38, s38, s37")
        A(f"s_lshl_b32 s30, s{sT}, 13")
        A(f"s_add_u32 s30, s30, {hex(STAT)}")

        def chk():
            A("v_cmp_ne_u32 vcc, -1, v17")
            A("s_and_b32 s36, vcc_lo, s38")
            A("s_cselect_b64 vcc, 0, -1")
        poll(lambda: A(f"buffer_load_dword v17, v16, {WSR}, s30 offen sc1"), chk)
        mark("x_ok")
        A("s_and_b32 s36, s36, s37")
        skip_if("s_cmp_eq_u32 s36, 0", lambda: emit(st_x(1, 1)))
    elif GATE:
        gate(1)
        mark("x_ok")
        emit(st_x(1, 1))
    if not EARLY:
        W("st0")
    A("s_barrier")
    if EARLY:
        tagged("stat", stat_loads(S, STAT))
    emit(st_w(2))
    for ks in range(4):
        A(f"ds_read_b128 {v(PR+4*ks,4)}, v117 offset:{ks*512}")
    if not GATE:
        gate(1)
        mark("x_ok")
        emit(st_x(1, 1))
    stpoll = lambda: poll(stat_loads(S, STAT), lambda: sent_check(range(S, S + 32), 48, SST), "stat")

    def st1():
        stpoll()
        stat_core(S, E, 48)

    def st2():
        A("s_waitcnt lgkmcnt(0)")
        cand_publish(S, E, 48, PR, 0)
        mark("cand")
    if EARLY:
        stpoll()
        mark("st_ok")
        skip_if("s_cmp_lg_u32 s36, 0", lambda: emit(st_x(1, 1)))
        weave(st_x(1, 2), lambda: (plain(lambda: stat_core(S, E, 48))(), SC["st2"] < 0 and st2()), opt("x2l", 1))
    else:
        if SC["stL"] < 0:
            tagged("stat", stat_loads(S, STAT))
        gate(2)
        emit(st_x(1, 2))

    emit(LATE.get(42, []))

    def st3():
        A(f"v_add_f32 v56, 1.0, v{E+3}")
        A(f"v_mul_f32 v57, v{E+2}, v{E+3}")
        A("v_mul_f32 v58, v56, v56")
        A("v_sub_f32 v57, 0, v57")
        A(f"v_mul_f32 v58, v58, v{S+1}")
        A(f"v_add_f32 v58, {fl(EPS)}, v58")
        A("v_rsq_f32 v58, v58")
        A("v_mul_f32 v58, v58, v56")
        tab_write("v58", f"v{E+2}", "v56", "v57", 48)

    def arg():
        argmax_lane(TB, "tab")
        readsel(TB, "s32")
        tagged("x", xloads)
        mark("f_arg")
        idx_write()
        patch_flag()

    def gateup():
        poll(xloads, lambda: sent_check(range(XG, XG + 4), 30), "x")
        isred(red_pre)
        ffn_gateup()

    def down():
        ffn_down()
        mark("f_down")

    def red():
        poll(red_loads, red_chk, "red")
        red_sum()

    def redst():
        A(f"s_mov_b32 s32, {hex(X2R)}")
        A("s_lshl_b32 s33, s89, 4")
        assert RQ == 2
        A(f"v_lshrrev_b32 v89, 1, v{LN}")
        A(f"v_and_or_b32 v88, v{L16}, 16, s33")
        A("v_lshl_or_b32 v88, v89, 11, v88")
        A(f"s_mov_b64 exec, {(1 << RQ*XREP) - 1}")
        A(f"buffer_store_dwordx4 {v(RS,4)}, v88, {WSR}, s32 offen sc1")
        A("s_mov_b64 exec, -1")
        isred(lambda: mark("f_red")) if PROF else None
    SZ = SC["wch"] + 1

    def x2loads():
        A(f"s_add_u32 s35, s{(sKa, sKb)[SZ & 1]}, {SZ}")
        A("s_and_b32 s35, s35, 15")
        A("s_lshl_b32 s35, s35, 7")
        x2base(35, 35)
        A(f"v_and_b32 v19, 32, v{LN}")
        A(f"v_bfe_u32 v18, v{LN}, 4, 1")
        A("v_lshl_add_u32 v19, v18, 3, v19")
        for kk in range(4):
            A(f"buffer_load_dwordx2 {v(XCH+2*kk,2)}, v19, {WSR}, s35 offen offset:{64*(kk>>1)+16*(kk&1)} sc1")

    def z():
        poll(x2loads, lambda: sent_check(range(XCH, XCH + 8), 30), "x2")
        wch_reduce(CUB + LSTR, XCH)
        mark("f_z")

    def paddr():
        A(f"v_and_b32 v20, 7, v{LN}")
        A(f"v_lshrrev_b32 v21, 4, v{LN}")
        A("v_lshl_add_u32 v21, v20, 2, v21")
        A(f"s_and_b32 s34, s{sIDX}, 31")
        A("s_and_b32 s32, s34, 7")
        A("s_and_b32 s33, s34, 8")
        A("s_lshl_b32 s33, s33, 1")
        A("s_add_u32 s32, s32, s33")
        A("s_lshr_b32 s33, s34, 4")
        A("s_lshl_b32 s33, s33, 3")
        A("s_add_u32 s32, s32, s33")
        A(f"s_cmp_eq_u32 s{sW4}, 1")
        A("s_cselect_b32 s34, s32, s34")
        A("v_mov_b32 v20, s34")
        A(f"s_cmp_ge_u32 s{sW4}, 2")
        A("s_cselect_b64 vcc, -1, 0")
        A("s_cselect_b32 s32, 2048, 0")
        A("v_cndmask_b32 v30, v20, v21, vcc")
        A("v_cndmask_b32 v31, v21, v20, vcc")
        A("v_lshlrev_b32 v0, 4, v30")
        A("v_bfe_u32 v20, v31, 2, 2")
        A("v_lshl_add_u32 v0, v20, 9, v0")
        A("v_lshrrev_b32 v20, 4, v31")
        A("v_lshl_add_u32 v0, v20, 3, v0")
        A("v_and_b32 v20, 3, v31")
        A("v_lshl_add_u32 v0, v20, 1, v0")
        A("s_lshl_b32 s33, s39, 12")
        A("s_add_u32 s33, s33, s32")
        A(f"s_add_u32 s33, s33, {L_KV}")
        A("s_lshl_b32 s34, s39, 11")
        A(f"s_add_u32 s34, s34, {L_Q - 8*2048}")
        A("s_cmp_ge_u32 s39, 8")
        A("s_cselect_b32 s38, 1, 0")
        A("s_movk_i32 s32, 8192")
        A(f"s_cmp_eq_u32 s{sW4}, 0")
        A("s_cselect_b32 s33, s34, s33")
        A(f"s_cselect_b32 s32, s32, {KVH}")
        A("s_cselect_b32 s38, s38, 1")
        A(f"s_cselect_b32 s37, {fl(QSCALE)}, 1.0")
        A(f"v_bfe_u32 v20, v{LN}, 3, 1")
        A("v_mul_u32_u24 v20, s32, v20")
        A("v_add3_u32 v0, v0, v20, s33")

    pat = lambda f: (lambda: skip_if(f"s_cmp_eq_u32 s{sPATCH}, 0", f, "pat"))
    gu, dn, rd = cut(gateup), cut(plain(down)), pieces(plain(red), [opt("rdf", 0.5)])
    jobs, first = {}, {}
    for k, j in (("stL", lambda: tagged("stat", stat_loads(S, STAT))), ("tabL", lambda: tagged("tab", table_loads(TB))),
                 ("redL", lambda: isred(lambda: tagged("red", red_loads))), ("x2L", lambda: tagged("x2", x2loads))):
        first.setdefault(SC[k], []).append(j)
    for it in range(SC["st1"] + 1):
        first.setdefault(it, []).append(lambda it=it: gate(it + 3))
    for k, j in (("st1", plain(st1)), ("st2", st2), ("st3", st3), ("arg", arg), ("gu1", gu[0]), ("gu2", gu[1]), ("dn1", dn[0]), ("dn2", dn[1]),
                 ("red1", lambda: isred(rd[0], 4)), ("red2", lambda: (isred(rd[1], 4), redst())), ("wch", lambda: wch_reads(SZ)), ("pad", pat(paddr)), ("z", z)):
        jobs.setdefault(SC[k], []).append(j)
    jobs.setdefault(13, []).append(lambda: code_pf(3, 154))
    if DLATE:
        jobs.setdefault(SC["prm"], []).append(lambda: (W("ffw"), ffn_perm((2,))))
        assert SC["prm"] < SC["dn1"] and SC["prm"] > max(FFS) - 43
    assert SC["st3"] <= 14 and SC["arg"] <= 14 and SC["gu2"] < SC["dn1"] and SC["wch"] < SC["z"] and SC["st1"] < SC["tabL"]
    assert SC["st3"] < SC["redL"] and SC["dn2"] < SC["redL"] and SC["dn2"] <= SC["pad"] and SC["arg"] < SC["x2L"] and SC["dn2"] <= 13
    q_loop(1, jobs, {k - 43: g for k, g in LATE.items() if k >= 43}, {}, opt("lead", {}), first=first, dlead=opt("dlead", 2))
    A("s_branch l_att")
    l_patch()
    A.label("l_tail")
    A.lines.append("@reset")
    srd_load(TS, 64, 4 * MB)
    A("v_mov_b32 v20, 0")

    def epoch():
        A(f"s_mov_b32 s34, {hex(EPOCH)}")
        flag_store("s34")
    A(f"s_or_b32 s34, s{sCU}, s{sW4}")
    skip_if("s_cmp_lg_u32 s34, 0", epoch)
    if SPEC:
        return l_tail_spec(TB)
    A("s_barrier")
    A(f"ds_read_b128 {v(TB,4)}, v20 offset:{T_IDX}")
    A("s_waitcnt lgkmcnt(0)")
    readsel(TB, "0")
    mark("t_arg")
    poll(xloads, lambda: sent_check(range(XG, XG + 4), 30))
    mark("t_x")
    A(f"s_cmp_ge_u32 s{sF}, 224")
    A("s_cbranch_scc1 l_tred")
    ffn_gateup()
    A("s_waitcnt lgkmcnt(0)")
    A("s_barrier")
    ffn_down()
    mark("f_down")
    A("s_branch k_end")
    A.label("l_tred")
    A("s_cmp_lt_i32 s89, 0")
    A("s_cbranch_scc1 k_end")
    red_pre()
    A(f"s_lshl_b32 s34, s{sIDX}, 11")
    A("s_lshl_b32 s33, s89, 4")
    A("s_add_u32 s34, s34, s33")
    poll(red_loads, red_chk)
    mark("t_py")
    red_sum()
    A(f"s_mov_b64 exec, {(1 << RQ) - 1}")
    A(f"buffer_store_dwordx4 {v(RS,4)}, v{L16}, s[{TS}:{TS+3}], s34 offen sc1")
    A("s_mov_b64 exec, -1")


def l_tail_spec(TB):
    FN = 8
    fread = lambda: A(f"ds_read_b128 {v(FN,4)}, v20 offset:{T_FN}")

    def fchk():
        A(f"v_readfirstlane_b32 s35, v{FN+1}")
        A("s_cmp_lt_i32 s35, 0")
        A(f"s_cselect_b32 s34, s{sIDX}, s35")
        A(f"s_cmp_lg_u32 s34, s{sIDX}")
        A("s_cbranch_scc1 l_second")
        A("s_cmp_ge_i32 s35, 0")
    A(f"s_cmp_ge_i32 s89, 0")
    A("s_cselect_b32 s34, 0, s29")
    A(f"s_cmp_ge_u32 s34, 224")
    A("s_cbranch_scc1 k_end")
    A(f"s_lshr_b32 s34, s{sIDX}, 7")
    A(f"s_sub_u32 s34, s{sRB}, s34")
    A(f"s_lshl_b32 s35, s{sW4}, 4")
    A("s_or_b32 s34, s34, s35")
    skip_if(f"s_cmp_ge_u32 s34, {SPEC}", lambda: arg_first(0, 20))
    A(f"s_setprio {opt('lpr', 1)}")
    A("s_mov_b32 s38, 0")
    A(f"s_mov_b32 s39, {LSTR}")
    lspin(lambda: (A(f"ds_read_b128 {v(TB,4)}, v20 offset:{T_C1}"), fread()),
          lambda: (A(f"v_readfirstlane_b32 s35, v{TB+1}"), A("s_cmp_ge_i32 s35, 0")), opt("lnap", 1))
    readsel(TB, "0")
    mark("t_arg")
    fchk()
    A.label("l_round")
    poll(xloads, lambda: sent_check(range(XG, XG + 4), 30))
    mark("t_x")
    fread()
    A(f"s_cmp_ge_u32 s{sF}, 224")
    A("s_cbranch_scc1 l_tred")
    g = cut(lambda: ffn_gateup("s38"))
    g[0]()
    A("s_waitcnt lgkmcnt(0)")
    fchk()
    g[1]()

    def chk():
        fchk()
        sent_check(range(32, 40), 31)
        A("s_cmp_eq_u64 vcc, 0")
    ffn_down("s38", "s39", lambda reads: lspin(lambda: (reads(), fread()), chk))
    mark("f_down")
    lspin(fread, fchk, opt("lnap", 1))
    A("s_branch k_end")
    A.label("l_second")
    readsel(FN, "0")
    A("s_movk_i32 s38, 512")
    A(f"s_mov_b32 s39, {LSTR + 448*KB}")
    A("s_branch l_round")
    A.label("l_tred")
    red_pre()
    A(f"s_lshl_b32 s36, s{sIDX}, 11")
    A("s_lshl_b32 s33, s89, 4")
    A("s_add_u32 s36, s36, s33")
    poll(lambda: (red_loads("s39"), fread()), lambda: (A("s_waitcnt lgkmcnt(0)"), fchk(), red_chk()))
    mark("t_py")
    red_sum()
    lspin(fread, fchk)
    A(f"s_mov_b64 exec, {(1 << RQ) - 1}")
    A(f"buffer_store_dwordx4 {v(RS,4)}, v{L16}, s[{TS}:{TS+3}], s36 offen sc1")
    A("s_mov_b64 exec, -1")


def main():
    out = [x for x in ARGS if x.endswith(".s")]
    out = out[0] if out else os.path.join(os.path.dirname(os.path.abspath(__file__)), NAME + ".s")
    K = NAME + "_kernel"
    A(f".globl {K}")
    A(".p2align 8")
    A(f".type {K},@function")
    A.label(K)
    cap(ffn_perm)
    prologue()
    if opt("ub", ""):
        return ubench(out, K)
    e_init()
    e_qphase()
    e_att()
    e_wo()
    l_layer0()
    l_att()
    l_layer1()
    finish(out, K, lambda: (att_exact(0), att_exact(1)))


def ubench(out, K):
    def ubmid():
        mark("a_end")
        if opt("ubb", 1):
            A("s_barrier")
        mark("b_go")
    for team in range(2):
        if team:
            A.label("l_start")
        ptr_fin()
        masks()
        A(f"s_mov_b32 s{sLOC}, 1")
        A(f"s_mov_b32 s{sPATCH}, 0")
        for i in range(4):
            A(f"v_mov_b32 v{i}, 0x3c003c00")
        A(f"s_mul_i32 s30, s{sW}, 20480")
        A(f"v_add_u32 v4, s30, v{L16}")
        for i in range(20):
            A(f"ds_write_b128 v4, v[0:3] offset:{i*1024}")
        A(f"s_setprio {opt('ubp', [1, 0])[team]}")
        prof_next()
        for rep in range(2):
            att_setup(team)
            A("s_waitcnt vmcnt(0) lgkmcnt(0)")
            A("s_barrier")
            if opt("ubo", 3) >> team & 1:
                if team:
                    for i in range(opt("ubd", 0)):
                        A("s_sleep 4")
                mark("att_go")
                att_qread()
                attention(team, lambda: None, ubmid, lambda k: None)
        A("s_branch k_end")
    A.label("att_exact0")
    A.label("att_exact1")
    finish(out, K)


def finish(out, K, cold=lambda: None):
    A.label("k_end")
    if PAD:
        skip_if(f"s_cmp_lt_u32 s{sW}, 4", lambda: padat("end"))
    if PROF:
        A("s_mov_b64 exec, -1")
        A("s_waitcnt vmcnt(0)")
        mark("end")
        A(f"s_lshl_b32 s30, s{sCU}, 3")
        A(f"s_add_u32 s30, s30, s{sW}")
        A("s_lshl_b32 s30, s30, 9")
        A(f"s_add_u32 s30, s30, {hex(PROFOFF)}")
        A(f"v_lshlrev_b32 v0, 2, v{LN}")
        A(f"buffer_store_dword v{PRF2}, v0, {WSR}, s30 offen")
        A(f"buffer_store_dword v{PRF}, v0, {WSR}, s30 offen offset:256")
    A.label("k_exit")
    A("s_endpgm")
    cold()
    assert len(MARKS) <= (64 if "-profq" in ARGS else 32), len(MARKS)
    A.lines = resolve(A.lines)
    A.hazard_pass(verbose="-v" in ARGS)
    if opt("aln", 1):
        A.lines = align_pass(A.lines, opt("alw", 100), anti=opt("aln", 1) < 0)
    txt = "; @launch grid=(256,1,1) block=(512,1,1) lds=163840\n"
    txt += "; marks: " + " ".join(MARKS) + "\n" if PROF else ""
    txt += '.amdgcn_target "amdgcn-amd-amdhsa--gfx950"\n.text\n' + A.text() + '.section .rodata,"a"\n.p2align 6\n'
    txt += f""".amdhsa_kernel {K}
  .amdhsa_next_free_vgpr 256
  .amdhsa_next_free_sgpr 102
  .amdhsa_accum_offset 256
  .amdhsa_group_segment_fixed_size 0
  .amdhsa_kernarg_size 88
  .amdhsa_user_sgpr_count 2
  .amdhsa_user_sgpr_kernarg_segment_ptr 1
  .amdhsa_system_sgpr_workgroup_id_x 1
.end_amdhsa_kernel
"""
    open(out, "w").write(txt)


main()
```

```python
import sys, os, struct, math, re
sys.path.insert(0, os.path.join(os.path.dirname(os.path.abspath(__file__)), "tools"))
from asmlib import *

NAME = "interleave_layers__sliding_block__moe_arch_mod__prompt"
KB, MB = 1 << 10, 1 << 20
ARGS = sys.argv[1:]


def opt(name, default):
    for x in ARGS:
        if x.startswith(name + "="):
            t = x.split("=", 1)[1]
            return eval(t) if isinstance(default, (list, tuple, dict)) else type(default)(t)
    return default


PROF = "-prof" in ARGS
USELOC = opt("loc", 1)
OSH, XFO = opt("osh", 2), opt("xfo", 0)
LSTR = 16 * MB
KVB, OFB, AR = 0, 8 * MB, 12 * MB
STAT, PY, CAND, CUB, SM = AR, AR + 512 * KB, AR + 1408 * KB, AR + 1536 * KB, AR + 1792 * KB
TABLE, X2R, KVF, OFL = SM, SM + 16 * KB, SM + 64 * KB, SM + 72 * KB
KVS = opt("kvs", 3)
if KVS:
    KVF = AR + 2 * MB
EPOCH, ROWF, COLF = SM + 96 * KB, SM + 100 * KB, SM + 104 * KB
EPINC = 0x9E3779B9
XFB = 32 * MB
STAT0, CUB0 = 36 * MB, 37 * MB
PROFOFF = 100 * MB
EPS = 1e-5
QSCALE = (32 ** -0.5) * math.log2(math.e)
ONES = "0x3f803f80"
T_A, T_M, T_CS, T_C, T_D, T_IDX, T_INB = 0, 512, 1024, 2048, 2560, 3072, 3328
L_W, WSL, L_X, XSL = 40960, 24576, 147456, 16384
L_Q, L_KV, KVH = 49152, 65536, 49152
sW, sRB, sHG, sL, sLIM, sW4, sF = 3, 24, 25, 26, 27, 28, 29
MS = 40
sCU, sIDX, sR, sMEAN, sRSTD, sLOC, sCNT, sCI = 72, 73, 74, 75, 76, 77, 78, 79
XS, WOS, TS, WS_, WSP = 4, 8, 12, 16, 20
TS2 = 80
sSX, sSW, sMX, sMW, sNON, sAC = 84, 85, 86, 87, 88, 89
sKa, sKb, sD0, sD1, sCG, sT, sPATCH, sMO = 94, 95, 96, 97, 98, 99, 100, 101
LN, L16, PRF2, PRF = 252, 253, 254, 255
P, WR, CC, DD, WSUM, EVO = 208, 224, 240, 241, 242, 243
GW, UW, DW, SPARE = 156, 188, 220, 155
CSUM = 2


def fl(x):
    return "0x%08x" % struct.unpack("<I", struct.pack("<f", x))[0]


A = Asm()
_lab = [0]
WSR = f"s[{WSP}:{WSP+3}]"
XFR = f"s[{TS}:{TS+3}]" if XFO else WSR


def newlab(p):
    _lab[0] += 1
    return f"{p}_{_lab[0]}"


def srd_fin(d, nbytes):
    A(f"s_mov_b32 s{d+2}, {hex(nbytes)}")
    A(f"s_mov_b32 s{d+3}, 0x20000")


def srd_load(d, karg, nbytes):
    A(f"s_load_dwordx2 s[{d}:{d+1}], s[0:1], {karg}")
    srd_fin(d, nbytes)
    A("s_waitcnt lgkmcnt(0)")


def cap(fn):
    keep = A.lines
    A.lines = []
    fn()
    out = A.lines
    A.lines = keep
    return out


def tagged(tag, fn):
    for ln in cap(fn):
        if ln.startswith("buffer_") and ";@" not in ln:
            ln += f" ;@{tag}"
        A.lines.append(ln)


def plain(fn):
    def f():
        for ln in cap(fn):
            m = re.fullmatch(r"v_pk_add_f32 v\[(\d+):\d+\], v\[(\d+):\d+\], v\[(\d+):\d+\]", ln)
            if m and opt("plain", 1):
                d, a_, b_ = map(int, m.groups())
                A.lines += [f"v_add_f32 v{d+i}, v{a_+i}, v{b_+i}" for i in range(2)]
            else:
                A.lines.append(ln)
    return f


def cut(fn):
    body = cap(fn)
    c = [-1] + [i for i, x in enumerate(body) if x == "@cut"] + [len(body)]
    return [(lambda a=a, b=b: A.lines.extend(body[a+1:b])) for a, b in zip(c, c[1:])]


def W(tags, lgkm=None, most=None):
    A.lines.append(f"@wait {tags} {'' if lgkm is None else lgkm} {'' if most is None else most}")


def cond(key, fn):
    A.lines.append(f"@cond {key}")
    fn()
    A.lines.append("@endcond")


def resolve(lines):
    out, issued, stack, side = [], [], [], []
    neg = lambda k: k[1:] if k[0] == "!" else "!" + k
    for ln in lines:
        if ln == "@out":
            out, side = side, out
        elif ln == "@place":
            out += side
            side = []
        elif ln.startswith("@cond"):
            stack.append(ln.split()[1])
        elif ln == "@endcond":
            stack.pop()
        elif ln == "@cut":
            pass
        elif ln == "@again":
            issued.append((None, tuple(stack)))
        elif ln == "@reset":
            issued = []
        elif ln.startswith("@wait"):
            p = ln.split()
            tags = p[1].split(",")
            ns = []
            for a in ([[]] if "red" in stack or "!red" in stack else [["red"], ["!red"]]):
                known = stack + a
                live = [e for e in issued if not any(neg(k) in known for k in e[1])]
                idx = [i for i, (t, c) in enumerate(live) if t in tags]
                if idx:
                    ns.append(sum(1 for (t, c) in live[idx[-1]+1:] if all(k in known for k in c)))
            assert ns, f"wait for unknown tag {tags}"
            n = min(ns + [int(x) for x in p[3:]])
            out.append(f"s_waitcnt vmcnt({min(n, 63)})" + (f" lgkmcnt({p[2]})" if len(p) > 2 else ""))
        else:
            if ln.startswith("buffer_"):
                issued.append((ln.split(";@")[1] if ";@" in ln else None, tuple(stack)))
                ln = ln.split(";@")[0].strip()
            out.append(ln)
    return out


SCCW = ("s_add_", "s_sub_", "s_cmp", "s_and_", "s_or_", "s_xor_", "s_lshl", "s_lshr", "s_min", "s_max", "s_not", "s_bfe", "s_bitcmp")
SCCR = ("s_cselect", "s_cbranch_scc", "s_addc", "s_subb")


def safe_points(body):
    n = len(body)
    safe = [True] * (n + 1)
    pos = {ln[:-1]: i for i, ln in enumerate(body) if ln.endswith(":")}
    ex, depth, lastw = True, 0, -1
    for i, ln in enumerate(body):
        if ln.startswith(("s_cbranch", "s_branch")):
            j = pos[ln.split()[1]]
            for k in range(min(i, j) + 1, max(i, j) + 1):
                safe[k] = False
        if ln.startswith(SCCR):
            for k in range(lastw + 1, i + 1):
                safe[k] = False
        if ln.startswith(SCCW):
            lastw = i
        if re.match(r"s_\w+ exec", ln) or "saveexec" in ln:
            ex = ln == "s_mov_b64 exec, -1"
        if ln.startswith("@cond"):
            depth += 1
        if ln == "@endcond":
            depth -= 1
        if not ex or depth or ln.startswith("s_getpc"):
            safe[i + 1] = False
    return safe


def pieces(fn, k):
    body = cap(fn)
    safe = safe_points(body)
    fr = [(i + 1) / k for i in range(k - 1)] if isinstance(k, int) else k
    cuts = [0]
    for f in fr:
        c = max(int(f * len(body)), cuts[-1])
        while not safe[c]:
            c += 1
        cuts.append(c)
    cuts.append(len(body))
    return [(lambda a=a, b=b: A.lines.extend(body[a:b])) for a, b in zip(cuts, cuts[1:])]


def weave(groups, fn, lead=1, post=False):
    body = cap(fn)
    n = len(body)
    safe = safe_points(body)
    groups = list(groups)
    for g in groups[:lead]:
        A.lines += g
    groups = groups[lead:]
    k = 0
    lim = n
    if opt("wlim", 1):
        lim = min([i for i, x in enumerate(body) if x.startswith(("v_dot2", "buffer_store"))] + [n])
        while not safe[lim]:
            lim -= 1
    for i in range(n + 1):
        while k < len(groups) and not post and safe[i] and i >= (k + 1) * lim / (len(groups) + (lim == n)):
            A.lines += groups[k]
            k += 1
        if i < n:
            A.lines.append(body[i])
    for g in groups[k:]:
        A.lines += g


MARKS = {}


def markx(name):
    if name in opt("mx", "").split(","):
        mark(name)


def mark(name):
    if name in opt("nm", "").split(","):
        return
    if name not in MARKS:
        MARKS[name] = len(MARKS)
    if PROF:
        A("s_memrealtime s[90:91]")
        if "-profq" not in ARGS:
            A("s_memtime s[92:93]")
        A("s_waitcnt lgkmcnt(0)")
        A(f"v_writelane_b32 v{PRF}, s90, {MARKS[name]}")
        if "-profq" not in ARGS:
            A(f"v_writelane_b32 v{PRF}, s92, {MARKS[name]+32}")


PAD = opt("pad", {})


def padat(name, L=None):
    if name not in PAD:
        return
    l, e = newlab("pad"), newlab("pad")
    if L is not None:
        A(f"s_cmp_lg_u32 s{sL}, {L*LSTR}")
        A(f"s_cbranch_scc1 {e}")
    A.label(l)
    A("s_memrealtime s[92:93]")
    A("s_waitcnt lgkmcnt(0)")
    A("s_sub_u32 s92, s92, s90")
    A(f"s_cmp_lt_u32 s92, {PAD[name]}")
    A(f"s_cbranch_scc1 {l}")
    A.label(e)


def markq(name):
    if "-profq" in ARGS:
        mark(name)


def prof_next():
    if PROF:
        A(f"v_mov_b32 v{PRF2}, v{PRF}")
        A(f"v_mov_b32 v{PRF}, 0")


def MF(d, a_, b_, c=None):
    cc = v(d, 16) if c is None else (c if isinstance(c, str) else v(c, 16))
    return f"v_mfma_f32_32x32x16_bf16 {v(d,16)}, {v(a_,4)}, {v(b_,4)}, {cc}"


def MF16(d, a_, b_):
    return f"v_mfma_f32_16x16x32_bf16 {v(d,4)}, {v(a_,4)}, {v(b_,4)}, {v(d,4)}"


DPPF = "row_mask:0xf bank_mask:0xf"


def wave_red(r, t, op="add", n=64):
    for sh in ("quad_perm:[1,0,3,2]", "quad_perm:[2,3,0,1]", "row_half_mirror", "row_mirror"):
        A(f"v_{op}_f32_dpp v{r}, v{r}, v{r} {sh} {DPPF}")
    A(f"v_mov_b32 v{t}, v{r}")
    A(f"v_permlane16_swap_b32 v{r}, v{t}")
    A(f"v_{op}_f32 v{r}, v{r}, v{t}")
    if n == 64:
        A(f"v_mov_b32 v{t}, v{r}")
        A(f"v_permlane32_swap_b32 v{r}, v{t}")
        A(f"v_{op}_f32 v{r}, v{r}, v{t}")


def tred4(r):
    A(f"v_permlane32_swap_b32 v{r}, v{r+2}")
    A(f"v_permlane32_swap_b32 v{r+1}, v{r+3}")
    A(f"v_add_f32 v{r}, v{r}, v{r+2}")
    A(f"v_add_f32 v{r+1}, v{r+1}, v{r+3}")
    A(f"v_permlane16_swap_b32 v{r}, v{r+1}")
    A(f"v_add_f32 v{r}, v{r}, v{r+1}")


SST = opt("sst", 4)


def sent_check(regs, t, step=1):
    regs = list(regs)[::step]
    if len(regs) == 1:
        A(f"v_cmp_eq_u32 vcc, -1, v{regs[0]}")
        return
    if len(regs) == 2:
        A(f"v_max_u32 v{t}, v{regs[0]}, v{regs[1]}")
        rest = []
    else:
        A(f"v_max3_u32 v{t}, v{regs[0]}, v{regs[1]}, v{regs[2]}")
        rest = regs[3:]
    while rest:
        if len(rest) >= 2:
            A(f"v_max3_u32 v{t}, v{t}, v{rest[0]}, v{rest[1]}")
            rest = rest[2:]
        else:
            A(f"v_max_u32 v{t}, v{t}, v{rest[0]}")
            rest = rest[1:]
    A(f"v_cmp_eq_u32 vcc, -1, v{t}")


def poll(loads, check, issued=None):
    top, chk, done = newlab("pl"), newlab("pc"), newlab("pd")
    A(f"s_mov_b32 s{sCNT}, s{sLIM}")
    if issued is not None:
        if isinstance(issued, int):
            A(f"s_waitcnt vmcnt({issued})")
        else:
            W(issued)
        A(f"s_branch {chk}")
    A.label(top)
    cond(top, lambda: A.lines.extend(x.split(";@")[0].strip() for x in cap(loads)))
    A("s_waitcnt vmcnt(0)")
    A.label(chk)
    check()
    A(f"s_cbranch_vccz {done}")
    A(f"s_sub_u32 s{sCNT}, s{sCNT}, 1")
    A(f"s_cmp_lg_u32 s{sCNT}, 0")
    A(f"s_cbranch_scc1 {top}")
    A(f"s_mov_b32 s{sLIM}, 1")
    A.label(done)


def lspin(reads, check, nap=0):
    top, done = newlab("ll"), newlab("ld")
    A(f"s_lshl_b32 s{sCNT}, s{sLIM}, 4")
    A.label(top)
    reads()
    A("s_waitcnt lgkmcnt(0)")
    check()
    A(f"s_cbranch_scc1 {done}")
    if nap:
        A(f"s_sleep {nap}")
    A(f"s_sub_u32 s{sCNT}, s{sCNT}, 1")
    A(f"s_cmp_lg_u32 s{sCNT}, 0")
    A(f"s_cbranch_scc1 {top}")
    A.label(done)


def skip_if(cmp, body, key=None):
    l = newlab("sk")
    A(cmp)
    A(f"s_cbranch_scc1 {l}")
    cond(key or l, body)
    A.label(l)


def st_loc(fn, last=False):
    if not USELOC:
        fn("sc1")
        return
    a_, b_ = newlab("lc"), newlab("lc")
    A(f"s_cmp_gt_u32 s{sLOC}, s{sL}" if last else f"s_cmp_lg_u32 s{sLOC}, 0")
    A(f"s_cbranch_scc1 {a_}")
    cond(a_, lambda: fn("sc1"))
    A(f"s_branch {b_}")
    A.label(a_)
    fn("")
    A.label(b_)


def flag_store(so, loc=False):
    A(f"v_mov_b32 v154, s{sNON}")
    A("s_mov_b64 exec, 1")
    A("s_waitcnt vmcnt(0)")
    f = lambda bits: A(f"buffer_store_dword v154, v{L16}, {WSR}, {so} offen {bits}")
    if loc:
        st_loc(f)
    else:
        f("sc1")
    A("s_mov_b64 exec, -1")


def masks():
    for reg in range(16):
        G, r = reg >> 2, reg & 3
        key = 16 * (G & 1) + 8 * (G >> 1) + r
        A(f"s_mov_b32 s{MS+2*reg}, {hex((0xFFFFFFFF << key) & 0xFFFFFFFF)}")
        A(f"s_mov_b32 s{MS+2*reg+1}, {hex((0xFFFFFFFF << (key+4)) & 0xFFFFFFFF)}")


def prologue():
    A("s_cmp_ge_u32 s2, 256")
    A("s_cbranch_scc1 k_exit")
    A(f"s_load_dwordx4 s[{XS}:{XS+3}], s[0:1], 0")
    A(f"s_load_dwordx2 s[{WOS}:{WOS+1}], s[0:1], 16")
    A(f"s_load_dwordx2 s[{WSP}:{WSP+1}], s[0:1], 80")
    A(f"s_load_dwordx2 s[{TS2}:{TS2+1}], s[0:1], 32")
    A("v_lshrrev_b32 v1, 6, v0")
    A(f"v_and_b32 v{LN}, 63, v0")
    A(f"v_readfirstlane_b32 s{sW}, v1")
    A(f"v_lshlrev_b32 v{L16}, 4, v{LN}")
    A("s_and_b32 s30, s2, 7")
    A("s_lshr_b32 s31, s2, 3")
    A("s_and_b32 s32, s31, 1")
    A(f"s_lshl_b32 s33, s30, 1")
    A(f"s_add_u32 s{sRB}, s33, s32")
    A(f"s_lshr_b32 s{sHG}, s31, 1")
    A(f"s_add_u32 s33, s33, s{sHG}")
    A(f"s_add_u32 s{sKa}, s33, s32")
    A(f"s_sub_u32 s{sKb}, s33, s32")
    A(f"s_add_u32 s{sCG}, s{sKb}, 15")
    A(f"s_and_b32 s{sCG}, s{sCG}, 15")
    A(f"s_mul_i32 s{sF}, s30, 28")
    A(f"s_lshl_b32 s32, s30, 2")
    A(f"s_add_u32 s32, s32, {224-28}")
    A("s_cmp_lt_u32 s31, 28")
    A(f"s_cselect_b32 s{sF}, s{sF}, s32")
    A(f"s_add_u32 s{sF}, s{sF}, s31")
    A(f"s_lshl_b32 s{sCU}, s{sRB}, 4")
    A(f"s_add_u32 s{sCU}, s{sCU}, s{sHG}")
    A(f"s_mov_b32 s{sL}, 0")
    A(f"s_mov_b32 s{sLIM}, 20000")
    A(f"s_and_b32 s{sW4}, s{sW}, 3")
    A(f"s_lshl_b32 s{sT}, s{sRB}, 2")
    A(f"s_add_u32 s{sT}, s{sT}, s{sW4}")
    A(f"s_lshl_b32 s{sMO}, s{sW4}, 10")
    srd_fin(WS_, 6 * MB)
    srd_fin(WOS, 2 * MB)
    srd_fin(WSP, 128 * MB)
    srd_fin(TS2, 2048)
    if PROF:
        A(f"v_mov_b32 v{PRF}, 0")
        A(f"v_mov_b32 v{PRF2}, 0")
    mark("start")
    if PAD:
        A("s_memrealtime s[90:91]")
    A(f"s_cmp_ge_u32 s{sW}, 4")
    A("s_cbranch_scc1 l_start")


CPF = opt("cpf", 15)
WBK, WBH = opt("wb", 0), opt("wbh", 3)


def code_pf(bit, va, red=1):
    if not CPF >> bit & 1:
        return
    l = newlab("pc")
    n = 128 // red
    A("s_getpc_b64 s[32:33]")
    A.label(l)
    A(f"s_sub_u32 s32, s32, {l}-{NAME}_kernel")
    A("s_subb_u32 s33, s33, 0")
    A("s_lshr_b32 s34, s2, 3")
    A("s_lshl_b32 s34, s34, 2")
    A(f"s_add_u32 s34, s34, s{sW4}")
    A(f"s_and_b32 s34, s34, {n-1}")
    A("s_lshl_b32 s34, s34, 7")
    A(f"v_lshl_add_u32 v{va}, v{LN}, {7 + n.bit_length() - 1}, s34")
    A(f"s_mov_b32 s34, k_exit-{NAME}_kernel")
    A("s_mov_b32 s35, 0x20000")
    A(f"buffer_load_dword v{va}, v{va}, s[32:35], 0 offen")


def ptr_fin():
    A("s_waitcnt lgkmcnt(0)")
    A(f"s_mov_b32 s{sNON}, {hex(EPOCH)}")
    A(f"s_load_dword s{sNON}, s[{WSP}:{WSP+1}], s{sNON}")
    A(f"s_mov_b64 s[{WS_}:{WS_+1}], s[{XS+2}:{XS+3}]")
    srd_fin(XS, 4 * MB)


def wo_voff(dst):
    A(f"v_bfe_u32 v20, v{LN}, 3, 2")
    A(f"v_lshrrev_b32 v21, 5, v{LN}")
    A("v_lshl_add_u32 v20, v21, 3, v20")
    A(f"s_lshr_b32 s32, s{sW4}, 1")
    A("s_lshl_b32 s32, s32, 4")
    A(f"s_and_b32 s33, s{sW4}, 1")
    A("s_lshl_b32 s33, s33, 2")
    A("s_add_u32 s32, s32, s33")
    A("v_add_u32 v20, s32, v20")
    A("v_lshlrev_b32 v20, 11, v20")
    A(f"v_lshrrev_b32 v21, 2, v{LN}")
    A("v_and_b32 v21, 4, v21")
    A(f"v_xor_b32 v21, v21, v{LN}")
    A("v_and_b32 v21, 7, v21")
    A("v_lshl_add_u32 v20, v21, 4, v20")
    A(f"s_lshl_b32 s32, s{sCG}, 7")
    A(f"v_add_u32 v{dst}, s32, v20")


ROT = opt("rot", 1)


def wo_groups(slots, vo, tag):
    gs = []
    for j in slots:
        g = []
        if ROT:
            g += [f"s_add_u32 s{sD0}, s{sHG}, {j & 15}", f"s_and_b32 s{sD0}, s{sD0}, 15", f"s_lshl_b32 s{sD0}, s{sD0}, 17"]
            if j >= 16:
                g += [f"s_add_u32 s{sD0}, s{sD0}, 65536"]
        else:
            g += [f"s_mov_b32 s{sD0}, {(2*(j & 15) + (j >> 4))*65536}"]
        g += [f"s_add_u32 m0, s{sMO}, {4096*j}",
              f"buffer_load_dwordx4 v{vo}, s[{WOS}:{WOS+3}], s{sD0} offen lds ;@{tag}"]
        gs.append(g)
    return gs


def emit(groups):
    for g in groups:
        A.lines += g


FR = [96, 136]
XB, WB, XC, WC = 176, 178, 180, 182
KOF, VOF, KLD, VLD, QLD, TA = 244, 245, 246, 247, 248, 184
RA = 192
AR_IT = opt("ar", 4)


PF, PFD = opt("pf", 1), opt("pfd", 6)
PFA, PFT, sPB, sPK = 190, 191, 84, 85


def pf_setup(va, sPB=sPB):
    A(f"s_lshr_b32 s30, s{WS_}, 7")
    A("s_sub_u32 s30, 3, s30")
    A("s_and_b32 s30, s30, 7")
    A(f"s_and_b32 s31, s{sRB}, 1")
    A("s_lshl_b32 s31, s31, 3")
    A("s_add_u32 s30, s30, s31")
    A(f"s_and_b32 s31, s{sRB}, 14")
    A(f"s_add_u32 s{sPB}, s31, s30")
    A(f"s_lshl_b32 s31, s{sHG}, 2")
    A(f"s_add_u32 s31, s31, s{sW4}")
    A("s_mul_i32 s31, s31, 6144")
    A("s_lshl_b32 s30, s30, 7")
    A("s_add_u32 s30, s30, s31")
    A(f"v_min_u32 v{va}, 2, v{LN}")
    A(f"v_lshl_add_u32 v{va}, v{va}, 11, s30")


def pf_load(va, vt, k, sPB=sPB):
    return [f"s_add_u32 s30, s{sPB}, {k & 15}", "s_and_b32 s30, s30, 15", f"s_mul_i32 s30, s30, {64*6144}",
            f"buffer_load_dword v{vt}, v{va}, s[{WS_}:{WS_+3}], s30 offen"]


FPF = opt("fpf", [7] * 4)
FPM = opt("fpm", [0])
FPR, FPN, FPA, sFM = opt("fpr", 8), opt("fpn", 1), 196, 86


def fpf_setup():
    A("s_lshr_b32 s30, s2, 3")
    A("s_lshl_b32 s30, s30, 2")
    A(f"s_add_u32 s30, s30, s{sW}")
    A("s_and_b32 s31, s2, 7")
    nm = len(FPM)
    mg = -(-65536 // (7 * nm))
    assert all(mg * l >> 16 == l // (7 * nm) for l in range(64)) and 7 * nm * FPR <= 64
    A(f"v_mul_u32_u24 v4, {mg}, v{LN}")
    A("v_lshrrev_b32 v4, 16, v4")
    A(f"v_mul_u32_u24 v5, {7*nm}, v4")
    A(f"v_sub_u32 v5, v{LN}, v5")
    A(f"v_min_u32 v4, {FPR-1}, v4")
    A("v_lshl_add_u32 v4, v4, 7, s30")
    A("v_mul_u32_u24 v6, 37, v5")
    A("v_lshrrev_b32 v6, 8, v6")
    A("v_mul_u32_u24 v7, 7, v6")
    A("v_sub_u32 v5, v5, v7")
    A(f"v_mad_u32_u24 v6, v6, {FPM[1]-FPM[0] if nm > 1 else 0}, {FPM[0]}")
    A("v_cmp_eq_u32 vcc, 2, v6")
    A("v_mov_b32 v7, 7168")
    A("v_mov_b32 v8, 896")
    A("v_cndmask_b32 v7, v7, v8, vcc")
    A("v_mul_u32_u24 v4, v4, v7")
    A(f"v_mul_u32_u24 v{FPA+2}, {128*FPR}, v7")
    A("v_lshl_add_u32 v4, v5, 7, v4")
    A(f"v_mov_b32 v7, {896*1024}")
    A("v_cndmask_b32 v7, v8, v7, vcc")
    A("v_mad_u32_u24 v4, v7, s31, v4")
    for i in range(2):
        A(f"v_mov_b32 v{FPA+i}, s{36+i}")
        A(f"v_mov_b32 v7, s{74+i}")
        A(f"v_cndmask_b32 v{FPA+i}, v{FPA+i}, v7, vcc")
    A("v_cmp_eq_u32 vcc, 1, v6")
    for i in range(2):
        A(f"v_mov_b32 v7, s{38+i}")
        A(f"v_cndmask_b32 v{FPA+i}, v{FPA+i}, v7, vcc")
    A(f"v_add_co_u32 v{FPA}, vcc, v{FPA}, v4")
    A(f"v_addc_co_u32 v{FPA+1}, vcc, 0, v{FPA+1}, vcc")
    st = opt("fps", 1)
    mk = [sum(1 << (15 - f - st * i) for i in range(opt('fpe', 8 // FPR // FPN))) for f in FPF]
    fo = opt("fpo", 6)
    assert all(m & ((1 << fo) - 1) == 0 for m in mk)
    A(f"s_mov_b32 s30, {hex(mk[0] | mk[1] << 16)}")
    A(f"s_mov_b32 s31, {hex(mk[2] | mk[3] << 16)}")
    A(f"s_lshl_b32 s{sFM}, s{sW}, 4")
    A(f"s_lshr_b64 s[30:31], s[30:31], s{sFM}")
    A(f"s_and_b32 s{sFM}, s30, 0xffff")
    if fo > 1:
        A(f"s_mul_i32 s30, s{sHG}, {fo}")
        A("s_lshr_b32 s30, s30, 4")
        A(f"s_lshr_b32 s{sFM}, s{sFM}, s30")


def fpf_step():
    A.label("e_fpf")
    A(f"s_bitset0_b32 s{sFM}, s36")
    A(f"s_bfm_b64 exec, {7*len(FPM)*FPR}, 0")
    for i in range(FPN):
        A(f"global_load_dword v{PFT}, {v(FPA,2)}, off {opt('fpb', '')}")
        A(f"v_add_co_u32 v{FPA}, vcc, v{FPA}, v{FPA+2}")
        A(f"v_addc_co_u32 v{FPA+1}, vcc, 0, v{FPA+1}, vcc")
    A("s_mov_b64 exec, -1")
    FTL = opt("ftl", 0)
    if FTL:
        A(f"v_lshl_add_u32 v{FPA+2}, s{sW}, 6, v{LN}")
        A(f"v_mul_u32_u24 v{FPA+2}, 28672, v{FPA+2}")
        if FTL & 8:
            A("s_mov_b64 exec, 0x01010101")
            A("s_mov_b32 exec_hi, 0x01010101")
        if FTL & 2:
            A(f"global_load_dword v{PFT}, v{FPA+2}, s[38:39]")
        if FTL & 4:
            A(f"global_load_dword v{PFT}, v{FPA+2}, s[74:75]")
        A("s_mov_b64 exec, -1")
    A("s_branch e_fpf_ret")


def e_init():
    code_pf(0, PFT, opt("cpr", 2))
    if FPF:
        A("s_load_dwordx4 s[36:39], s[0:1], 40")
        A("s_load_dwordx2 s[74:75], s[0:1], 56")
    ptr_fin()
    if FPF:
        fpf_setup()
    A(f"s_load_dwordx2 s[{TS}:{TS+1}], s[0:1], 64")
    srd_fin(TS, 4 * MB)
    TCH = opt("tch", 0)
    if TCH:
        A(f"s_lshl_b32 s30, s{sHG}, 19")
        A(f"s_lshl_b32 s31, s{sRB}, 18")
        tl = [("s30", KVB), ("s31", OFB), ("s31", XFB), ("s30", KVB + LSTR)]
        for i, (r_, b_) in enumerate(tl):
            if TCH >> i & 1:
                A(f"s_add_u32 s32, {r_}, {hex(b_)}")
                if TCH & 256:
                    A(f"buffer_load_dword v{PFT}, off, {WSR}, s32")
                else:
                    A(f"s_load_dword s{sD0}, s[{WSP}:{WSP+1}], s32")
    if PF:
        pf_setup(PFA)
        for k in opt("pf0", [0, 1]):
            A.lines += pf_load(PFA, PFT, k)
    A(f"v_lshrrev_b32 v5, 5, v{LN}")
    A("v_lshlrev_b32 v6, 3, v5")
    A(f"s_lshl_b32 s33, s{sCG}, 7")
    for g in range(8):
        A(f"buffer_load_dwordx2 {v(WR+2*g,2)}, v6, s[{TS2}:{TS2+3}], s33 offen offset:{16*g}")
    masks()
    wo_voff(EVO)
    A(f"s_and_b32 s34, s{sW}, 1")
    A(f"s_lshr_b32 s35, s{sW}, 1")
    A(f"v_and_b32 v4, 15, v{LN}")
    A(f"v_lshrrev_b32 v7, 4, v{LN}")
    A("v_lshrrev_b32 v6, 1, v4")
    A("v_xor_b32 v6, v6, v7")
    A("v_lshlrev_b32 v6, 4, v6")
    A("v_lshl_add_u32 v6, v4, 7, v6")
    A("s_lshl_b32 s30, s34, 13")
    A(f"v_add_u32 v{XB}, s30, v6")
    A(f"v_xor_b32 v{XB+1}, 64, v{XB}")
    A("s_lshl_b32 s30, s35, 1")
    wtr_addr(WB, "s30", L_W)
    A(f"v_xor_b32 v{WB+1}, 32, v{WB}")
    A(f"v_and_b32 v8, 31, v{LN}")
    A("v_bfe_u32 v6, v8, 1, 3")
    A("v_xor_b32 v6, v6, v5")
    A("v_lshlrev_b32 v6, 4, v6")
    A("v_lshl_add_u32 v6, v8, 7, v6")
    A(f"s_lshl_b32 s30, s{sW}, 12")
    A(f"s_add_u32 s30, s30, {L_X}")
    A(f"v_add_u32 v{RA}, s30, v6")
    for ks in range(1, 4):
        A(f"v_xor_b32 v{RA+ks}, {32*ks}, v{RA}")
    A("s_lshl_b32 s30, s34, 8")
    A(f"v_lshl_add_u32 v{TA}, v4, 2, s30")
    A(f"v_lshl_add_u32 v{TA+1}, v7, 4, s30")
    A("s_lshl_b32 s30, s35, 7")
    A(f"v_lshl_add_u32 v{TA+2}, v7, 4, s30")
    A(f"s_add_u32 s30, s30, {T_CS+512}")
    A(f"v_lshl_add_u32 v{TA+3}, v4, 2, s30")
    A(f"s_lshl_b32 s30, s{sW}, 7")
    A(f"s_add_u32 s30, s30, {T_C}")
    A(f"v_lshl_add_u32 v{TA+4}, v8, 2, s30")
    A(f"v_mov_b32 v{TA+5}, 0")
    A("v_lshlrev_b32 v6, 9, v7")
    A(f"v_lshl_add_u32 v{VOF}, v4, 4, v6")
    A("v_and_b32 v9, 8, v4")
    A(f"v_lshl_add_u32 v{KOF}, v9, 4, v{VOF}")
    A(f"s_mul_i32 s30, s35, {KVH}")
    A("s_lshl_b32 s31, s34, 13")
    A("s_add_u32 s30, s30, s31")
    A(f"s_add_u32 s30, s30, {L_KV+8*4096}")
    A(f"v_add_u32 v{KLD}, s30, v{KOF}")
    A(f"v_add_u32 v{VLD}, s30, v{VOF}")
    A(f"s_lshl_b32 s30, s{sW}, 12")
    A(f"s_add_u32 s30, s30, {L_Q}")
    A(f"v_add_u32 v{QLD}, s30, v{VOF}")
    A("s_getreg_b32 s30, hwreg(HW_REG_XCC_ID, 0, 4)")
    A("v_mov_b32 v251, s30")
    A(f"s_lshl_b32 s30, s{sHG}, 4")
    A(f"s_add_u32 s30, s30, s{sRB}")
    A(f"s_sub_u32 s30, s30, s{sCU}")
    A(f"s_add_u32 s30, s30, {(COLF - ROWF) // 8}")
    A(f"v_mul_u32_u24 v249, s30, v{LN}")
    A(f"v_add_u32 v249, s{sCU}, v249")
    A("v_lshlrev_b32 v249, 3, v249")
    A(f"s_cmp_eq_u32 s{sW}, 0")
    A(f"s_cselect_b32 s{sAC}, {14 - AR_IT}, -1")
    A(f"v_mov_b32 v{WSUM}, 0")
    for i in range(96):
        A(f"v_mov_b32 v{i}, 0")
    A("s_waitcnt vmcnt(0) lgkmcnt(0)")
    A(f"s_add_u32 s{sNON}, s{sNON}, {hex(EPINC)}")
    A(f"v_mov_b32 v250, s{sNON}")
    for p in range(16):
        A(f"v_dot2c_f32_bf16 v{WSUM}, {ONES}, v{WR+p}")
    if PF:
        for k in opt("pf1", [2, 3, 4, 5]):
            A.lines += pf_load(PFA, PFT, k)
    A("s_setprio 1")


def wtr_addr(dst, ct, base):
    A(f"v_lshrrev_b32 v20, 2, v{LN}")
    A("v_bfe_u32 v21, v20, 1, 2")
    if ct is not None:
        A(f"v_xor_b32 v21, {ct}, v21")
    A("v_lshlrev_b32 v20, 7, v20")
    A("v_lshl_add_u32 v20, v21, 5, v20")
    A(f"v_and_b32 v21, 3, v{LN}")
    A("v_lshl_add_u32 v20, v21, 3, v20")
    A(f"v_add_u32 v{dst}, {base}, v20")


def accq(c, t):
    return 64 + (c & 1) * 16 + t * 4 if c >= 4 else (c >> 1) * 32 + t * 8 + (c & 1) * 4


def e_qphase():
    A.label("e_q")
    A.lines.append("@reset")
    A("s_mov_b32 s31, 0")
    A(f"s_mov_b32 s32, {L_X}")
    A("s_mov_b32 s36, 15")
    for i in range(2):
        A(f"v_add_u32 v{XC+i}, s32, v{XB+i}")
        A(f"v_mov_b32 v{WC+i}, v{WB+i}")

    def rd(fs, kk):
        f = FR[fs]
        x = [f"ds_read_b128 {v(f+4*t,4)}, v{XC+kk} offset:{t*2048}" for t in range(4)]
        w = [f"ds_read_b64_tr_b16 {v(f+16+8*seg+4*u+2*j,2)}, v{WC+u} offset:{seg*8192+kk*4096+j*2048}"
             for seg in range(3) for u in range(2) for j in range(2)]
        return [x[0], w[0], w[1], x[1], x[2], x[3]] + w[2:]

    def mf(fs, cs=range(6), snake=True):
        f = FR[fs]
        m = []
        for c in cs:
            for t in range(4):
                if snake and c & 1:
                    t = 3 - t
                a_, b_ = f + 16 + 4 * c, f + 4 * t
                if c >= 4:
                    a_, b_ = b_, a_
                m.append(MF16(accq(c, t), a_, b_))
        return m

    mark("q_wait")
    padat("q0", 0)
    padat("q1", 1)
    A("s_barrier")
    mark("q_go")
    for x in rd(0, 0):
        A(x)
    adv = [[f"s_cmp_eq_u32 s36, s{sAC}", "s_cbranch_scc1 e_arr", "e_arr_ret:"],
           [f"s_add_u32 s31, s31, {WSL}", f"s_sub_u32 s32, s32, {XSL}"],
           [f"s_cmp_ge_u32 s31, {3*WSL}", "s_cselect_b32 s31, 0, s31", f"s_cselect_b32 s32, {L_X}, s32"],
           [f"v_add_u32 v{WC}, s31, v{WB}", f"v_add_u32 v{XC}, s32, v{XB}"],
           [f"v_add_u32 v{WC+1}, s31, v{WB+1}", f"v_add_u32 v{XC+1}, s32, v{XB+1}"],
           ["s_sub_u32 s36, s36, 1", "s_cmp_eq_u32 s36, 0"]]
    if PF:
        A(f"s_add_u32 s{sPK}, s{sPB}, {PFD - 1}")
        adv[5:5] = [[f"s_add_u32 s{sPK}, s{sPK}, 1", f"s_and_b32 s30, s{sPK}, 15"],
                    [f"s_mul_i32 s30, s30, {64*6144}", f"s_cmp_ge_u32 s36, {PFD}"],
                    ["s_cselect_b64 exec, 7, 0", f"buffer_load_dword v{PFT}, v{PFA}, s[{WS_}:{WS_+3}], s30 offen", "s_mov_b64 exec, -1"]]
    if FPF:
        fp = opt("fpp", len(adv) - 1)
        adv[fp:fp] = [[f"s_bitcmp1_b32 s{sFM}, s36", "s_cbranch_scc1 e_fpf", "e_fpf_ret:"]]
    A.label("e_loop")
    for ks in range(2):
        m, r = mf(ks), rd(ks ^ 1, ks ^ 1)
        A("s_waitcnt lgkmcnt(0)")
        A(m[0])
        if ks == 1:
            A("s_barrier")
        for i in range(1, 24):
            if i <= 16:
                A(r[i-1])
            elif 7 * ks + i - 17 < len(adv):
                A.lines += adv[7*ks+i-17]
            A(m[i])
    A("s_cbranch_scc0 e_loop")
    m, r = mf(0), rd(1, 1)
    A("s_waitcnt lgkmcnt(0)")
    sal = [[f"s_and_b32 s34, s{sW}, 1", f"s_lshr_b32 s35, s{sW}, 1", f"s_lshl_b32 s30, s{sHG}, 1"],
           ["s_add_u32 s30, s30, s35", "s_lshl_b32 s30, s30, 6", f"s_lshl_b32 s31, s{sRB}, 2"],
           ["s_add_u32 s30, s30, s31", "s_lshl_b32 s31, s34, 1", "s_add_u32 s30, s30, s31"],
           ["s_lshl_b32 s32, s30, 12", f"s_add_u32 s32, s32, s{sL}", "s_add_u32 s33, s32, 4096"]]
    for i in range(24):
        if 1 <= i <= 16:
            A(r[i-1])
        if i == 17:
            A(f"s_cmp_lg_u32 s{sL}, 0")
            A("s_cbranch_scc1 e_nores")
            for ks in range(4):
                A(f"ds_read_b128 {v(P+4*ks,4)}, v{RA+ks}")
            A.label("e_nores")
        if 18 <= i < 22:
            A.lines += sal[i-18]
        A(m[i])
    AV, MV, CSK, CSQ, AK, MK, CSV, IDX = 96, 112, 128, 196, 192, 204, 190, 250
    tab = [f"ds_read2_b32 {v(MK,2)}, v{TA} offset0:128 offset1:144",
           f"ds_read_b128 {v(CSK,4)}, v{TA+2} offset:{T_CS+256}",
           f"ds_read_b128 {v(CSK+4,4)}, v{TA+2} offset:{T_CS+256+64}",
           f"ds_read2_b32 {v(AK,2)}, v{TA} offset0:0 offset1:16",
           f"ds_read2_b32 {v(MK+2,2)}, v{TA} offset0:160 offset1:176",
           f"ds_read2_b32 {v(AK+2,2)}, v{TA} offset0:32 offset1:48",
           f"ds_read2_b32 {v(CSV,2)}, v{TA+3} offset0:0 offset1:16"]
    for t in range(4):
        tab += [f"ds_read_b128 {v(MV+4*t,4)}, v{TA+1} offset:{T_M+64*t}", f"ds_read_b128 {v(AV+4*t,4)}, v{TA+1} offset:{T_A+64*t}"]
    tab += [f"ds_read_b128 {v(CSQ,4)}, v{TA+2} offset:{T_CS}", f"ds_read_b128 {v(CSQ+4,4)}, v{TA+2} offset:{T_CS+64}",
            f"ds_read2_b32 {v(CC,2)}, v{TA+4} offset0:0 offset1:128", f"ds_read_b64 {v(IDX,2)}, v{TA+5} offset:{T_IDX}"]
    so = ["s32", "s33"]

    def sel(hi):
        return ("op_sel:[0,1,0] op_sel_hi:[1,1,1]", "op_sel:[0,1] op_sel_hi:[1,1]") if hi else ("op_sel_hi:[1,0,1]", "op_sel_hi:[1,0]")

    def qk(seg, t, pk=True):
        acc, cs = 32 * seg + 8 * t, (CSQ, CSK)[seg]
        s3, s2 = sel(t & 1)
        if not pk:
            return ([f"v_fma_f32 v{acc+p}, v{cs+p}, -v{MK+t}, v{acc+p}" for p in range(8)] +
                    [f"v_mul_f32 v{acc+p}, v{acc+p}, v{AK+t}" for p in range(8)] +
                    [f"v_cvt_pk_bf16_f32 v{acc+p}, v{acc+2*p}, v{acc+2*p+1}" for p in range(4)])
        o = [f"v_pk_fma_f32 {v(acc+2*p,2)}, {v(cs+2*p,2)}, {v(MK+(t&2),2)}, {v(acc+2*p,2)} {s3} neg_lo:[0,1,0] neg_hi:[0,1,0]" for p in range(4)]
        o += [f"v_pk_mul_f32 {v(acc+2*p,2)}, {v(acc+2*p,2)}, {v(AK+(t&2),2)} {s2}" for p in range(4)]
        o += [f"v_cvt_pk_bf16_f32 v{acc+p}, v{acc+2*p}, v{acc+2*p+1}" for p in range(4)]
        return o
    kep = []
    for t in range(4):
        kep += qk(1, t, opt("kpk", 0) or t >= 2) + [f"buffer_store_dwordx4 {v(32+8*t,4)}, v{KOF}, {WSR}, {so[t>>1]} offen offset:{(t&1)*128} sc1"]
    m = mf(1, [2, 3, 4, 5, 0, 1], False)
    A("s_waitcnt vmcnt(0) lgkmcnt(0)")
    A(m[0])
    A("s_barrier")
    for i in range(1, 24):
        A.lines += tab[2*(i-1):2*i]
        if i == 11:
            A("s_waitcnt lgkmcnt(13)")
        if i >= 11:
            A.lines += kep[3*(i-11):3*(i-10)]
            if opt("kpk", 0) > 1:
                A(f"s_nop {opt('kpk', 0)-2}")
        A(m[i])
    A.lines += kep[39:]
    mark("q_end")
    A("s_waitcnt lgkmcnt(0)")
    for T in range(2):
        for c in range(2):
            acc = 64 + 16 * c + 8 * T
            s3, _ = sel(c)
            for p in range(4):
                A(f"v_pk_fma_f32 {v(acc+2*p,2)}, {v(MV+8*T+2*p,2)}, {v(CSV,2)}, {v(acc+2*p,2)} {s3} neg_lo:[0,1,0] neg_hi:[0,1,0]")
            for p in range(4):
                A(f"v_pk_mul_f32 {v(acc+2*p,2)}, {v(acc+2*p,2)}, {v(AV+8*T+2*p,2)}")
            for p in range(4):
                A(f"v_cvt_pk_bf16_f32 v{acc+p}, v{acc+2*p}, v{acc+2*p+1}")
            A(f"buffer_store_dwordx4 {v(acc,4)}, v{VOF}, {WSR}, {so[T]} offen offset:{2048+c*256} sc1")
    mark("kv_st")
    for t in range(4):
        A(f"ds_write_b128 v{KLD}, {v(32+8*t,4)} offset:{(t>>1)*4096+(t&1)*128}")
        A(f"v_mul_f32 v{AK+t}, {fl(QSCALE)}, v{AK+t}")
    for t in range(4):
        A.lines += qk(0, t)
        A(f"ds_write_b128 v{VLD}, {v(64+16*(t&1)+8*(t>>1),4)} offset:{(t>>1)*4096+2048+(t&1)*256}")
        A(f"ds_write_b128 v{QLD}, {v(8*t,4)} offset:{(t>>1)*2048+(t&1)*256}")
    A(f"s_lshl_b32 s30, s{sHG}, 8")
    A(f"s_lshl_b32 s31, s{sRB}, 4")
    A("s_add_u32 s30, s30, s31")
    A("s_lshl_b32 s31, s34, 3")
    A("s_add_u32 s30, s30, s31")
    A("s_lshl_b32 s31, s35, 2")
    A("s_add_u32 s30, s30, s31")
    if KVS:
        A(f"s_lshl_b32 s30, s30, {KVS}")
    A(f"s_add_u32 s30, s30, s{sL}")
    A(f"s_add_u32 s30, s30, {hex(KVF)}")
    A(f"v_readfirstlane_b32 s{sIDX}, v{IDX}")
    A(f"v_readfirstlane_b32 s{sLOC}, v{IDX+1}")
    patch_flag()

    def unswz():
        for ks in range(4):
            A(f"v_permlane32_swap_b32 v{P+4*ks}, v{P+4*ks+2}")
            A(f"v_permlane32_swap_b32 v{P+4*ks+1}, v{P+4*ks+3}")
    skip_if(f"s_cmp_lg_u32 s{sL}, 0", unswz)


def patch_flag():
    A(f"s_lshr_b32 s39, s{sIDX}, 5")
    A(f"s_lshl_b32 s34, s{sRB}, 2")
    A("s_sub_u32 s39, s39, s34")
    A("s_add_u32 s39, s39, 8")
    A("s_lshr_b32 s34, s39, 3")
    A("s_add_u32 s34, s34, 1")
    A("s_cmp_lt_u32 s39, 12")
    A(f"s_cselect_b32 s{sPATCH}, s34, 0")


Q, PM, AD, MX, SU0, SU1, CB, SM_, O, TM = 4, 12, 20, 21, 22, 23, 24, 40, 88, 152
SA, KF, VF, PP = [56, 72], [104, 112], [120, 128], [136, 144]


SEL, SUM, AD0, AD1 = 40, 44, 22, 23
sN, sPH, sTA = 74, 75, 76
MIR = opt("mir", 1)


def att_masks():
    A("v_mov_b32 v20, 0xffff")
    A("v_mov_b32 v21, 0xffff0000")
    for p in range(8):
        A(f"v_cndmask_b32 v22, 0, v20, {s(MS+4*p,2)}")
        A(f"v_cndmask_b32 v23, 0, v21, {s(MS+4*p+2,2)}")
        A(f"v_or_b32 v{PM+p}, v22, v23")


def att_base(team):
    A(f"s_and_b32 s34, s{sTA}, 3")
    A("s_lshl_b32 s33, s34, 12")
    A(f"s_add_u32 s33, s33, {L_KV+team*KVH}")
    A(f"v_add_u32 v{AD}, s33, v{L16}")


def att_setup(team):
    att_masks()
    A(f"s_xor_b32 s{sTA}, s{sT}, {3 if team and MIR else 0}")
    att_base(team)
    A(f"v_add_u32 v{AD0}, {8*4096}, v{AD}")
    A(f"v_add_u32 v{AD1}, {L_KV+team*KVH+7*4096}, v{L16}")
    A(f"s_add_u32 s{sN}, s34, 1")
    A(f"s_mov_b32 s{sPH}, 0")
    A("s_lshl_b32 s34, s34, 11")
    A(f"s_add_u32 s34, s34, {L_Q+team*8192}")
    A(f"v_add_u32 v3, s34, v{L16}")
    A(f"v_mov_b32 v{MX}, {fl(-1e30)}")
    for i in range(16):
        A(f"v_cndmask_b32 v{CB+i}, v{MX}, 0, {s(MS+2*i,2)}")
    A(f"v_lshrrev_b32 v{SEL}, 2, v{LN}")
    A(f"v_xor_b32 v{SEL}, v{SEL}, v{LN}")
    A(f"v_bfe_u32 v{SEL}, v{SEL}, 2, 1")
    A(f"v_add_u32 v{SEL}, -1, v{SEL}")
    A(f"v_and_b32 v{SEL}, {ONES}, v{SEL}")
    for i in range(1, 4):
        A(f"v_mov_b32 v{SEL+i}, v{SEL}")
    for i in range(4):
        A(f"v_mov_b32 v{SUM+i}, 0")
    for i in range(16):
        A(f"v_mov_b32 v{O+i}, 0")


def attention(team, pre, mid, hook, nh=8):
    n = f"a{team}{newlab('')}"
    KA, KB_, K0, VA, VB, PA, PB = KF[0], KF[0] + 4, KF[1], VF[0], [VF[0] + 4, VF[1]], PP[0], PP[0] + 4

    def rd(r, j, o):
        A(f"ds_read_b128 {v(r,4)}, v{AD1 if j else AD0} offset:{j*4096+o}")
    rd(K0, 0, 0)
    rd(K0 + 4, 0, 1024)
    A("s_waitcnt lgkmcnt(0)")
    A(MF(SA[0], K0, Q, CB))
    A(MF(SA[0], K0 + 4, Q + 4))
    rd(KA, 1, 0)
    rd(VB[0], 0, 3072)
    rd(KB_, 1, 1024)
    rd(VA, 0, 2048)
    pre()
    A(f"v_max3_f32 v{MX}, v{SA[0]}, v{SA[0]+1}, v{SA[0]+2}")
    A(f"v_max3_f32 v{TM}, v{SA[0]+3}, v{SA[0]+4}, v{SA[0]+5}")
    for p in range(3, 8):
        r = (TM, MX)[p & 1]
        A(f"v_max3_f32 v{r}, v{r}, v{SA[0]+2*p}, v{SA[0]+2*p+1}")
    A(f"v_max_f32 v{MX}, v{MX}, v{TM}")
    A(f"v_mov_b32 v{TM}, v{MX}")
    A(f"v_permlane32_swap_b32 v{MX}, v{TM}")
    A(f"v_max_f32 v{MX}, v{MX}, v{TM}")
    for i in range(16):
        A(f"v_sub_f32 v{CB+i}, 0, v{MX}")
    A(f"s_branch {n}_go")
    A.label(f"{n}_mid")
    A(f"s_cmp_ge_u32 s{sTA}, 8")
    A("s_cselect_b32 s33, 0, -1")
    for p in range(8):
        A(f"v_not_b32 v{PM+p}, v{PM+p}")
        A(f"v_or_b32 v{PM+p}, s33, v{PM+p}")
    A(f"s_and_b32 s32, s{sTA}, 3")
    A(f"s_cmp_ge_u32 s{sTA}, 8")
    A("s_cselect_b32 s32, s32, 4")
    A(f"s_sub_u32 s{sN}, 8, s32")
    A("s_lshl_b32 s32, s32, 12")
    A(f"s_add_u32 s32, s32, {L_KV+team*KVH}")
    A(f"v_add_u32 v{AD0}, s32, v{L16}")
    A(f"v_add_u32 v{AD1}, s32, v{L16}")
    A(f"s_cmp_eq_u32 s{sL}, 0")
    A(f"s_cselect_b32 s{sPH}, 2, 1")
    mid()
    A(f"s_cmp_lt_u32 s{sTA}, 4")
    A(f"s_cbranch_scc1 {n}_none")
    rd(K0, 0, 0)
    rd(K0 + 4, 0, 1024)
    rd(KA, 1, 0)
    rd(VB[0], 0, 3072)
    rd(KB_, 1, 1024)
    rd(VA, 0, 2048)
    A("s_waitcnt lgkmcnt(4)")
    A.label(f"{n}_go")
    A(MF(SA[0], K0, Q, CB))
    A(MF(SA[0], K0 + 4, Q + 4))

    def hk(k):
        body = cap(lambda: hook(k))
        if body:
            skip_if(f"s_cmp_eq_u32 s{sPH}, 0", lambda: A.lines.extend(body), "hk")

    def body(j, last):
        b = j & 1
        S, N = SA[b], SA[b ^ 1]
        E = lambda a_, z: [A(f"v_exp_f32 v{S+i}, v{S+i}") for i in range(a_, z)]

        def C(a_, z):
            for p in range(a_, z):
                A(f"v_cvt_pk_bf16_f32 v{PA+p}, v{S+2*p}, v{S+2*p+1}")
            if j == 0 and not last and z & 3 == 0:
                for p in range(z - 4, z):
                    A(f"v_and_b32 v{PA+p}, v{PA+p}, v{PM+p}")
        jk = j + 2 if j < 6 else j
        nl, nf = not last, j or last
        op = {"qa": lambda: nl and (A("s_waitcnt lgkmcnt(3)"), A(MF(N, KA, Q, CB))), "ka": lambda: nl and rd(KA, jk, 0),
              "pb": lambda: nf and A(MF(O, VB[b ^ 1], PB)), "vb": lambda: nl and rd(VB[b ^ 1], j + 1, 3072),
              "qb": lambda: nl and (A("s_waitcnt lgkmcnt(2)"), A(MF(N, KB_, Q + 4))), "kb": lambda: nl and rd(KB_, jk, 1024),
              "sb": lambda: nf and A(MF16(SUM, SEL, PB)), "sa": lambda: A(MF16(SUM, SEL, PA)),
              "pa": lambda: (last and A("s_waitcnt lgkmcnt(0)"), A(MF(O, VA, PA))), "va": lambda: nl and rd(VA, j + 1, 2048),
              "h0": lambda: (last or j < 3) and hk(6 if last else 2 * j), "h1": lambda: (last or j < 3) and hk(7 if last else 2 * j + 1)}
        ne = nc = 0
        for x in opt("ao", "qa,ka,e3,pb,vb,e3,qb,kb,e2,c2,sb,c2,e2,pa,va,h0,e4,sa,e2,c4,h1").split(","):
            if x in op:
                op[x]()
            elif x[0] == "e":
                E(ne, ne + int(x[1:]))
                ne += int(x[1:])
            else:
                C(nc, nc + int(x[1:]))
                nc += int(x[1:])
        assert ne == 16 and nc == 8
    for j in range(7):
        if j:
            A(f"s_cmp_eq_u32 s{sN}, {j+1}")
            A(f"s_cbranch_scc1 {n}_t{j&1}")
        body(j, False)
        if j == 0:
            A(f"s_cmp_eq_u32 s{sN}, 1")
            A(f"s_cbranch_scc1 {n}_e0")
    for b in (1, 0):
        A.label(f"{n}_t{b}")
        body(b, True)
        A.label(f"{n}_e{b}")
        A(f"s_cmp_eq_u32 s{sPH}, 0")
        A(MF16(SUM, SEL, PB))
        A(MF(O, VB[b], PB))
        A(f"s_cbranch_scc1 {n}_mid")
        A(f"s_branch {n}_fin")
    A.label(f"{n}_none")
    cond("hk", lambda: [hook(k) for k in range(8)])
    A.label(f"{n}_fin")
    att_addr(team)
    A(f"v_cmp_nlt_f32 vcc, {fl(2.0**60)}, v{SUM}") if opt("fexact", 0) else A(f"v_cmp_ngt_f32 vcc, {fl(2.0**60)}, v{SUM}")
    A(f"v_rcp_f32 v{SU0}, v{SUM}")
    A(f"s_cbranch_vccnz att_exact{team}")
    A.label(f"att_ret{team}" + (n if opt("ub", "") else ""))
    att_store(team)


def att_qread():
    A(f"ds_read_b128 {v(Q,4)}, v3")
    A(f"ds_read_b128 {v(Q+4,4)}, v3 offset:1024")


def att_exact(team):
    A.label(f"att_exact{team}")
    A("s_waitcnt lgkmcnt(0)")
    att_masks()
    att_base(team)
    for i in range(16):
        A(f"v_mov_b32 v{CB+i}, 0")

    def rdK(buf, d):
        A(f"ds_read_b128 {v(KF[buf],4)}, v{AD} offset:{(8-d)*4096}")
        A(f"ds_read_b128 {v(KF[buf]+4,4)}, v{AD} offset:{(8-d)*4096+1024}")

    def rdV(buf, d):
        A(f"ds_read_b128 {v(VF[buf],4)}, v{AD} offset:{(8-d)*4096+2048}")
        A(f"ds_read_b128 {v(VF[buf]+4,4)}, v{AD} offset:{(8-d)*4096+3072}")

    def neg_switch(d):
        l = newlab("ng")
        A(f"s_cmp_eq_u32 s{sTA}, {d-1}")
        A(f"s_cbranch_scc0 {l}")
        for i in range(16):
            A(f"v_mov_b32 v{CB+i}, {fl(-1e30)}")
        A.label(l)

    def smf(dst, buf, c):
        A(MF(dst, KF[buf], Q, c))
        A(MF(dst, KF[buf] + 4, Q + 4))

    def maxes(src, first):
        for p in range(8):
            if first and p == 0:
                A(f"v_max_f32 v{MX}, v{src}, v{src+1}")
            else:
                A(f"v_max3_f32 v{MX}, v{MX}, v{src+2*p}, v{src+2*p+1}")
    rdK(0, 0)
    rdK(1, 1)
    A("s_waitcnt lgkmcnt(2)")
    smf(SM_, 0, "0")
    for d in range(1, 9):
        b = d & 1
        if d < 8:
            rdK(b ^ 1, d + 1)
        neg_switch(d)
        A(f"s_waitcnt lgkmcnt({2 if d < 8 else 0})")
        smf(SA[b], b, CB)
        if d >= 2:
            maxes(SA[b ^ 1], d == 2)
    rdK(1, 1)
    rdV(0, 0)
    rdV(1, 8)
    for i in range(16):
        A(f"v_cndmask_b32 v{SM_+i}, v{SA[0]+i}, v{SM_+i}, {s(MS+2*i,2)}")
    maxes(SM_, False)
    A(f"v_mov_b32 v{TM}, v{MX}")
    A(f"v_permlane32_swap_b32 v{MX}, v{TM}")
    A(f"v_max_f32 v{MX}, v{MX}, v{TM}")
    for i in range(16):
        A(f"v_sub_f32 v{CB+i}, 0, v{MX}")
    neg_switch(1)
    A("s_waitcnt lgkmcnt(4)")
    smf(SA[1], 1, CB)
    rdK(0, 2)
    for i in range(16):
        A(f"v_sub_f32 v{SM_+i}, v{SM_+i}, v{MX}")
    for i in range(16):
        A(f"v_exp_f32 v{SM_+i}, v{SM_+i}")
    A(f"v_add_f32 v{SU0}, v{SM_}, v{SM_+1}")
    A(f"v_add_f32 v{SU1}, v{SM_+2}, v{SM_+3}")
    for i in range(4, 16):
        A(f"v_add_f32 v{SU0+(i&1)}, v{SU0+(i&1)}, v{SM_+i}")
    for p in range(8):
        A(f"v_cvt_pk_bf16_f32 v{PP[1]+p}, v{SM_+2*p}, v{SM_+2*p+1}")
    for p in range(8):
        A(f"v_and_b32 v{PP[0]+p}, v{PP[1]+p}, v{PM+p}")
    for p in range(8):
        A(f"v_xor_b32 v{PP[1]+p}, v{PP[1]+p}, v{PP[0]+p}")
    A("s_waitcnt lgkmcnt(2)")
    A(MF(O, VF[0], PP[0], "0"))
    A(MF(O, VF[0] + 4, PP[0] + 4))
    A(MF(O, VF[1], PP[1]))
    A(MF(O, VF[1] + 4, PP[1] + 4))
    for d in range(1, 8):
        b = d & 1
        rdV(b, d)
        if d < 7:
            neg_switch(d + 1)
            A("s_waitcnt lgkmcnt(2)")
            smf(SA[b ^ 1], b ^ 1, CB)
            if d < 6:
                rdK(b, d + 2)
        src = SA[b]
        for i in range(16):
            A(f"v_exp_f32 v{src+i}, v{src+i}")
        for i in range(16):
            A(f"v_add_f32 v{SU0+(i&1)}, v{SU0+(i&1)}, v{src+i}")
        for p in range(8):
            A(f"v_cvt_pk_bf16_f32 v{PP[b]+p}, v{src+2*p}, v{src+2*p+1}")
        A(f"s_waitcnt lgkmcnt({2 if d < 6 else 0})")
        A(MF(O, VF[b], PP[b]))
        A(MF(O, VF[b] + 4, PP[b] + 4))
    A(f"v_add_f32 v{SU0}, v{SU0}, v{SU1}")
    A(f"v_mov_b32 v{TM}, v{SU0}")
    A(f"v_permlane32_swap_b32 v{SU0}, v{TM}")
    A(f"v_add_f32 v{SU0}, v{SU0}, v{TM}")
    A(f"v_rcp_f32 v{SU0}, v{SU0}")
    A(f"s_lshl_b32 s33, s{sHG}, 11")
    A("s_add_u32 s33, s33, s36")
    A(f"s_branch att_ret{team}")


def att_addr(team):
    A(f"s_lshl_b32 s36, s{sTA}, {17 if OSH == 2 else 16}")
    if not OSH:
        A(f"s_add_u32 s36, s36, s{sL}")
    if OSH == 2:
        A(f"s_lshr_b32 s33, s{sL}, 8")
        A("s_add_u32 s36, s36, s33")
    A(f"s_add_u32 s36, s36, {hex((40*MB if OSH == 2 else OFB) + team*32768)}")
    A(f"s_lshl_b32 s33, s{sHG}, 11")
    A("s_add_u32 s33, s33, s36")
    A(f"s_lshl_b32 s30, s{sRB}, 9")
    A(f"s_and_b32 s31, s{sTA}, 3")
    A("s_lshl_b32 s31, s31, 6")
    A("s_add_u32 s30, s30, s31")
    A(f"s_add_u32 s30, s30, s{sL}")
    A(f"s_add_u32 s30, s30, {hex(OFL + team*256)}")
    A(f"s_lshl_b32 s31, s{sHG}, 2")
    A("s_add_u32 s31, s31, s30")


def att_store(team):
    for p in range(8):
        A(f"v_pk_mul_f32 {v(O+2*p,2)}, {v(O+2*p,2)}, {v(SU0,2)} op_sel_hi:[1,0]")
    for p in range(8):
        A(f"v_cvt_pk_bf16_f32 v{O+p}, v{O+2*p}, v{O+2*p+1}")

    def st(bits):
        bits = bits or opt("o2bits", "")
        A(f"buffer_store_dwordx4 {v(O,4)}, v{L16}, {WSR}, s33 offen {bits}")
        A(f"buffer_store_dwordx4 {v(O+4,4)}, v{L16}, {WSR}, s33 offen offset:1024 {bits}")
    st_loc(st, opt("owt", 3) >> team & 1)
    mark("att_end")


WO0, WO1 = opt("wo0", [13] * 3 + [16] * 6), opt("wo1", [16, 16])


XE2, XLA = opt("xe2", 1), opt("xla", 5)


EH = opt("eh", 3)
XREP = opt("xrep", 8)


def x2base(d, add=None):
    A(f"s_lshr_b32 vcc_lo, s{sRB}, {(16//XREP).bit_length()-1}")
    A("s_lshl_b32 vcc_lo, vcc_lo, 11")
    if add is not None:
        A(f"s_add_u32 vcc_lo, vcc_lo, s{add}")
    A(f"s_add_u32 s{d}, vcc_lo, {hex(X2R)}")


def e_att():
    att_setup(0)
    padat("a0", 0)
    padat("a1", 1)

    def kvfl():
        if EH == 3:
            A(f"s_and_b32 s32, s{sW4}, 1")
            A(f"s_lshr_b32 s33, s{sW4}, 1")
            A(f"s_add_u32 s36, s32, s{sRB}")
            A("s_sub_u32 s36, s36, 2")
            A(f"s_lshl_b32 s37, s{sHG}, 4")
            A("s_add_u32 s37, s37, s36")
            A("s_lshl_b32 s37, s37, 2")
            A("s_add_u32 s37, s37, s33")
            A(f"s_lshl_b32 s37, s37, {2+KVS}")
            A(f"s_add_u32 s37, s37, s{sL}")
            A(f"s_add_u32 s37, s37, {hex(KVF)}")
            A(f"s_lshl_b32 s38, s{sHG}, 1")
            A("s_add_u32 s38, s38, s33")
            A("s_lshl_b32 s38, s38, 4")
            A("s_add_u32 s38, s38, s36")
            A("s_lshl_b32 s38, s38, 14")
            A(f"s_add_u32 s38, s38, s{sL}")
            A(f"s_mul_i32 s33, s33, {KVH}")
            A("s_lshl_b32 s32, s32, 14")
            A("s_add_u32 s39, s32, s33")
            A(f"v_and_b32 v48, 8, v{LN}")
            if KVS:
                A(f"v_lshlrev_b32 v48, {KVS}, v48")
        flag_store("s30")
        mark("kv_fl")

    def halo():
        poll(lambda: A(f"buffer_load_dword v49, v48, {WSR}, s37 offen sc1"), lambda: A(f"v_cmp_ne_u32 vcc, s{sNON}, v49"))
        mark("kv_ok")
        A("s_mov_b32 s36, -1")
        for tt in range(4):
            A(f"s_add_u32 m0, s39, {L_KV + tt*4096}")
            A(f"s_add_u32 s32, s38, {tt*4096}")
            for p in range(4):
                A(f"buffer_load_dwordx4 v{L16}, {WSR}, s32 offen offset:{p*1024} sc1 lds")
    skip_if(f"s_cmp_lg_u32 s{sPATCH}, 2", lambda: (kvfl(), EH == 3 and opt("ehp", 0) and skip_if("s_cmp_lt_i32 s36, 0", halo)))
    A("s_waitcnt lgkmcnt(0)")
    mark("x0_wait")
    A("s_barrier")

    def fix():
        A(f"s_lshr_b32 s34, s{sIDX}, 5")

        def row():
            A(f"s_lshl_b32 s34, s{sCG}, 7")
            x2base(34, 34)
            A(f"s_and_b32 s32, s{sIDX}, 31")
            A(f"v_and_b32 v0, 31, v{LN}")
            A("v_cmp_eq_u32 vcc, s32, v0")
            A(f"v_lshrrev_b32 v0, 5, v{LN}")
            A("v_lshlrev_b32 v0, 3, v0")
            A("s_mov_b64 exec, vcc")
            for ks in range(8):
                A(f"buffer_load_dwordx2 {v(P+2*ks,2)}, v0, {WSR}, s34 offen offset:{16*ks} sc1")
            A(f"v_mov_b32 v{CC}, 1.0")
            A(f"v_mov_b32 v{DD}, 0")
            A("s_mov_b64 exec, -1")
        skip_if(f"s_cmp_lg_u32 s34, s{sT}", row)
        A("s_barrier")
    skip_if(f"s_cmp_lg_u32 s{sPATCH}, 2", fix)
    mark("a_go")
    att_qread()
    al = wo_groups([0, 12, 13, 14, 15], EVO, "woa")
    AL = opt("al", [0, 1, 2, 3, 4])

    def mid():
        mark("a_end")
        if EH == 3:
            skip_if("s_cmp_lt_i32 s36, 0", halo)
            A(f"s_cmp_eq_u32 s{sPATCH}, 1")
            A(f"s_cselect_b32 s32, 0, s{sW4}")
            skip_if("s_cmp_ge_u32 s32, 2", lambda: A("s_waitcnt vmcnt(0)"))
            mark("x1_wait")
        A("s_barrier")
        skip_if(f"s_cmp_lg_u32 s{sPATCH}, 1", lambda: A("s_barrier"))
        mark("att_go")

    def hook(k):
        if k == XE2:
            if EH == 3:
                A(f"s_waitcnt vmcnt({sum(j < k for j in AL)})")
            A("s_barrier")
        emit([g for j, g in zip(AL, al) if j == k])
    attention(0, lambda: skip_if(f"s_cmp_eq_u32 s{sPATCH}, 2", kvfl), mid, hook)


TREP, TW = opt("trep", 8), opt("tw", 32)
assert TREP * TW <= 256


def table_loads(T):
    def f():
        A(f"s_add_u32 s32, s{sCI}, {hex(TABLE)}")
        if TREP > 1:
            if opt("trd", 0):
                A(f"s_and_b32 vcc_lo, s{sHG}, {TREP-1}")
            else:
                A(f"s_lshr_b32 vcc_lo, s{sRB}, {(16//TREP).bit_length()-1}")
            A(f"s_mul_i32 vcc_lo, vcc_lo, {64*TW}")
            A("s_add_u32 s32, s32, vcc_lo")
        if TW == 32:
            A(f"v_lshlrev_b32 v{T+4}, 1, v{L16}")
        A(f"buffer_load_dwordx4 {v(T,4)}, v{T+4 if TW == 32 else L16}, {WSR}, s32 offen sc1")
    return f


def argmax_lane(T, issued=None):
    if opt("tmk", 0) >> (issued is not None) & 1:
        if issued is None:
            A("s_mov_b64 vcc, -1")
        poll(lambda: (A("s_mov_b64 exec, vcc"), table_loads(T)()), lambda: sent_check(range(T, T + 4), T + 4), issued)
        A("s_mov_b64 exec, -1")
    else:
        poll(table_loads(T), lambda: sent_check(range(T, T + 4), T + 4), issued)
    A(f"v_mov_b32 v{T+4}, v{T}")
    wave_red(T + 4, T + 5, "max")
    A(f"v_cmp_eq_f32 vcc, v{T+4}, v{T}")
    A("s_ff1_i32_b64 s32, vcc")
    A("s_and_b32 s32, s32, 63")


SPEC = opt("spec", 0)
T_C1, T_FN = 1024, 1040
TL = 0 if SPEC else opt("tl", 0)


def arg_first(T, z):
    A(f"s_lshr_b32 s34, s{sIDX}, 7")
    A("s_lshl_b32 s34, s34, 2")
    A(f"s_bfm_b64 s[36:37], {4*SPEC}, s34")

    def chk():
        sent_check(range(T, T + 4), T + 4)
        A("s_andn2_b64 vcc, vcc, s[36:37]")
    poll(table_loads(T), chk)
    A(f"v_mov_b32 v{T+5}, 0xff800000")
    A(f"v_cndmask_b32 v{T+4}, v{T}, v{T+5}, s[36:37]")
    wave_red(T + 4, T + 5, "max")
    A(f"v_cmp_eq_f32 vcc, v{T+4}, v{T}")
    A("s_andn2_b64 vcc, vcc, s[36:37]")
    A("s_ff1_i32_b64 s32, vcc")
    sel_write(T, z, T_C1)


def sel_write(T, z, off):
    A("s_lshl_b64 exec, 1, s32")
    A(f"v_and_b32 v{T+1}, 0x7ff, v{T+1}")
    A(f"ds_write_b128 v{z}, {v(T,4)} offset:{off}")
    A("s_mov_b64 exec, -1")


def stat_loads(S, base):
    def f():
        A(f"s_lshl_b32 s30, s{sT}, 13")
        A(f"s_add_u32 s30, s30, {hex(base)}")
        A("s_add_u32 s31, s30, 4096")
        for i in range(8):
            A(f"buffer_load_dwordx4 {v(S+4*i,4)}, v{L16}, {WSR}, s{30+(i>>2)} offen offset:{(i&3)*1024} sc1")
    return f


def stat_core(S, E, t, nc=4, n=8, sw=32):
    for i in range(1, n):
        for c in range(0, nc, 2):
            A(f"v_pk_add_f32 {v(S+c,2)}, {v(S+c,2)}, {v(S+4*i+c,2)}")
    for i in range(nc):
        A(f"v_mov_b32 v{t+i}, v{S+i}")
    for i in range(nc):
        A(f"v_permlane{sw}_swap_b32 v{S+i}, v{t+i}")
    for i in range(nc):
        A(f"v_add_f32 v{S+i}, v{S+i}, v{t+i}")
    A(f"v_mul_f32 v{E+2}, {fl(1/1024)}, v{S}")
    A(f"v_mul_f32 v{S+1}, {fl(1/1024)}, v{S+1}")
    A(f"v_fma_f32 v{S+1}, -v{E+2}, v{E+2}, v{S+1}")
    A(f"v_max_f32 v{S+1}, 0, v{S+1}")
    A(f"v_add_f32 v{E+3}, {fl(EPS)}, v{S+1}")
    A(f"v_rsq_f32 v{E+3}, v{E+3}")


def cand_publish(S, E, t, PR, lay):
    A(f"v_fma_f32 v{E}, -v{E+2}, v{S+3}, v{S+2}")
    A(f"v_and_b32 v{E+1}, 31, v{LN}")
    A(f"v_mul_f32 v{E}, v{E}, v{E+3}")
    A(f"s_lshl_b32 s32, s{sT}, 5")
    A(f"v_add_u32 v{E+1}, s32, v{E+1}")
    A(f"v_mov_b32 v{t}, v{E}")
    wave_red(t, t + 1, "max", 32)
    A(f"v_cmp_eq_f32 vcc, v{t}, v{E}")
    A(f"v_lshrrev_b32 v{t+2}, 5, v{LN}")
    A(f"v_lshlrev_b32 v{t+2}, 4, v{t+2}")
    if TW == 16:
        A(f"s_lshr_b32 s34, s{sHG}, {TREP.bit_length()-1}")
        A(f"v_add_lshl_u32 v{t+3}, v{t+2}, s34, 27")
    else:
        A(f"s_lshr_b32 s34, s{sHG}, {TREP.bit_length()-1}")
        A(f"v_lshl_add_u32 v{t+3}, s34, 28, v{t+2}")
    A(f"s_lshl_b32 s32, s{sT}, 11")
    A(f"s_lshl_b32 s33, s{sCG}, 7")
    A("s_add_u32 s32, s32, s33")
    A(f"s_add_u32 s32, s32, {hex(CAND + lay)}")
    A(f"s_and_b32 s34, s{sHG}, {TREP-1}")
    A("s_lshl_b32 s34, s34, 6")
    A(f"s_add_u32 s34, s34, s{sT}")
    A(f"s_mul_i32 s34, s34, {TW}")
    A(f"s_add_u32 s34, s34, {hex(TABLE + lay)}")
    A("s_ff1_i32_b32 s35, vcc_lo")
    A("s_lshl_b32 s35, 1, s35")
    A("s_mov_b32 exec_lo, s35")
    A("s_mov_b32 exec_hi, s35")
    A(f"buffer_store_dwordx4 {v(E,4)}, v{t+3}, {WSR}, s34 offen sc1")
    for ks in range(4):
        A(f"buffer_store_dwordx4 {v(PR+4*ks,4)}, v{t+2}, {WSR}, s32 offen offset:{ks*32} sc1")
    A("s_mov_b64 exec, -1")


def xf_off(dst):
    A(f"v_bfe_u32 v{dst}, v{LN}, 4, 1")
    A(f"v_lshlrev_b32 v{dst}, 11, v{dst}")
    A(f"v_lshrrev_b32 v{dst+1}, 5, v{LN}")
    A(f"v_lshl_add_u32 v{dst}, v{dst+1}, 8, v{dst}")
    A(f"v_and_b32 v{dst+1}, 15, v{LN}")
    A(f"v_lshl_add_u32 v{dst}, v{dst+1}, 4, v{dst}")
    A(f"s_lshl_b32 s34, s{sW4}, 12")
    A(f"s_add_u32 s34, s34, {L_X}")
    A(f"v_add_u32 v{dst+1}, s34, v{dst}")


def e_wo():
    D = opt("wod", 8)
    WA, FA, FL, XO, OB = 56, 60, 61, 100, 104
    WF = [32, 40, 48]
    assert OB + 4 * (D + 1) <= 154
    A(f"v_bfe_u32 v33, v{LN}, 2, 2")
    A(f"v_lshrrev_b32 v32, 5, v{LN}")
    A("v_lshl_add_u32 v34, v32, 3, v33")
    A("v_lshlrev_b32 v34, 7, v34")
    A("v_lshrrev_b32 v33, 1, v33")
    A("v_lshl_add_u32 v34, v33, 6, v34")
    A(f"v_bfe_u32 v33, v{LN}, 4, 1")
    A("v_lshl_add_u32 v34, v33, 5, v34")
    A(f"v_and_b32 v33, 3, v{LN}")
    A(f"v_lshl_add_u32 v{WA}, v33, 3, v34")
    A(f"v_xor_b32 v{WA+1}, 64, v{WA}")
    A(f"v_add_u32 v{WA+2}, 0x10000, v{WA}")
    A(f"v_add_u32 v{WA+3}, 0x10000, v{WA+1}")
    A(f"v_and_b32 v{FA}, 15, v{LN}")
    A(f"v_lshlrev_b32 v{FA}, 2, v{FA}")
    A("s_waitcnt vmcnt(2)")
    XAF = opt("xaf", 1)
    if XAF:
        A(f"s_and_b32 s35, s{sT}, {3 if XAF == 1 else 0}")
        skip_if("s_cmp_lg_u32 s35, 0", lambda: A("s_barrier"))
    for p in range(16):
        A(f"v_lshlrev_b32 v{2*p}, 16, v{P+p}")
        A(f"v_and_b32 v{2*p+1}, 0xffff0000, v{P+p}")
    for p in range(16):
        A(f"v_pk_fma_f32 {v(2*p,2)}, {v(2*p,2)}, {v(CC,2)}, {v(CC,2)} op_sel:[0,0,1] op_sel_hi:[1,0,1]")
    flag_store("s31", True)
    mark("o_fl")
    if XAF:
        skip_if("s_cmp_eq_u32 s35, 0", lambda: A("s_barrier"))
    else:
        A("s_barrier")
    mark("xa")
    emit(wo_groups(range(16, 28), EVO, "wob"))
    xf_off(XO)
    A(f"s_lshl_b32 s37, s{sHG}, 11" if ROT else "s_mov_b32 s37, 0")

    def rd(i):
        f = WF[i % 3]
        return [f"ds_read_b64_tr_b16 {v(f+4*u+2*j,2)}, v{WA+u+2*(i>>5)} offset:{(i&31)*2048+j*512}" for u in range(2) for j in range(2)]

    def ld(i):
        if i == 32:
            A("s_add_u32 s36, s36, 32768")
        if i & 1 == 0:
            A("s_add_u32 s38, s36, s37")
        else:
            A("s_add_u32 s37, s37, 2048")
            A("s_and_b32 s37, s37, 0x7800")
        A(f"buffer_load_dwordx4 {v(OB+4*(i%(D+1)),4)}, v{L16}, {WSR}, s38 offen offset:{(i&1)*1024} sc1 ;@o{i}")

    def fload(off):
        return lambda: A(f"buffer_load_dword v{FL}, v{FA}, {WSR}, s30 offen offset:{off} sc1")
    A.lines += rd(0) + rd(1)
    poll(fload(0), lambda: A(f"v_cmp_ne_u32 vcc, s{sNON}, v{FL}"))
    mark("o_ok0")
    for i in range(D):
        ld(i)
    FB = opt("wofb", 4)
    for i in range(64):
        f, ob = WF[i % 3], OB + 4 * (i % (D + 1))
        r = rd(i + 2) if i + 2 < 64 else []
        if i in (30, 54):
            A("s_barrier")
        W(f"o{i}", 4 if i < 63 else 0)
        A(MF(0, f, ob))
        if i + D == 32 - FB:
            tagged("fb", fload(256))
        if i + D == 32:
            poll(fload(256), lambda: A(f"v_cmp_ne_u32 vcc, s{sNON}, v{FL}"), "fb")
            mark("o_ok1")
        if i + D < 64:
            ld(i + D)
        A.lines += r[:2]
        A(MF(16, f + 4, ob))
        A.lines += r[2:]
    mark("wo_end")
    G = 96
    A(f"s_lshl_b32 s35, s{sRB}, 4")
    A(f"s_add_u32 s35, s35, s{sCG}")
    A("s_lshl_b32 s35, s35, 14")
    A(f"s_lshl_b32 s34, s{sW}, 12")
    A("s_add_u32 s35, s35, s34")
    if not XFO:
        A(f"s_add_u32 s35, s35, {hex(XFB)}")
    A(f"s_lshl_b32 s30, s{sT}, 13")
    A(f"s_add_u32 s30, s30, s{sL}")
    A(f"s_add_u32 s30, s30, {hex(STAT)}")
    A(f"s_lshl_b32 s31, s{sCG}, 9")
    A("s_add_u32 s31, s31, s30")
    for i in range(3):
        A(f"v_mov_b32 v{G+i}, 0")
    A(f"v_mov_b32 v{G+3}, v{WSUM}")
    for p in range(16):
        A(f"v_cvt_pk_bf16_f32 v{P+p}, v{2*p}, v{2*p+1}")

    def xfst():
        st_loc(lambda bits: [A(f"buffer_store_dwordx4 {v(P+4*ks,4)}, v{XO}, {XFR}, s35 offen offset:{ks*512} {opt('xbits', 'sc1') or bits}") for ks in range(4)])
        for ks in range(4):
            A(f"ds_write_b128 v{XO+1}, {v(P+4*ks,4)} offset:{ks*512}")
    skip_if(f"s_cmp_lg_u32 s{sL}, 0", xfst)
    for p in range(16):
        A(f"v_dot2c_f32_bf16 v{G}, {ONES}, v{P+p}")
        A(f"v_dot2c_f32_bf16 v{G+1}, v{P+p}, v{P+p}")
        A(f"v_dot2c_f32_bf16 v{G+2}, v{WR+p}, v{P+p}")
    for i in range(4):
        A(f"v_mov_b32 v{48+i}, v{G+i}")
    for i in range(4):
        A(f"v_permlane32_swap_b32 v{G+i}, v{48+i}")
    for i in range(4):
        A(f"v_add_f32 v{G+i}, v{G+i}, v{48+i}")
    A("s_mov_b32 exec_hi, 0")
    A("s_waitcnt vmcnt(0)")
    st_loc(lambda bits: A(f"buffer_store_dwordx4 {v(G,4)}, v{L16}, {WSR}, s31 offen {bits}"), opt("swt", 0))
    A("s_mov_b64 exec, -1")
    mark("st_pub")
    A(f"s_cmp_lg_u32 s{sL}, 0")
    A("s_cbranch_scc1 e_final")
    A(f"s_mov_b32 s{sL}, {LSTR}")
    A(f"s_and_b32 s30, s{sW}, 1")
    A("s_lshl_b32 s30, s30, 13")
    A(f"v_add_u32 v{XB}, s30, v{L16}")
    A(f"v_add_u32 v{XB+1}, 1024, v{XB}")
    if PF:
        pf_setup(PFA)
        A(f"s_add_u32 s{sPB}, s{sPB}, 14")
    for i in range(96):
        A(f"v_mov_b32 v{i}, 0")
    if WBK & 2:
        A(f"s_lshl_b32 s30, s{sHG}, 2")
        A(f"s_add_u32 s30, s30, s{sW}")
        A(f"s_cmp_eq_u32 s30, {4*WBH+1}")
        A(f"s_cselect_b32 s{sAC}, {14 - opt('wbi', 8)}, -1")
    prof_next()
    A("s_waitcnt lgkmcnt(0)")
    A("s_branch e_q")
    if FPF:
        fpf_step()
    A.label("e_arr")
    if WBK & 2:
        A(f"s_cmp_eq_u32 s{sL}, 0")
        A("s_cbranch_scc1 e_arr0")
        A("buffer_wbl2 sc1")
        A("s_branch e_arr_ret")
        A.label("e_arr0")
    A("s_mov_b64 exec, 3")
    A(f"s_mov_b32 s{sAC}, {hex(ROWF)}")
    A(f"buffer_store_dwordx2 v[250:251], v249, {WSR}, s{sAC} offen sc1")
    A("s_mov_b64 exec, -1")
    A("s_branch e_arr_ret")
    A.label("e_final")
    S, E = 64, 52
    if opt("etr", 1) == 5:
        A(f"s_mov_b32 s{sCI}, s{sL}")
        table_loads(40)()
    poll(stat_loads(S, STAT + LSTR), lambda: sent_check(range(S, S + 32), 48, SST))
    if opt("etr", 1) == 5:
        A("v_cmp_eq_u32 vcc, -1, v40")
        A("s_bcnt1_i32_b64 s42, vcc")
    mark("st_ok")
    if TL == 2:
        A(f"v_mov_b32 v47, s{sNON}")
        A(f"ds_write_b32 v{TA+5}, v47 offset:{T_C1}")
    stat_core(S, E, 48)
    cand_publish(S, E, 48, P, LSTR)
    if TL == 1:
        A("s_barrier")
    EST = opt("est", 1)
    A("s_mov_b32 s38, s35")
    A("s_mov_b32 s39, s35")
    mark("cand")
    A(f"v_add_f32 v{CC}, 1.0, v{E+3}")
    A(f"v_mul_f32 v{DD}, v{E+2}, v{E+3}")
    A(f"v_sub_f32 v{DD}, 0, v{DD}")
    for p in range(16):
        A(f"v_pk_fma_f32 {v(2*p,2)}, {v(2*p,2)}, {v(CC,2)}, {v(CC,2)} op_sel:[0,0,1] op_sel_hi:[1,0,1]")
    for p in range(16):
        A(f"v_cvt_pk_bf16_f32 v{64+p}, v{2*p}, v{2*p+1}")
    for ks in range(4):
        A(f"v_permlane32_swap_b32 v{64+4*ks}, v{64+4*ks+2}")
        A(f"v_permlane32_swap_b32 v{64+4*ks+1}, v{64+4*ks+3}")
    A(f"v_lshl_add_u32 v50, v{E+1}, 11, v50")
    A(f"s_mov_b32 s{sCI}, s{sL}")

    def ost(bits):
        for ks in range(4):
            A(f"buffer_store_dwordx4 {v(64+4*ks,4)}, v50, s[{TS}:{TS+3}], s33 offen offset:{ks*32} {bits}")
        A("s_mov_b64 exec, -1")
    ETR = opt("etr", 1)

    def ost_lines(bits):
        for j in range(4):
            A(f"ds_read_b128 {v(24+4*j,4)}, v18 offset:{j*1024}")
        A("s_ff1_i32_b32 s36, s38")
        A("s_and_b32 s37, s36, 7")
        A("s_lshl_b32 s37, s37, 3")
        A("s_lshl_b64 s[40:41], 0xff, s37")
        A("s_not_b64 s[40:41], s[40:41]")
        A("s_lshr_b32 s36, s36, 3")
        A("s_mov_b32 s37, s33")
        for j in range(4):
            A(f"s_cmp_eq_u32 s36, {j}")
            A("s_cselect_b64 exec, s[40:41], -1")
            A(f"s_waitcnt lgkmcnt({3-j})")
            A(f"buffer_store_dwordx4 {v(24+4*j,4)}, v{20+(j&1)}, s[{TS}:{TS+3}], s37 offen {bits}")
            if j < 3:
                A("s_add_u32 s37, s37, 16384")
        A("s_mov_b64 exec, -1")
    if EST and ETR:
        A(f"s_lshl_b32 s34, s{sW4}, 12")
        A(f"s_add_u32 s34, s34, {L_X}")
        A(f"v_bfe_u32 v16, v{LN}, 1, 3")
        A(f"v_lshrrev_b32 v17, 5, v{LN}")
        A("v_xor_b32 v16, v16, v17")
        A(f"v_and_b32 v17, 31, v{LN}")
        A("v_lshlrev_b32 v17, 7, v17")
        A("v_lshl_add_u32 v16, v16, 4, v17")
        A("v_add_u32 v16, s34, v16")
        for ks in range(4):
            if ks:
                A(f"v_xor_b32 v17, {32*ks}, v16")
            A(f"ds_write_b128 v{17 if ks else 16}, {v(64+4*ks,4)}")
        A(f"v_add_u32 v18, s34, v{L16}")
        A(f"v_lshrrev_b32 v19, 4, v{LN}")
        A(f"v_xor_b32 v19, v19, v{LN}")
        A("v_and_b32 v19, 7, v19")
        A(f"v_lshrrev_b32 v20, 3, v{LN}")
        A(f"v_lshl_add_u32 v20, s{sT}, 5, v20")
        A("v_lshlrev_b32 v20, 11, v20")
        A("v_lshl_add_u32 v20, v19, 4, v20")
        A("v_xor_b32 v21, 64, v20")
        A("s_waitcnt lgkmcnt(0)")
        eb = opt('ebits', 'sc1').replace("+", " ")
        if ETR == 1:
            ost_lines(eb)
        elif ETR == 6:
            skip_if(f"s_cmp_lt_u32 s{sW}, {opt('esp', 2)}", lambda: ost_lines(eb))
        elif ETR == 5:
            skip_if(f"s_cmp_lt_u32 s42, {opt('elate', 24)}", lambda: ost_lines(eb))
        elif ETR < 4:
            skip_if(f"s_cmp_eq_u32 s{sW}, 0", lambda: ost_lines(eb))
            if ETR == 2:
                skip_if(f"s_cmp_lg_u32 s{sW}, 0", lambda: ost_lines(""))
    elif EST:
        A("s_not_b64 exec, s[38:39]")
        ost(opt('ebits', '').replace("+", " "))

    def arg():
        argmax_lane(0)
        A("s_lshl_b64 exec, 1, s32")
        A(f"ds_write_b128 v{TA+5}, v[0:3] offset:{T_IDX}")
        A("s_mov_b64 exec, -1")

    def arg2():
        arg_first(0, TA + 5)
        argmax_lane(0, 0)
        sel_write(0, TA + 5, T_FN)
    if SPEC:
        A("s_setprio 0")
        skip_if(f"s_cmp_lg_u32 s{sW}, 0", arg2)
        lspin(lambda: A(f"ds_read_b32 v0, v{TA+5} offset:{T_FN+4}"),
              lambda: (A("v_readfirstlane_b32 s35, v0"), A("s_cmp_ge_i32 s35, 0")), opt("enap", 1))
        mark("t_arg")
    else:
        if not TL:
            skip_if(f"s_cmp_lg_u32 s{sW}, 0", arg)
        A("s_waitcnt lgkmcnt(0)")
        A("s_barrier")
        A(f"ds_read_b32 v0, v{TA+5} offset:{T_IDX+4}")
        A("s_waitcnt lgkmcnt(0)")
        A("v_and_b32 v0, 0x7ff, v0")
        if ETR == 3:
            skip_if(f"s_cmp_lg_u32 s{sW}, 0", lambda: ost_lines(eb))
        if ETR >= 4:
            def late_rows():
                A("v_readfirstlane_b32 s36, v0")
                A(f"s_lshl_b32 s37, s{sT}, 5")
                A("s_sub_u32 s36, s36, s37")
                A("s_lshl_b32 s38, 1, s36")
                A("s_cmp_lt_u32 s36, 32")
                A("s_cselect_b32 s38, s38, 0")
                ost_lines(eb)
                A("s_mov_b64 s[38:39], 0")
            A("s_barrier")
            late_rows() if ETR == 4 else skip_if(f"s_cmp_ge_u32 s42, {opt('elate', 24)}" if ETR == 5 else f"s_cmp_ge_u32 s{sW}, {opt('esp', 2)}", late_rows)
            skip_if(f"s_cmp_ge_u32 s{sF}, 224", lambda: A("s_barrier"))
    A(f"v_cmp_ne_u32 vcc, v0, v{E+1}")
    A("s_and_b64 exec, vcc, s[38:39]" if EST else "s_mov_b64 exec, vcc")
    if EST:
        A("s_cbranch_execz k_end")
    ost(opt('obits', '').replace("+", " "))
    if WBK & 4:
        A(f"s_lshl_b32 s30, s{sHG}, 2")
        A(f"s_add_u32 s30, s30, s{sW}")
        A(f"s_and_b32 s30, s30, {opt('wbm', 63)}")
        A(f"s_cmp_lg_u32 s30, {(4*WBH+1) & opt('wbm', 63)}")
        A("s_cbranch_scc1 k_end")
        A("s_waitcnt vmcnt(0)")
        A("buffer_wbl2 sc1")
    A("s_branch k_end")


STAG = opt("stag", 1)
FV = [155, 155, 153]


def ffn_addr():
    A(f"v_lshrrev_b32 v20, 2, v{LN}")
    A("v_lshlrev_b32 v20, 2, v20")
    A(f"v_bfe_u32 v21, v{LN}, 1, 1")
    A("v_add_u32 v20, v20, v21")
    A(f"v_mul_u32_u24 v20, {4*7168}, v20")
    A(f"v_and_b32 v21, 1, v{LN}")
    A("v_lshl_add_u32 v20, v21, 4, v20")
    A(f"s_mul_i32 s30, s{sW4}, {256*7168}")
    A(f"s_lshl_b32 s31, s{sF}, 5")
    A("s_add_u32 s30, s30, s31")
    A(f"v_add_u32 v{FV[0]}, s30, v20")
    A("v_lshlrev_b32 v21, 14, v21")
    A(f"v_lshrrev_b32 v20, 1, v{LN}")
    A("v_lshl_add_u32 v20, v20, 4, v21")
    A(f"s_lshl_b32 s30, s{sW4}, 9")
    A(f"s_lshl_b32 s31, s{sF}, 15")
    A("s_add_u32 s30, s30, s31")
    A(f"v_add_u32 v{FV[2]}, s30, v20")


def ffn_srd(which, sd):
    karg, nb = [(40, 1024 * 7168), (48, 1024 * 7168), (56, 3584 * 2048)][which]
    if opt("noffn", 0) >> which & 1:
        nb = 0
    return [f"s_load_dwordx2 s[{sd}:{sd+1}], s[0:1], {karg}", f"s_cmp_lt_u32 s{sF}, 224",
            f"s_cselect_b32 s{sd+2}, {hex(nb)}, 0", f"s_mov_b32 s{sd+3}, 0x20000"]


def ffn_groups(which, sd):
    base = [GW, UW, DW][which]
    gs = []
    for j in range(8):
        g = []
        if which == 2:
            g += [f"s_mov_b32 s{sD0}, {j*2048}"]
        elif STAG:
            g += [f"s_xor_b32 s{sD0}, s{sF}, {j >> 1}", f"s_and_b32 s{sD1}, s{sD0}, 2", f"s_and_b32 s{sD0}, s{sD0}, 3",
                  f"s_mul_i32 s{sD1}, s{sD1}, {2*7168}", f"s_mul_i32 s{sD0}, s{sD0}, {2*7168}", f"s_add_u32 s{sD0}, s{sD0}, s{sD1}"]
            if j & 1:
                g += [f"s_add_u32 s{sD0}, s{sD0}, 7168"]
        else:
            g += [f"s_mov_b32 s{sD0}, {((j & 3) + 8*(j >> 2))*7168}"]
        g += [f"buffer_load_dwordx4 {v(base+4*j,4)}, v{FV[which]}, s[{sd}:{sd+3}], s{sD0} offen {opt('fbits', '')} ;@ffw"]
        gs.append(g)
    return gs


FFS = opt("ffs", [26] * 3 + [17] * 5 + [18, 18, 19, 19, 20, 21, 22, 23] + [40] * 8)
LATE = {}


def late(k):
    if k in LATE:
        skip_if(f"s_cmp_lg_u32 s{sL}, 0", lambda: emit(LATE[k]))


WMAP = {}


DLATE = max(FFS[16:]) > 40


def ffn_perm(ms=(0, 1, 2)):
    A("s_mov_b32 s30, 0x05040100")
    A("s_mov_b32 s31, 0x07060302")
    free = SPARE
    for m, base in enumerate((GW, UW, DW)):
        for p in range(4):
            for c in range(4):
                a_, b_ = base + 8 * p + c, base + 8 * p + 4 + c
                if m in ms:
                    A(f"v_perm_b32 v{free}, v{b_}, v{a_}, s30")
                    A(f"v_perm_b32 v{b_}, v{b_}, v{a_}, s31")
                WMAP[(m, p, 2 * c)] = free
                WMAP[(m, p, 2 * c + 1)] = b_
                free = a_


XG = 24
RQ = opt("rq", 2)


def ffn_xaddr():
    A(f"s_lshl_b32 s32, s{sW4}, 9")
    A(f"s_sub_u32 s34, s{sF}, 224")
    A("s_lshl_b32 s34, s34, 2")
    A(f"s_mul_i32 s35, s{sW4}, {RQ}")
    A("s_and_b32 s33, s35, 3")
    A("s_add_u32 s34, s34, s33")
    A("s_cmp_lt_u32 s35, 4")
    A("s_cselect_b32 s89, s34, -1")
    A(f"v_and_b32 v23, {RQ-1}, v{LN}")
    A("v_add_u32 v23, s34, v23")
    A(f"v_lshrrev_b32 v22, 5, v{LN}")
    A("v_and_or_b32 v23, v23, -2, v22")
    A(f"v_lshrrev_b32 v22, 1, v{LN}")
    A(f"s_cmp_lt_u32 s{sF}, 224")
    A("s_cselect_b32 s32, s32, 0")
    A("s_cselect_b64 vcc, -1, 0")
    A("v_cndmask_b32 v22, v23, v22, vcc")
    A("v_lshl_add_u32 v22, v22, 4, s32")


def xloads():
    A(f"s_lshr_b32 s33, s{sIDX}, 5")
    A("s_lshl_b32 s33, s33, 11")
    A(f"s_add_u32 s33, s33, s{sCI}")
    A(f"s_add_u32 s33, s33, {hex(CAND)}")
    A(f"buffer_load_dwordx4 {v(XG,4)}, v22, {WSR}, s33 offen sc1")


def isffn(body):
    skip_if(f"s_cmp_ge_u32 s{sF}, 224", body) if opt("skf", 1) else body()


def ffn_gateup(slot=None):
    AC = 32
    A(f"v_mov_b32 v28, s{sRSTD}")
    A(f"v_mul_f32 v29, s{sMEAN}, v28")
    for p in range(4):
        A(f"v_lshlrev_b32 v30, 16, v{XG+p}")
        A(f"v_and_b32 v31, 0xffff0000, v{XG+p}")
        A("v_fma_f32 v30, v30, v28, -v29")
        A("v_fma_f32 v31, v31, v28, -v29")
        A(f"v_cvt_pk_bf16_f32 v{XG+p}, v30, v31")
    if STAG:
        for b in range(2):
            skip_if(f"s_bitcmp0_b32 s{sF}, {b}",
                    lambda: [A(f"v_swap_b32 v{XG+p}, v{XG+(p ^ (1 << b))}") for p in range(4) if not p >> b & 1])
    isffn(lambda: [A(f"v_dot2_f32_bf16 v{AC+8*m+c}, v{WMAP[(m,p,c)]}, v{XG+p}, {'0' if p == 0 else 'v%d' % (AC+8*m+c)}")
                   for p in range(4) for m in range(2) for c in range(8)])
    A.lines.append("@cut")
    A(f"v_lshrrev_b32 v31, 5, v{LN}")
    A("v_lshlrev_b32 v30, 6, v31")
    for c in range(8):
        A(f"v_permlane32_swap_b32 v{AC+c}, v{AC+8+c}")
    for c in range(8):
        A(f"v_add_f32 v{AC+c}, v{AC+c}, v{AC+8+c}")
    A(f"v_and_b32 v31, 1, v{LN}")
    A("v_lshl_add_u32 v30, v31, 5, v30")
    for c in range(4):
        A(f"v_permlane16_swap_b32 v{AC+c}, v{AC+4+c}")
    for c in range(4):
        A(f"v_add_f32 v{AC+c}, v{AC+c}, v{AC+4+c}")
    A(f"v_and_b32 v31, 16, v{LN}")
    A(f"s_lshl_b32 s32, s{sW4}, 7")
    if slot:
        A(f"s_add_u32 s32, s32, {slot}")
    A("v_add3_u32 v30, v31, v30, s32")
    for sh in ("quad_perm:[2,3,0,1]", "row_ror:4", "row_ror:8"):
        for c in range(4):
            A(f"v_add_f32_dpp v{AC+c}, v{AC+c}, v{AC+c} {sh} {DPPF}")
    A("s_mov_b32 exec_lo, 0x00030003")
    A("s_mov_b32 exec_hi, 0x00030003")
    A(f"ds_write_b128 v30, {v(AC,4)} offset:{0 if slot else T_INB}")
    A("s_mov_b64 exec, -1")


def ffn_down(slot=None, off=None, wait=None):
    A(f"v_and_b32 v30, 1, v{LN}")
    A(f"v_bfe_u32 v31, v{LN}, 1, 3")
    A("v_lshl_add_u32 v30, v30, 3, v31")
    ra = 21 if slot else 30
    if slot:
        A(f"v_lshl_add_u32 v21, v30, 2, {slot}")
    else:
        A("v_lshlrev_b32 v30, 2, v30")
        A(f"v_add_u32 v30, {T_INB}, v30")
    reads = lambda: [A(f"ds_read2_b32 {v(32+2*i,2)}, v{ra} offset0:{32*i} offset1:{32*i+16}") for i in range(4)]
    if not slot:
        reads()
    A(f"v_lshrrev_b32 v30, {RQ.bit_length()}, v{LN}")
    A(f"v_mul_u32_u24 v30, {224*16*RQ}, v30")
    if RQ > 1:
        A(f"v_and_b32 v31, {2*RQ-2}, v{LN}")
        A("v_lshl_add_u32 v30, v31, 3, v30")
    A(f"s_add_u32 s32, s{sF}, 32")
    A("s_lshr_b32 s32, s32, 8")
    A("v_lshl_add_u32 v30, s32, 31, v30")
    A(f"s_mul_i32 s32, s{sW4}, {32*224*16}")
    A(f"s_mul_i32 s33, s{2 if opt('pyp', 0) else sF}, {16*RQ}")
    A("s_add_u32 s32, s32, s33")
    A(f"s_add_u32 s32, s32, {off or 's%d' % sCI}")
    A(f"s_add_u32 s32, s32, {hex(PY)}")
    wait(reads) if slot else A("s_waitcnt lgkmcnt(0)")
    A("v_pk_add_f32 v[32:33], v[32:33], v[34:35]")
    A("v_pk_add_f32 v[36:37], v[36:37], v[38:39]")
    A("v_pk_add_f32 v[32:33], v[32:33], v[36:37]")
    A(f"v_mul_f32 v34, {fl(-math.log2(math.e))}, v32")
    A("v_exp_f32 v34, v34")
    A("v_mul_f32 v32, v32, v33")
    A("v_add_f32 v34, 1.0, v34")
    A("v_rcp_f32 v34, v34")
    A("v_mul_f32 v32, v32, v34")
    A(f"v_mov_b32_dpp v33, v32 quad_perm:[2,3,2,3] {DPPF}")
    A("v_cvt_pk_bf16_f32 v32, v32, v33")
    for p in range(4):
        A(f"ds_swizzle_b32 v{36+p}, v32 offset:{hex(1 | (4*p) << 5)}")
    A("s_waitcnt lgkmcnt(0)")
    AC = 40
    isffn(lambda: [A(f"v_dot2_f32_bf16 v{AC+c}, v{WMAP[(2,p,c)]}, v{36+p}, {'0' if p == 0 else 'v%d' % (AC+c)}")
                   for p in range(4) for c in range(8)])
    A.lines.append("@cut")
    for c in range(8):
        A(f"v_add_f32_dpp v{AC+c}, v{AC+c}, v{AC+c} quad_perm:[1,0,3,2] {DPPF}")
    A("s_mov_b32 exec_lo, 0x55555555")
    A("s_mov_b32 exec_hi, 0x55555555")
    for c in range(4):
        A(f"v_cvt_pk_bf16_f32 v{AC+c}, v{AC+2*c}, v{AC+2*c+1}")
    A(f"buffer_store_dwordx4 {v(AC,4)}, v30, {WSR}, s32 offen sc1")
    A("s_mov_b64 exec, -1")


NR = -(-7 * RQ // 2)
RP, RS = 88 - 4 * NR, 24


def red_loads(off=None, RP=RP):
    A(f"s_mul_i32 s32, s89, {224*16}")
    A(f"s_add_u32 s32, s32, {off or 's%d' % sCI}")
    A(f"s_add_u32 s32, s32, {hex(PY)}")
    for i in range(NR):
        if RQ == 1 and i == 3:
            A("s_mov_b32 exec_hi, 0")
        A(f"buffer_load_dwordx4 {v(RP+4*i,4)}, v{L16}, {WSR}, s32 offen offset:{(i&3)*1024} sc1")
        if i & 3 == 3 and RQ > 1:
            A("s_add_u32 s32, s32, 4096")
    if RQ == 1:
        A("s_mov_b64 exec, -1")


def red_chk(RP=RP):
    sent_check(range(RP, RP + 4 * NR), 30, SST)


def red_pre():
    A(f"v_and_b32 v30, 16, v{LN}")
    A("v_cmp_eq_u32 vcc, 16, v30")
    A(f"v_mov_b32 v28, s{sRSTD}")
    A(f"v_mul_f32 v29, s{sMEAN}, v28")
    A("v_add_f32 v28, 1.0, v28")
    A(f"v_cndmask_b32 v30, v{XG}, v{XG+1}, vcc")
    A(f"v_cndmask_b32 v31, v{XG+2}, v{XG+3}, vcc")
    if RQ == 1:
        A("s_bitcmp1_b32 s89, 0")
        A("s_cselect_b64 vcc, -1, 0")
    else:
        A("s_mov_b32 vcc_lo, 0xaaaaaaaa")
        A("s_mov_b32 vcc_hi, 0xaaaaaaaa")
    A(f"v_mov_b32 v96, {fl(-math.log2(math.e))}")
    A(f"v_mul_f32 v96, s{sR}, v96")
    A("v_exp_f32 v96, v96")
    A("v_cndmask_b32 v30, v30, v31, vcc")
    A("v_lshlrev_b32 v92, 16, v30")
    A("v_and_b32 v93, 0xffff0000, v30")
    for c in range(2):
        A(f"v_fma_f32 v{92+c}, v{92+c}, v28, -v29")
    A("v_add_f32 v96, 1.0, v96")
    A("v_rcp_f32 v96, v96")
    for c in range(4 * (RQ == 1)):
        A(f"v_mov_b32 v{RP+12+c}, 0")


def red_sum(RP=RP):
    R, T = RS, 88
    for d in range(4):
        A(f"v_lshlrev_b32 v{R+2*d}, 16, v{RP+d}")
        A(f"v_and_b32 v{R+2*d+1}, 0xffff0000, v{RP+d}")
    for i in range(1, NR):
        for d in range(0, 4, 2):
            for e in range(2):
                A(f"v_lshlrev_b32 v{T+2*e}, 16, v{RP+4*i+d+e}")
                A(f"v_and_b32 v{T+2*e+1}, 0xffff0000, v{RP+4*i+d+e}")
            for e in range(2):
                A(f"v_pk_add_f32 {v(R+2*d+2*e,2)}, {v(R+2*d+2*e,2)}, {v(T+2*e,2)}")
    for n, sw in ((4, 32), (2, 16)):
        for c in range(n):
            A(f"v_permlane{sw}_swap_b32 v{R+c}, v{R+n+c}")
        for c in range(n):
            A(f"v_add_f32 v{R+c}, v{R+c}, v{R+n+c}")
    for sh in ("quad_perm:[1,0,3,2]", "quad_perm:[2,3,0,1]", "row_ror:4", "row_ror:8")[RQ >> 1:]:
        for c in range(2):
            A(f"v_add_f32_dpp v{R+c}, v{R+c}, v{R+c} {sh} {DPPF}")
    for c in range(2):
        A(f"v_fma_f32 v{R+4+c}, v{R+c}, v96, v{92+c}")
    for c in range(4):
        A(f"v_cvt_pk_bf16_f32 v{R+c}, v{R+4}, v{R+5}")
    A(f"v_permlane16_swap_b32 v{R}, v{R+1}")
    A(f"v_permlane16_swap_b32 v{R+2}, v{R+3}")
    A(f"v_permlane32_swap_b32 v{R}, v{R+2}")
    A(f"v_permlane32_swap_b32 v{R+1}, v{R+3}")


WCH, XCH, WAC = 100, 132, 140


def wch_reads(st):
    A(f"s_min_u32 s30, s{sW4}, 2")
    A("s_lshl_b32 s30, s30, 13")
    A(f"s_add_u32 s30, s30, {L_W + (st % 3)*WSL}")
    wtr_addr(144, None, "s30")
    for ct in range(1, 4):
        A(f"v_xor_b32 v{144+ct}, {32*ct}, v144")
    for ct in range(4):
        for q in range(4):
            A(f"ds_read_b64_tr_b16 {v(WCH+8*ct+2*q,2)}, v{144+ct} offset:{q*2048}")


def cub_base(base):
    A(f"s_min_u32 s32, s{sW4}, 2")
    A("s_lshl_b32 s32, s32, 12")
    A(f"s_lshl_b32 s33, s{sHG}, 14")
    A("s_add_u32 s32, s32, s33")
    A(f"s_add_u32 s32, s32, {hex(base)}")


def wch_reduce(base, x, guard=None):
    if guard:
        b = cap(lambda: wch_reduce(base, x))
        c, e = b.index("@cut"), [i for i, ln in enumerate(b) if ln.startswith("v_lshlrev_b32 v20")][0]
        A("v_bfrev_b32 v20, 1")
        guard(lambda: A.lines.extend(b[:c] + b[e:-1]))
        A.lines += b[c+1:e] + b[-1:]
        return
    for ct in range(4):
        A(f"v_mov_b32 v{WAC+ct}, 0")
    for q in range(8):
        for ct in range(4):
            A(f"v_dot2c_f32_bf16 v{WAC+ct}, {ONES if x is None else 'v%d' % (x+q)}, v{WCH+8*ct+q}")
    A.lines.append("@cut")
    cub_base(base)
    A(f"s_lshl_b32 s33, s{sRB}, 8")
    A("s_add_u32 s32, s32, s33")
    A(f"v_lshlrev_b32 v20, 2, v{LN}")
    tred4(WAC)
    A(f"buffer_store_dword v{WAC}, v20, {WSR}, s32 offen sc1")


def cub_loads(Z, base):
    cub_base(base)
    for i in range(4):
        A(f"buffer_load_dwordx4 {v(Z+4*i,4)}, v{L16}, {WSR}, s32 offen offset:{i*1024} sc1")


def cub_sum(Z):
    for i in range(1, 4):
        for c in range(0, 4, 2):
            A(f"v_pk_add_f32 {v(Z+c,2)}, {v(Z+c,2)}, {v(Z+4*i+c,2)}")
    tred4(Z)


def tab_write(a_, m_, c_, d_, t, alt=False):
    if alt:
        A(f"v_and_b32 v{t}, 15, v{LN}")
        A(f"v_lshrrev_b32 v{t+1}, 5, v{LN}")
        A(f"v_lshl_add_u32 v{t}, v{t}, 1, v{t+1}")
        A(f"v_bfe_u32 v{t+1}, v{LN}, 4, 1")
    else:
        A(f"v_and_b32 v{t}, 31, v{LN}")
        A(f"v_lshrrev_b32 v{t+1}, 5, v{LN}")
    A(f"v_cmp_eq_u32 vcc, 0, v{t+1}")
    A(f"v_lshlrev_b32 v{t+1}, 9, v{t+1}")
    A(f"v_lshl_add_u32 v{t}, v{t}, 2, v{t+1}")
    A(f"s_lshl_b32 s32, s{sW4}, 7")
    A(f"v_add_u32 v{t}, s32, v{t}")
    A(f"v_cndmask_b32 v{t+1}, {m_}, {a_}, vcc")
    A(f"v_cndmask_b32 v{t+2}, {d_}, {c_}, vcc")
    A(f"ds_write_b32 v{t}, v{t+1} offset:{T_A}")
    A(f"ds_write_b32 v{t}, v{t+2} offset:{T_C}")
    A(f"v_and_b32 v{t}, 15, v{LN}")
    A(f"v_lshrrev_b32 v{t+3}, 4, v{LN}")
    A(f"v_lshl_add_u32 v{t}, v{t}, 2, v{t+3}")
    A(f"s_min_u32 s32, s{sW4}, 2")
    A("s_lshl_b32 s32, s32, 8")
    A(f"v_lshl_add_u32 v{t}, v{t}, 2, s32")
    A(f"ds_write_b32 v{t}, v{CSUM} offset:{T_CS}")


def idx_write():
    A(f"v_mov_b32 v20, s{sIDX}")
    A(f"v_mov_b32 v21, s{sLOC}")
    A("v_mov_b32 v19, 0")
    A(f"ds_write_b64 v19, v[20:21] offset:{T_IDX}")


VX, VW, VO = 4, 8, 14


def l_setup(L):
    A(f"v_lshrrev_b32 v21, 3, v{LN}")
    if L == 0:
        A(f"v_lshrrev_b32 v20, 4, v{LN}")
        A(f"v_xor_b32 v20, v20, v{LN}")
        A("v_and_b32 v20, 7, v20")
        A("v_lshlrev_b32 v20, 4, v20")
        A(f"v_lshl_add_u32 v{VX}, v21, 11, v20")
        A(f"v_xor_b32 v{VX+1}, 64, v{VX}")
        A(f"v_add_u32 v{VX+1}, {16384-1024}, v{VX+1}")
        A(f"v_add_u32 v{VX+2}, {2*(16384-1024)}, v{VX}")
        A(f"v_add_u32 v{VX+3}, {2*(16384-1024)}, v{VX+1}")
        A(f"s_lshl_b32 s{sSX}, s{sT}, 16")
        A(f"s_lshl_b32 s{sSW}, s{sHG}, 7")
        A(f"s_lshl_b32 s{sMX}, s{sW4}, 12")
        A(f"s_mul_i32 s{sMW}, s{sW4}, 6144")
        A("v_and_b32 v20, 4, v21")
        A("v_add_u32 v20, v20, v21")
        A("v_mul_u32_u24 v20, 6144, v20")
    else:
        A(f"s_lshl_b32 s{sSX}, s{sRB}, 18")
        A(f"s_add_u32 s{sSX}, s{sSX}, s{sMX}")
        if not XFO:
            A(f"s_add_u32 s{sSX}, s{sSX}, {hex(XFB)}")
        A("v_mul_u32_u24 v20, 6144, v21")
    A("v_and_b32 v21, 6, v21")
    A(f"v_xor_b32 v21, v21, v{LN}")
    A("v_and_b32 v21, 7, v21")
    A("v_lshl_add_u32 v20, v21, 4, v20")
    A(f"s_mul_i32 s32, s{sW4}, 3")
    for m in range(3):
        A("s_bfe_u32 s33, s32, 0x10001")
        A(f"s_mul_i32 s33, s33, {32*6144}")
        A("s_and_b32 s34, s32, 1")
        A(f"s_mul_i32 s34, s34, {(4 if L == 0 else 8)*6144}")
        A("s_add_u32 s33, s33, s34")
        A("s_lshr_b32 s34, s32, 2")
        A("s_lshl_b32 s34, s34, 11")
        A("s_add_u32 s33, s33, s34")
        if m == 1:
            A("s_sub_u32 s33, s33, 2048")
        A(f"v_add_u32 v{VW+2*m}, s33, v20")
        A(f"v_add_u32 v{VW+2*m+1}, {16*6144-1024}, v{VW+2*m}")
        if m < 2:
            A("s_add_u32 s32, s32, 1")


def kreg(st):
    return [f"s_add_u32 s{sD0}, s{(sKa, sKb)[st & 1]}, {st}", f"s_and_b32 s{sD0}, s{sD0}, 15"]


def st_x(L, st, tag=None):
    gs = []
    for q in range(4):
        g = []
        if q == 0:
            g += kreg(st) + [f"s_lshl_b32 s{sD1}, s{sD0}, {7 if L == 0 else 14}", f"s_add_u32 s{sD1}, s{sD1}, s{sSX}",
                             f"s_add_u32 m0, s{sMX}, {L_X - XSL*(st % 3)}"]
        if L == 0:
            g += [f"buffer_load_dwordx4 v{VX+q}, s[{XS}:{XS+3}], s{sD1} offen offset:{q*1024} lds ;@{tag or 'st%d' % st}"]
        else:
            g += [f"buffer_load_dwordx4 v{L16}, {XFR}, s{sD1} offen offset:{q*1024} sc1 lds ;@{tag or 'st%d' % st}"]
        gs.append(g)
    return gs


def st_w(st, tag=None):
    gs = []
    for i in range(6):
        g = []
        if i == 0:
            g += kreg(st) + [f"s_mul_i32 s{sD0}, s{sD0}, {64*6144}", f"s_add_u32 s{sD0}, s{sD0}, s{sSW}"]
        if i & 3 == 0:
            g += [f"s_add_u32 m0, s{sMW}, {L_W + WSL*(st % 3) + 1024*i}"]
        g += [f"buffer_load_dwordx4 v{VW+i}, s[{WS_}:{WS_+3}], s{sD0} offen offset:{(i&3)*1024} lds ;@{tag or 'st%d' % st}"]
        gs.append(g)
    return gs


def st_gen(tag):
    k = ["s_bitcmp1_b32 s36, 0", f"s_cselect_b32 s{sD0}, s{sKb}, s{sKa}", f"s_add_u32 s{sD0}, s{sD0}, s36", f"s_and_b32 s{sD0}, s{sD0}, 15"]
    gs = [g[-1:] for g in st_x(1, 0, tag) + st_w(0, tag)]
    gs[0][:0] = k + [f"s_lshl_b32 s{sD1}, s{sD0}, 14", f"s_add_u32 s{sD1}, s{sD1}, s{sSX}", f"s_mul_i32 s38, s37, {XSL}",
                     f"s_sub_u32 s38, s{sMX}, s38", f"s_add_u32 m0, s38, {L_X}"]
    gs[4][:0] = [f"s_mul_i32 s{sD0}, s{sD0}, {64*6144}", f"s_add_u32 s{sD0}, s{sD0}, s{sSW}", f"s_mul_i32 s38, s37, {WSL}",
                 f"s_add_u32 s38, s38, s{sMW}", f"s_add_u32 m0, s38, {L_W}"]
    gs[8][:0] = [f"s_add_u32 m0, s38, {L_W + 4096}", "s_add_u32 s36, s36, 1", "s_add_u32 s37, s37, 1", "s_cmp_eq_u32 s37, 3", "s_cselect_b32 s37, 0, s37"]
    return gs


REDM = [None]


def q_loop(L, jobs, extra, force, lead, pre={}, post=[], first={}, dlead=2, alt=(), adp=None, after={}):
    pq = opt("pq", ())
    fine = lambda it: pq and pq[0] <= it < pq[1]
    mq = lambda it, x: markq(f"{x}{it}") if fine(it) or not pq else None

    def head(it):
        tags = ([f"st{it+1}"] if it < 15 else []) + force.get(it, [])
        if tags:
            W(",".join(tags), 0)
        else:
            A("s_waitcnt lgkmcnt(0)")
        mq(it, "w")
        A("s_barrier")
        mq(it, "b")

    def body(it):
        for j in first.get(it, []):
            j()
        g = pre.get(it, []) + (st_x(L, it + 3) + st_w(it + 3) if it <= 12 else []) + extra.get(it, [])
        weave(g, lambda: [j() for j in [lambda: fine(it) and mq(it, "d")] + jobs.get(it, [])], lead.get(it, dlead), it in post)
        after.get(it, lambda: None)()
        if fine(it):
            mq(it, "j")
    for it in range(16):
        if it in alt[1:]:
            continue
        if adp and adp[0] <= it < adp[1]:
            if it == adp[0]:
                adp[2]()
            continue
        head(it)
        if it not in alt:
            body(it)
            continue
        both = lambda: [(j > it and head(j), body(j)) for j in alt]
        A("s_cmp_lt_i32 s89, 0")
        A("s_cbranch_scc0 q_red")
        REDM[0] = False
        cond("!red", both)
        A.label("q_join")
        A.lines.append("@out")
        A.label("q_red")
        REDM[0] = True
        cond("red", both)
        A("s_branch q_join")
        A.lines.append("@out")
        REDM[0] = None


def isred(body, k=1):
    if REDM[0] is not None:
        return REDM[0] and body()
    if k > 1:
        for x in pieces(body, k):
            isred(x)
        return
    l = newlab("sk")
    A("s_cmp_lt_i32 s89, 0")
    A(f"s_cbranch_scc1 {l}")
    cond("red", body)
    A.label(l)


def l_layer0():
    A.label("l_start")
    A.lines.append("@reset")
    l_setup(0)
    ptr_fin()
    g = st_x(0, 0) + st_w(0) + st_x(0, 1) + st_w(1) + st_x(0, 2) + st_w(2)
    N0, N1 = opt("n0", 8), opt("n1", 17)
    emit(g[:N0])
    masks()
    wo_voff(VO)
    ffn_addr()
    A.lines += ffn_srd(0, TS2) + ffn_srd(2, TS)
    A(f"s_mov_b32 s{sIDX}, -1")
    A(f"s_mov_b32 s{sPATCH}, 0")
    A(f"s_sub_u32 s30, s{sHG}, s{sRB}")
    A(f"s_add_u32 s30, s30, {(COLF - ROWF) // 128 - 1}")
    A(f"v_and_b32 v15, 16, v{LN}")
    A("v_mul_u32_u24 v15, s30, v15")
    A(f"v_and_b32 v20, 31, v{LN}")
    A("v_add_lshl_u32 v15, v15, v20, 3")
    A(f"s_lshl_b32 s30, s{sRB}, 7")
    A(f"s_add_u32 s30, s30, {hex(ROWF)}")
    A("v_add_u32 v15, s30, v15")
    emit(g[N0:N1])
    W("st0", 0)
    A(f"s_add_u32 s{sNON}, s{sNON}, {hex(EPINC)}")
    A("s_barrier")
    emit(g[N1:])
    S, E, Z = 64, 52, 32

    def clears():
        for i in range(4):
            A(f"v_mov_b32 v{16+i}, -1")
        A(f"s_lshr_b32 s30, s{sW4}, 1")
        A(f"s_mul_i32 s30, s30, {LSTR}")
        A(f"s_and_b32 s31, s{sW4}, 1")
        A("s_lshl_b32 s32, s31, 20")
        A(f"s_lshl_b32 s33, s{sCU}, 10")
        A("s_add_u32 s32, s32, s33")
        A("s_add_u32 s32, s32, s30")
        A(f"s_add_u32 s32, s32, {hex(AR)}")
        for i in range(3):
            A(f"buffer_store_dwordx4 v[16:19], v{L16}, {WSR}, s32 offen sc1 ;@pub")
            A(f"s_add_u32 s32, s32, {256*KB}")
        A(f"s_lshl_b32 s33, s{sCU}, 7")
        A("s_add_u32 s33, s33, s30")
        A(f"s_add_u32 s33, s33, {hex(SM)}")
        A("s_cmp_eq_u32 s31, 0")
        A("s_cselect_b32 s32, s32, s33")
        A("s_cselect_b64 exec, -1, 0xff")
        A(f"buffer_store_dwordx4 v[16:19], v{L16}, {WSR}, s32 offen sc1 ;@pub")
        A("s_mov_b64 exec, -1")

    def part(st):
        A(f"v_and_b32 v28, 31, v{LN}")
        A("v_bfe_u32 v29, v28, 1, 3")
        A(f"v_lshrrev_b32 v30, 5, v{LN}")
        A("v_xor_b32 v29, v29, v30")
        A("v_lshlrev_b32 v29, 4, v29")
        A("v_lshl_add_u32 v28, v28, 7, v29")
        A(f"s_add_u32 s30, s{sMX}, {L_X - XSL*(st % 3)}")
        A("v_add_u32 v28, s30, v28")
        for ks in range(1, 4):
            A(f"v_xor_b32 v{28+ks}, {32*ks}, v28")
        for ks in range(4):
            A(f"ds_read_b128 {v(32+4*ks,4)}, v{28+ks}")
        wch_reads(st)

    def part2():
        cs = cut(lambda: tagged("pub", lambda: wch_reduce(CUB0, None)))
        for i in range(4):
            A(f"v_mov_b32 v{48+i}, 0")
        cs[0]()
        for p in range(16):
            A(f"v_dot2c_f32_bf16 v{48+2*(p&1)}, {ONES}, v{32+p}")
            A(f"v_dot2c_f32_bf16 v{49+2*(p&1)}, v{32+p}, v{32+p}")
        A.lines.append("@cut")
        A(f"s_lshl_b32 s30, s{sT}, 12")
        A(f"s_lshl_b32 s31, s{sHG}, 8")
        A("s_add_u32 s30, s30, s31")
        A(f"s_add_u32 s30, s30, {hex(STAT0)}")
        A(f"v_lshlrev_b32 v28, 3, v{LN}")
        A("v_pk_add_f32 v[48:49], v[48:49], v[50:51]")
        A("v_mov_b32 v50, v48")
        A("v_mov_b32 v51, v49")
        A("v_permlane32_swap_b32 v48, v50")
        A("v_permlane32_swap_b32 v49, v51")
        A("v_pk_add_f32 v[48:49], v[48:49], v[50:51]")
        A("s_mov_b32 exec_hi, 0")
        A(f"buffer_store_dwordx2 v[48:49], v28, {WSR}, s30 offen sc1 ;@pub")
        A("s_mov_b64 exec, -1")
        cs[1]()

    def dbgload():
        A(f"buffer_load_dwordx2 v[16:17], v15, {WSR}, 0 offen sc1")

    def arrived():
        poll(dbgload, lambda: A(f"v_cmp_ne_u32 vcc, s{sNON}, v16"), "arr")
        mark("arr")
        A("s_getreg_b32 s30, hwreg(HW_REG_XCC_ID, 0, 4)")
        A("v_cmp_ne_u32 vcc, s30, v17")
        A("s_and_b32 s30, vcc_lo, 0xffff")
        A(f"s_cselect_b32 s{sLOC}, 0, 1")
        idx_write()

    def s0loads():
        A(f"s_lshl_b32 s30, s{sT}, 12")
        A(f"s_add_u32 s30, s30, {hex(STAT0)}")
        for i in range(4):
            A(f"buffer_load_dwordx4 {v(S+4*i,4)}, v{L16}, {WSR}, s30 offen offset:{i*1024} sc1 ;@s0")
        tagged("s0", lambda: cub_loads(Z, CUB0))

    def tables():
        W("s0")
        for i in range(1, 4):
            for c in range(0, 4, 2):
                A(f"v_pk_add_f32 {v(S+c,2)}, {v(S+c,2)}, {v(S+4*i+c,2)}")
        A(f"v_permlane32_swap_b32 v{S}, v{S+2}")
        A(f"v_permlane32_swap_b32 v{S+1}, v{S+3}")
        A(f"v_pk_add_f32 {v(S,2)}, {v(S,2)}, {v(S+2,2)}")
        stat_core(S, E, 48, 2, 1, 16)
        cub_sum(Z)
        A(f"v_mov_b32 v{CSUM}, v{Z}")
        tab_write(f"v{E+3}", f"v{E+2}", "1.0", "0", 48, True)
    SP, CL, AR_, AP = opt("sp", 1), opt("cl", 0), AR_IT, opt("ap", 10)
    jobs, extra = {}, {}
    S0, TB0 = opt("s0", 13), opt("tb0", 14)
    p2 = cut(plain(part2))
    for it, j in ((SP - 1, lambda: part(SP)), (CL, clears), (SP, p2[0]), (opt("sp2", SP + 1), p2[1]), (opt("cp0", 9), lambda: code_pf(1, 154)),
                  (AP, lambda: tagged("arr", dbgload)), (AP + 1, arrived), (S0, s0loads), (TB0, plain(tables))):
        jobs.setdefault(it, []).append(j)
    ff = ffn_groups(0, TS2) + ffn_groups(1, XS) + ffn_groups(2, TS)
    assert min(FFS[8:16]) >= 14 and all(x <= 16 for x in WO0)
    extra[13] = [ffn_srd(1, XS)]
    for k, gr in [(FFS[j], ff[j]) for j in list(range(16, 24)) + list(range(16))] + list(zip(WO0, wo_groups(range(1, 10), VO, "wo"))):
        (extra if k < 16 else LATE).setdefault(k, []).append(gr)
    q_loop(0, jobs, extra, {AR_: ["pub"]}, opt("lead0", {CL: 2, AP: 0, AP + 1: 10, S0: 1 if S0 == 13 else 10, TB0: 0}), post=opt("post0", [S0, TB0]))


ZZ, ZX, ZT = 56, 72, 80
PMID = opt("pmid", 1)


ZSEP = opt("zsep", 1)
ZE = opt("ze", 0)


def zxloads():
    x2base(32)
    for i in range(2):
        A(f"buffer_load_dwordx4 {v(ZX+4*i,4)}, v{L16}, {WSR}, s32 offen offset:{1024*i} sc1")


def zloads():
    cub_loads(ZZ, CUB + LSTR)
    if not ZSEP:
        zxloads()


def halo_flag():
    A(f"buffer_load_dword v49, v48, {WSR}, s30 offen sc1")


def halo_poll():
    poll(halo_flag, lambda: A(f"v_cmp_ne_u32 vcc, s{sNON}, v49"))


def halo_dma():
    mark("kv_ok")
    A("s_mov_b32 s36, -1")
    A(f"s_lshl_b32 s30, s{sW4}, 13")
    for hd in range(2):
        for tt in range(2):
            A(f"s_add_u32 m0, s30, {L_KV + hd*KVH + tt*4096}")
            A(f"s_add_u32 s31, s35, {hd*262144 + tt*4096}")
            for p in range(4):
                A(f"buffer_load_dwordx4 v{L16}, {WSR}, s31 offen offset:{p*1024} {opt('hb', 'sc1').replace('no', '')} lds")


def l_patch():
    A.label("l_patch")
    a, b, t = ZT, ZT + 1, ZT + 2
    zchk = lambda: sent_check(range(ZZ, ZZ + (16 if ZSEP else 24)), t)

    def rowstat(mid):
        A(f"v_mov_b32 v{a}, 0")
        A(f"v_mov_b32 v{b}, 0")
        for p in range(8):
            A(f"v_dot2c_f32_bf16 v{a}, {ONES}, v{ZX+p}")
            A(f"v_dot2c_f32_bf16 v{b}, v{ZX+p}, v{ZX+p}")
        mid()
        x, y = cap(lambda: wave_red(a, t)), cap(lambda: wave_red(b, t + 1))
        for i, j in zip(x, y):
            A.lines += [i, j]
        A(f"v_mul_f32 v{a}, {fl(1/1024)}, v{a}")
        A(f"v_mul_f32 v{b}, {fl(1/1024)}, v{b}")
        A(f"v_fma_f32 v{b}, -v{a}, v{a}, v{b}")
        A(f"v_max_f32 v{b}, 0, v{b}")
        A(f"v_add_f32 v{b}, {fl(EPS)}, v{b}")
        A(f"v_rsq_f32 v{b}, v{b}")
    if ZSEP:
        zxloads()
        zloads()
        if EH != 3:
            halo_flag()
        markx("zi")
        if ZE:
            assert EH == 3 and not WDEF
            A("s_waitcnt vmcnt(4)")
            A.label("l_patch_e")
        poll(zxloads, lambda: sent_check(range(ZX, ZX + 8), t), 5 + WO1.count(16) if ZE else 4 + (EH != 3))
        markx("zx")
        rowstat(lambda: None)
        markx("zs")

    def chk():
        A(f"v_cmp_ne_u32 vcc, s{sNON}, v49")
        A("s_ashr_i32 s34, s36, 31")
        A("s_or_b32 s34, s34, vcc_lo")
        markx("zr")
        zchk()
        A("s_cbranch_vccz l_zok")
        A("s_cmp_lg_u32 s34, 0")
        A("s_cselect_b64 vcc, -1, 0")
    if EH == 3:
        poll(zloads, zchk, 0)
    else:
        poll(lambda: (zloads(), halo_flag()), chk, 0 if ZSEP else None)
        A("s_cmp_lg_u32 s34, 0")
        A("s_cbranch_scc1 l_zok")
        zloads()
        halo_dma()
        A("s_mov_b32 s34, -1")
        poll(zloads, zchk, 16)
    A.label("l_zok")
    markx("zo")
    if WDEF == 1:
        wo1()
    if PMID and EH != 3:
        skip_if("s_cmp_lg_u32 s34, 0", halo_dma)
    cub_sum(ZZ) if ZSEP else rowstat(lambda: cub_sum(ZZ))
    A(f"v_fma_f32 v{ZZ}, -v{a}, v{CSUM}, v{ZZ}")
    A(f"v_mul_f32 v{b}, s37, v{b}")
    A(f"v_mul_f32 v{ZZ}, v{ZZ}, v{b}")
    A(f"v_cvt_pk_bf16_f32 v1, v{ZZ}, v{ZZ}")
    mark("f_patch")
    if PMID:
        A(f"s_cmp_lg_u32 s{sPATCH}, 2")
        A("s_cbranch_scc1 l_pmid")
        patch_write()
    else:
        skip_if(f"s_cmp_lg_u32 s{sPATCH}, 2", patch_write)
        if EH != 3:
            skip_if("s_cmp_lg_u32 s34, 0", halo_dma)
    if WDEF == 2:
        wo1()
    A("s_branch l_patched")


WDEF = opt("wdef", 0)


def wo1():
    emit([g for j, g in zip(WO1, wo_groups([10, 11], 50 if WDEF else VO, "wo")) if j == 16])


def patch_write():
    A("s_cmp_lg_u32 s38, 0")
    A("s_barrier")
    A("s_cselect_b64 exec, -1, 0")
    A("ds_write_b16 v0, v1")
    A("s_mov_b64 exec, -1")
    A("s_waitcnt lgkmcnt(0)")
    A("s_barrier")


def l_halo_addr():
    A(f"s_lshr_b32 s36, s{sW4}, 1")
    A(f"s_add_u32 s36, s36, s{sRB}")
    A("s_sub_u32 s36, s36, 2")

    A(f"s_and_b32 s34, s{sW4}, 1")
    A(f"s_lshl_b32 s35, s{sHG}, 7")
    A("s_lshl_b32 s30, s36, 2")
    A("s_add_u32 s35, s35, s30")
    A("s_lshl_b32 s30, s34, 1")
    A("s_add_u32 s35, s35, s30")
    A("s_lshl_b32 s35, s35, 12")
    A(f"s_add_u32 s35, s35, s{sL}")
    A(f"s_lshl_b32 s30, s{sHG}, 8")
    A("s_lshl_b32 s31, s36, 4")
    A("s_add_u32 s30, s30, s31")
    A("s_lshl_b32 s31, s34, 3")
    A("s_add_u32 s30, s30, s31")
    if KVS:
        A(f"s_lshl_b32 s30, s30, {KVS}")
    A(f"s_add_u32 s30, s30, s{sL}")
    A(f"s_add_u32 s30, s30, {hex(KVF)}")
    A(f"v_and_b32 v48, 4, v{LN}")
    if KVS:
        A(f"v_lshlrev_b32 v48, {KVS}, v48")


def l_att():
    A.label("l_att")
    A.lines.append("@reset")
    if WDEF:
        A(f"v_mov_b32 v50, v{VO}")
    skip_if(f"s_cmp_lg_u32 s{sPATCH}, 0", wo1) if WDEF else wo1()
    if ZE:
        skip_if(f"s_cmp_le_u32 s{sPATCH}, {PMID}", zloads)
    late(16)
    att_setup(1)
    if EH != 3:
        l_halo_addr()
    mark("x0_wait")
    skip_if(f"s_cmp_eq_u32 s{sPATCH}, 2", lambda: A("s_barrier"))
    A(f"s_cmp_gt_u32 s{sPATCH}, {PMID}")
    A(f"s_cbranch_scc1 l_patch{'_e' if ZE else ''}")
    if EH == 2:
        A("s_branch l_nohalo")
    A.label("l_patched")
    if EH in (1, 2):
        skip_if("s_cmp_lt_i32 s36, 0", lambda: (halo_poll(), halo_dma()))
    A.label("l_nohalo")
    att_qread()
    mark("a_go")
    n26 = len(LATE.get(26, []) + LATE.get(27, [])) if EH & 1 else 0

    def wt(n):
        A(f"s_waitcnt vmcnt({n+n26})")
        if n26:
            skip_if(f"s_cmp_eq_u32 s{sL}, 0", lambda: A(f"s_waitcnt vmcnt({n})"))

    def mid():
        mark("a_end")
        if PMID:
            A(f"s_cmp_eq_u32 s{sPATCH}, 1")
            A("s_cbranch_scc1 l_patch")
            A.label("l_pmid")
        if EH & 1 == 0:
            skip_if("s_cmp_lt_i32 s36, 0", lambda: (halo_poll(), halo_dma()))
        late(27)
        if EH != 3:
            wt(8)
            mark("x1_wait")
        skip_if(f"s_cmp_eq_u32 s{sPATCH}, 1", lambda: A("s_barrier"))
        wt(0)
        skip_if(f"s_cmp_lg_u32 s{sPATCH}, 1", patch_write)
        late(17)
        A("s_barrier")
        mark("att_go")

    def hook(k):
        if k == XLA and XE2 < 8:
            A("s_barrier")
        late(18 + k)
    attention(1, lambda: late(26), mid, hook)
    if XLA == 8 and XE2 < 8:
        A("s_barrier")
    flag_store("s31", True)
    mark("o_fl")
    late(40)
    wo_voff(VO)
    ffn_xaddr()
    A(f"s_mov_b32 s{sCI}, s{sL}")

    def nxt():
        if 40 in LATE and (not DLATE or 40 in FFS[:16]):
            A("s_waitcnt vmcnt(0)")
        code_pf(2, 19)
        if PF:
            pf_setup(18, 35)
            for k in range(PFD):
                A.lines += pf_load(18, 19, k - 2, 35)
        ffn_perm((0, 1) if DLATE else (0, 1, 2))
        l_setup(1)
        A(f"s_sub_u32 s30, s{sKb}, 1")
        A(f"s_sub_u32 s{sKb}, s{sKa}, 3")
        A(f"s_mov_b32 s{sKa}, s30")
        xf_off(116)
        A(f"v_and_b32 v16, 15, v{LN}")
        A("v_lshlrev_b32 v16, 9, v16")
        assert not XFO
    skip_if(f"s_cmp_lg_u32 s{sL}, 0", nxt)
    A("s_barrier")
    emit(wo_groups(range(28, 32), VO, "wo"))
    if SPEC:
        for i in range(4):
            A(f"v_mov_b32 v{24+i}, -1")
        A(f"v_lshl_add_u32 v28, s{sW4}, 10, v{L16}")
        A("ds_write_b128 v28, v[24:27]")
    A("s_waitcnt vmcnt(0) lgkmcnt(0)")

    def wbk():
        A(f"s_lshl_b32 s30, s{sHG}, 2")
        A(f"s_add_u32 s30, s30, s{sW4}")
        A(f"s_add_u32 s30, s30, s{sL}")
        skip_if(f"s_cmp_lg_u32 s30, {LSTR+4*WBH+1}", lambda: A("buffer_wbl2 sc1"))
    if WBK & 8:
        wbk()
    A("s_barrier")
    if WBK & 1:
        wbk()
    A(f"s_cmp_lg_u32 s{sL}, 0")
    A("s_cbranch_scc1 l_tail")


def readsel(T, lane):
    for r_, i in ((sR, 0), (sIDX, 1), (sMEAN, 2), (sRSTD, 3)):
        A(f"v_readlane_b32 s{r_}, v{T+i}, {lane}")
    A(f"s_and_b32 s{sIDX}, s{sIDX}, 2047")


def l_layer1():
    S, E, TB, PR = 64, 52, 16, 32
    GATE = opt("gate", 1)
    A(f"s_mov_b32 s{sL}, {LSTR}")
    A("s_mov_b32 s36, 0")

    def gate(st):
        A.lines += kreg(st)

        def chk():
            A("v_cmp_ne_u32 vcc, -1, v17")
            A("s_mov_b32 s36, vcc_lo")
            if GATE:
                A(f"s_bitcmp0_b32 s36, s{sD0}")
            else:
                A("s_cmp_lg_u32 s36, -1")
            A("s_cselect_b64 vcc, -1, 0")

        def spin():
            A(f"s_lshl_b32 s30, s{sT}, 13")
            A(f"s_add_u32 s30, s30, {hex(STAT)}")
            poll(lambda: A(f"buffer_load_dword v17, v16, {WSR}, s30 offen sc1"), chk)
        skip_if(f"s_bitcmp1_b32 s36, s{sD0}", spin)
    SC = dict(stL=-1, st1=-1, st2=-1, st3=1, tabL=3, arg=4, gu1=5, gu2=6, dn1=7, dn2=7, redL=10, red1=11, red2=11, x2L=14, wch=13, z=15, pad=14, prm=2)
    SC.update(opt("sc", {}))
    EARLY = SC["st1"] < 0
    if opt("dnm", 0):
        mark("x4")
    emit(st_w(0) + st_w(1) + LATE.get(41, []))
    if opt("dnm", 0):
        mark("dn_i")
        W("st1")
        mark("w_l")
        A("s_waitcnt vmcnt(0)")
        mark("dn_l")
    prof_next()
    if EARLY:
        A.lines += kreg(1)
        A(f"s_lshl_b32 s37, 1, s{sD0}")
        A(f"s_lshl_b32 s38, 1, s{sCG}")
        A("s_or_b32 s38, s38, s37")
        A(f"s_lshl_b32 s30, s{sT}, 13")
        A(f"s_add_u32 s30, s30, {hex(STAT)}")

        def chk():
            A("v_cmp_ne_u32 vcc, -1, v17")
            A("s_and_b32 s36, vcc_lo, s38")
            A("s_cselect_b64 vcc, 0, -1")
        poll(lambda: A(f"buffer_load_dword v17, v16, {WSR}, s30 offen sc1"), chk)
        mark("x_ok")
        A("s_and_b32 s36, s36, s37")
        skip_if("s_cmp_eq_u32 s36, 0", lambda: emit(st_x(1, 1)))
    elif GATE:
        gate(1)
        mark("x_ok")
        emit(st_x(1, 1))
    if not EARLY:
        W("st0")
    A("s_barrier")
    if EARLY:
        tagged("stat", stat_loads(S, STAT))
    emit(st_w(2))
    for ks in range(4):
        A(f"ds_read_b128 {v(PR+4*ks,4)}, v117 offset:{ks*512}")
    if not GATE:
        gate(1)
        mark("x_ok")
        emit(st_x(1, 1))
    stpoll = lambda: poll(stat_loads(S, STAT), lambda: sent_check(range(S, S + 32), 48, SST), "stat")

    def st1():
        stpoll()
        stat_core(S, E, 48)

    def st2():
        A("s_waitcnt lgkmcnt(0)")
        cand_publish(S, E, 48, PR, 0)
        mark("cand")
    if EARLY:
        stpoll()
        mark("st_ok")
        skip_if("s_cmp_lg_u32 s36, 0", lambda: emit(st_x(1, 1)))
        weave(st_x(1, 2), lambda: (plain(lambda: stat_core(S, E, 48))(), SC["st2"] < 0 and st2()), opt("x2l", 1))
    else:
        if SC["stL"] < 0:
            tagged("stat", stat_loads(S, STAT))
        gate(2)
        emit(st_x(1, 2))

    emit(LATE.get(42, []))

    def st3():
        A(f"v_add_f32 v56, 1.0, v{E+3}")
        A(f"v_mul_f32 v57, v{E+2}, v{E+3}")
        A("v_mul_f32 v58, v56, v56")
        A("v_sub_f32 v57, 0, v57")
        A(f"v_mul_f32 v58, v58, v{S+1}")
        A(f"v_add_f32 v58, {fl(EPS)}, v58")
        A("v_rsq_f32 v58, v58")
        A("v_mul_f32 v58, v58, v56")
        tab_write("v58", f"v{E+2}", "v56", "v57", 48)

    def arg():
        argmax_lane(TB, 63 if ADP else "tab")
        readsel(TB, "s32")
        tagged("x", xloads)
        mark("f_arg")
        idx_write()
        patch_flag()

    def gateup():
        poll(xloads, lambda: sent_check(range(XG, XG + 4), 30), "x")
        isred(red_pre)
        ffn_gateup()

    def down():
        ffn_down()
        mark("f_down")

    def red():
        poll(red_loads, red_chk, "red")
        red_sum()

    def redst():
        if REDM[0] is False and opt("ralt", 2) != 3:
            return
        A(f"s_mov_b32 s32, {hex(X2R)}")
        A("s_lshl_b32 s33, s89, 4")
        assert RQ == 2
        A(f"v_lshrrev_b32 v89, 1, v{LN}")
        A(f"v_and_or_b32 v88, v{L16}, 16, s33")
        A("v_lshl_or_b32 v88, v89, 11, v88")
        A(f"s_mov_b64 exec, {(1 << RQ*XREP) - 1}")
        A(f"buffer_store_dwordx4 {v(RS,4)}, v88, {WSR}, s32 offen sc1")
        A("s_mov_b64 exec, -1")
        isred(lambda: mark("f_red")) if PROF else None
    SZ = SC["wch"] + 1

    def x2loads(k=None):
        A(f"s_add_u32 s35, s{(sKa, sKb)[SZ & 1]}, {SZ}")
        A("s_and_b32 s35, s35, 15")
        A("s_lshl_b32 s35, s35, 7")
        x2base(35, 35)
        A(f"v_and_b32 v19, 32, v{LN}")
        A(f"v_bfe_u32 v18, v{LN}, 4, 1")
        A("v_lshl_add_u32 v19, v18, 3, v19")
        if k:
            A(f"s_cmp_lg_u32 s36, {k}")
            A("s_cselect_b32 s34, 1, 0")
            A("v_lshl_add_u32 v19, s34, 31, v19")
        for kk in range(4):
            A(f"buffer_load_dwordx2 {v(XCH+2*kk,2)}, v19, {WSR}, s35 offen offset:{64*(kk>>1)+16*(kk&1)} sc1")

    def z():
        poll(x2loads, lambda: sent_check(range(XCH, XCH + 8), 30), "x2")
        if ZE:
            assert SC["z"] == 15 and not ADP
            skip_if(f"s_cmp_le_u32 s{sPATCH}, {PMID}", zxloads)
        wch_reduce(CUB + LSTR, XCH)
        mark("f_z")

    ADP = opt("adp", ())
    ZO, RO, TB2, sA = opt("zo", 11), opt("ro", 6), 148, 36

    def ztry(k):
        def guard(act):
            skip_if(f"s_cmp_lg_u32 s36, {k}", lambda: (poll(x2loads, lambda: sent_check(range(XCH, XCH + 8), 30), "x2"), act(), mark("f_z")))
        if k > 12:
            wch_reduce(CUB + LSTR, XCH, guard)
        if k < min(15, ADP[1] + ZO):
            tagged("x2", lambda: x2loads(k + 1))

    def tchk():
        W("tab")
        for i in range(4):
            A(f"v_mov_b32 v{TB+i}, v{TB2+i}")
        tagged("tab", table_loads(TB2))
        sent_check(range(TB, TB + 4), TB + 4)
        A("v_mov_b32 v49, 0")
        A("s_cmp_eq_u64 vcc, 0")
        A("s_cselect_b32 s32, s36, 64")
        A("v_mov_b32 v48, s32")
        A(f"s_cmp_eq_u32 s{sW4}, 0")
        A("s_cselect_b64 exec, 1, 0")
        A(f"ds_write_b32 v49, v48 offset:{T_IDX + 8}")
        A("s_mov_b64 exec, -1")

    def adaptive():
        def head(tag, most=None):
            W(tag, 0, most)
            A("s_barrier")
        A(f"s_mov_b32 s36, {ADP[0] + 3}")
        A(f"s_mov_b32 s37, {ADP[0] % 3}")
        tchk()
        A.label("a_top")
        head(f"st{ADP[0]+1}", 12)
        A(f"ds_read_b32 v48, v49 offset:{T_IDX + 8}")
        g = st_gen("g0")
        emit(g[:2])
        A("s_waitcnt lgkmcnt(0)")
        A("v_readfirstlane_b32 s32, v48")
        A(f"s_cmp_ge_u32 s36, {ADP[1] + 3}")
        A("s_cselect_b32 s32, 0, s32")
        A("s_cmp_le_u32 s32, s36")
        A("s_cbranch_scc1 a_arg")
        emit(g[2:])
        tchk()
        A("s_branch a_top")
        A.label("a_arg")
        A.lines += ["@again"] * 2
        A(f"v_mov_b32 v{TB2+5}, s36")
        weave(st_gen("g1")[2:], arg, 0)
        n = 12 - ADP[1]
        seq = {1: gu[0], 2: gu[1], 3: lambda: (dn[0](), dn[1]()), RO + 1: lambda: (isred(rd[0], 4), isred(rd[1], 4), redst())}
        assert 4 <= RO < n
        for i in range(1, n + 1):
            head(f"g{i-1}")
            if i == RO:
                isred(lambda: tagged("red", red_loads))
            weave(st_gen(f"g{i+1}" if i < n else "st14"), seq.get(i, lambda: None), opt("dlead", 2))
        A.label("a_rest")
        A("s_cmp_ge_u32 s36, 16")
        A("s_cbranch_scc1 a_end")
        head(f"g{n}", 10)
        emit(st_gen("st15"))
        A("s_branch a_rest")
        A.label("a_end")
        A(f"v_readfirstlane_b32 s36, v{TB2+5}")
        A(f"s_add_u32 s36, s36, {ZO - 3}")
        A("s_max_u32 s36, s36, 13")
        A("s_min_u32 s36, s36, 15")
        ztry(12)

    def paddr():
        A(f"v_and_b32 v20, 7, v{LN}")
        A(f"v_lshrrev_b32 v21, 4, v{LN}")
        A("v_lshl_add_u32 v21, v20, 2, v21")
        A(f"s_and_b32 s34, s{sIDX}, 31")
        A("s_and_b32 s32, s34, 7")
        A("s_and_b32 s33, s34, 8")
        A("s_lshl_b32 s33, s33, 1")
        A("s_add_u32 s32, s32, s33")
        A("s_lshr_b32 s33, s34, 4")
        A("s_lshl_b32 s33, s33, 3")
        A("s_add_u32 s32, s32, s33")
        A(f"s_cmp_eq_u32 s{sW4}, 1")
        A("s_cselect_b32 s34, s32, s34")
        A("v_mov_b32 v20, s34")
        A(f"s_cmp_ge_u32 s{sW4}, 2")
        A("s_cselect_b64 vcc, -1, 0")
        A("s_cselect_b32 s32, 2048, 0")
        A("v_cndmask_b32 v30, v20, v21, vcc")
        A("v_cndmask_b32 v31, v21, v20, vcc")
        A("v_lshlrev_b32 v0, 4, v30")
        A("v_bfe_u32 v20, v31, 2, 2")
        A("v_lshl_add_u32 v0, v20, 9, v0")
        A("v_lshrrev_b32 v20, 4, v31")
        A("v_lshl_add_u32 v0, v20, 3, v0")
        A("v_and_b32 v20, 3, v31")
        A("v_lshl_add_u32 v0, v20, 1, v0")
        A("s_lshl_b32 s33, s39, 12")
        A("s_add_u32 s33, s33, s32")
        A(f"s_add_u32 s33, s33, {L_KV}")
        A("s_lshl_b32 s34, s39, 11")
        A(f"s_add_u32 s34, s34, {L_Q - 8*2048}")
        A("s_cmp_ge_u32 s39, 8")
        A("s_cselect_b32 s38, 1, 0")
        A("s_movk_i32 s32, 8192")
        A(f"s_cmp_eq_u32 s{sW4}, 0")
        A("s_cselect_b32 s33, s34, s33")
        A(f"s_cselect_b32 s32, s32, {KVH}")
        A("s_cselect_b32 s38, s38, 1")
        A(f"s_cselect_b32 s37, {fl(QSCALE)}, 1.0")
        A(f"v_bfe_u32 v20, v{LN}, 3, 1")
        A("v_mul_u32_u24 v20, s32, v20")
        A("v_add3_u32 v0, v0, v20, s33")

    pat = lambda f: (lambda: skip_if(f"s_cmp_eq_u32 s{sPATCH}, 0", f, "pat"))
    gu, dn, rd = cut(gateup), cut(plain(down)), pieces(plain(red), [opt("rdf", 0.5)])
    jobs, first = {}, {}
    for k, j in (("stL", lambda: tagged("stat", stat_loads(S, STAT))), ("tabL", lambda: tagged("tab", table_loads(TB))),
                 ("redL", lambda: isred(lambda: tagged("red", red_loads))), ("x2L", lambda: tagged("x2", x2loads))):
        first.setdefault(SC[k], []).append(j)
    for it in range(SC["st1"] + 1):
        first.setdefault(it, []).append(lambda it=it: gate(it + 3))
    for k, j in (("st1", plain(st1)), ("st2", st2), ("st3", st3), ("arg", arg), ("gu1", gu[0]), ("gu2", gu[1]), ("dn1", dn[0]), ("dn2", dn[1]),
                 ("red1", lambda: isred(rd[0], 4)), ("red2", lambda: (isred(rd[1], 4), redst())), ("wch", lambda: wch_reads(SZ)), ("pad", pat(paddr)), ("z", z)):
        jobs.setdefault(SC[k], []).append(j)
    jobs.setdefault(13, []).append(lambda: code_pf(3, 154))
    after = {}
    if ADP:
        assert not ZE and not DLATE and EARLY and SC["wch"] < ADP[0] and SC["st3"] < ADP[0] and ADP[0] >= 2
        first[SC["x2L"]].pop()
        jobs[SC["z"]].remove(z)
        for k in range(13, min(15, ADP[1] + ZO) + 1):
            jobs.setdefault(k, []).insert(0, lambda k=k: ztry(k))
        after[ADP[0] - 2] = lambda: tagged("tab", table_loads(TB2))
    if DLATE:
        jobs.setdefault(SC["prm"], []).append(lambda: (W("ffw"), ffn_perm((2,))))
        assert SC["prm"] < SC["dn1"] and SC["prm"] > max(FFS) - 43
    assert SC["st3"] <= 14 and SC["arg"] <= 14 and SC["gu2"] < SC["dn1"] and SC["wch"] < SC["z"] and SC["st1"] < SC["tabL"]
    assert SC["st3"] < SC["redL"] and SC["dn2"] < SC["redL"] and SC["dn2"] <= SC["pad"] and SC["arg"] < SC["x2L"] and SC["dn2"] <= 13
    q_loop(1, jobs, {k - 43: g for k, g in LATE.items() if k >= 43}, {}, opt("lead", {}), first=first, dlead=opt("dlead", 2),
           adp=ADP and (ADP[0], 13, adaptive), after=after,
           alt=list(range(SC["redL"], SC["red2"] + (3 if opt("ralt", 2) == 2 else 1))) if opt("ralt", 2) and not ADP else ())
    A("s_branch l_att")
    A.lines.append("@place")
    l_patch()
    A.label("l_tail")
    A.lines.append("@reset")
    srd_load(TS, 64, 4 * MB)
    A("v_mov_b32 v20, 0")

    def epoch():
        A(f"s_mov_b32 s34, {hex(EPOCH)}")
        flag_store("s34")
    A(f"s_or_b32 s34, s{sCU}, s{sW4}")
    skip_if("s_cmp_lg_u32 s34, 0", epoch)
    if SPEC:
        return l_tail_spec(TB)

    def targ():
        if TL == 2:
            lspin(lambda: A(f"ds_read_b32 v16, v20 offset:{T_C1}"),
                  lambda: (A("v_readfirstlane_b32 s35, v16"), A(f"s_cmp_eq_u32 s35, s{sNON}")), opt("tnap", 0))
        argmax_lane(TB)
        A("v_mov_b32 v20, 0")
        A("s_lshl_b64 exec, 1, s32")
        A(f"ds_write_b128 v20, {v(TB,4)} offset:{T_IDX}")
        A("s_mov_b64 exec, -1")
        A("s_waitcnt lgkmcnt(0)")
    if TL == 1:
        A("s_barrier")
    if TL:
        skip_if(f"s_cmp_lg_u32 s{sW4}, 1", targ)
    A("s_barrier")
    A(f"ds_read_b128 {v(TB,4)}, v20 offset:{T_IDX}")
    A("s_waitcnt lgkmcnt(0)")
    readsel(TB, "0")
    mark("t_arg")
    poll(xloads, lambda: sent_check(range(XG, XG + 4), 30))
    mark("t_x")
    if opt("etr", 1) >= 4:
        A("s_barrier")
    A(f"s_cmp_ge_u32 s{sF}, 224")
    A("s_cbranch_scc1 l_tred")
    ffn_gateup()
    A("s_waitcnt lgkmcnt(0)")
    A("s_barrier")
    ffn_down()
    mark("f_down")
    A("s_branch k_end")
    A.label("l_tred")
    A("s_cmp_lt_i32 s89, 0")
    A("s_cbranch_scc1 k_end")
    red_pre()
    A(f"s_lshl_b32 s34, s{sIDX}, 11")
    A("s_lshl_b32 s33, s89, 4")
    A("s_add_u32 s34, s34, s33")
    RPP = opt("rpp", 0)
    if RPP:
        sets = [RP, 156, 188, 220][:RPP]
        A(f"s_mov_b32 s{sCNT}, s{sLIM}")
        for k, b in enumerate(sets):
            if k:
                A(f"s_sleep {opt('rps', 4)}")
            red_loads(RP=b)
        A.label("rp_top")
        for k, b in enumerate(sets):
            A(f"s_waitcnt vmcnt({NR*(RPP-1)})")
            red_chk(b)
            A(f"s_cbranch_vccz rp_ok{k}")
            red_loads(RP=b)
        A(f"s_sub_u32 s{sCNT}, s{sCNT}, 1")
        A(f"s_cmp_lg_u32 s{sCNT}, 0")
        A("s_cbranch_scc1 rp_top")
        A("s_waitcnt vmcnt(0)")
        for k, b in list(enumerate(sets))[::-1]:
            A.label(f"rp_ok{k}")
            mark("t_py")
            red_sum(b)
            if k:
                A("s_branch rp_st")
        A.label("rp_st")
    else:
        if opt("rsl", 0):
            A(f"s_sleep {opt('rsl', 0)}")
        if opt("rq1", 2):
            A(f"s_mov_b64 exec, {hex((1 << opt('rq1', 2)) - 1)}")
            if opt("rqn", 0):
                ld = cap(red_loads)[:4]
                A.lines += ld[:3]
                for k in range(opt("rqn", 0)):
                    A.lines += ld[3:]
                    A("s_waitcnt vmcnt(0)")
                    sent_check([RP], 30)
                    A("s_cbranch_vccz rq_ok")
                A.label("rq_ok")
            else:
                poll(lambda: A.lines.extend(cap(red_loads)[:4]), lambda: sent_check([RP], 30))
            A("s_mov_b64 exec, -1")
        poll(red_loads, red_chk)
        mark("t_py")
        red_sum()
    A(f"s_mov_b64 exec, {(1 << RQ) - 1}")
    A(f"buffer_store_dwordx4 {v(RS,4)}, v{L16}, s[{TS}:{TS+3}], s34 offen {'' if opt('lpl', 1) else 'sc1'}")
    A("s_mov_b64 exec, -1")


def l_tail_spec(TB):
    FN = 8
    fread = lambda: A(f"ds_read_b128 {v(FN,4)}, v20 offset:{T_FN}")

    def fchk():
        A(f"v_readfirstlane_b32 s35, v{FN+1}")
        A("s_cmp_lt_i32 s35, 0")
        A(f"s_cselect_b32 s34, s{sIDX}, s35")
        A(f"s_cmp_lg_u32 s34, s{sIDX}")
        A("s_cbranch_scc1 l_second")
        A("s_cmp_ge_i32 s35, 0")
    A(f"s_cmp_ge_i32 s89, 0")
    A("s_cselect_b32 s34, 0, s29")
    A(f"s_cmp_ge_u32 s34, 224")
    A("s_cbranch_scc1 k_end")
    A(f"s_lshr_b32 s34, s{sIDX}, 7")
    A(f"s_sub_u32 s34, s{sRB}, s34")
    A(f"s_lshl_b32 s35, s{sW4}, 4")
    A("s_or_b32 s34, s34, s35")
    skip_if(f"s_cmp_ge_u32 s34, {SPEC}", lambda: arg_first(0, 20))
    A(f"s_setprio {opt('lpr', 1)}")
    A("s_mov_b32 s38, 0")
    A(f"s_mov_b32 s39, {LSTR}")
    lspin(lambda: (A(f"ds_read_b128 {v(TB,4)}, v20 offset:{T_C1}"), fread()),
          lambda: (A(f"v_readfirstlane_b32 s35, v{TB+1}"), A("s_cmp_ge_i32 s35, 0")), opt("lnap", 1))
    readsel(TB, "0")
    mark("t_arg")
    fchk()
    A.label("l_round")
    poll(xloads, lambda: sent_check(range(XG, XG + 4), 30))
    mark("t_x")
    fread()
    A(f"s_cmp_ge_u32 s{sF}, 224")
    A("s_cbranch_scc1 l_tred")
    g = cut(lambda: ffn_gateup("s38"))
    g[0]()
    A("s_waitcnt lgkmcnt(0)")
    fchk()
    g[1]()

    def chk():
        fchk()
        sent_check(range(32, 40), 31)
        A("s_cmp_eq_u64 vcc, 0")
    ffn_down("s38", "s39", lambda reads: lspin(lambda: (reads(), fread()), chk))
    mark("f_down")
    lspin(fread, fchk, opt("lnap", 1))
    A("s_branch k_end")
    A.label("l_second")
    readsel(FN, "0")
    A("s_movk_i32 s38, 512")
    A(f"s_mov_b32 s39, {LSTR + 448*KB}")
    A("s_branch l_round")
    A.label("l_tred")
    red_pre()
    A(f"s_lshl_b32 s36, s{sIDX}, 11")
    A("s_lshl_b32 s33, s89, 4")
    A("s_add_u32 s36, s36, s33")
    poll(lambda: (red_loads("s39"), fread()), lambda: (A("s_waitcnt lgkmcnt(0)"), fchk(), red_chk()))
    mark("t_py")
    red_sum()
    lspin(fread, fchk)
    A(f"s_mov_b64 exec, {(1 << RQ) - 1}")
    A(f"buffer_store_dwordx4 {v(RS,4)}, v{L16}, s[{TS}:{TS+3}], s36 offen sc1")
    A("s_mov_b64 exec, -1")


def main():
    out = [x for x in ARGS if x.endswith(".s")]
    out = out[0] if out else os.path.join(os.path.dirname(os.path.abspath(__file__)), NAME + ".s")
    K = NAME + "_kernel"
    A(f".globl {K}")
    A(".p2align 8")
    A(f".type {K},@function")
    A.label(K)
    cap(ffn_perm)
    prologue()
    if opt("ub", ""):
        return ubench(out, K)
    e_init()
    e_qphase()
    e_att()
    e_wo()
    l_layer0()
    l_att()
    l_layer1()
    finish(out, K, lambda: (att_exact(0), att_exact(1)))


def ubench(out, K):
    def ubmid():
        mark("a_end")
        if opt("ubb", 1):
            A("s_barrier")
        mark("b_go")
    for team in range(2):
        if team:
            A.label("l_start")
        ptr_fin()
        masks()
        A(f"s_mov_b32 s{sLOC}, 1")
        A(f"s_mov_b32 s{sPATCH}, 0")
        for i in range(4):
            A(f"v_mov_b32 v{i}, 0x3c003c00")
        A(f"s_mul_i32 s30, s{sW}, 20480")
        A(f"v_add_u32 v4, s30, v{L16}")
        for i in range(20):
            A(f"ds_write_b128 v4, v[0:3] offset:{i*1024}")
        A(f"s_setprio {opt('ubp', [1, 0])[team]}")
        prof_next()
        for rep in range(2):
            att_setup(team)
            A("s_waitcnt vmcnt(0) lgkmcnt(0)")
            A("s_barrier")
            if opt("ubo", 3) >> team & 1:
                if team:
                    for i in range(opt("ubd", 0)):
                        A("s_sleep 4")
                mark("att_go")
                att_qread()
                attention(team, lambda: None, ubmid, lambda k: None)
        A("s_branch k_end")
    A.label("att_exact0")
    A.label("att_exact1")
    finish(out, K)


def finish(out, K, cold=lambda: None):
    A.label("k_end")
    if PAD:
        skip_if(f"s_cmp_lt_u32 s{sW}, 4", lambda: padat("end"))
    if PROF:
        A("s_mov_b64 exec, -1")
        A("s_waitcnt vmcnt(0)")
        mark("end")
        A(f"s_lshl_b32 s30, s{sCU}, 3")
        A(f"s_add_u32 s30, s30, s{sW}")
        A("s_lshl_b32 s30, s30, 9")
        A(f"s_add_u32 s30, s30, {hex(PROFOFF)}")
        A(f"v_lshlrev_b32 v0, 2, v{LN}")
        A(f"buffer_store_dword v{PRF2}, v0, {WSR}, s30 offen sc1")
        A(f"buffer_store_dword v{PRF}, v0, {WSR}, s30 offen offset:256 sc1")
    A.label("k_exit")
    A("s_endpgm")
    cold()
    assert len(MARKS) <= (64 if "-profq" in ARGS else 32), len(MARKS)
    A.lines = resolve(A.lines)
    A.hazard_pass(verbose="-v" in ARGS)
    if opt("aln", 1):
        A.lines = align_pass(A.lines, opt("alw", 100), anti=opt("aln", 1) < 0)
    txt = "; @launch grid=(256,1,1) block=(512,1,1) lds=163840\n"
    txt += "; marks: " + " ".join(MARKS) + "\n" if PROF else ""
    txt += '.amdgcn_target "amdgcn-amd-amdhsa--gfx950"\n.text\n' + A.text() + '.section .rodata,"a"\n.p2align 6\n'
    txt += f""".amdhsa_kernel {K}
  .amdhsa_next_free_vgpr 256
  .amdhsa_next_free_sgpr 102
  .amdhsa_accum_offset 256
  .amdhsa_group_segment_fixed_size 0
  .amdhsa_kernarg_size 88
  .amdhsa_user_sgpr_count 2
  .amdhsa_user_sgpr_kernarg_segment_ptr 1
  .amdhsa_system_sgpr_workgroup_id_x 1
.end_amdhsa_kernel
"""
    open(out, "w").write(txt)


main()
```
